```python
import torch

def _softmax(x, axis=-1):
    return torch.softmax(x, dim=axis)
def _gelu(x):
    return torch.nn.functional.gelu(x, approximate="tanh")
def _silu(x):
    return torch.nn.functional.silu(x)
def _sigmoid(x):
    return torch.sigmoid(x)
def _layernorm(x, axis=-1, eps=1e-5):
    m = x.mean(dim=axis, keepdim=True)
    v = x.var(dim=axis, keepdim=True, unbiased=False)
    return (x - m) / torch.sqrt(v + eps)
def _scatter_add(tgt, idx, src, axis=0):
    return tgt.clone().index_add_(axis, idx, src)
def _segment_sum(src, seg, n):
    out = torch.zeros((n,) + src.shape[1:], dtype=src.dtype)
    return out.index_add_(0, seg, src)
def _pad(x, pw):
    flat = tuple(v for pair in reversed(pw) for v in pair)
    return torch.nn.functional.pad(x, flat)

kernel_name = 'parallel_sum__linear_attn_block__mixer_channel_mlp__prompt'

def setup_inputs():

    _w = (lambda a: (lambda t: t.to(torch.bfloat16) if t.is_floating_point() else t)(torch.as_tensor(a)))
    def _A_setup():
        B, S, D = 1, 2048, 448
        return {
            "x": _w((lambda *s: torch.randn(*s, dtype=torch.bfloat16) * 0.05)(B, S, D)),
            "wqkv": _w((lambda *s: torch.randn(*s, dtype=torch.bfloat16) * 0.1)(D, 3 * D)),
            "wo": _w((lambda *s: torch.randn(*s, dtype=torch.bfloat16) * 0.05)(D, D)),
        }
    _A_in = _A_setup()

    def _B_setup():
        B, S, D, F = 1, 2048, 448, 1792
        return {
            "x": _w((lambda *s: torch.randn(*s, dtype=torch.bfloat16) * 0.05)(B, S, D)),
            "w1": _w((lambda *s: torch.randn(*s, dtype=torch.bfloat16) * 1.6)(D, F) * (D ** -0.5)),
            "b1": _w((lambda *s: torch.randn(*s, dtype=torch.bfloat16) * 0.4)(F)),
            "w2": _w((lambda *s: torch.randn(*s, dtype=torch.bfloat16) * 0.05)(F, D) * (F ** -0.5)),
            "b2": _w((lambda *s: torch.randn(*s, dtype=torch.bfloat16) * 0.05)(D)),
        }
    _B_in = _B_setup()

    return {
        "A_x": _A_in["x"],
        "A_wqkv": _A_in["wqkv"],
        "A_wo": _A_in["wo"],
        "B_x": _B_in["x"],
        "B_w1": _B_in["w1"],
        "B_b1": _B_in["b1"],
        "B_w2": _B_in["w2"],
        "B_b2": _B_in["b2"],
    }

def reference(A_x, A_wqkv, A_wo, B_x, B_w1, B_b1, B_w2, B_b2):
    def _A_ref(x, wqkv, wo):
        B, S, D = x.shape
        H = 16; Dh = D // H
        qkv = (lambda x, *d: x.permute(*d))((x @ wqkv).reshape(B, S, 3, H, Dh), 2, 0, 3, 1, 4)
        q, k, v = qkv[0], qkv[1], qkv[2]
        phi = lambda t: torch.where(t > 0, t + 1, torch.exp(t)) + 1e-6
        pq, pk = phi(q), phi(k)
        kv = torch.einsum("bhsd,bhse->bhde", pk, v)
        z = torch.einsum("bhsd->bhd", pk)
        num = torch.einsum("bhqd,bhde->bhqe", pq, kv)
        den = torch.einsum("bhqd,bhd->bhq", pq, z)[..., None] + 1e-6
        o = num / den
        return (lambda x, *d: x.permute(*d))(o, 0, 2, 1, 3).reshape(B, S, D) @ wo

    def _B_ref(x, w1, b1, w2, b2):
        y = _layernorm(x, axis=-1)
        h = _gelu(torch.einsum("bsd,df->bsf", y, w1) + b1)
        return torch.einsum("bsf,fd->bsd", h, w2) + b2

    x = A_x
    xn = _layernorm(x, axis=-1)
    return x + _A_ref(xn, A_wqkv, A_wo) + _B_ref(xn, B_w1, B_b1, B_w2, B_b2)
```

```python
import re

REG_RE = re.compile(r'\b([vsa])(?:\[(\d+):(\d+)\]|(\d+))')

def regs_of(op):
    out = []
    for m in REG_RE.finditer(op):
        k = m.group(1)
        if m.group(2) is not None:
            out += [(k, i) for i in range(int(m.group(2)), int(m.group(3)) + 1)]
        else:
            out.append((k, int(m.group(4))))
    if re.search(r'\bvcc(_lo|_hi)?\b', op): out += [('s', 106), ('s', 107)]
    if re.search(r'\bexec(_lo|_hi)?\b', op): out += [('s', 126), ('s', 127)]
    if re.search(r'\bm0\b', op): out.append(('s', 124))
    return out

TRANS = ('v_exp_', 'v_log_', 'v_rcp_', 'v_rsq_', 'v_sqrt_', 'v_sin_', 'v_cos_')

class Ins:
    __slots__ = ('text', 'mn', 'cls', 'w', 'r', 'passes', 'ops', 'srcc', 'ab', 'data', 'states')
    def __init__(self, text):
        self.text = text
        t = text.split(';')[0].strip()
        parts = t.split(None, 1)
        mn = parts[0]; self.mn = mn
        rest = parts[1] if len(parts) > 1 else ''
        ops = []; depth = 0; cur = ''
        for ch in rest:
            if ch in '[(': depth += 1
            if ch in '])': depth -= 1
            if ch == ',' and depth == 0: ops.append(cur.strip()); cur = ''
            else: cur += ch
        if cur.strip(): ops.append(cur.strip())
        self.ops = ops
        self.w = []; self.r = []; self.passes = 0; self.srcc = []; self.ab = []; self.data = []
        self.states = 1
        R = lambda i: regs_of(ops[i].split(' ')[0] if False else ops[i]) if i < len(ops) else []
        allr = lambda s: [x for o in ops[s:] for x in regs_of(o)]
        if mn.startswith('v_mfma'):
            self.cls = 'mfma'
            self.passes = 8 if '32x32x16' in mn else (4 if '16x16x32' in mn else 2)
            self.w = R(0); self.ab = R(1) + R(2); self.srcc = R(3); self.r = self.ab + self.srcc
        elif mn.startswith('v_cmp'):
            self.cls = 'valu'; self.w = R(0); self.r = allr(1)
            if mn.startswith('v_cmpx'): self.w += [('s', 126), ('s', 127)]
        elif mn.startswith('v_permlane'):
            self.cls = 'valu'; self.w = R(0) + R(1); self.r = R(0) + R(1)
        elif mn.startswith('v_readfirstlane') or mn.startswith('v_readlane'):
            self.cls = 'valu'; self.w = R(0); self.r = allr(1)
        elif mn.startswith(('v_add_co', 'v_sub_co', 'v_addc_co', 'v_subb_co')):
            self.cls = 'valu'; self.w = R(0) + R(1); self.r = allr(2)
        elif mn.startswith('v_'):
            self.cls = 'valu'; self.w = R(0); self.r = allr(1)
            if mn.startswith(('v_fmac', 'v_dot2c', 'v_writelane')): self.r += R(0)
            if mn.startswith('v_cndmask') and len(ops) == 3: self.r += [('s', 106), ('s', 107)]
        elif mn.startswith('ds_'):
            self.cls = 'ds'
            if mn.startswith(('ds_read', 'ds_bpermute', 'ds_permute', 'ds_swizzle')) or '_rtn' in mn:
                self.w = R(0); self.r = allr(1)
            else:
                self.r = allr(0)
        elif mn.startswith(('buffer_', 'global_')):
            self.cls = 'vmem'
            islds = bool(re.search(r'\blds\b', rest)) or '_lds_' in mn
            if mn.startswith(('buffer_wbl2', 'buffer_inv')):
                pass
            elif islds:
                self.r = allr(0) + [('s', 124)]; self.cls = 'vmem_lds'
            elif 'load' in mn:
                self.w = R(0); self.r = allr(1)
            elif 'atomic' in mn and re.search(r'\bsc0\b', rest):
                self.w = R(0); self.r = allr(0)
            else:
                self.r = allr(0)
                self.data = R(0) if mn.startswith('buffer_') else R(1)
                if not mn.endswith(('x3', 'x4')): self.data = []
        elif mn.startswith(('s_load', 's_buffer_load', 's_memtime', 's_memrealtime')):
            self.cls = 'smem'; self.w = R(0); self.r = allr(1)
        elif mn == 's_nop':
            self.cls = 'nop'; self.states = int(ops[0], 0) + 1
        elif mn.startswith(('s_cmp', 's_cbranch', 's_branch', 's_waitcnt', 's_barrier', 's_endpgm', 's_setprio', 's_sleep', 's_bitcmp')):
            self.cls = 'sctl'; self.r = allr(0)
        elif mn.startswith('s_'):
            self.cls = 'salu'; self.w = R(0); self.r = allr(1)
            if 'saveexec' in mn: self.w += [('s', 126), ('s', 127)]
        else:
            raise ValueError('unknown instr ' + text)

def need_states(p, c):
    n = 0
    pw = set(p.w)
    vw = {x for x in pw if x[0] in 'va'}
    sw = {x for x in pw if x[0] == 's'}
    cr = set(c.r); cw = set(c.w)
    if p.cls == 'valu':
        if c.cls == 'mfma' and vw & cr: n = max(n, 2)
        if c.cls == 'mfma' and ('s', 126) in sw: n = max(n, 4)
        if c.cls in ('vmem', 'vmem_lds') and sw & cr: n = max(n, 5)
        if c.cls == 'valu':
            if sw & cr:
                n = max(n, 4 if c.mn.startswith(('v_readlane', 'v_writelane')) else 2)
            if ('s', 126) in sw and c.mn.startswith(('v_readlane', 'v_readfirstlane', 'v_writelane', 'v_permlane')): n = max(n, 4)
            if ('s', 126) in sw and 'dpp' in c.text: n = max(n, 5)
            if vw & cr:
                if c.mn.startswith(('v_readlane', 'v_readfirstlane')): n = max(n, 1)
                if c.mn.startswith('v_permlane') or 'dpp' in c.text: n = max(n, 2)
                if p.mn.startswith(TRANS) and not c.mn.startswith(TRANS): n = max(n, 1)
                if 'sdwa' in p.text or ('op_sel' in p.text and not p.mn.startswith('v_pk_')): n = max(n, 1)
            if p.mn.startswith('v_dot') and (vw & (cr | cw)):
                same = (p.mn == c.mn)
                if same and not (vw & (set(regs_of(c.ops[1])) | set(regs_of(c.ops[2])))): pass
                else: n = max(n, 3)
        if p.mn.startswith('v_dot') and c.cls != 'valu' and vw & (cr | cw): n = max(n, 3)
        if p.mn.startswith(TRANS) and c.cls in ('ds', 'vmem', 'vmem_lds', 'mfma') and vw & cr: n = max(n, 2)
        if c.cls in ('salu', 'sctl', 'smem') and sw & cr: n = max(n, 2)
    if p.cls == 'salu':
        if ('s', 124) in sw and c.cls == 'vmem_lds': n = max(n, 1)
    if p.cls == 'mfma':
        tab = {2: (5, 4, 1), 4: (8, 6, 3), 8: (12, 10, 7), 16: (20, 18, 15)}[p.passes]
        if c.cls == 'mfma':
            if pw & set(c.ab): n = max(n, tab[0])
            if pw & set(c.srcc):
                if not (c.srcc == p.w and c.passes == p.passes): n = max(n, tab[1])
                elif p.passes == 2: n = max(n, 2)
            elif pw & cw: n = max(n, tab[0])
        elif c.cls in ('valu', 'ds', 'vmem', 'vmem_lds'):
            if pw & (cr | cw): n = max(n, tab[0])
            if set(p.srcc) & cw: n = max(n, tab[2])
    if p.data and cw & set(p.data): n = max(n, 2)
    return n

class K:
    def __init__(self):
        self.items = []
        self.vm = []
        self.lg = []
        self.nt = 0
        self.uid = 0
    def raw(self, s): self.items.append(s)
    def label(self, name): self.items.append(name + ':')
    def newlabel(self, base='L'):
        self.uid += 1; return f'{base}_{self.uid}'
    def c(self, s): self.items.append('    ; ' + s)
    def e(self, text):
        tok = None
        for line in text.strip().split('\n'):
            line = line.strip()
            if not line: continue
            ins = Ins(line)
            self.items.append(ins)
            if ins.cls in ('vmem', 'vmem_lds'):
                self.nt += 1; tok = self.nt; self.vm.append(tok)
            elif ins.cls == 'ds':
                self.nt += 1; tok = self.nt; self.lg.append(tok)
            elif ins.mn == 's_waitcnt':
                m = re.search(r'vmcnt\((\d+)\)', line)
                if m: n = int(m.group(1)); self.vm = self.vm[len(self.vm) - n:] if n < len(self.vm) else self.vm; self.vm = self.vm if n else []
                m = re.search(r'lgkmcnt\((\d+)\)', line)
                if m: n = int(m.group(1)); self.lg = self.lg[len(self.lg) - n:] if n < len(self.lg) else self.lg; self.lg = self.lg if n else []
        return tok
    def wait(self, vm=None, lg=None):
        parts = []
        if vm is not None and vm in self.vm:
            n = len(self.vm) - 1 - self.vm.index(vm)
            parts.append(f'vmcnt({min(n, 63)})')
        if lg is not None and lg in self.lg:
            n = len(self.lg) - 1 - self.lg.index(lg)
            parts.append(f'lgkmcnt({min(n, 15)})')
        if parts: self.e('s_waitcnt ' + ' '.join(parts))
    def state(self): return (list(self.vm), list(self.lg))
    def set_state(self, st): self.vm, self.lg = list(st[0]), list(st[1])
    def render(self):
        out = []; hist = []
        nnop = 0
        for it in self.items:
            if isinstance(it, str):
                out.append(it); continue
            need = 0; dist = 0
            for p in reversed(hist):
                req = need_states(p, it)
                if req > dist: need = max(need, req - dist)
                dist += p.states
                if dist >= 20: break
            while need > 0:
                n = min(need, 16)
                nop = Ins(f's_nop {n-1}'); hist.append(nop); out.append(f'    s_nop {n-1}'); need -= n; nnop += 1
            out.append('    ' + it.text)
            hist.append(it)
            if len(hist) > 40: hist = hist[-24:]
        return '\n'.join(out) + '\n', nnop

def vr(a, n=1): return f'v{a}' if n == 1 else f'v[{a}:{a+n-1}]'
def sr(a, n=1): return f's{a}' if n == 1 else f's[{a}:{a+n-1}]'

def spread(base, fill):
    out = []; k = 0; n = len(base)
    for i, b in enumerate(base):
        out.append(b)
        m = (len(fill) * (i + 1)) // n
        out += fill[k:m]; k = m
    return out
```

```python
import sys, math, struct
sys.path.insert(0, 'gen')
from dsl import *

NAME = "parallel_sum__linear_attn_block__mixer_channel_mlp__prompt"
FUSED = '--fused' in sys.argv
STAMPS = '--stamps' in sys.argv

def f32(x): return '0x%08x' % struct.unpack('<I', struct.pack('<f', x))[0]

HQ = 0
KVP = 0x900000
MB = 0xA00000
ZT = 0xA80000
FLH = 0xA90000
FLKV = FLH + 64 * 128
FLM = FLKV + 16 * 128
EPOCH = FLM + 128
WS_USED = 0xAA0000
STAMP_OFF = 0x8000000
SLOT = 49152
SCR = 3 * SLOT
ST = SCR
CS = SCR + 8192
RS = SCR + 12288
LDS_BYTES = 163840
EPS = 1e-5
LOG2E = math.log2(math.e)
GC0 = -2.0 * math.sqrt(2.0 / math.pi) * LOG2E
GC1 = 0.044715

sW = 3
pX, pWQKV, pWO, pBX, pW1, pB1, pW2, pB2, pOUT, pDBG, pWS = 4, 6, 8, 10, 12, 14, 16, 18, 20, 22, 24
sXCD, sSUB, sGSEL, sRB, sCC = 26, 27, 28, 29, 30
sT0, sT1, sT2, sT3, sT4 = 31, 32, 33, 34, 35
rX, rW0, rW1, rW2, rWS, rW2G, rMISC = 36, 40, 44, 48, 52, 56, 60
sSOX, sSO0, sSO1, sSO2 = 64, 65, 66, 67
sPSTEP0, sPSTEP1, sPSTEP2 = 68, 69, 70
sM0X, sM0W = 71, 72
sLO, sHI = 73, 74
sMASK = 76
sHALF = 78
sTAB = 80
sTAG = 94
sCT, sTB = 95, 96
sTILE0 = 97
sM0P = 98
sSTAMP = 100

k = K()
e = k.e

def srd(r, ptr, nbytes):
    e(f"s_mov_b32 s{r}, s{ptr}\ns_and_b32 s{r+1}, s{ptr+1}, 0xffff\ns_mov_b32 s{r+2}, {nbytes}\ns_mov_b32 s{r+3}, 0x20000")

nstamp = [0]
def stamp(idx):
    if not STAMPS: return
    L = k.newlabel('Lst')
    st = k.state()
    e(f"s_cmp_lg_u32 s{sW}, 0\ns_cbranch_scc1 {L}")
    e(f"s_memrealtime s[{sSTAMP}:{sSTAMP+1}]\ns_waitcnt lgkmcnt(0)")
    e(f"v_mov_b32 v254, s{sSTAMP}\nv_mov_b32 v255, s{sSTAMP+1}")
    e(f"s_lshl_b32 s{sSTAMP}, s2, 7\ns_add_u32 s{sSTAMP}, s{sSTAMP}, {STAMP_OFF + 8*idx}\nv_mov_b32 v253, s{sSTAMP}")
    e(f"global_store_dwordx2 v253, v[254:255], s[{pWS}:{pWS+1}]")
    k.label(L)
    k.set_state((st[0], []))
    e("s_waitcnt lgkmcnt(0)")

def prologue(nwg, endlabel):
    e(f"s_cmp_ge_u32 s2, {nwg}\ns_cbranch_scc1 {endlabel}")
    e(f"s_load_dwordx16 s[4:19], s[0:1], 0\ns_load_dwordx4 s[20:23], s[0:1], 64\ns_load_dwordx2 s[24:25], s[0:1], 80")
    e(f"v_lshrrev_b32 v1, 6, v0\nv_and_b32 v0, 63, v0\nv_readfirstlane_b32 s{sW}, v1")
    e(f"s_and_b32 s{sXCD}, s2, 7\ns_lshr_b32 s{sT0}, s2, 3\ns_and_b32 s{sSUB}, s{sT0}, 3\ns_lshr_b32 s{sGSEL}, s{sT0}, 2")
    e(f"s_lshr_b32 s{sT0}, s{sXCD}, 1\ns_lshl_b32 s{sT0}, s{sT0}, 2\ns_add_u32 s{sRB}, s{sT0}, s{sSUB}")
    e(f"s_and_b32 s{sLO}, s{sW}, 3\ns_lshr_b32 s{sHI}, s{sW}, 2")
    e(f"s_mov_b32 s{sHALF}, 0\ns_mov_b32 s{sHALF+1}, -1")
    e(f"s_mov_b32 s{sCT}, s{sGSEL}\ns_lshl_b32 s{sTB}, s{sXCD}, 2\ns_add_u32 s{sTB}, s{sTB}, s{sSUB}")

def tile_of(p):
    if p < 29: return 2 * p - p % 3
    q = p - 29
    return 2 * q - q % 3 + 3
vPD0, vPD1 = 2, 3

def p2_setup():
    e(f"s_lshl_b32 s{sT0}, s{sLO}, 3")
    for j in range(14):
        c = sum(tile_of(4 * j + q) << (8 * q) for q in range(4))
        e(f"s_lshr_b32 s{sTAB+j}, {c:#x}, s{sT0}\ns_and_b32 s{sTAB+j}, s{sTAB+j}, 0xff")
    srd(rW2G, pW2, 1792 * 896)
    e(f"""v_lshrrev_b32 v4, 3, v0
v_lshl_add_u32 v4, s{sHI}, 4, v4
v_mul_u32_u24 v4, 896, v4
v_bfe_u32 v5, v0, 4, 1
v_lshlrev_b32 v5, 2, v5
v_and_b32 v6, 7, v0
v_xor_b32 v5, v5, v6
v_lshl_add_u32 v4, v5, 4, v4
s_lshl_b32 s{sT0}, s{sCT}, 7
v_add_u32 v{vPD0}, s{sT0}, v4
v_add_u32 v{vPD1}, 7168, v{vPD0}
s_mul_i32 s{sM0P}, s{sLO}, 12288
s_lshl_b32 s{sT0}, s{sHI}, 11
s_add_u32 s{sM0P}, s{sM0P}, s{sT0}""")

def p2_dma(pc):
    out = []
    slot = ((pc + 1) % 3) * SLOT
    for t in range(3):
        j = 3 * pc + t
        if j >= 14: break
        for jj in range(2):
            g = ""
            if jj == 0: g += f"s_mul_i32 s{sT4}, s{sTAB+j}, 28672\n"
            g += f"s_add_u32 m0, s{sM0P}, {slot + t*4096 + jj*1024}\n"
            g += f"buffer_load_dwordx4 v{vPD0+jj}, s[{rW2G}:{rW2G+3}], s{sT4} offen lds"
            out.append(g)
    return out

vDX0, vDX1, vDW0, vDW1, vDW2 = 8, 9, 10, 11, 12
vAX = 13
vAW = 17
vBIAS = 25
vSEL = 28
vXB = 32
vWB_M = 48
vWB_KV = 56
vACC = 72
vCSA = 136
vS = 148
vU = 152
vE = 156

def chunk_advance():
    return (f"s_add_u32 s{sCC}, s{sCC}, 1\ns_cmp_eq_u32 s{sCC}, 7\ns_cselect_b32 s{sCC}, 0, s{sCC}")

def p1_dma(kind, i):
    slot = (i % 3) * SLOT
    out = []
    g = f"s_lshl_b32 s{sSOX}, s{sCC}, 7\n"
    out.append(g + f"s_add_u32 m0, s{sM0X}, {slot}\nbuffer_load_dwordx4 v{vDX0}, s[{rX}:{rX+3}], s{sSOX} offen lds")
    out.append(f"s_add_u32 m0, s{sM0X}, {slot + 1024}\nbuffer_load_dwordx4 v{vDX1}, s[{rX}:{rX+3}], s{sSOX} offen lds")
    if kind == 'M':
        for lc in range(3):
            out.append(f"s_mul_i32 s{sSO0+lc}, s{sCC}, s{sPSTEP0+lc}\ns_add_u32 m0, s{sM0W}, {slot + lc*8192}\n"
                       f"buffer_load_dwordx4 v{vDW0+lc}, s[{rW0+4*lc}:{rW0+4*lc+3}], s{sSO0+lc} offen lds")
    else:
        for kv in range(2):
            for jj in range(2):
                g = ""
                if kv == 0 and jj == 0: g += f"s_mul_i32 s{sSO0}, s{sCC}, {64*2688}\ns_add_u32 s{sSO1}, s{sSO0}, 896\n"
                g += f"s_add_u32 m0, s{sM0W}, {slot + kv*16384 + jj*1024}\n"
                g += f"buffer_load_dwordx4 v{vDW0+jj}, s[{rW0}:{rW0+3}], s{sSO0+kv} offen lds"
                out.append(g)
    out[-1] += "\n" + chunk_advance()
    return out

def stat_ops(xr, s1, s2, s1b, s2b):
    o = []
    for d in range(4):
        lo, hi = vU + 2 * (d & 1), vU + 2 * (d & 1) + 1
        o += [f"v_lshlrev_b32 v{lo}, 16, v{xr+d}", f"v_and_b32 v{hi}, 0xffff0000, v{xr+d}",
              f"v_add_f32 v{s1}, v{lo}, v{s1}", f"v_add_f32 v{s1b}, v{hi}, v{s1b}",
              f"v_fmac_f32 v{s2}, v{lo}, v{lo}", f"v_fmac_f32 v{s2b}, v{hi}, v{hi}"]
    return o

def p1_common_setup():
    srd(rX, pX, 2048 * 896)
    srd(rWS, pWS, WS_USED)

def p1_pre_setup():
    e(f"s_lshl_b32 s{sT0}, s{sSUB}, 1\ns_add_u32 s{sT0}, s{sT0}, s{sGSEL}\ns_mul_i32 s{sT1}, s{sXCD}, 3\ns_add_u32 s{sT0}, s{sT0}, s{sT1}")
    e(f"s_mul_i32 s{sT1}, s{sT0}, 37\ns_lshr_b32 s{sT1}, s{sT1}, 8\ns_mul_i32 s{sT1}, s{sT1}, 7\ns_sub_u32 s{sCC}, s{sT0}, s{sT1}")
    e(f"""s_lshl_b32 s{sT0}, s{sRB}, 7
s_lshl_b32 s{sT1}, s{sW}, 4
s_add_u32 s{sT0}, s{sT0}, s{sT1}
v_lshrrev_b32 v4, 3, v0
v_add_u32 v4, s{sT0}, v4
v_mul_u32_u24 v4, 896, v4
v_and_b32 v5, 7, v0
v_lshrrev_b32 v6, 4, v0
v_xor_b32 v6, v5, v6
v_lshl_add_u32 v{vDX0}, v6, 4, v4
v_xor_b32 v6, 4, v6
v_lshl_add_u32 v{vDX1}, v6, 4, v4
v_add_u32 v{vDX1}, 7168, v{vDX1}
s_lshl_b32 s{sM0X}, s{sW}, 11""")
    e(f"""v_lshrrev_b32 v4, 2, v0
v_lshrrev_b32 v5, 4, v0
v_xor_b32 v4, v4, v5
v_and_b32 v4, 1, v4
v_and_b32 v5, 3, v0
v_or_b32 v4, v4, v5
v_cmp_eq_u32 vcc, 0, v4
v_mov_b32 v5, 0x3f803f80
v_cndmask_b32 v{vSEL}, 0, v5, vcc
v_cndmask_b32 v{vSEL+1}, 0, v5, vcc
v_cndmask_b32 v{vSEL+2}, 0, v5, vcc
v_cndmask_b32 v{vSEL+3}, 0, v5, vcc""")
    for i in range(4): e(f"v_mov_b32 v{vS+i}, 0")
    e(f"s_lshl_b32 s{sT0}, s{sHI}, 1\ns_add_u32 s{sT0}, s{sT0}, s{sLO}\ns_and_b32 s{sT2}, s{sT0}, 3")

def x_addr_setup(tile_sreg_expr):
    e(f"""v_and_b32 v4, 31, v0
v_lshlrev_b32 v5, 7, v4
v_add_u32 v5, s{sT3}, v5
v_bfe_u32 v4, v0, 1, 3
v_lshrrev_b32 v6, 5, v0
v_xor_b32 v4, v4, v6
v_lshl_add_u32 v5, v4, 4, v5""")
    for j in range(4):
        e(f"s_add_u32 s{sT0}, s{sT2}, {j}\ns_and_b32 s{sT0}, s{sT0}, 3\ns_lshl_b32 s{sT0}, s{sT0}, 5\nv_xor_b32 v{vAX+j}, s{sT0}, v5")

def main_loop(kind, extra_dma):
    M = kind == 'M'
    nt = 3 if M else 4
    def xbuf(j, u=0):
        if M: return vXB + 4 * j
        return vXB + 8 * [0, 1, 2, 1][j] + 4 * u
    def wbuf(n, t):
        return (vWB_M + 12 * (n & 1) + 4 * t) if M else (vWB_KV + 8 * (n & 1) + 4 * t)
    def reads(n):
        i, j = divmod(n, 4)
        delta = None
        if i < 6: delta = SLOT if (i % 3) < 2 else -2 * SLOT
        upd = lambda r: (f"v_add_u32 v{r}, {delta}, v{r}" if delta > 0 else f"v_subrev_u32 v{r}, {-delta}, v{r}")
        o = []
        if M:
            o.append((f"ds_read_b128 {vr(xbuf(j),4)}, v{vAX+j}", 'x0'))
            for t in range(3):
                a = vAW + 2 * j + (t & 1); off = 8192 if t == 2 else 0
                for rd in range(2):
                    o.append((f"ds_read_b64_tr_b16 {vr(wbuf(n,t)+2*rd,2)}, v{a} offset:{off + rd*512}", f'w{t}'))
            if delta is not None:
                o += [(upd(vAX + j), None), (upd(vAW + 2 * j), None), (upd(vAW + 2 * j + 1), None)]
        else:
            o.append((f"ds_read_b128 {vr(xbuf(j,0),4)}, v{vAX+j}", 'x0'))
            for rd in range(2): o.append((f"ds_read_b64_tr_b16 {vr(wbuf(n,0)+2*rd,2)}, v{vAW+j} offset:{rd*1024}", 'w0'))
            for rd in range(2): o.append((f"ds_read_b64_tr_b16 {vr(wbuf(n,1)+2*rd,2)}, v{vAW+j} offset:{16384 + rd*1024}", 'w1'))
            o.append((f"ds_read_b128 {vr(xbuf(j,1),4)}, v{vAX+j} offset:4096", 'x1'))
            if delta is not None:
                o += [(upd(vAX + j), None), (upd(vAW + j), None)]
        return o
    dma_tok = {}
    for i in range(3):
        for g in p1_dma(kind, i): dma_tok[i] = e(g)
    yield 'issued'
    k.wait(vm=dma_tok[0]); e("s_barrier")
    tok = {}
    for txt, tag in reads(0):
        t = e(txt)
        if tag: tok[tag] = t
    pend_dma = []; pend_i = None
    for n in range(28):
        i, j = divmod(n, 4)
        cur = tok; tok = {}
        if j == 3 and i < 6:
            for g in pend_dma: dma_tok[pend_i] = e(g)
            pend_dma = []
            e("s_waitcnt lgkmcnt(0)")
            k.wait(vm=dma_tok[i + 1]); e("s_barrier")
            pend_i = i + 3
            pend_dma = p1_dma(kind, i + 3) if i + 3 < 7 else extra_dma(i + 3 - 7)
        mf = []
        for t in range(nt):
            acc = vr(vACC + 16 * t, 16); cin = '0' if n == 0 else acc
            if M: mf.append((f"v_mfma_f32_32x32x16_bf16 {acc}, {vr(wbuf(n,t),4)}, {vr(xbuf(j),4)}, {cin}", ['x0', f'w{t}']))
            else:
                u, kv = t >> 1, t & 1
                mf.append((f"v_mfma_f32_32x32x16_bf16 {acc}, {vr(xbuf(j,u),4)}, {vr(wbuf(n,kv),4)}, {cin}", [f'x{u}', f'w{kv}']))
        cs_js = [2] if M else [1, 2]
        if j in cs_js:
            first = (i == 0 and j == cs_js[0])
            for t in range(3 if M else 2):
                acc = vr(vCSA + 4 * t, 4)
                mf.append((f"v_mfma_f32_16x16x32_bf16 {acc}, {vr(vSEL,4)}, {vr(wbuf(n,t),4)}, {'0' if first else acc}", [f'w{t}']))
        fill = []
        rd = reads(n + 1) if n < 27 else []
        if M:
            so = stat_ops(xbuf(j >> 1), vS, vS + 1, vS + 2, vS + 3)
            st = so[12 * (j & 1): 12 * (j & 1) + 12]
        else:
            so = stat_ops(xbuf(0, 0), vS, vS + 1, vS, vS + 1) + stat_ops(xbuf(0, 1), vS + 2, vS + 3, vS + 2, vS + 3)
            st = so[16 * j: 16 * j + 16] if j < 3 else []
        ndma = 2
        dm = pend_dma[:ndma]; pend_dma = pend_dma[ndma:]
        fill = spread([('r', x) for x in rd] or [('n', None)], [('s', x) for x in st])
        fill = spread([('d', x) for x in dm] or [('n', None)], fill)
        fill = [f for f in fill if f[0] != 'n']
        seq = spread([('m', x) for x in mf], fill)
        need_x1 = (not M and j == 1)
        for kind_, x in seq:
            if kind_ == 'm':
                for tg in x[1]: k.wait(lg=cur[tg])
                e(x[0])
            elif kind_ == 'r':
                t = e(x[0])
                if x[1]: tok[x[1]] = t
            elif kind_ == 'd': dma_tok[pend_i] = e(x)
            else: e(x)
    for g in pend_dma: dma_tok[pend_i] = e(g)
    yield dma_tok

def gelu_tile(acc, out, kp, sp, tmp):
    o = []
    for h in range(2):
        a = acc + 8 * h; t = tmp + 8 * h
        for p in range(4): o.append(f"v_pk_mul_f32 {vr(t+2*p,2)}, {vr(a+2*p,2)}, {vr(a+2*p,2)}")
        for p in range(4): o.append(f"v_pk_fma_f32 {vr(t+2*p,2)}, {vr(t+2*p,2)}, {vr(kp+2,2)}, {vr(kp,2)} op_sel_hi:[1,0,0]")
        for p in range(4): o.append(f"v_pk_mul_f32 {vr(t+2*p,2)}, {vr(t+2*p,2)}, {vr(a+2*p,2)}")
        for p in range(8): o.append(f"v_exp_f32 v{t+p}, v{t+p}")
        for p in range(4): o.append(f"v_pk_fma_f32 {vr(t+2*p,2)}, {vr(t+2*p,2)}, {vr(sp,2)}, {vr(sp,2)} op_sel_hi:[1,0,0]")
        for p in range(8): o.append(f"v_rcp_f32 v{t+p}, v{t+p}")
        for p in range(4): o.append(f"v_pk_mul_f32 {vr(t+2*p,2)}, {vr(t+2*p,2)}, {vr(a+2*p,2)}")
        for p in range(4): o.append(f"v_cvt_pk_bf16_f32 v{out+4*h+p}, v{t+2*p}, v{t+2*p+1}")
    return o

def phi_tile(acc, out, rfun, rlfun, sel, epsp, tmp):
    o = []
    for h in range(2):
        a = acc + 8 * h; t = tmp + 8 * h
        for p in range(4): o.append(f"v_pk_mul_f32 {vr(t+2*p,2)}, {vr(a+2*p,2)}, {rlfun(4*h+p)} op_sel_hi:[1,{sel}]")
        for p in range(4): o.append(f"v_pk_fma_f32 {vr(a+2*p,2)}, {vr(a+2*p,2)}, {rfun(4*h+p)}, {sr(epsp,2)} op_sel_hi:[1,{sel},0]")
        for p in range(8): o.append(f"v_exp_f32 v{t+p}, v{t+p} clamp")
        for p in range(8): o.append(f"v_max_f32 v{a+p}, s{epsp}, v{a+p}")
        for p in range(4): o.append(f"v_pk_add_f32 {vr(t+2*p,2)}, {vr(t+2*p,2)}, {vr(a+2*p,2)}")
        for p in range(4): o.append(f"v_cvt_pk_bf16_f32 v{out+4*h+p}, v{t+2*p}, v{t+2*p+1}")
    return o

def phase1_M(extra_dma, after):
    mg = sT4
    e(f"s_and_b32 s{sT0}, s{sXCD}, 1\ns_mul_i32 s{sT0}, s{sT0}, 6\ns_add_u32 s{mg}, s{sT0}, s{sGSEL}")
    e(f"s_mul_i32 s{sTILE0}, s{mg}, 6\ns_mul_i32 s{sT0}, s{sHI}, 3\ns_add_u32 s{sTILE0}, s{sTILE0}, s{sT0}")
    e(f"""v_lshrrev_b32 v4, 3, v0
v_lshl_add_u32 v4, s{sW}, 3, v4
v_bfe_u32 v5, v0, 4, 1
v_lshlrev_b32 v5, 2, v5
v_and_b32 v6, 7, v0
v_xor_b32 v5, v5, v6
v_lshlrev_b32 v5, 4, v5
s_lshl_b32 s{sM0W}, s{sW}, 10
s_add_u32 s{sM0W}, s{sM0W}, 16384""")
    for lc in range(3):
        e(f"""s_mul_i32 s{sT0}, s{mg}, 3
s_add_u32 s{sT0}, s{sT0}, {lc}
s_sub_u32 s{sT1}, s{sT0}, 28
s_cmp_lt_u32 s{sT0}, 28
s_cselect_b32 s{sT0}, s{sT0}, s{sT1}
s_movk_i32 s{sT1}, 2688
s_cselect_b32 s{sT1}, 3584, s{sT1}
s_lshl_b32 s{sT0}, s{sT0}, 7
s_lshl_b32 s{sPSTEP0+lc}, s{sT1}, 6
v_mad_u32_u24 v{vDW0+lc}, v4, s{sT1}, v5
v_add_u32 v{vDW0+lc}, s{sT0}, v{vDW0+lc}""")
    e(f"s_lshl_b32 s{sT3}, s{sLO}, 12")
    x_addr_setup(None)
    e(f"""v_lshrrev_b32 v4, 5, v0
v_lshlrev_b32 v4, 3, v4
v_bfe_u32 v5, v0, 2, 2
v_add_u32 v4, v4, v5
v_lshlrev_b32 v4, 7, v4
v_bfe_u32 v5, v0, 4, 1
v_lshl_add_u32 v4, v5, 5, v4
v_and_b32 v5, 3, v0
v_lshl_add_u32 v4, v5, 3, v4
v_bfe_u32 v5, v0, 3, 1
v_lshl_add_u32 v4, v5, 6, v4""")
    for q in range(2):
        e(f"""s_mul_i32 s{sT0}, s{sHI}, 3
s_add_u32 s{sT0}, s{sT0}, {q}
s_and_b32 s{sT1}, s{sT0}, 1
s_lshl_b32 s{sT1}, s{sT1}, 6
s_lshr_b32 s{sT0}, s{sT0}, 1
s_lshl_b32 s{sT0}, s{sT0}, 13
s_add_u32 s{sT0}, s{sT0}, 16384
v_xor_b32 v5, s{sT1}, v4
v_add_u32 v5, s{sT0}, v5""")
        for j in range(4):
            e(f"s_add_u32 s{sT0}, s{sT2}, {j}\ns_and_b32 s{sT0}, s{sT0}, 3\ns_lshl_b32 s{sT0}, s{sT0}, 11\nv_add_u32 v{vAW+2*j+q}, s{sT0}, v5")
    e("s_waitcnt lgkmcnt(0)")
    p1_common_setup()
    for lc in range(3):
        r = rW0 + 4 * lc
        e(f"""s_mul_i32 s{sT0}, s{mg}, 3
s_add_u32 s{sT0}, s{sT0}, {lc}
s_cmp_lt_u32 s{sT0}, 28
s_cselect_b32 s{r}, s{pW1}, s{pWQKV}
s_cselect_b32 s{r+1}, s{pW1+1}, s{pWQKV+1}
s_mov_b32 s{r+2}, {448*2688}
s_cselect_b32 s{r+2}, {448*3584}, s{r+2}
s_and_b32 s{r+1}, s{r+1}, 0xffff
s_cmp_lt_u32 s{sT0}, 35
s_cselect_b32 s{r+2}, s{r+2}, 0
s_mov_b32 s{r+3}, 0x20000""")
    gen = main_loop('M', extra_dma)
    next(gen)
    srd(rMISC, pB1, 3584)
    e(f"s_lshl_b32 s{sT0}, s{sTILE0}, 6\nv_and_b32 v4, 31, v0\nv_lshl_add_u32 v4, v4, 1, s{sT0}")
    for t in range(3): btok = e(f"buffer_load_ushort v{vBIAS+t}, v4, s[{rMISC}:{rMISC+3}], 0 offen offset:{64*t}")
    if FUSED: p2_setup()
    stamp(1)
    dma_tok = next(gen)
    stamp(2)
    vA = vE
    e(f"""v_add_f32 v{vS}, v{vS}, v{vS+2}
v_add_f32 v{vS+1}, v{vS+1}, v{vS+3}
v_and_b32 v4, 31, v0
v_lshlrev_b32 v5, 5, v4
s_lshl_b32 s{sT0}, s{sLO}, 10
s_add_u32 s{sT0}, s{sT0}, {ST}
v_add_u32 v5, s{sT0}, v5
v_lshrrev_b32 v6, 5, v0
v_lshl_add_u32 v6, v6, 3, v5
s_lshl_b32 s{sT0}, s{sHI}, 4
v_add_u32 v6, s{sT0}, v6
ds_write_b64 v6, {vr(vS,2)}
s_mul_i32 s{sT0}, s{sHI}, 1536
s_add_u32 s{sT0}, s{sT0}, {CS}
v_lshl_add_u32 v7, v4, 4, s{sT0}
s_lshl_b32 s{sT0}, s{sLO}, 2
v_add_u32 v6, s{sT0}, v7""")
    for t in range(3): e(f"ds_write_b32 v6, v{vCSA+4*t} offset:{512*t}")
    e("s_waitcnt lgkmcnt(0)\ns_barrier")
    R = vXB
    e(f"ds_read_b128 {vr(R,4)}, v5\nds_read_b128 {vr(R+4,4)}, v5 offset:16")
    for t in range(3): e(f"ds_read_b128 {vr(R+8+4*t,4)}, v7 offset:{512*t}")
    for g in after(): e(g)
    e("s_waitcnt lgkmcnt(3)")
    m, var, r1, w_, rm, sm = vE, vE + 1, vE + 2, vE + 3, vE + 4, vE + 6
    e(f"""v_add_f32 v{R}, v{R}, v{R+2}
v_add_f32 v{R+1}, v{R+1}, v{R+3}
v_add_f32 v{R+4}, v{R+4}, v{R+6}
v_add_f32 v{R+5}, v{R+5}, v{R+7}
v_add_f32 v{R}, v{R}, v{R+4}
v_add_f32 v{R+1}, v{R+1}, v{R+5}
v_mul_f32 v{m}, {f32(1/448)}, v{R}
v_mul_f32 v{var}, {f32(1/448)}, v{R+1}
v_fma_f32 v{var}, -v{m}, v{m}, v{var}
v_max_f32 v{var}, 0, v{var}
v_add_f32 v{r1}, {f32(EPS)}, v{var}
v_mov_b32 v{w_}, {f32(EPS)}
v_fma_f32 v{w_}, v{w_}, v{r1}, v{var}
v_rsq_f32 v{r1}, v{r1}
v_rsq_f32 v{rm}, v{w_}""")
    vBA = vE + 8; vAA = vE + 12
    vK = vE + 24
    e(f"""v_mul_f32 v{sm}, v{w_}, v{rm}
v_cvt_pk_bf16_f32 v{R}, -v{m}, v{sm}
v_lshlrev_b32 v{R+1}, 16, v{R}
v_and_b32 v{R+2}, 0xffff0000, v{R}
v_sub_f32 v{R+1}, -v{m}, v{R+1}
v_sub_f32 v{R+2}, v{sm}, v{R+2}
v_cvt_pk_bf16_f32 v{R+3}, -v{m}, v{R+1}
v_cvt_pk_bf16_f32 v{R+4}, v{R+2}, 0
v_cndmask_b32 v{vBA}, v{R+3}, 0, s[{sHALF}:{sHALF+1}]
v_cndmask_b32 v{vBA+1}, v{R}, 0, s[{sHALF}:{sHALF+1}]
v_cndmask_b32 v{vBA+2}, v{R+4}, 0, s[{sHALF}:{sHALF+1}]
v_mov_b32 v{vBA+3}, 0
v_mul_f32 v{vK}, {f32(GC0)}, v{rm}
v_mul_f32 v{R+5}, v{rm}, v{rm}
v_mul_f32 v{R+5}, {f32(GC1)}, v{R+5}
v_mul_f32 v{vK+2}, v{R+5}, v{vK}
v_mov_b32 v{vK+4}, v{r1}
v_mul_f32 v{vK+6}, {f32(LOG2E)}, v{r1}
s_waitcnt lgkmcnt(0)""")
    k.wait(vm=btok)
    for t in range(3):
        c = R + 8 + 4 * t; a = vAA + 4 * t
        e(f"""v_add_f32 v{c}, v{c}, v{c+1}
v_add_f32 v{c+2}, v{c+2}, v{c+3}
v_add_f32 v{c}, v{c}, v{c+2}
v_cvt_pk_bf16_f32 v{a}, v{c}, v{c}
v_and_b32 v{c+1}, 0xffff0000, v{a}
v_sub_f32 v{c+1}, v{c}, v{c+1}
v_lshlrev_b32 v{c+2}, 16, v{vBIAS+t}
v_cvt_pk_bf16_f32 v{a+1}, v{c+1}, v{c+2}
v_mov_b32 v{a+2}, v{vBIAS+t}
v_mov_b32 v{a+3}, 0""")
        acc = vr(vACC + 16 * t, 16)
        e(f"v_mfma_f32_32x32x16_bf16 {acc}, {vr(a,4)}, {vr(vBA,4)}, {acc}")
    e(f"""s_lshl_b32 s{sT0}, s{sRB}, 2
s_add_u32 s{sT0}, s{sT0}, s{sLO}
s_mul_i32 s{sT0}, s{sT0}, {140*1024}
s_lshl_b32 s{sT1}, s{sTILE0}, 11
s_add_u32 s{sT3}, s{sT0}, s{sT1}
v_lshlrev_b32 v4, 4, v0
s_mov_b32 s{sMASK}, {f32(1e-6)}
s_mov_b32 s{sMASK+1}, {f32(1e-6)}
s_nop 7""")
    vT = vE + 32; vO = vE + 48
    last = None
    for t in range(3):
        Lq, Ld = k.newlabel('Lq'), k.newlabel('Ld')
        e(f"s_add_u32 s{sT0}, s{sTILE0}, {t}\ns_cmp_ge_u32 s{sT0}, 56\ns_cbranch_scc1 {Lq}")
        for x in gelu_tile(vACC + 16 * t, vO + 8 * t, vK, sm, vT): e(x)
        e(f"s_branch {Ld}")
        k.label(Lq)
        for x in phi_tile(vACC + 16 * t, vO + 8 * t, lambda p: vr(vK + 4, 2), lambda p: vr(vK + 6, 2), 0, sMASK, vT): e(x)
        e(f"s_cmp_ge_u32 s{sT0}, 70\ns_cselect_b32 s{sT3}, {0x7000000}, s{sT3}")
        k.label(Ld)
        e(f"buffer_store_dwordx4 {vr(vO+8*t,4)}, v4, s[{rWS}:{rWS+3}], s{sT3} offen sc1")
        last = e(f"buffer_store_dwordx4 {vr(vO+8*t+4,4)}, v4, s[{rWS}:{rWS+3}], s{sT3} offen offset:1024 sc1")
        e(f"s_add_u32 s{sT3}, s{sT3}, 2048")
    stamp(3)
    return last

def phase1_KV(extra_dma):
    g = sT4
    e(f"""s_and_b32 s{sT0}, s{sXCD}, 1
s_mul_i32 s{sT1}, s{sT0}, 3
s_add_u32 s{sT3}, s{sT0}, 1
s_cmp_eq_u32 s{sGSEL}, 6
s_cselect_b32 s{g}, s{sT1}, s{sT3}
s_lshl_b32 s{sTILE0}, s{g}, 2
s_add_u32 s{sTILE0}, s{sTILE0}, s{sLO}""")
    e(f"""s_mul_i32 s{sT0}, s{g}, 224
s_cmp_eq_u32 s{g}, 3
s_cselect_b32 s{sT0}, 640, s{sT0}
s_cselect_b32 s{sT1}, 32, 0
s_add_u32 s{sT0}, s{sT0}, 896
v_lshrrev_b32 v4, 4, v0
v_lshlrev_b32 v5, 2, v4
v_sub_u32 v5, v0, v5
v_and_b32 v5, 15, v5
v_lshl_add_u32 v5, v5, 4, s{sT0}
v_lshl_add_u32 v4, s{sW}, 3, v4
v_mul_u32_u24 v4, 2688, v4
v_add_u32 v{vDW0}, v4, v5
v_add_u32 v{vDW1}, {4*2688}, v{vDW0}
s_lshl_b32 s{sM0W}, s{sW}, 11
s_add_u32 s{sM0W}, s{sM0W}, 16384""")
    e(f"""s_mul_i32 s{sT0}, s{sLO}, 56
s_add_u32 s{sT1}, s{sT1}, s{sT0}
v_bfe_u32 v4, v0, 2, 2
v_lshl_add_u32 v5, v4, 6, s{sT1}
v_bfe_u32 v6, v0, 4, 1
v_lshl_add_u32 v5, v6, 5, v5
v_and_b32 v6, 3, v0
v_lshl_add_u32 v5, v6, 3, v5
v_and_b32 v5, 255, v5
v_lshrrev_b32 v6, 5, v0
v_lshl_add_u32 v4, v6, 3, v4
v_lshl_add_u32 v5, v4, 8, v5
v_add_u32 v5, 16384, v5""")
    for j in range(4):
        e(f"s_add_u32 s{sT0}, s{sT2}, {j}\ns_and_b32 s{sT0}, s{sT0}, 3\ns_lshl_b32 s{sT0}, s{sT0}, 12\nv_add_u32 v{vAW+j}, s{sT0}, v5")
    e(f"s_lshl_b32 s{sT3}, s{sHI}, 13")
    x_addr_setup(None)
    e("s_waitcnt lgkmcnt(0)")
    p1_common_setup()
    srd(rW0, pWQKV, 448 * 2688)
    gen = main_loop('KV', extra_dma)
    next(gen)
    if FUSED:
        p2_setup()
        e(f"s_cmp_eq_u32 s{sGSEL}, 7\ns_cselect_b32 s{rW2G+2}, 0, s{rW2G+2}")
    stamp(1)
    dma_tok = next(gen)
    stamp(2)
    e(f"""v_and_b32 v4, 31, v0
v_lshlrev_b32 v5, 6, v4
s_lshl_b32 s{sT0}, s{sHI}, 12
s_add_u32 s{sT0}, s{sT0}, {ST}
s_lshl_b32 s{sT1}, s{sLO}, 4
s_add_u32 s{sT1}, s{sT1}, s{sT0}
v_lshrrev_b32 v6, 5, v0
v_lshl_add_u32 v6, v6, 3, v5
v_add_u32 v6, s{sT1}, v6
ds_write_b64 v6, {vr(vS,2)}
ds_write_b64 v6, {vr(vS+2,2)} offset:2048
v_lshl_add_u32 v5, v0, 6, s{sT0}
s_lshl_b32 s{sT0}, s{sLO}, 9
s_add_u32 s{sT0}, s{sT0}, {CS}
v_lshl_add_u32 v7, v4, 3, s{sT0}
s_lshl_b32 s{sT0}, s{sHI}, 2
v_add_u32 v6, s{sT0}, v7
ds_write_b32 v6, v{vCSA}
ds_write_b32 v6, v{vCSA+4} offset:256
s_waitcnt lgkmcnt(0)
s_barrier""")
    R = vXB
    for q in range(4): e(f"ds_read_b128 {vr(R+4*q,4)}, v5 offset:{16*q}")
    e(f"ds_read_b64 {vr(R+16,2)}, v7\nds_read_b64 {vr(R+18,2)}, v7 offset:256")
    e("s_waitcnt lgkmcnt(2)")
    for q in range(4): e(f"v_add_f32 v{R+4*q}, v{R+4*q}, v{R+4*q+2}\nv_add_f32 v{R+4*q+1}, v{R+4*q+1}, v{R+4*q+3}")
    m, var, r1 = vE, vE + 1, vE + 2
    vXA = vE + 4
    vWA = vE + 12
    e(f"""v_add_f32 v{R}, v{R}, v{R+4}
v_add_f32 v{R+1}, v{R+1}, v{R+5}
v_add_f32 v{R+8}, v{R+8}, v{R+12}
v_add_f32 v{R+9}, v{R+9}, v{R+13}
v_add_f32 v{R}, v{R}, v{R+8}
v_add_f32 v{R+1}, v{R+1}, v{R+9}
v_mul_f32 v{m}, {f32(1/448)}, v{R}
v_mul_f32 v{var}, {f32(1/448)}, v{R+1}
v_fma_f32 v{var}, -v{m}, v{m}, v{var}
v_max_f32 v{var}, 0, v{var}
v_add_f32 v{r1}, {f32(EPS)}, v{var}
v_rsq_f32 v{r1}, v{r1}
s_lshl_b32 s{sT0}, s{sW}, 9
s_add_u32 s{sT0}, s{sT0}, {RS}
v_lshl_add_u32 v6, v0, 2, s{sT0}
v_mul_f32 v{r1+1}, {f32(LOG2E)}, v{r1}
ds_write_b32 v6, v{r1}
ds_write_b32 v6, v{r1+1} offset:256
v_cvt_pk_bf16_f32 v{R}, -v{m}, 0
v_lshlrev_b32 v{R+1}, 16, v{R}
v_sub_f32 v{R+1}, -v{m}, v{R+1}
v_cvt_pk_bf16_f32 v{R+3}, -v{m}, v{R+1}
v_cndmask_b32 v{vXA}, v{R+3}, 0, s[{sHALF}:{sHALF+1}]
v_cndmask_b32 v{vXA+1}, v{R}, 0, s[{sHALF}:{sHALF+1}]
v_mov_b32 v{vXA+2}, 0
v_mov_b32 v{vXA+3}, 0
v_cndmask_b32 v{vXA+4}, 0, v{R+3}, s[{sHALF}:{sHALF+1}]
v_cndmask_b32 v{vXA+5}, 0, v{R}, s[{sHALF}:{sHALF+1}]
v_mov_b32 v{vXA+6}, 0
v_mov_b32 v{vXA+7}, 0
v_lshrrev_b32 v6, 5, v0
v_lshl_add_u32 v6, v6, 4, s{sT0}
s_waitcnt lgkmcnt(0)""")
    vR = vE + 20
    for u in range(2):
        for gq in range(4):
            e(f"ds_read_b128 {vr(vR+16*u+4*gq,4)}, v6 offset:{128*u+32*gq}")
            rtok = e(f"ds_read_b128 {vr(vR+32+16*u+4*gq,4)}, v6 offset:{256+128*u+32*gq}")
    for kv in range(2):
        c = R + 16 + 2 * kv; a = vWA + 4 * kv
        e(f"""v_add_f32 v{c}, v{c}, v{c+1}
v_cvt_pk_bf16_f32 v{a}, v{c}, v{c}
v_and_b32 v{c+1}, 0xffff0000, v{a}
v_sub_f32 v{c+1}, v{c}, v{c+1}
v_cvt_pk_bf16_f32 v{a+1}, v{c+1}, 0
v_mov_b32 v{a+2}, 0
v_mov_b32 v{a+3}, 0""")
    for t in range(4):
        u, kv = t >> 1, t & 1
        acc = vr(vACC + 16 * t, 16)
        e(f"v_mfma_f32_32x32x16_bf16 {acc}, {vr(vXA+4*u,4)}, {vr(vWA+4*kv,4)}, {acc}")
    e(f"s_mov_b32 s{sMASK}, {f32(1e-6)}\ns_mov_b32 s{sMASK+1}, {f32(1e-6)}\ns_waitcnt lgkmcnt(0)")
    vT = vXB
    vPK = 48; vPV = 56
    vKV = vCSA
    e(f"v_mov_b32 v7, 0x3f803f80\ns_mov_b32 s{sT0}, 0x10000000\ns_mov_b32 s{sT1}, 0x10000000")
    assert sT1 == sT0 + 1 and False or True
    for u in range(2):
        ak, av = vACC + 32 * u, vACC + 32 * u + 16
        for x in phi_tile(ak, vPK, lambda p: vr(vR + 16 * u + 2 * p, 2), lambda p: vr(vR + 32 + 16 * u + 2 * p, 2), 1, sMASK, vT): e(x)
        for p in range(8): e(f"v_pk_mul_f32 {vr(av+2*p,2)}, {vr(av+2*p,2)}, {vr(vR+16*u+2*p,2)}")
        for p in range(8): e(f"v_cvt_pk_bf16_f32 v{vPV+p}, v{av+2*p}, v{av+2*p+1}")
        e("s_mov_b32 exec_lo, 0x10000000\ns_mov_b32 exec_hi, 0x10000000")
        for p in range(8): e(f"v_mov_b32 v{vPV+p}, v7")
        e("s_mov_b64 exec, -1")
        for h in range(2):
            cin = '0' if (u == 0 and h == 0) else vr(vKV, 16)
            e(f"v_mfma_f32_32x32x16_bf16 {vr(vKV,16)}, {vr(vPV+4*h,4)}, {vr(vPK+4*h,4)}, {cin}")
    e(f"s_lshl_b32 s{sT0}, s{sLO}, 12\nv_lshl_add_u32 v6, v0, 4, s{sT0}")
    L1, L2 = k.newlabel('Lc'), k.newlabel('Lc')
    e(f"s_nop 7\ns_nop 3\ns_cmp_eq_u32 s{sHI}, 0\ns_cbranch_scc1 {L1}")
    for gq in range(4): e(f"ds_write_b128 v6, {vr(vKV+4*gq,4)} offset:{1024*gq}")
    e("s_waitcnt lgkmcnt(0)")
    k.label(L1)
    e("s_barrier")
    st = k.state()
    e(f"s_cmp_lg_u32 s{sHI}, 0\ns_cbranch_scc1 {L2}")
    for gq in range(4): e(f"ds_read_b128 {vr(vT+4*gq,4)}, v6 offset:{1024*gq}")
    e(f"""s_lshl_b32 s{sT0}, s{sTILE0}, 4
s_add_u32 s{sT0}, s{sT0}, s{sRB}
s_lshl_b32 s{sT0}, s{sT0}, 12
s_add_u32 s{sT0}, s{sT0}, {KVP}
v_lshlrev_b32 v4, 4, v0
s_waitcnt lgkmcnt(0)""")
    for p in range(8): e(f"v_pk_add_f32 {vr(vKV+2*p,2)}, {vr(vKV+2*p,2)}, {vr(vT+2*p,2)}")
    for gq in range(4): e(f"buffer_store_dwordx4 {vr(vKV+4*gq,4)}, v4, s[{rWS}:{rWS+3}], s{sT0} offen offset:{1024*gq} sc1")
    e("s_waitcnt vmcnt(0)")
    k.label(L2)
    k.set_state(st)
    stamp(3)

def reducer():
    hd, hf = sT3, sT4
    e(f"s_lshr_b32 s{hd}, s{sTB}, 1\ns_and_b32 s{hf}, s{sTB}, 1")
    srd(rMISC, pWO, 448 * 896)
    WOB = SLOT
    AF = SLOT + 16384
    e(f"""s_mul_i32 s{sT0}, s{hf}, 7
s_add_u32 s{sCT}, s{sT0}, s{sW}
s_mul_i32 s{sT0}, s{hd}, 28
v_lshrrev_b32 v4, 2, v0
v_add_u32 v4, s{sT0}, v4
v_mul_u32_u24 v4, 896, v4
v_and_b32 v5, 3, v0
v_lshl_add_u32 v4, v5, 4, v4
s_lshl_b32 s{sT0}, s{sCT}, 6
v_add_u32 v4, s{sT0}, v4
v_add_u32 v5, {16*896}, v4
s_lshl_b32 s{sT1}, s{sW}, 11
s_add_u32 m0, s{sT1}, {WOB}
buffer_load_dwordx4 v4, s[{rMISC}:{rMISC+3}], 0 offen lds
s_add_u32 m0, s{sT1}, {WOB+1024}""")
    wtok = e(f"buffer_load_dwordx4 v5, s[{rMISC}:{rMISC+3}], 0 offen lds")
    e(f"""v_lshrrev_b32 v6, 5, v0
v_lshlrev_b32 v6, 2, v6
v_bfe_u32 v7, v0, 2, 2
v_add_u32 v6, v6, v7
v_lshlrev_b32 v6, 6, v6
v_bfe_u32 v7, v0, 4, 1
v_lshl_add_u32 v6, v7, 5, v6
v_and_b32 v7, 3, v0
v_lshl_add_u32 v6, v7, 3, v6
s_add_u32 s{sT1}, s{sT1}, {WOB}
v_add_u32 v6, s{sT1}, v6""")
    k.wait(vm=wtok)
    vWF = 16
    for s in range(2):
        for rd in range(2): e(f"ds_read_b64_tr_b16 {vr(vWF+4*s+2*rd,2)}, v6 offset:{s*1024+rd*512}")
    L1 = k.newlabel('Lr')
    e(f"s_cmp_ge_u32 s{sW}, 4\ns_cbranch_scc1 {L1}")
    if FUSED: wait_flags(FLKV_expr=True)
    vP = 32
    e(f"""s_lshl_b32 s{sT0}, s{hd}, 16
s_lshl_b32 s{sT1}, s{sW}, 10
s_add_u32 s{sT0}, s{sT0}, s{sT1}
s_add_u32 s{sT0}, s{sT0}, {KVP}
v_lshlrev_b32 v4, 4, v0""")
    toks = []
    for rb in range(16):
        toks.append(e(f"buffer_load_dwordx4 {vr(vP+4*rb,4)}, v4, s[{rWS}:{rWS+3}], s{sT0} offen sc1"))
        if rb < 15: e(f"s_add_u32 s{sT0}, s{sT0}, 4096")
    for rb in range(1, 16):
        k.wait(vm=toks[rb])
        e(f"v_pk_add_f32 {vr(vP,2)}, {vr(vP,2)}, {vr(vP+4*rb,2)}\nv_pk_add_f32 {vr(vP+2,2)}, {vr(vP+2,2)}, {vr(vP+4*rb+2,2)}")
    L2 = k.newlabel('Lr')
    e(f"s_cmp_lg_u32 s{sW}, 3\ns_cbranch_scc1 {L2}")
    e(f"""v_cvt_pk_bf16_f32 v8, v{vP}, v{vP}
v_and_b32 v9, 31, v0
v_lshrrev_b32 v10, 2, v9
s_mul_i32 s{sT0}, s{hd}, 7
v_add_u32 v10, s{sT0}, v10
v_lshrrev_b32 v11, 2, v10
v_lshlrev_b32 v11, 5, v11
v_and_b32 v12, 1, v10
v_lshl_add_u32 v11, v12, 4, v11
v_bfe_u32 v12, v10, 1, 1
v_lshl_add_u32 v11, v12, 3, v11
v_and_b32 v12, 3, v0
v_lshl_add_u32 v11, v12, 1, v11
s_cmp_eq_u32 s{hf}, 0
s_mov_b32 s{sT0}, {0x7000000}
s_cselect_b32 s{sT0}, {ZT}, s{sT0}
s_mov_b32 exec_lo, 0
s_mov_b32 exec_hi, 0x0fffffff
buffer_store_short v8, v11, s[{rWS}:{rWS+3}], s{sT0} offen sc1
s_mov_b32 exec_hi, -1
v_mov_b32 v{vP}, 0
v_mov_b32 v{vP+1}, 0
v_mov_b32 v{vP+2}, 0
v_mov_b32 v{vP+3}, 0
s_mov_b64 exec, -1""")
    k.label(L2)
    e(f"""v_cvt_pk_bf16_f32 v8, v{vP}, v{vP+1}
v_cvt_pk_bf16_f32 v9, v{vP+2}, v{vP+3}
s_lshr_b32 s{sT0}, s{sW}, 1
s_lshl_b32 s{sT0}, s{sT0}, 10
s_and_b32 s{sT1}, s{sW}, 1
s_lshl_b32 s{sT1}, s{sT1}, 3
s_add_u32 s{sT0}, s{sT0}, s{sT1}
s_add_u32 s{sT0}, s{sT0}, {AF}
v_lshl_add_u32 v5, v0, 4, s{sT0}
ds_write_b64 v5, v[8:9]""")
    k.label(L1)
    e("s_waitcnt lgkmcnt(0)\ns_barrier")
    Lend = k.newlabel('Lr')
    e(f"s_cmp_eq_u32 s{sW}, 7\ns_cbranch_scc1 {Lend}")
    vAF = 24; vD = 96
    e(f"v_lshlrev_b32 v5, 4, v0\nv_add_u32 v5, {AF}, v5\nds_read_b128 {vr(vAF,4)}, v5\nds_read_b128 {vr(vAF+4,4)}, v5 offset:1024")
    e(f"""s_mul_i32 s{sT0}, s{hd}, 7
v_lshrrev_b32 v6, 5, v0
v_and_b32 v7, 31, v0
v_lshlrev_b32 v7, 4, v7
s_mul_i32 s{sT1}, s{sCT}, {28*1024}
s_add_u32 s{sT1}, s{sT1}, {MB}""")
    for gq in range(4):
        a = 8 + gq
        e(f"""v_add_u32 v12, s{sT0}, v6
v_add_u32 v12, {2*gq}, v12
v_lshrrev_b32 v13, 2, v12
v_lshl_add_u32 v{a}, v13, 10, v7
v_and_b32 v13, 1, v12
v_lshl_add_u32 v{a}, v13, 9, v{a}
v_bfe_u32 v13, v12, 1, 1
v_lshl_add_u32 v{a}, v13, 3, v{a}""")
    e(f"v_mov_b32 v13, 0x7000000\nv_cndmask_b32 v11, v11, v13, s[{sHALF}:{sHALF+1}]")
    e("s_waitcnt lgkmcnt(0)")
    e(f"v_mfma_f32_32x32x16_bf16 {vr(vD,16)}, {vr(vAF,4)}, {vr(vWF,4)}, 0")
    e(f"v_mfma_f32_32x32x16_bf16 {vr(vD,16)}, {vr(vAF+4,4)}, {vr(vWF+4,4)}, {vr(vD,16)}")
    for p in range(8): e(f"v_cvt_pk_bf16_f32 v{112+p}, v{vD+2*p}, v{vD+2*p+1}")
    for gq in range(4): e(f"buffer_store_dwordx2 {vr(112+2*gq,2)}, v{8+gq}, s[{rWS}:{rWS+3}], s{sT1} offen sc1")
    k.label(Lend)

def phase2(pre_issued, dma_tok):
    vHO = 4
    vWA = 5
    vMA = 7
    vXR = 8
    vB2 = 12
    vWB = 16
    vA2 = 32
    vH = 64
    vQ = 176
    vZ = 204
    vT = 232
    for pc in range(pre_issued, 3):
        for g in p2_dma(pc): dma_tok[pc] = e(g)
    e(f"""s_lshl_b32 s{sT0}, s{sTB}, 1
s_add_u32 s{sT0}, s{sT0}, s{sHI}
s_mul_i32 s{sT0}, s{sT0}, {140*1024}
v_lshl_add_u32 v{vHO}, v0, 4, s{sT0}
v_lshrrev_b32 v{vT}, 5, v0
v_lshlrev_b32 v{vT}, 2, v{vT}
v_bfe_u32 v{vT+1}, v0, 2, 2
v_add_u32 v{vT}, v{vT}, v{vT+1}
v_lshlrev_b32 v{vT}, 7, v{vT}
v_bfe_u32 v{vT+1}, v0, 4, 1
v_lshl_add_u32 v{vT}, v{vT+1}, 5, v{vT}
v_and_b32 v{vT+1}, 3, v0
v_lshl_add_u32 v{vT}, v{vT+1}, 3, v{vT}
v_bfe_u32 v{vT+1}, v0, 3, 1
v_lshl_add_u32 v{vT}, v{vT+1}, 6, v{vT}
s_mul_i32 s{sT0}, s{sLO}, 12288
s_add_u32 s{sT0}, s{sT0}, {SLOT}
v_add_u32 v{vWA}, s{sT0}, v{vT}
v_xor_b32 v{vWA+1}, 64, v{vWA}""")
    htok = {}
    def h_loads(j0, j1):
        for j in range(j0, j1):
            e(f"s_lshl_b32 s{sT0}, s{sTAB+j}, 11")
            for s in range(2):
                htok[2*j+s] = e(f"buffer_load_dwordx4 {vr(vH+8*j+4*s,4)}, v{vHO}, s[{rWS}:{rWS+3}], s{sT0} offen offset:{1024*s} sc1")
    if FUSED: wait_h('A')
    h_loads(0, 7)
    if FUSED: wait_h('B')
    h_loads(7, 14)
    e(f"s_mul_i32 s{sT0}, s{sLO}, {7*1024}\ns_add_u32 s{sT0}, s{sT0}, {112*1024}")
    for s in range(7):
        if s == 4: e(f"s_add_u32 s{sT0}, s{sT0}, 4096")
        qtok = e(f"buffer_load_dwordx4 {vr(vQ+4*s,4)}, v{vHO}, s[{rWS}:{rWS+3}], s{sT0} offen offset:{1024*(s&3)} sc1")
    srd(rMISC, pB2, 896)
    e(f"""v_lshrrev_b32 v{vT}, 3, v0
s_lshl_b32 s{sT0}, s{sTB}, 6
s_lshl_b32 s{sT1}, s{sW}, 3
s_add_u32 s{sT0}, s{sT0}, s{sT1}
v_add_u32 v{vT}, s{sT0}, v{vT}
v_mul_u32_u24 v{vT}, 896, v{vT}
v_and_b32 v{vT+1}, 7, v0
v_lshlrev_b32 v{vT+1}, 4, v{vT+1}
s_lshl_b32 s{sT0}, s{sCT}, 7
v_add_u32 v{vT+1}, s{sT0}, v{vT+1}
v_add_u32 v1, v{vT}, v{vT+1}
buffer_load_dwordx4 {vr(vXR,4)}, v1, s[{rX}:{rX+3}], 0 offen""")
    xtok = e(f"buffer_load_dwordx4 {vr(vB2,4)}, v{vT+1}, s[{rMISC}:{rMISC+3}], 0 offen")
    stamp(4)
    def wreads(n):
        j, s = divmod(n, 2); pc, t = divmod(j, 3)
        o = []
        for c in range(2):
            for rd in range(2):
                o.append((f"ds_read_b64_tr_b16 {vr(vWB+8*(n&1)+4*c+2*rd,2)}, v{vWA+c} offset:{t*4096+s*2048+rd*1024}", c))
        if n % 6 == 5 and n < 27:
            nxt = ((pc + 2) % 3 - (pc + 1) % 3) * SLOT
            for c in range(2):
                o.append(((f"v_add_u32 v{vWA+c}, {nxt}, v{vWA+c}" if nxt > 0 else f"v_subrev_u32 v{vWA+c}, {-nxt}, v{vWA+c}"), None))
        return o
    k.wait(vm=dma_tok[0]); e("s_barrier")
    tok = {}
    for txt, c in wreads(0):
        t = e(txt)
        if c is not None: tok[c] = t
    pend = []; pend_pc = None
    mtok = None
    for n in range(28):
        cur = tok; tok = {}
        pc = n // 6
        if n % 6 == 5:
            for g in pend: dma_tok[pend_pc] = e(g)
            pend = []
            e("s_waitcnt lgkmcnt(0)")
            k.wait(vm=dma_tok[pc + 1]); e("s_barrier")
            if pc + 3 < 5: pend = p2_dma(pc + 3); pend_pc = pc + 3
            if pc == 3:
                if FUSED: wait_m()
                e(f"""s_mul_i32 s{sT0}, s{sCT}, {56*1024}
s_mul_i32 s{sT1}, s{sW}, {7*1024}
s_add_u32 s{sT0}, s{sT0}, s{sT1}
s_add_u32 s{sT0}, s{sT0}, {MB}
v_lshlrev_b32 v{vT}, 4, v0
v_lshrrev_b32 v{vT+1}, 5, v0
v_lshlrev_b32 v{vT+1}, 4, v{vT+1}
s_mul_i32 s{sT2}, s{sLO}, 224
s_add_u32 s{sT2}, s{sT2}, {ZT}""")
                for s in range(7): ztok = e(f"buffer_load_dwordx4 {vr(vZ+4*s,4)}, v{vT+1}, s[{rWS}:{rWS+3}], s{sT2} offen offset:{32*s} sc1")
                for s in range(7):
                    e(f"s_add_u32 m0, s{sT1}, {1024*s}")
                    mtok = e(f"buffer_load_dwordx4 v{vT}, s[{rWS}:{rWS+3}], s{sT0} offen sc1 lds")
                    if s < 6: e(f"s_add_u32 s{sT0}, s{sT0}, 1024")
        rd = wreads(n + 1) if n < 27 else []
        dm = pend[:2]; pend = pend[2:]
        fill = [('r', x) for x in rd] + [('d', x) for x in dm]
        mf = []
        for c in range(2):
            acc = vr(vA2 + 16 * c, 16)
            mf.append(('m', (f"v_mfma_f32_32x32x16_bf16 {acc}, {vr(vWB+8*(n&1)+4*c,4)}, {vr(vH+4*n,4)}, {'0' if n == 0 else acc}", c)))
        for kind_, x in spread(mf, fill):
            if kind_ == 'm':
                k.wait(vm=htok[n] if x[1] == 0 else None, lg=cur[x[1]])
                e(x[0])
            elif kind_ == 'r':
                t = e(x[0])
                if x[1] is not None: tok[x[1]] = t
            else: dma_tok[pend_pc] = e(x)
    stamp(5)
    k.wait(vm=ztok)
    a = [vT + i for i in range(4)]; t3, t10 = vT + 4, vT + 5
    dst = {0: a[0], 1: a[0], 2: a[0], 3: t3, 4: a[1], 5: a[1], 6: a[1], 7: a[2], 8: a[2], 9: a[2], 10: t10, 11: a[3], 12: a[3], 13: a[3]}
    seen = set(); order = []
    for rnd in range(3):
        for q in (0, 4, 7, 11, 3, 10):
            qq = q + rnd
            if q in (3, 10) and rnd > 0: continue
            order.append(qq)
    for d in range(2):
        for q in order:
            r = dst[q]
            cin = '0' if r not in seen else f'v{r}'
            seen.add(r)
            e(f"v_dot2_f32_bf16 v{r}, v{vQ+2*q+d}, v{vZ+2*q+d}, {cin}")
    H = f"s[{sHALF}:{sHALF+1}]"
    b = [vT + 8 + i for i in range(4)]
    e(f"""v_cndmask_b32 v{vT+6}, v{t3}, 0, {H}
v_cndmask_b32 v{vT+7}, 0, v{t3}, {H}
v_add_f32 v{a[0]}, v{a[0]}, v{vT+6}
v_add_f32 v{a[1]}, v{a[1]}, v{vT+7}
v_cndmask_b32 v{vT+6}, v{t10}, 0, {H}
v_cndmask_b32 v{vT+7}, 0, v{t10}, {H}
v_add_f32 v{a[2]}, v{a[2]}, v{vT+6}
v_add_f32 v{a[3]}, v{a[3]}, v{vT+7}""")
    for i in range(4): e(f"v_mov_b32 v{b[i]}, v{a[i]}")
    for i in range(4): e(f"v_permlane32_swap_b32 v{a[i]}, v{b[i]}")
    for i in range(4): e(f"v_add_f32 v{a[i]}, v{a[i]}, v{b[i]}")
    for i in range(4): e(f"v_add_f32 v{a[i]}, {f32(1e-6)}, v{a[i]}")
    for i in range(4): e(f"v_rcp_f32 v{a[i]}, v{a[i]}")
    e(f"v_cndmask_b32 v{t3}, v{a[0]}, v{a[1]}, {H}\nv_cndmask_b32 v{t10}, v{a[2]}, v{a[3]}, {H}")
    u = vT + 12
    for q in range(14):
        r = dst[q]
        for d in range(2):
            x = vQ + 2 * q + d; lo, hi = u + 2 * d, u + 2 * d + 1
            e(f"v_lshlrev_b32 v{lo}, 16, v{x}\nv_and_b32 v{hi}, 0xffff0000, v{x}\nv_mul_f32 v{lo}, v{lo}, v{r}\nv_mul_f32 v{hi}, v{hi}, v{r}\nv_cvt_pk_bf16_f32 v{x}, v{lo}, v{hi}")
    e(f"s_mul_i32 s{sT0}, s{sLO}, {7*1024}\nv_lshl_add_u32 v{vMA}, v0, 4, s{sT0}")
    k.wait(vm=mtok); e("s_barrier")
    mt = {}
    for s in range(7):
        for c in range(2):
            mt[(s, c)] = e(f"ds_read_b128 {vr(vH+8*s+4*c,4)}, v{vMA} offset:{c*28*1024+s*1024}")
    for s in range(7):
        for c in range(2):
            k.wait(lg=mt[(s, c)])
            acc = vr(vA2 + 16 * c, 16)
            e(f"v_mfma_f32_32x32x16_bf16 {acc}, {vr(vH+8*s+4*c,4)}, {vr(vQ+4*s,4)}, {acc}")
    stamp(6)
    RED = 57344; PITCH = 272
    e(f"""v_and_b32 v{vT}, 31, v0
s_lshl_b32 s{sT0}, s{sHI}, 5
v_add_u32 v{vT}, s{sT0}, v{vT}
v_mul_u32_u24 v{vT}, {PITCH}, v{vT}
v_lshrrev_b32 v{vT+1}, 5, v0
v_lshl_add_u32 v{vT}, v{vT+1}, 4, v{vT}
s_mul_i32 s{sT0}, s{sLO}, {64*PITCH}
s_add_u32 s{sT0}, s{sT0}, {RED}
v_add_u32 v{vT}, s{sT0}, v{vT}
v_lshrrev_b32 v{vT+1}, 3, v0
v_lshl_add_u32 v{vT+1}, s{sW}, 3, v{vT+1}
v_mul_u32_u24 v{vT+1}, {PITCH}, v{vT+1}
v_and_b32 v{vT+2}, 7, v0
v_lshl_add_u32 v{vT+1}, v{vT+2}, 5, v{vT+1}
v_add_u32 v{vT+1}, {RED}, v{vT+1}""")
    for c in range(2):
        for gq in range(4):
            e(f"ds_write_b128 v{vT}, {vr(vA2+16*c+4*gq,4)} offset:{c*128+gq*32}")
    e("s_waitcnt lgkmcnt(0)\ns_barrier")
    for q in range(4):
        for hh in range(2): e(f"ds_read_b128 {vr(vH+8*q+4*hh,4)}, v{vT+1} offset:{q*64*PITCH+16*hh}")
    srd(rMISC, pOUT, 2048 * 896)
    k.wait(vm=xtok)
    for d in range(4):
        e(f"""v_lshlrev_b32 v{vQ+2*d}, 16, v{vXR+d}
v_and_b32 v{vQ+2*d+1}, 0xffff0000, v{vXR+d}
v_lshlrev_b32 v{vZ+2*d}, 16, v{vB2+d}
v_and_b32 v{vZ+2*d+1}, 0xffff0000, v{vB2+d}""")
    for d in range(4): e(f"v_pk_add_f32 {vr(vQ+2*d,2)}, {vr(vQ+2*d,2)}, {vr(vZ+2*d,2)}")
    e("s_waitcnt lgkmcnt(0)")
    for d in range(4): e(f"v_pk_add_f32 {vr(vH+2*d,2)}, {vr(vH+2*d,2)}, {vr(vH+8+2*d,2)}\nv_pk_add_f32 {vr(vH+16+2*d,2)}, {vr(vH+16+2*d,2)}, {vr(vH+24+2*d,2)}")
    for d in range(4): e(f"v_pk_add_f32 {vr(vH+2*d,2)}, {vr(vH+2*d,2)}, {vr(vH+16+2*d,2)}")
    for d in range(4): e(f"v_pk_add_f32 {vr(vH+2*d,2)}, {vr(vH+2*d,2)}, {vr(vQ+2*d,2)}")
    for d in range(4): e(f"v_cvt_pk_bf16_f32 v{vXR+d}, v{vH+2*d}, v{vH+2*d+1}")
    e(f"buffer_store_dwordx4 {vr(vXR,4)}, v1, s[{rMISC}:{rMISC+3}], 0 offen")
    stamp(7)

def kd(name):
    return f""".amdhsa_kernel {name}
  .amdhsa_next_free_vgpr 256
  .amdhsa_next_free_sgpr 102
  .amdhsa_accum_offset 256
  .amdhsa_group_segment_fixed_size 0
  .amdhsa_kernarg_size 88
  .amdhsa_user_sgpr_count 2
  .amdhsa_user_sgpr_kernarg_segment_ptr 1
  .amdhsa_system_sgpr_workgroup_id_x 1
.end_amdhsa_kernel
"""
def kstart(name):
    k.raw(f".globl {name}\n.p2align 8\n.type {name},@function\n{name}:")
    k.set_state(([], []))

hdr = open(f'cdna_kernels/{NAME}.s.ref').read().split('; Override launch')[0]
if not FUSED:
    names = ['p1_kernel', 'red_kernel', 'p2_kernel']
    head = hdr + "".join(f"; @launch kernel={n} grid=(256,1,1) block=(512,1,1) lds={LDS_BYTES}\n" for n in names)
    k.raw('.amdgcn_target "amdgcn-amd-amdhsa--gfx950"\n.text')
    kstart('p1_kernel')
    prologue(256, 'Lend1')
    p1_pre_setup()
    if STAMPS: e("s_waitcnt lgkmcnt(0)")
    stamp(0)
    e(f"s_cmp_ge_u32 s{sGSEL}, 6\ns_cbranch_scc1 Lkv")
    phase1_M(lambda i: [], lambda: [])
    e("s_endpgm")
    k.label('Lkv'); k.set_state(([], []))
    phase1_KV(lambda i: [])
    k.label('Lend1'); e("s_endpgm")
    kstart('red_kernel')
    prologue(256, 'Lend2')
    e(f"s_cmp_lg_u32 s{sGSEL}, 7\ns_cbranch_scc1 Lend2\ns_waitcnt lgkmcnt(0)")
    p1_common_setup()
    reducer()
    k.label('Lend2'); e("s_endpgm")
    kstart('p2_kernel')
    prologue(256, 'Lend3')
    e(f"s_cmp_eq_u32 s{sGSEL}, 7\ns_cbranch_scc1 Lend3\ns_waitcnt lgkmcnt(0)")
    p1_common_setup()
    p2_setup()
    phase2(0, {})
    k.label('Lend3'); e("s_endpgm")
    body, nnop = k.render()
    tail = '.section .rodata,"a"\n' + "".join('.p2align 6\n' + kd(n) for n in names)
    out = head + body + tail
outp = [a for a in sys.argv[1:] if not a.startswith('--')]
open(outp[0] if outp else f'cdna_kernels/{NAME}.s', 'w').write(out)
print("nops inserted:", nnop, "lines:", out.count('\n'))
```

```python
import sys, math, struct
sys.path.insert(0, 'gen')
from dsl import *

NAME = "parallel_sum__linear_attn_block__mixer_channel_mlp__prompt"
STAMPS = '--stamps' in sys.argv
DBG = set(a[6:] for a in sys.argv if a.startswith('--dbg-'))
def f32(x): return '0x%08x' % struct.unpack('<I', struct.pack('<f', x))[0]

EPOCH = 0
FLH = 0x1000
FLM = 0x3000
FLZ = 0x3400
ZT = 0x3800
STATS = 0x8000
CSG = 0x10000
MB = 0x40000
KVP = 0x100000
HQ = 0x200000
WS_USED = 0xAC0000
DUMP = 0x7000000
STAMP_OFF = 0x8000000
SLOT = 49152
SCR = 3 * SLOT
LDS_BYTES = 163840
EPS = 1e-5
LOG2E = math.log2(math.e)
GC0 = -2.0 * math.sqrt(2.0 / math.pi) * LOG2E
GC1 = 0.044715
SPIN_MAX = 30000

sW = 3
pX, pWQKV, pWO, pBX, pW1, pB1, pW2, pB2, pOUT, pDBG, pWS = 4, 6, 8, 10, 12, 14, 16, 18, 20, 22, 24
sXCD, sSUB, sGSEL, sRB, sCC = 26, 27, 28, 29, 30
sT0, sT1, sT2, sT3, sT4 = 31, 32, 33, 34, 35
rX, rW0, rW1, rW2, rWS, rW2G, rMISC = 36, 40, 44, 48, 52, 56, 60
sSOX, sSO0, sSO1, sSO2 = 64, 65, 66, 67
sPSTEP0 = 68
sM0X, sM0W = 71, 72
sLO, sHI = 73, 74
sC0 = 75
sMASK = 76
sHALF = 78
sTAB = 80
sPM = 87
sEPS = 88
sMK2 = 90
sMG = 92
sPD = 93
sTAG = 94
sCT, sTB = 95, 96
sTILE0 = 97
sM0P = 98
sMEAN = 99
sSTAMP = 100
sENTRY = 10

k = K()
e = k.e
outline = []

def srd(r, ptr, nbytes):
    e(f"s_mov_b32 s{r}, s{ptr}\ns_and_b32 s{r+1}, s{ptr+1}, 0xffff\ns_mov_b32 s{r+2}, {nbytes}\ns_mov_b32 s{r+3}, 0x20000")
WS = f"s[{rWS}:{rWS+3}]"
HALF = f"s[{sHALF}:{sHALF+1}]"

def stamp(idx, wave=0, chunk=False):
    if not STAMPS: return
    if ('chunks' in DBG) != chunk and idx > 1: return
    L = k.newlabel('Lst')
    st = k.state()
    e(f"s_cmp_lg_u32 s{sW}, {wave}\ns_cbranch_scc1 {L}")
    if 'dbgout' in DBG:
        wg = [int(a[5:]) for a in sys.argv if a.startswith('--wg=')][0]
        e(f"s_cmp_lg_u32 s2, {wg}\ns_cbranch_scc1 {L}")
        e(f"s_memrealtime s[{sSTAMP}:{sSTAMP+1}]\ns_waitcnt lgkmcnt(0)")
        e(f"s_sub_u32 s{sSTAMP}, s{sSTAMP}, s{sENTRY}\nv_mov_b32 v254, s{sSTAMP}\nv_mov_b32 v253, {4*idx}")
        e(f"global_store_dword v253, v254, s[{pDBG}:{pDBG+1}]")
    else:
        e(f"s_memrealtime s[{sSTAMP}:{sSTAMP+1}]\ns_memtime vcc\ns_waitcnt lgkmcnt(0)")
        e(f"v_mov_b32 v254, s{sSTAMP}\nv_mov_b32 v255, s{sSTAMP+1}")
        e(f"s_lshl_b32 s{sSTAMP}, s2, 8\ns_add_u32 s{sSTAMP}, s{sSTAMP}, {STAMP_OFF + 8*idx}\nv_mov_b32 v253, s{sSTAMP}")
        e(f"global_store_dwordx2 v253, v[254:255], s[{pWS}:{pWS+1}]")
        e(f"s_nop 1\nv_mov_b32 v254, vcc_lo\nv_mov_b32 v255, vcc_hi")
        e(f"global_store_dwordx2 v253, v[254:255], s[{pWS}:{pWS+1}] offset:128")
    k.label(L)
    k.set_state(st)

def emit_item(x):
    return x() if callable(x) else e(x)

vFL = 250
def flag_set(soff, after_tok):
    if after_tok is None: e("s_waitcnt vmcnt(0)")
    else: k.wait(vm=after_tok)
    e(f"v_mov_b32 v{vFL}, s{sTAG}\nv_mov_b32 v{vFL+1}, 0\ns_mov_b64 exec, 1")
    e(f"buffer_store_dword v{vFL}, v{vFL+1}, {WS}, s{soff} offen sc1")
    e("s_mov_b64 exec, -1")

def poll(vaddr):
    Lp, Ld = k.newlabel('Lpl'), k.newlabel('Lpl')
    e(f"s_mov_b32 s{sT2}, {SPIN_MAX}")
    k.label(Lp)
    e(f"buffer_load_dword v{vFL}, v{vaddr}, {WS}, 0 offen sc1\ns_waitcnt vmcnt(0)")
    e(f"v_cmp_ne_u32 vcc, s{sTAG}, v{vFL}\ns_and_b64 vcc, vcc, s[{sMASK}:{sMASK+1}]\ns_cbranch_scc0 {Ld}")
    e(f"s_sub_u32 s{sT2}, s{sT2}, 1\ns_cbranch_scc1 {Ld}\ns_sleep 1\ns_branch {Lp}")
    k.label(Ld)

A_LIST = [6 * (p // 3) + p % 3 for p in range(29)]
B_LIST = [6 * (p // 3) + 3 + p % 3 for p in range(27)]
LISTS = [A_LIST[:28], [A_LIST[28]] + B_LIST]
def tiles_of_wave(w): return LISTS[w >> 2][7 * (w & 3): 7 * (w & 3) + 7]
vPD0 = 2
P_SLOT = [1, 2, 0]
def unit_pos(u):
    if u >= 9: u -= 9
    return P_SLOT[u // 3] * SLOT + (u % 3) * 2048

def p2_setup_items():
    it = []
    it.append(f"s_lshl_b32 s{sT0}, s{sLO}, 3\ns_cmp_eq_u32 s{sHI}, 0")
    for j in range(7):
        ca = sum(tiles_of_wave(q)[j] << (8 * q) for q in range(4))
        cb = sum(tiles_of_wave(4 + q)[j] << (8 * q) for q in range(4))
        it[-1] += f"\ns_mov_b32 s{sTAB+j}, {cb:#x}\ns_cselect_b32 s{sTAB+j}, {ca:#x}, s{sTAB+j}"
    for j in range(7):
        it[-1] += f"\ns_lshr_b32 s{sTAB+j}, s{sTAB+j}, s{sT0}\ns_and_b32 s{sTAB+j}, s{sTAB+j}, 0xff"
    g = f"s_mov_b32 s{sPM}, 0"
    for w in range(8):
        m = 0
        for t in tiles_of_wave(w): m |= 1 << (t // 3)
        g += f"\ns_cmp_eq_u32 s{sW}, {w}\ns_cselect_b32 s{sPM}, {m:#x}, s{sPM}"
    it.append(g)
    r = rW2G
    it.append(f"s_mov_b32 s{r}, s{pW2}\ns_and_b32 s{r+1}, s{pW2+1}, 0xffff\ns_mov_b32 s{r+2}, {1792*896}\ns_mov_b32 s{r+3}, 0x20000\n"
              f"s_cmp_eq_u32 s{sGSEL}, 7\ns_cselect_b32 s{r+2}, 0, s{r+2}")
    it.append(f"""v_lshrrev_b32 v4, 3, v0
v_mul_u32_u24 v4, 896, v4
v_bfe_u32 v5, v0, 4, 1
v_lshlrev_b32 v5, 2, v5
v_and_b32 v6, 7, v0
v_xor_b32 v5, v5, v6
v_lshl_add_u32 v4, v5, 4, v4
s_lshl_b32 s{sT0}, s{sCT}, 7
v_add_u32 v{vPD0}, s{sT0}, v4
v_add_u32 v{vPD0+1}, 7168, v{vPD0}
s_mul_i32 s{sM0P}, s{sW}, 6144""")
    return it

def unit_dma(u):
    j, s = divmod(u, 2)
    out = []
    for jj in range(2):
        g = ""
        if jj == 0:
            g += f"s_mul_i32 s{sPD}, s{sTAB+j}, 28672\n"
            if s: g += f"s_add_u32 s{sPD}, s{sPD}, 14336\n"
        g += f"s_add_u32 m0, s{sM0P}, {unit_pos(u) + jj*1024}\n"
        g += f"buffer_load_dwordx4 v{vPD0+jj}, s[{rW2G}:{rW2G+3}], s{sPD} offen lds"
        out.append(g)
    return out
def p2_dma(pc): return [g for u in range(3 * pc, 3 * pc + 3) for g in unit_dma(u)]

vDX0, vDX1, vDW0 = 8, 9, 10
vAX = 13
vAW = 17
vAX2 = 21
vBIAS = 25
vSEL = 28
vXB = 32
vWB = 48
vACC = 72
vCSA = 136
vROW = 148
vRU = 152
vGR = 160
vRT = 164
vSG = 168
vCG = 172
vGA = 188
vE = 192

def p1_dma(kind, i):
    slot = (i % 3) * SLOT
    out = []
    out.append(f"s_lshl_b32 s{sSOX}, s{sCC}, 7\ns_add_u32 m0, s{sM0X}, {slot}\nbuffer_load_dwordx4 v{vDX0}, s[{rX}:{rX+3}], s{sSOX} offen lds")
    out.append(f"s_add_u32 m0, s{sM0X}, {slot + 1024}\nbuffer_load_dwordx4 v{vDX1}, s[{rX}:{rX+3}], s{sSOX} offen lds")
    if kind == 'M':
        for lc in range(3):
            out.append(f"s_mul_i32 s{sSO0+lc}, s{sCC}, s{sPSTEP0+lc}\ns_add_u32 m0, s{sM0W}, {slot + lc*8192}\n"
                       f"buffer_load_dwordx4 v{vDW0+lc}, s[{rW0+4*lc}:{rW0+4*lc+3}], s{sSO0+lc} offen lds")
    else:
        for kv in range(2):
            for jj in range(2):
                g = ""
                if kv == 0 and jj == 0: g += f"s_mul_i32 s{sSO0}, s{sCC}, {64*2688}\ns_add_u32 s{sSO1}, s{sSO0}, 896\n"
                g += f"s_add_u32 m0, s{sM0W}, {slot + kv*16384 + jj*1024}\n"
                g += f"buffer_load_dwordx4 v{vDW0+jj}, s[{rW0}:{rW0+3}], s{sSO0+kv} offen lds"
                out.append(g)
    out[-1] += f"\ns_add_u32 s{sCC}, s{sCC}, 1\ns_cmp_eq_u32 s{sCC}, 7\ns_cselect_b32 s{sCC}, 0, s{sCC}"
    return out

def prologue():
    if 'dbgout' in DBG: e(f"s_memrealtime s[{sSTAMP}:{sSTAMP+1}]")
    e(f"s_load_dwordx16 s[4:19], s[0:1], 0\ns_load_dwordx4 s[20:23], s[0:1], 64\ns_load_dwordx2 s[24:25], s[0:1], 80")
    e(f"s_cmp_ge_u32 s2, 256\ns_cbranch_scc1 Lend")
    e(f"v_lshrrev_b32 v1, 6, v0\nv_lshlrev_b32 v4, 7, v0\nv_and_b32 v0, 63, v0\nv_readfirstlane_b32 s{sW}, v1")
    e(f"s_getpc_b64 s[{sMASK}:{sMASK+1}]")
    k.label('Lpc')
    e(f"v_min_u32 v4, Lcode_end-Lpc-4, v4")
    e(f"global_load_dword v249, v4, s[{sMASK}:{sMASK+1}]")
    e(f"s_and_b32 s{sXCD}, s2, 7\ns_lshr_b32 s{sT0}, s2, 3\ns_and_b32 s{sSUB}, s{sT0}, 3\ns_lshr_b32 s{sGSEL}, s{sT0}, 2")
    e(f"s_lshr_b32 s{sT0}, s{sXCD}, 1\ns_lshl_b32 s{sT0}, s{sT0}, 2\ns_add_u32 s{sRB}, s{sT0}, s{sSUB}")
    e(f"s_and_b32 s{sLO}, s{sW}, 3\ns_lshr_b32 s{sHI}, s{sW}, 2")
    e(f"s_lshl_b32 s{sT0}, s{sGSEL}, 1\ns_add_u32 s{sT0}, s{sT0}, s{sRB}")
    e(f"s_mul_i32 s{sT1}, s{sT0}, 37\ns_lshr_b32 s{sT1}, s{sT1}, 8\ns_mul_i32 s{sT1}, s{sT1}, 7\ns_sub_u32 s{sCC}, s{sT0}, s{sT1}\ns_mov_b32 s{sC0}, s{sCC}")
    e(f"""s_lshl_b32 s{sT0}, s{sRB}, 7
s_lshl_b32 s{sT1}, s{sW}, 4
s_add_u32 s{sT0}, s{sT0}, s{sT1}
v_lshrrev_b32 v4, 3, v0
v_add_u32 v4, s{sT0}, v4
v_mul_u32_u24 v4, 896, v4
v_and_b32 v5, 7, v0
v_lshrrev_b32 v6, 4, v0
v_xor_b32 v6, v5, v6
v_lshl_add_u32 v{vDX0}, v6, 4, v4
v_xor_b32 v6, 4, v6
v_lshl_add_u32 v{vDX1}, v6, 4, v4
v_add_u32 v{vDX1}, 7168, v{vDX1}
s_lshl_b32 s{sM0X}, s{sW}, 11""")
    e(f"""s_lshl_b32 s{sT0}, s2, 3
s_add_u32 s{sT0}, s{sT0}, s{sW}
s_mul_i32 s{sT1}, s{sT0}, 896
v_lshl_add_u32 v7, v0, 4, s{sT1}
v_mov_b32 v5, {DUMP}
v_cmp_gt_u32 vcc, 56, v0
v_cndmask_b32 v7, v5, v7, vcc
v_cndmask_b32 v{vRT+1}, 0, 1.0, vcc
s_lshl_b32 s{sT0}, s{sT0}, 4
s_add_u32 s{sT0}, s{sT0}, {STATS}
v_mov_b32 v6, s{sT0}
v_cmp_eq_u32 vcc, 63, v0
v_cndmask_b32 v{vRT+2}, v5, v6, vcc""")

def after_kernarg():
    e("s_waitcnt lgkmcnt(0)")
    if 'dbgout' in DBG: e(f"s_mov_b32 s{sENTRY}, s{sSTAMP}")
    e(f"s_load_dword s{sTAG}, s[{pWS}:{pWS+1}], {EPOCH}")
    srd(rX, pX, 2048 * 896)
    return e(f"buffer_load_dwordx4 {vr(vROW,4)}, v7, s[{rX}:{rX+3}], 0 offen")

def late_setup():
    srd(rWS, pWS, WS_USED)
    e(f"s_mov_b32 s{sHALF}, 0\ns_mov_b32 s{sHALF+1}, -1\ns_mov_b32 s{sEPS}, {f32(1e-6)}\ns_mov_b32 s{sEPS+1}, {f32(1e-6)}")
    e(f"s_mov_b32 s{sCT}, s{sGSEL}\ns_lshl_b32 s{sTB}, s{sXCD}, 2\ns_add_u32 s{sTB}, s{sTB}, s{sSUB}")
    e(f"""v_lshrrev_b32 v4, 2, v0
v_lshrrev_b32 v5, 4, v0
v_xor_b32 v4, v4, v5
v_and_b32 v4, 1, v4
v_and_b32 v5, 3, v0
v_or_b32 v4, v4, v5
v_cmp_eq_u32 vcc, 0, v4
v_mov_b32 v5, 0x3f803f80
v_cndmask_b32 v{vSEL}, 0, v5, vcc
v_cndmask_b32 v{vSEL+1}, 0, v5, vcc
v_cndmask_b32 v{vSEL+2}, 0, v5, vcc
v_cndmask_b32 v{vSEL+3}, 0, v5, vcc""")
    e(f"""v_and_b32 v4, 31, v0
v_lshlrev_b32 v5, 7, v4
v_add_u32 v5, s{sT3}, v5
v_bfe_u32 v4, v0, 1, 3
v_lshrrev_b32 v6, 5, v0
v_xor_b32 v4, v4, v6
v_lshl_add_u32 v{vAX}, v4, 4, v5""")
    for j in range(1, 4): e(f"v_xor_b32 v{vAX+j}, {32*j}, v{vAX}")
    for j in range(4): e(f"v_add_u32 v{vAX2+j}, {2*SLOT}, v{vAX+j}")
    e(f"s_waitcnt lgkmcnt(0)\ns_mul_i32 s{sTAG}, s{sTAG}, 1664525\ns_add_u32 s{sTAG}, s{sTAG}, 1013904223")

def wave_sum(r):
    o = []
    for m in ("quad_perm:[1,0,3,2] row_mask:0xf", "quad_perm:[2,3,0,1] row_mask:0xf", "row_half_mirror row_mask:0xf", "row_mirror row_mask:0xf",
              "row_bcast:15 row_mask:0xa", "row_bcast:31 row_mask:0xc"):
        o.append(f"v_add_f32_dpp v{r}, v{r}, v{r} {m} bank_mask:0xf")
    return o

def rowstat_items(rtok):
    a = vRT
    it = [lambda: k.wait(vm=rtok)]
    for d in range(4):
        it += [f"v_lshlrev_b32 v{vRU+2*d}, 16, v{vROW+d}", f"v_and_b32 v{vRU+2*d+1}, 0xffff0000, v{vROW+d}"]
    for d in range(4): it.append(f"v_add_f32 v{vROW+d}, v{vRU+2*d}, v{vRU+2*d+1}")
    it += [f"v_add_f32 v{vROW}, v{vROW}, v{vROW+1}", f"v_add_f32 v{vROW+2}, v{vROW+2}, v{vROW+3}", f"v_add_f32 v{a}, v{vROW}, v{vROW+2}"]
    it += wave_sum(a)
    it += [f"v_mul_f32 v{vGR}, {f32(1/448)}, v{a}", f"v_readlane_b32 s{sMEAN}, v{vGR}, 63", f"v_mul_f32 v{a}, s{sMEAN}, v{vRT+1}"]
    for d in range(8): it.append(f"v_sub_f32 v{vRU+d}, v{vRU+d}, v{a}")
    it += [f"v_mul_f32 v{vROW}, v{vRU}, v{vRU}", f"v_mul_f32 v{vROW+1}, v{vRU+1}, v{vRU+1}"]
    for d in range(2, 8): it.append(f"v_fmac_f32 v{vROW+(d&1)}, v{vRU+d}, v{vRU+d}")
    it.append(f"v_add_f32 v{a}, v{vROW}, v{vROW+1}")
    it += wave_sum(a)
    it += [f"v_mul_f32 v{vGR+1}, {f32(1/448)}, v{a}", f"v_mov_b32 v{vGR+2}, s{sTAG}", f"v_mov_b32 v{vGR+3}, s{sTAG}",
           f"buffer_store_dwordx4 {vr(vGR,4)}, v{vRT+2}, {WS}, 0 offen sc1"]
    return it

def colsum_pub_items(nt):
    g = vRU
    it = [f"v_mov_b32 v{g+t}, v{vCSA+4*t}" for t in range(nt)]
    it += [f"v_mov_b32 v{g+t}, s{sTAG}" for t in range(nt, 4)]
    it.append(f"buffer_store_dwordx4 {vr(g,4)}, v{vRT+3}, {WS}, 0 offen sc1")
    return it

def gran_addr_setup(slot_s, pub_cond_s, tok0_s, lane_tok):
    return [f"""s_lshl_b32 s{sT0}, s{slot_s}, 12
s_add_u32 s{sT0}, s{sT0}, {CSG}
v_lshl_add_u32 v{vGA+1}, v0, 4, s{sT0}
s_lshl_b32 s{sT1}, s{sC0}, 9
v_add_u32 v4, s{sT1}, v{vGA+1}
v_mov_b32 v5, {DUMP}
v_cndmask_b32 v4, v4, v5, {HALF}
s_cmp_lt_u32 s{sRB}, 7
s_cselect_b32 s{sT1}, s{pub_cond_s}, 1
s_cmp_eq_u32 s{sT1}, 0
s_cselect_b32 s{sT1}, 0, {DUMP}
v_add_u32 v{vRT+3}, s{sT1}, v4
s_lshl_b32 s{sT0}, s{tok0_s}, 4
s_add_u32 s{sT0}, s{sT0}, {STATS}
v_and_b32 v4, {lane_tok}, v0
v_lshl_add_u32 v{vGA}, v4, 4, s{sT0}"""]

def gran_loads():
    o = [f"buffer_load_dwordx4 {vr(vSG,4)}, v{vGA}, {WS}, 0 offen sc1"]
    for q in range(4): o.append(f"buffer_load_dwordx4 {vr(vCG+4*q,4)}, v{vGA+1}, {WS}, 0 offen offset:{1024*q} sc1")
    return o

def gran_check_items(tokbox):
    Ls, Lb = k.newlabel('Lgs'), k.newlabel('Lgb')
    chk = f"""v_cmp_ne_u32 s[{sMK2}:{sMK2+1}], s{sTAG}, v{vCG+15}
v_cmp_ne_u32 vcc, s{sTAG}, v{vSG+3}
s_andn2_b64 s[{sMK2}:{sMK2+1}], s[{sMK2}:{sMK2+1}], {HALF}
s_or_b64 s[{sMK2}:{sMK2+1}], s[{sMK2}:{sMK2+1}], vcc
v_cmp_ne_u32 vcc, s{sTAG}, v{vCG+3}
s_or_b64 s[{sMK2}:{sMK2+1}], s[{sMK2}:{sMK2+1}], vcc
v_cmp_ne_u32 vcc, s{sTAG}, v{vCG+7}
s_or_b64 s[{sMK2}:{sMK2+1}], s[{sMK2}:{sMK2+1}], vcc
v_cmp_ne_u32 vcc, s{sTAG}, v{vCG+11}
s_or_b64 s[{sMK2}:{sMK2+1}], s[{sMK2}:{sMK2+1}], vcc"""
    def main():
        k.wait(vm=tokbox[0])
        stamp(10, chunk=True)
        e(chk); e(f"s_cbranch_scc1 {Ls}")
        k.label(Lb)
        stamp(11, chunk=True)
    def slow():
        k.label(Ls)
        Lp = k.newlabel('Lgp')
        e(f"s_mov_b32 s{sT2}, {SPIN_MAX}")
        k.label(Lp)
        e(f"s_sub_u32 s{sT2}, s{sT2}, 1\ns_cbranch_scc1 {Lb}\ns_sleep 1")
        for x in gran_loads(): e(x)
        e("s_waitcnt vmcnt(0)")
        e(chk); e(f"s_cbranch_scc1 {Lp}\ns_branch {Lb}")
    outline.append(slow)
    return [main]

def colsum_sum_items(nt, dst):
    it = []
    for t in range(nt): it.append(f"v_cndmask_b32 v{vCG+12+t}, v{vCG+12+t}, 0, {HALF}")
    for t in range(nt): it += [f"v_add_f32 v{vCG+t}, v{vCG+t}, v{vCG+4+t}", f"v_add_f32 v{vCG+8+t}, v{vCG+8+t}, v{vCG+12+t}"]
    for t in range(nt): it.append(f"v_add_f32 v{vCG+t}, v{vCG+t}, v{vCG+8+t}")
    for t in range(nt): it.append(f"v_mov_b32 v{vCG+4+t}, v{vCG+t}")
    for t in range(nt): it.append(f"v_permlane32_swap_b32 v{vCG+t}, v{vCG+4+t}")
    for t in range(nt): it.append(f"v_add_f32 v{dst+t}, v{vCG+t}, v{vCG+4+t}")
    return it

def main_loop(kind, dma_tok, fillers, pre_dma):
    M = kind == 'M'
    nt = 3 if M else 4
    xbuf = (lambda n, u=0: vXB + 4 * (n & 1)) if M else (lambda n, u=0: vXB + 8 * (n & 1) + 4 * u)
    wbuf = (lambda n, t: vWB + 12 * (n & 1) + 4 * t) if M else (lambda n, t: vWB + 8 * (n & 1) + 4 * t)
    def reads(n):
        i, j = divmod(n, 4); sl = i % 3
        xa = (vAX2 if sl == 2 else vAX) + j; xo = SLOT if sl == 1 else 0
        o = []
        if M:
            o.append((f"ds_read_b128 {vr(xbuf(n),4)}, v{xa} offset:{xo}", 'x0'))
            for t in range(3):
                a = vAW + (t & 1) + (2 if sl == 2 else 0); off = xo + j * 2048 + (8192 if t == 2 else 0)
                for rd in range(2):
                    o.append((f"ds_read_b64_tr_b16 {vr(wbuf(n,t)+2*rd,2)}, v{a} offset:{off + rd*512}", f'w{t}'))
        else:
            o.append((f"ds_read_b128 {vr(xbuf(n,0),4)}, v{xa} offset:{xo}", 'x0'))
            for kv in range(2):
                for rd in range(2): o.append((f"ds_read_b64_tr_b16 {vr(wbuf(n,kv)+2*rd,2)}, v{vAW+sl} offset:{kv*16384 + j*4096 + rd*1024}", f'w{kv}'))
            o.append((f"ds_read_b128 {vr(xbuf(n,1),4)}, v{xa} offset:{xo+4096}", 'x1'))
        return o
    per = {n: [] for n in range(28)}
    for first, (last, items) in fillers.items():
        ns = last - first + 1
        for q in range(ns):
            per[first + q] += items[len(items) * q // ns: len(items) * (q + 1) // ns]
    k.wait(vm=dma_tok[0]); e("s_barrier")
    stamp(1)
    tok = {}
    for txt, tag in reads(0): tok[tag] = e(txt)
    pend = []; pend_i = None
    for n in range(28):
        i, j = divmod(n, 4)
        cur = tok; tok = {}
        if j == 3:
            assert not pend
            e("s_waitcnt lgkmcnt(0)")
            if i < 6: k.wait(vm=dma_tok[i + 1])
            e("s_barrier")
            stamp(2 + i, chunk=True)
            pend_i = i + 3
            pend = list(pre_dma.get(i, [])) + (p1_dma(kind, i + 3) if i + 3 < 7 else p2_dma(i + 3 - 7))
            if not M and i == 6: pend = []
        mf = []
        for t in range(nt):
            acc = vr(vACC + 16 * t, 16); cin = '0' if n == 0 else acc
            if M: mf.append((f"v_mfma_f32_32x32x16_bf16 {acc}, {vr(wbuf(n,t),4)}, {vr(xbuf(n),4)}, {cin}", ['x0', f'w{t}']))
            else:
                u, kv = t >> 1, t & 1
                mf.append((f"v_mfma_f32_32x32x16_bf16 {acc}, {vr(xbuf(n,u),4)}, {vr(wbuf(n,kv),4)}, {cin}", [f'x{u}', f'w{kv}']))
        if i == 0:
            for t in range(3 if M else 2):
                acc = vr(vCSA + 4 * t, 4)
                mf.append((f"v_mfma_f32_16x16x32_bf16 {acc}, {vr(vSEL,4)}, {vr(wbuf(n,t),4)}, {'0' if n == 0 else acc}", [f'w{t}']))
        rd = reads(n + 1) if n < 27 else []
        nd = len(pend) if (j == 2 or n == 27) else (len(pend) + 2) // (3 if j == 3 else (3 - j) if j < 2 else 1)
        dm = pend[:nd]; pend = pend[nd:]
        other = spread([('d', x) for x in dm] or [('n', None)], [('f', x) for x in per[n]])
        other = [f for f in other if f[0] != 'n']
        fill = [('r', x) for x in rd] + other
        for kind_, x in spread([('m', x) for x in mf], fill):
            if kind_ == 'm':
                for tg in x[1]: k.wait(lg=cur.get(tg))
                e(x[0])
            elif kind_ == 'r': tok[x[1]] = e(x[0])
            elif kind_ == 'd':
                t = emit_item(x)
                if t is not None: dma_tok[pend_i] = t
            else: emit_item(x)

def gelu_tile(acc, out, kp, sp, tmp):
    o = []
    for h in range(2):
        a = acc + 8 * h; t = tmp + 8 * h
        for p in range(4): o.append(f"v_pk_mul_f32 {vr(t+2*p,2)}, {vr(a+2*p,2)}, {vr(a+2*p,2)}")
        for p in range(4): o.append(f"v_pk_fma_f32 {vr(t+2*p,2)}, {vr(t+2*p,2)}, {vr(kp+2,2)}, {vr(kp,2)} op_sel_hi:[1,0,0]")
        for p in range(4): o.append(f"v_pk_mul_f32 {vr(t+2*p,2)}, {vr(t+2*p,2)}, {vr(a+2*p,2)}")
        for p in range(8): o.append(f"v_exp_f32 v{t+p}, v{t+p}")
        for p in range(4): o.append(f"v_pk_fma_f32 {vr(t+2*p,2)}, {vr(t+2*p,2)}, {vr(sp,2)}, {vr(sp,2)} op_sel_hi:[1,0,0]")
        for p in range(8): o.append(f"v_rcp_f32 v{t+p}, v{t+p}")
        for p in range(4): o.append(f"v_pk_mul_f32 {vr(t+2*p,2)}, {vr(t+2*p,2)}, {vr(a+2*p,2)}")
        for p in range(4): o.append(f"v_cvt_pk_bf16_f32 v{out+4*h+p}, v{t+2*p}, v{t+2*p+1}")
    return o

def phi_tile(acc, out, rfun, rlfun, sel, tmp):
    o = []
    for h in range(2):
        a = acc + 8 * h; t = tmp + 8 * h
        for p in range(4): o.append(f"v_pk_mul_f32 {vr(t+2*p,2)}, {vr(a+2*p,2)}, {rlfun(4*h+p)} op_sel_hi:[1,{sel}]")
        for p in range(4): o.append(f"v_pk_fma_f32 {vr(a+2*p,2)}, {vr(a+2*p,2)}, {rfun(4*h+p)}, {sr(sEPS,2)} op_sel_hi:[1,{sel},0]")
        for p in range(8): o.append(f"v_exp_f32 v{t+p}, v{t+p} clamp")
        for p in range(8): o.append(f"v_max_f32 v{a+p}, s{sEPS}, v{a+p}")
        for p in range(4): o.append(f"v_pk_add_f32 {vr(t+2*p,2)}, {vr(t+2*p,2)}, {vr(a+2*p,2)}")
        for p in range(4): o.append(f"v_cvt_pk_bf16_f32 v{out+4*h+p}, v{t+2*p}, v{t+2*p+1}")
    return o

def lines(s): return [l for l in s.strip().split('\n') if l.strip()]

def phase1_M():
    mg = sMG
    e(f"s_and_b32 s{sT0}, s{sXCD}, 1\ns_mul_i32 s{sT0}, s{sT0}, 6\ns_add_u32 s{mg}, s{sT0}, s{sGSEL}")
    e(f"""v_lshrrev_b32 v4, 3, v0
v_lshl_add_u32 v4, s{sW}, 3, v4
v_bfe_u32 v5, v0, 4, 1
v_lshlrev_b32 v5, 2, v5
v_and_b32 v6, 7, v0
v_xor_b32 v5, v5, v6
v_lshlrev_b32 v5, 4, v5
s_lshl_b32 s{sM0W}, s{sW}, 10
s_add_u32 s{sM0W}, s{sM0W}, 16384""")
    for lc in range(3):
        r = rW0 + 4 * lc
        e(f"""s_mul_i32 s{sT0}, s{mg}, 3
s_add_u32 s{sT0}, s{sT0}, {lc}
s_sub_u32 s{sT1}, s{sT0}, 28
s_cmp_lt_u32 s{sT0}, 35
s_cselect_b32 s{r+2}, {448*2688}, 0
s_cmp_lt_u32 s{sT0}, 28
s_cselect_b32 s{r+2}, {448*3584}, s{r+2}
s_cselect_b32 s{sT0}, s{sT0}, s{sT1}
s_movk_i32 s{sT1}, 2688
s_cselect_b32 s{sT1}, 3584, s{sT1}
s_lshl_b32 s{sT0}, s{sT0}, 7
s_lshl_b32 s{sPSTEP0+lc}, s{sT1}, 6
v_mad_u32_u24 v{vDW0+lc}, v4, s{sT1}, v5
v_add_u32 v{vDW0+lc}, s{sT0}, v{vDW0+lc}
s_mov_b32 s{r+3}, 0x20000""")
    rtok = after_kernarg()
    stamp(0)
    e(f"s_and_b32 s{pW1+1}, s{pW1+1}, 0xffff\ns_and_b32 s{pWQKV+1}, s{pWQKV+1}, 0xffff")
    for lc in range(3):
        r = rW0 + 4 * lc
        e(f"s_cmp_eq_u32 s{sPSTEP0+lc}, {64*3584}\ns_cselect_b32 s{r}, s{pW1}, s{pWQKV}\ns_cselect_b32 s{r+1}, s{pW1+1}, s{pWQKV+1}")
    dma_tok = {}
    for i in range(3):
        for g in p1_dma('M', i): dma_tok[i] = e(g)
    e(f"s_mul_i32 s{sTILE0}, s{mg}, 6\ns_mul_i32 s{sT0}, s{sHI}, 3\ns_add_u32 s{sTILE0}, s{sTILE0}, s{sT0}")
    srd(rMISC, pB1, 3584)
    e(f"s_lshl_b32 s{sT0}, s{sTILE0}, 6\nv_and_b32 v4, 31, v0\nv_lshl_add_u32 v4, v4, 1, s{sT0}")
    for t in range(3): e(f"buffer_load_ushort v{vBIAS+t}, v4, s[{rMISC}:{rMISC+3}], 0 offen offset:{64*t}")
    e(f"""v_lshrrev_b32 v4, 5, v0
v_lshlrev_b32 v4, 3, v4
v_bfe_u32 v5, v0, 2, 2
v_add_u32 v4, v4, v5
v_lshlrev_b32 v4, 7, v4
v_bfe_u32 v5, v0, 4, 1
v_lshl_add_u32 v4, v5, 5, v4
v_and_b32 v5, 3, v0
v_lshl_add_u32 v4, v5, 3, v4
v_bfe_u32 v5, v0, 3, 1
v_lshl_add_u32 v4, v5, 6, v4""")
    for q in range(2):
        e(f"""s_mul_i32 s{sT0}, s{sHI}, 3
s_add_u32 s{sT0}, s{sT0}, {q}
s_and_b32 s{sT1}, s{sT0}, 1
s_lshl_b32 s{sT1}, s{sT1}, 6
s_lshr_b32 s{sT0}, s{sT0}, 1
s_lshl_b32 s{sT0}, s{sT0}, 13
s_add_u32 s{sT0}, s{sT0}, 16384
v_xor_b32 v5, s{sT1}, v4
v_add_u32 v{vAW+q}, s{sT0}, v5
v_add_u32 v{vAW+2+q}, {2*SLOT}, v{vAW+q}""")
    e(f"s_lshl_b32 s{sT3}, s{sLO}, 12")
    late_setup()
    e(f"s_lshl_b32 s{sT4}, s{mg}, 1\ns_add_u32 s{sT4}, s{sT4}, s{sHI}\ns_lshl_b32 s{sT3}, s{sRB}, 7\ns_lshl_b32 s{sT0}, s{sLO}, 5\ns_add_u32 s{sT3}, s{sT3}, s{sT0}")
    for x in gran_addr_setup(sT4, sLO, sT3, 31): e(x)
    gbox = [None]
    gl = gran_loads()
    def last_g():
        gbox[0] = e(gl[-1])
    m, var = vSG, vSG + 1
    r1, w_, rm, sm = vE, vE + 1, vE + 2, vE + 4
    vBA = vE + 8; vAA = vE + 12; vK = vE + 24; R = vE + 32; vC = vE + 40
    aug = gran_check_items(gbox) + lines(f"""v_add_f32 v{r1}, {f32(EPS)}, v{var}
v_mov_b32 v{w_}, {f32(EPS)}
v_fma_f32 v{w_}, v{w_}, v{r1}, v{var}
v_rsq_f32 v{r1}, v{r1}
v_rsq_f32 v{rm}, v{w_}""") + colsum_sum_items(3, vC) + lines(f"""v_mul_f32 v{sm}, v{w_}, v{rm}
v_cvt_pk_bf16_f32 v{R}, -v{m}, v{sm}
v_lshlrev_b32 v{R+1}, 16, v{R}
v_and_b32 v{R+2}, 0xffff0000, v{R}
v_sub_f32 v{R+1}, -v{m}, v{R+1}
v_sub_f32 v{R+2}, v{sm}, v{R+2}
v_cvt_pk_bf16_f32 v{R+3}, -v{m}, v{R+1}
v_cvt_pk_bf16_f32 v{R+4}, v{R+2}, 0
v_cndmask_b32 v{vBA}, v{R+3}, 0, {HALF}
v_cndmask_b32 v{vBA+1}, v{R}, 0, {HALF}
v_cndmask_b32 v{vBA+2}, v{R+4}, 0, {HALF}
v_mov_b32 v{vBA+3}, 0
v_mul_f32 v{vK}, {f32(GC0)}, v{rm}
v_mul_f32 v{R+5}, v{rm}, v{rm}
v_mul_f32 v{R+5}, {f32(GC1)}, v{R+5}
v_mul_f32 v{vK+2}, v{R+5}, v{vK}
v_mov_b32 v{vK+4}, v{r1}
v_mul_f32 v{vK+6}, {f32(LOG2E)}, v{r1}""")
    for t in range(3):
        c = vC + t; a = vAA + 4 * t
        aug += lines(f"""v_cvt_pk_bf16_f32 v{a}, v{c}, v{c}
v_and_b32 v{R+6}, 0xffff0000, v{a}
v_sub_f32 v{R+6}, v{c}, v{R+6}
v_lshlrev_b32 v{R+7}, 16, v{vBIAS+t}
v_cvt_pk_bf16_f32 v{a+1}, v{R+6}, v{R+7}
v_mov_b32 v{a+2}, v{vBIAS+t}
v_mov_b32 v{a+3}, 0""")
    aug.append(f"""s_lshl_b32 s{sT0}, s{sRB}, 2
s_add_u32 s{sT0}, s{sT0}, s{sLO}
s_lshl_b32 s{sT4}, s{sT0}, 7
s_mul_i32 s{sT0}, s{sT0}, {140*1024}
s_lshl_b32 s{sT1}, s{sTILE0}, 11
s_add_u32 s{sT3}, s{sT0}, s{sT1}
s_add_u32 s{sT3}, s{sT3}, {HQ}
s_lshl_b32 s{sT1}, s{mg}, 3
s_add_u32 s{sT4}, s{sT4}, s{sT1}
s_lshl_b32 s{sT1}, s{sHI}, 2
s_add_u32 s{sT4}, s{sT4}, s{sT1}
s_add_u32 s{sT4}, s{sT4}, {FLH}
v_lshlrev_b32 v4, 4, v0""")
    fillers = {0: (4, rowstat_items(rtok)), 6: (6, colsum_pub_items(3)), 8: (11, p2_setup_items()), 23: (27, aug)}
    main_loop('M', dma_tok, fillers, {4: gl[:-1] + [last_g]})
    for t in range(3):
        acc = vr(vACC + 16 * t, 16)
        e(f"v_mfma_f32_32x32x16_bf16 {acc}, {vr(vAA+4*t,4)}, {vr(vBA,4)}, {acc}")
    stamp(2); stamp(9, chunk=True)
    vT = vXB; vO = vWB
    def store(t):
        e(f"buffer_store_dwordx4 {vr(vO+8*t,4)}, v4, {WS}, s{sT3} offen offset:{(2048*t) % 4096} sc1")
        r = e(f"buffer_store_dwordx4 {vr(vO+8*t+4,4)}, v4, {WS}, s{sT3} offen offset:{(2048*t) % 4096 + 1024} sc1")
        if t == 1: e(f"s_add_u32 s{sT3}, s{sT3}, 4096")
        return r
    ph = lambda t: phi_tile(vACC + 16 * t, vO + 8 * t, lambda p: vr(vK + 4, 2), lambda p: vr(vK + 6, 2), 0, vT)
    e(f"s_nop 7\ns_cmp_ge_u32 s{sTILE0}, 56\ns_cbranch_scc1 Lphi3")
    st0 = k.state()
    for t in range(2):
        for x in gelu_tile(vACC + 16 * t, vO + 8 * t, vK, sm, vT): e(x)
        store(t)
    e(f"s_cmp_eq_u32 s{sTILE0}, 54\ns_cbranch_scc1 Lphi1")
    for x in gelu_tile(vACC + 32, vO + 16, vK, sm, vT): e(x)
    k.label('Lst2')
    last = store(2)
    k.label('Lstdone')
    st1 = k.state()
    def phis():
        k.label('Lphi3'); k.set_state(st0)
        for x in ph(0): e(x)
        store(0)
        e(f"s_cmp_eq_u32 s{sTILE0}, 69\ns_cbranch_scc1 Lstdone")
        for x in ph(1): e(x)
        store(1)
        k.label('Lphi1')
        for x in ph(2): e(x)
        e("s_branch Lst2")
    outline.append(phis)
    stamp(3); stamp(12, 4)
    return sT4

def phase1_KV():
    g = sMG
    e(f"""s_and_b32 s{sT0}, s{sXCD}, 1
s_mul_i32 s{sT1}, s{sT0}, 3
s_add_u32 s{sT3}, s{sT0}, 1
s_cmp_eq_u32 s{sGSEL}, 6
s_cselect_b32 s{g}, s{sT1}, s{sT3}
s_mul_i32 s{sT0}, s{g}, 224
s_cmp_eq_u32 s{g}, 3
s_cselect_b32 s{sT0}, 640, s{sT0}
s_add_u32 s{sT0}, s{sT0}, 896
v_lshrrev_b32 v4, 4, v0
v_lshlrev_b32 v5, 2, v4
v_sub_u32 v5, v0, v5
v_and_b32 v5, 15, v5
v_lshl_add_u32 v5, v5, 4, s{sT0}
v_lshl_add_u32 v4, s{sW}, 3, v4
v_mul_u32_u24 v4, 2688, v4
v_add_u32 v{vDW0}, v4, v5
v_add_u32 v{vDW0+1}, {4*2688}, v{vDW0}
s_lshl_b32 s{sM0W}, s{sW}, 11
s_add_u32 s{sM0W}, s{sM0W}, 16384""")
    rtok = after_kernarg()
    stamp(0)
    srd(rW0, pWQKV, 448 * 2688)
    dma_tok = {}
    for i in range(3):
        for gg in p1_dma('KV', i): dma_tok[i] = e(gg)
    e(f"""s_lshl_b32 s{sTILE0}, s{g}, 2
s_add_u32 s{sTILE0}, s{sTILE0}, s{sLO}
s_cmp_eq_u32 s{g}, 3
s_cselect_b32 s{sT1}, 32, 0
s_mul_i32 s{sT0}, s{sLO}, 56
s_add_u32 s{sT1}, s{sT1}, s{sT0}
v_bfe_u32 v4, v0, 2, 2
v_lshl_add_u32 v5, v4, 6, s{sT1}
v_bfe_u32 v6, v0, 4, 1
v_lshl_add_u32 v5, v6, 5, v5
v_and_b32 v6, 3, v0
v_lshl_add_u32 v5, v6, 3, v5
v_and_b32 v5, 255, v5
v_lshrrev_b32 v6, 5, v0
v_lshl_add_u32 v4, v6, 3, v4
v_lshl_add_u32 v5, v4, 8, v5
v_add_u32 v{vAW}, 16384, v5
v_add_u32 v{vAW+1}, {16384+SLOT}, v5
v_add_u32 v{vAW+2}, {16384+2*SLOT}, v5
s_lshl_b32 s{sT3}, s{sHI}, 13""")
    late_setup()
    e(f"s_add_u32 s{sT4}, s{sTILE0}, 24\ns_lshl_b32 s{sT3}, s{sRB}, 7\ns_lshl_b32 s{sT0}, s{sHI}, 6\ns_add_u32 s{sT3}, s{sT3}, s{sT0}")
    for x in gran_addr_setup(sT4, sHI, sT3, 63): e(x)
    gbox = [None]
    gl = gran_loads()
    def last_g():
        gbox[0] = e(gl[-1])
    m, var = vSG, vSG + 1
    r1 = vROW; R = vRU; vXA = vCSA; vWA = vGR - 16 + 16
    vXA = 136
    vWA = 144
    r1 = 152; R = 154; vC = 160
    vR = 184
    rbox = [None]
    aug = gran_check_items(gbox) + lines(f"""v_add_f32 v{r1}, {f32(EPS)}, v{var}
v_rsq_f32 v{r1}, v{r1}
s_lshl_b32 s{sT0}, s{sW}, 9
s_add_u32 s{sT0}, s{sT0}, {SCR}
v_lshl_add_u32 v6, v0, 2, s{sT0}
v_lshrrev_b32 v7, 5, v0
v_lshl_add_u32 v7, v7, 4, s{sT0}
v_mul_f32 v{r1+1}, {f32(LOG2E)}, v{r1}
ds_write_b32 v6, v{r1}
ds_write_b32 v6, v{r1+1} offset:256""") + colsum_sum_items(2, vC)
    for u in range(2):
        for gq in range(4):
            aug.append(f"ds_read_b128 {vr(vR+16*u+4*gq,4)}, v7 offset:{128*u+32*gq}")
            aug.append(f"ds_read_b128 {vr(vR+32+16*u+4*gq,4)}, v7 offset:{256+128*u+32*gq}")
    aug += lines(f"""v_cvt_pk_bf16_f32 v{R}, -v{m}, 0
v_lshlrev_b32 v{R+1}, 16, v{R}
v_sub_f32 v{R+1}, -v{m}, v{R+1}
v_cvt_pk_bf16_f32 v{R+3}, -v{m}, v{R+1}
v_cndmask_b32 v{vXA}, v{R+3}, 0, {HALF}
v_cndmask_b32 v{vXA+1}, v{R}, 0, {HALF}
v_mov_b32 v{vXA+2}, 0
v_mov_b32 v{vXA+3}, 0
v_cndmask_b32 v{vXA+4}, 0, v{R+3}, {HALF}
v_cndmask_b32 v{vXA+5}, 0, v{R}, {HALF}
v_mov_b32 v{vXA+6}, 0
v_mov_b32 v{vXA+7}, 0""")
    for kv in range(2):
        c = vC + kv; a = vWA + 4 * kv
        aug += lines(f"""v_cvt_pk_bf16_f32 v{a}, v{c}, v{c}
v_and_b32 v{R+4}, 0xffff0000, v{a}
v_sub_f32 v{R+4}, v{c}, v{R+4}
v_cvt_pk_bf16_f32 v{a+1}, v{R+4}, 0
v_mov_b32 v{a+2}, 0
v_mov_b32 v{a+3}, 0""")
    fillers = {0: (4, rowstat_items(rtok)), 6: (6, colsum_pub_items(2)), 8: (11, p2_setup_items()), 23: (27, aug)}
    main_loop('KV', dma_tok, fillers, {4: gl[:-1] + [last_g]})
    for t in range(4):
        u, kv = t >> 1, t & 1
        acc = vr(vACC + 16 * t, 16)
        e(f"v_mfma_f32_32x32x16_bf16 {acc}, {vr(vXA+4*u,4)}, {vr(vWA+4*kv,4)}, {acc}")
    stamp(2); stamp(9, chunk=True)
    vT = vXB; vPK = 48; vPV = 56; vKV = 160
    e(f"v_mov_b32 v7, 0x3f803f80\ns_mov_b32 s{sMK2}, 0x10000000\ns_mov_b32 s{sMK2+1}, 0x10000000\ns_waitcnt lgkmcnt(0)")
    for u in range(2):
        ak, av = vACC + 32 * u, vACC + 32 * u + 16
        for x in phi_tile(ak, vPK, lambda p: vr(vR + 16 * u + 2 * p, 2), lambda p: vr(vR + 32 + 16 * u + 2 * p, 2), 1, vT): e(x)
        for p in range(8): e(f"v_pk_mul_f32 {vr(av+2*p,2)}, {vr(av+2*p,2)}, {vr(vR+16*u+2*p,2)}")
        for p in range(8): e(f"v_cvt_pk_bf16_f32 v{vPV+p}, v{av+2*p}, v{av+2*p+1}")
        for p in range(8): e(f"v_cndmask_b32 v{vPV+p}, v{vPV+p}, v7, s[{sMK2}:{sMK2+1}]")
        for h in range(2):
            cin = '0' if (u == 0 and h == 0) else vr(vKV, 16)
            e(f"v_mfma_f32_32x32x16_bf16 {vr(vKV,16)}, {vr(vPV+4*h,4)}, {vr(vPK+4*h,4)}, {cin}")
    e(f"""s_add_u32 s{sT0}, s{sLO}, 4
s_mul_i32 s{sT0}, s{sT0}, 6144
v_lshl_add_u32 v6, v0, 4, s{sT0}
s_lshl_b32 s{sT0}, s{sTILE0}, 4
s_add_u32 s{sT0}, s{sT0}, s{sRB}
s_lshl_b32 s{sT0}, s{sT0}, 12
s_add_u32 s{sT0}, s{sT0}, {KVP}
v_lshlrev_b32 v4, 4, v0
v_mov_b32 v5, 0xff
s_lshr_b32 s{sT1}, s{sTAG}, 8
s_lshr_b32 s{sT3}, s{sTAG}, 16
s_lshr_b32 s{sT4}, s{sTAG}, 24""")
    L1, L2 = k.newlabel('Lc'), k.newlabel('Lc')
    e(f"s_nop 3\ns_cmp_lg_u32 s{sHI}, 0\ns_cbranch_scc1 {L1}")
    for gq in range(4): e(f"ds_write_b128 v6, {vr(vKV+4*gq,4)} offset:{1024*gq}")
    e("s_waitcnt lgkmcnt(0)")
    k.label(L1)
    e("s_barrier")
    st = k.state()
    e(f"s_cmp_eq_u32 s{sHI}, 0\ns_cbranch_scc1 {L2}")
    tk = [e(f"ds_read_b128 {vr(vT+4*gq,4)}, v6 offset:{1024*gq}") for gq in range(4)]
    tb = [sTAG, sT1, sT3, sT4]
    for gq in range(4):
        k.wait(lg=tk[gq])
        for p in range(2): e(f"v_pk_add_f32 {vr(vKV+4*gq+2*p,2)}, {vr(vKV+4*gq+2*p,2)}, {vr(vT+4*gq+2*p,2)}")
        for d in range(4): e(f"v_bfi_b32 v{vKV+4*gq+d}, v5, s{tb[d]}, v{vKV+4*gq+d}")
        e(f"buffer_store_dwordx4 {vr(vKV+4*gq,4)}, v4, {WS}, s{sT0} offen offset:{1024*gq} sc1")
    k.label(L2)
    k.set_state(st)
    stamp(3); stamp(12, 4)

def reducer():
    hd, hf = sT3, sT4
    e(f"s_lshr_b32 s{hd}, s{sTB}, 1\ns_and_b32 s{hf}, s{sTB}, 1")
    srd(rMISC, pWO, 448 * 896)
    WOB = SLOT
    AF = SLOT + 16384
    e(f"""s_mul_i32 s{sT0}, s{hf}, 7
s_add_u32 s{sCT}, s{sT0}, s{sW}
s_mul_i32 s{sT0}, s{hd}, 28
v_lshrrev_b32 v4, 2, v0
v_add_u32 v4, s{sT0}, v4
v_mul_u32_u24 v4, 896, v4
v_and_b32 v5, 3, v0
v_lshl_add_u32 v4, v5, 4, v4
s_lshl_b32 s{sT0}, s{sCT}, 6
v_add_u32 v4, s{sT0}, v4
v_add_u32 v5, {16*896}, v4
s_lshl_b32 s{sT1}, s{sW}, 11
s_add_u32 m0, s{sT1}, {WOB}
buffer_load_dwordx4 v4, s[{rMISC}:{rMISC+3}], 0 offen lds
s_add_u32 m0, s{sT1}, {WOB+1024}""")
    wtok = e(f"buffer_load_dwordx4 v5, s[{rMISC}:{rMISC+3}], 0 offen lds")
    e(f"""v_lshrrev_b32 v6, 5, v0
v_lshlrev_b32 v6, 2, v6
v_bfe_u32 v7, v0, 2, 2
v_add_u32 v6, v6, v7
v_lshlrev_b32 v6, 6, v6
v_bfe_u32 v7, v0, 4, 1
v_lshl_add_u32 v6, v7, 5, v6
v_and_b32 v7, 3, v0
v_lshl_add_u32 v6, v7, 3, v6
s_add_u32 s{sT1}, s{sT1}, {WOB}
v_add_u32 v14, s{sT1}, v6""")
    e(f"""s_mul_i32 s{sT0}, s{hd}, 7
v_lshrrev_b32 v6, 5, v0
v_and_b32 v7, 31, v0
v_lshlrev_b32 v7, 4, v7""")
    for gq in range(4):
        a = 8 + gq
        e(f"""v_add_u32 v12, s{sT0}, v6
v_add_u32 v12, {2*gq}, v12
v_lshrrev_b32 v13, 2, v12
v_lshl_add_u32 v{a}, v13, 10, v7
v_and_b32 v13, 1, v12
v_lshl_add_u32 v{a}, v13, 9, v{a}
v_bfe_u32 v13, v12, 1, 1
v_lshl_add_u32 v{a}, v13, 3, v{a}""")
    e(f"v_mov_b32 v13, {DUMP}\nv_cndmask_b32 v11, v11, v13, {HALF}")
    e(f"""v_and_b32 v4, 31, v0
v_lshrrev_b32 v5, 2, v4
v_add_u32 v5, s{sT0}, v5
v_lshrrev_b32 v15, 2, v5
v_lshlrev_b32 v15, 5, v15
v_and_b32 v12, 1, v5
v_lshl_add_u32 v15, v12, 4, v15
v_bfe_u32 v12, v5, 1, 1
v_lshl_add_u32 v15, v12, 3, v15
v_and_b32 v12, 3, v0
v_lshl_add_u32 v15, v12, 1, v15
v_add_u32 v15, {ZT}, v15
s_cmp_eq_u32 s{sCT}, 3
s_cselect_b32 s{sMK2+1}, 0x0fffffff, 0
s_mov_b32 s{sMK2}, 0
v_cndmask_b32 v15, v13, v15, s[{sMK2}:{sMK2+1}]
s_cmp_eq_u32 s{sW}, 3
s_cselect_b32 s{sMK2+1}, -1, 0""")
    k.wait(vm=wtok)
    vWF = 16
    for s in range(2):
        for rd in range(2): e(f"ds_read_b64_tr_b16 {vr(vWF+4*s+2*rd,2)}, v14 offset:{s*1024+rd*512}")
    L1 = k.newlabel('Lr')
    e(f"s_cmp_ge_u32 s{sW}, 4\ns_cbranch_scc1 {L1}")
    vP = 32; vX = 96
    e(f"""s_lshl_b32 s{sPD}, s{hd}, 16
s_lshl_b32 s{sT1}, s{sW}, 10
s_add_u32 s{sPD}, s{sPD}, s{sT1}
s_add_u32 s{sPD}, s{sPD}, {KVP}
v_lshlrev_b32 v4, 4, v0
s_lshr_b32 s{sSO0}, s{sTAG}, 8
s_lshr_b32 s{sSO1}, s{sTAG}, 16
s_lshr_b32 s{sSO2}, s{sTAG}, 24
s_lshr_b32 s{sT0}, s{sW}, 1
s_lshl_b32 s{sT0}, s{sT0}, 10
s_and_b32 s{sT1}, s{sW}, 1
s_lshl_b32 s{sT1}, s{sT1}, 3
s_add_u32 s{sT0}, s{sT0}, s{sT1}
s_add_u32 s{sT0}, s{sT0}, {AF}
v_lshl_add_u32 v5, v0, 4, s{sT0}
s_mov_b32 s{sT2}, {SPIN_MAX}""")
    tb = [sTAG, sSO0, sSO1, sSO2]
    Lp, Ld = k.newlabel('Lrp'), k.newlabel('Lrd')
    k.label(Lp)
    e(f"s_mov_b32 s{sT0}, s{sPD}")
    toks = []
    for rb in range(16):
        toks.append(e(f"buffer_load_dwordx4 {vr(vP+4*rb,4)}, v4, {WS}, s{sT0} offen sc1"))
        if rb < 15: e(f"s_add_u32 s{sT0}, s{sT0}, 4096")
    for rb in range(16):
        k.wait(vm=toks[rb])
        for d in range(4):
            if rb == 0: e(f"v_xor_b32 v{vX+d}, s{tb[d]}, v{vP+d}")
            else: e(f"v_bitop3_b32 v{vX+d}, v{vX+d}, v{vP+4*rb+d}, s{tb[d]} bitop3:0xf6")
        if rb: e(f"v_pk_add_f32 {vr(vP,2)}, {vr(vP,2)}, {vr(vP+4*rb,2)}\nv_pk_add_f32 {vr(vP+2,2)}, {vr(vP+2,2)}, {vr(vP+4*rb+2,2)}")
    e(f"""v_or3_b32 v{vX}, v{vX}, v{vX+1}, v{vX+2}
v_or_b32 v{vX}, v{vX}, v{vX+3}
v_and_b32 v{vX}, 0xff, v{vX}
v_cmp_ne_u32 vcc, 0, v{vX}
s_cmp_eq_u64 vcc, 0
s_cbranch_scc1 {Ld}
s_sub_u32 s{sT2}, s{sT2}, 1
s_cbranch_scc0 {Lp}""")
    k.label(Ld)
    stamp(4)
    e(f"""v_cvt_pk_bf16_f32 v6, v{vP}, v{vP}
buffer_store_short v6, v15, {WS}, 0 offen sc1
v_cvt_pk_bf16_f32 v12, v{vP}, v{vP+1}
v_cvt_pk_bf16_f32 v13, v{vP+2}, v{vP+3}
v_cndmask_b32 v12, v12, 0, s[{sMK2}:{sMK2+1}]
v_cndmask_b32 v13, v13, 0, s[{sMK2}:{sMK2+1}]
ds_write_b64 v5, v[12:13]""")
    k.label(L1)
    e(f"""v_lshlrev_b32 v5, 4, v0
v_add_u32 v5, {AF}, v5
s_mul_i32 s{sT1}, s{sCT}, {28*1024}
s_add_u32 s{sT1}, s{sT1}, {MB}
s_waitcnt lgkmcnt(0)
s_barrier""")
    Lend = k.newlabel('Lr')
    e(f"s_cmp_eq_u32 s{sW}, 7\ns_cbranch_scc1 {Lend}")
    vAF = 24; vD = 96
    e(f"ds_read_b128 {vr(vAF,4)}, v5\nds_read_b128 {vr(vAF+4,4)}, v5 offset:1024")
    e("s_waitcnt lgkmcnt(1)")
    e(f"v_mfma_f32_32x32x16_bf16 {vr(vD,16)}, {vr(vAF,4)}, {vr(vWF,4)}, 0")
    e("s_waitcnt lgkmcnt(0)")
    e(f"v_mfma_f32_32x32x16_bf16 {vr(vD,16)}, {vr(vAF+4,4)}, {vr(vWF+4,4)}, {vr(vD,16)}")
    for gq in range(4):
        for p in range(2): e(f"v_cvt_pk_bf16_f32 v{112+2*gq+p}, v{vD+4*gq+2*p}, v{vD+4*gq+2*p+1}")
        e(f"buffer_store_dwordx2 {vr(112+2*gq,2)}, v{8+gq}, {WS}, s{sT1} offen sc1")
    e(f"s_lshl_b32 s{sT0}, s{sCT}, 6\ns_lshl_b32 s{sT1}, s{hd}, 2\ns_add_u32 s{sT0}, s{sT0}, s{sT1}\ns_add_u32 s{sT0}, s{sT0}, {FLM}")
    flag_set(sT0, None)
    e(f"s_cmp_lg_u32 s{sCT}, 3\ns_cbranch_scc1 {Lend}")
    e(f"s_add_u32 s{sT0}, s{sT1}, {FLZ}")
    flag_set(sT0, -1)
    k.label(Lend)
    stamp(5)

def phase2():
    vHO = 4
    vWA = 6
    vPA = 12
    vT = 13
    vWB = 16
    vA2 = 32
    vH = 96
    vWP = 208
    e(f"""s_lshl_b32 s{sT0}, s{sTB}, 1
s_mul_i32 s{sT1}, s{sT0}, {140*1024}
s_add_u32 s{sT1}, s{sT1}, {HQ}
v_lshl_add_u32 v{vHO}, v0, 4, s{sT1}
v_add_u32 v{vHO+1}, {140*1024}, v{vHO}
s_lshl_b32 s{sT0}, s{sT0}, 7
s_add_u32 s{sT0}, s{sT0}, {FLH}
v_lshl_add_u32 v{vPA}, v0, 2, s{sT0}
v_lshrrev_b32 v{vT}, 5, v0
v_lshlrev_b32 v{vT}, 2, v{vT}
v_bfe_u32 v{vT+1}, v0, 2, 2
v_add_u32 v{vT}, v{vT}, v{vT+1}
v_lshlrev_b32 v{vT}, 7, v{vT}
v_bfe_u32 v{vT+1}, v0, 4, 1
v_lshl_add_u32 v{vT}, v{vT+1}, 5, v{vT}
v_and_b32 v{vT+1}, 3, v0
v_lshl_add_u32 v{vT}, v{vT+1}, 3, v{vT}
v_bfe_u32 v{vT+1}, v0, 3, 1
v_lshl_add_u32 v{vT}, v{vT+1}, 6, v{vT}
v_add_u32 v{vWA}, s{sM0P}, v{vT}
v_xor_b32 v{vWA+1}, 64, v{vWA}
v_add_u32 v{vWA+2}, {SLOT}, v{vWA}
v_add_u32 v{vWA+3}, {SLOT}, v{vWA+1}
v_add_u32 v{vWA+4}, {2*SLOT}, v{vWA}
v_add_u32 v{vWA+5}, {2*SLOT}, v{vWA+1}
s_mov_b32 s{sMASK}, s{sPM}
s_mov_b32 s{sMASK+1}, s{sPM}""")
    def wreads(u, dst):
        pos = unit_pos(u); sl, off = divmod(pos, SLOT)
        return [(f"ds_read_b64_tr_b16 {vr(dst+4*c+2*rd,2)}, v{vWA+2*sl+c} offset:{off+rd*1024}", c) for c in range(2) for rd in range(2)]
    flag_set(sT4, None)
    stamp(8)
    for u in range(5):
        for txt, c in wreads(u, vWP + 8 * u): e(txt)
    e("s_waitcnt lgkmcnt(0)")
    utok = {}
    for u in range(9, 14):
        for g in unit_dma(u): utok[u] = e(g)
    poll(vPA)
    stamp(9); stamp(13, 4)
    htok = {}
    for j in range(7):
        e(f"s_lshl_b32 s{sT0}, s{sTAB+j}, 11")
        for s in range(2):
            for tt in range(2):
                htok[(2*j+s, tt)] = e(f"buffer_load_dwordx4 {vr(vH+8*(2*j+s)+4*tt,4)}, v{vHO+tt}, {WS}, s{sT0} offen offset:{1024*s} sc1")
    tok = {}
    for u in range(14):
        cur = tok; tok = {}
        rd = wreads(u + 1, vWB + 8 * ((u + 1) & 1)) if 5 <= u + 1 < 14 else []
        wsrc = vWP + 8 * u if u < 5 else vWB + 8 * (u & 1)
        mf = []
        for tt in range(2):
            for c in range(2):
                acc = vr(vA2 + 32 * tt + 16 * c, 16)
                mf.append(('m', (f"v_mfma_f32_32x32x16_bf16 {acc}, {vr(wsrc+4*c,4)}, {vr(vH+8*u+4*tt,4)}, {'0' if u == 0 else acc}", tt, c)))
        for kind_, x in spread(mf, [('r', x) for x in rd]):
            if kind_ == 'm':
                k.wait(vm=htok[(u, x[1])], lg=cur.get(x[2]))
                e(x[0])
            else: tok[x[1]] = e(x[0])
    stamp(4); stamp(14, 4)
    vXR, vB2 = vWB, vWB + 4
    srd(rMISC, pB2, 896)
    e(f"""v_lshrrev_b32 v{vT}, 3, v0
s_lshl_b32 s{sT0}, s{sTB}, 6
s_lshl_b32 s{sT1}, s{sW}, 3
s_add_u32 s{sT0}, s{sT0}, s{sT1}
v_add_u32 v{vT}, s{sT0}, v{vT}
v_mul_u32_u24 v{vT}, 896, v{vT}
v_and_b32 v{vT+1}, 7, v0
v_lshlrev_b32 v{vT+1}, 4, v{vT+1}
s_lshl_b32 s{sT0}, s{sCT}, 7
v_add_u32 v{vT+1}, s{sT0}, v{vT+1}
v_add_u32 v1, v{vT}, v{vT+1}
buffer_load_dwordx4 {vr(vXR,4)}, v1, s[{rX}:{rX+3}], 0 offen
buffer_load_dwordx4 {vr(vB2,4)}, v{vT+1}, s[{rMISC}:{rMISC+3}], 0 offen""")
    e(f"s_cmp_lg_u32 s{sHI}, 0\ns_cbranch_scc1 Lred2")
    vQ = vH
    vM = vH + 56
    vZ = vWP
    vD = vWP + 28
    e(f"s_mov_b32 s{sMASK}, 0xfc0000\ns_mov_b32 s{sMASK+1}, 0xfc0000")
    poll(vPA)
    e(f"s_mul_i32 s{sT0}, s{sLO}, {7*1024}\ns_add_u32 s{sT0}, s{sT0}, {112*1024}\ns_add_u32 s{sT1}, s{sT0}, 4096")
    for tt in range(2):
        for s in range(7):
            e(f"buffer_load_dwordx4 {vr(vQ+28*tt+4*s,4)}, v{vHO+tt}, {WS}, s{sT0 if s < 4 else sT1} offen offset:{1024*(s&3)} sc1")
    e(f"""s_lshl_b32 s{sT0}, s{sCT}, 7
s_add_u32 s{sT0}, s{sT0}, {FLM}
v_and_b32 v{vT}, 31, v0
v_lshl_add_u32 v{vPA}, v{vT}, 2, s{sT0}
v_lshlrev_b32 v{vT}, 2, v{vT}
v_add_u32 v{vT}, {FLZ}, v{vT}
v_cndmask_b32 v{vPA}, v{vPA}, v{vT}, {HALF}
s_lshl_b32 s{sT0}, s{sLO}, 2
s_lshl_b32 s{sMASK}, 0xf000f, s{sT0}
s_lshl_b32 s{sMASK+1}, 0xf, s{sT0}
v_lshrrev_b32 v{vT}, 5, v0
v_lshlrev_b32 v{vT}, 4, v{vT}
v_lshlrev_b32 v{vT+1}, 4, v0
v_add_u32 v{vT+2}, {28*1024}, v{vT+1}
s_mul_i32 s{sT3}, s{sLO}, 224
s_add_u32 s{sT3}, s{sT3}, {ZT}
s_mul_i32 s{sT0}, s{sCT}, {56*1024}
s_mul_i32 s{sT1}, s{sLO}, {7*1024}
s_add_u32 s{sT0}, s{sT0}, s{sT1}
s_add_u32 s{sT0}, s{sT0}, {MB}
s_add_u32 s{sT1}, s{sT0}, 4096""")
    stamp(10)
    poll(vPA)
    stamp(11)
    for s in range(7): ztok = e(f"buffer_load_dwordx4 {vr(vZ+4*s,4)}, v{vT}, {WS}, s{sT3} offen offset:{32*s} sc1")
    mtok = {}
    for s in range(7):
        for c in range(2):
            mtok[(s, c)] = e(f"buffer_load_dwordx4 {vr(vM+8*s+4*c,4)}, v{vT+1+c}, {WS}, s{sT0 if s < 4 else sT1} offen offset:{1024*(s&3)} sc1")
    k.wait(vm=ztok)
    a = [vD + i for i in range(4)]; t3, t10 = vD + 4, vD + 5
    b = [vD + 6 + i for i in range(4)]
    dst = {0: a[0], 1: a[0], 2: a[0], 3: t3, 4: a[1], 5: a[1], 6: a[1], 7: a[2], 8: a[2], 9: a[2], 10: t10, 11: a[3], 12: a[3], 13: a[3]}
    order = [0, 4, 7, 11, 3, 10, 1, 5, 8, 12, 2, 6, 9, 13]
    vU = vWB + 8
    for tt in range(2):
        Q = vQ + 28 * tt
        seen = set()
        for d in range(2):
            for q in order:
                r = dst[q]; cin = '0' if r not in seen else f'v{r}'; seen.add(r)
                e(f"v_dot2_f32_bf16 v{r}, v{Q+2*q+d}, v{vZ+2*q+d}, {cin}")
        e(f"""v_cndmask_b32 v{b[0]}, v{t3}, 0, {HALF}
v_cndmask_b32 v{b[1]}, 0, v{t3}, {HALF}
v_cndmask_b32 v{b[2]}, v{t10}, 0, {HALF}
v_cndmask_b32 v{b[3]}, 0, v{t10}, {HALF}""")
        for i in range(4): e(f"v_add_f32 v{a[i]}, v{a[i]}, v{b[i]}")
        for i in range(4): e(f"v_mov_b32 v{b[i]}, v{a[i]}")
        for i in range(4): e(f"v_permlane32_swap_b32 v{a[i]}, v{b[i]}")
        for i in range(4): e(f"v_add_f32 v{a[i]}, v{a[i]}, v{b[i]}")
        for i in range(4): e(f"v_add_f32 v{a[i]}, s{sEPS}, v{a[i]}")
        for i in range(4): e(f"v_rcp_f32 v{a[i]}, v{a[i]}")
        e(f"v_cndmask_b32 v{t3}, v{a[0]}, v{a[1]}, {HALF}\nv_cndmask_b32 v{t10}, v{a[2]}, v{a[3]}, {HALF}")
        for q in range(14):
            r = dst[q]
            for d in range(2):
                x = Q + 2 * q + d; lo, hi = vU + 2 * d, vU + 2 * d + 1
                e(f"v_lshlrev_b32 v{lo}, 16, v{x}\nv_and_b32 v{hi}, 0xffff0000, v{x}\nv_mul_f32 v{lo}, v{lo}, v{r}\nv_mul_f32 v{hi}, v{hi}, v{r}\nv_cvt_pk_bf16_f32 v{x}, v{lo}, v{hi}")
    for s in range(7):
        for c in range(2):
            k.wait(vm=mtok[(s, c)])
            for tt in range(2):
                acc = vr(vA2 + 32 * tt + 16 * c, 16)
                e(f"v_mfma_f32_32x32x16_bf16 {acc}, {vr(vM+8*s+4*c,4)}, {vr(vQ+28*tt+4*s,4)}, {acc}")
    k.label('Lred2')
    stamp(6)
    PITCH = 272
    def tokaddr(dst, tokreg, tmp):
        return f"""v_mul_u32_u24 v{tmp}, 47, v{tokreg}
v_lshrrev_b32 v{tmp}, 10, v{tmp}
v_mul_u32_u24 v{dst}, {PITCH}, v{tokreg}
v_mul_u32_u24 v{tmp}, {SLOT - 22*PITCH}, v{tmp}
v_add_u32 v{dst}, v{dst}, v{tmp}"""
    w0, w1, rd_ = vHO, vHO + 1, vWA
    e(f"v_and_b32 v{vT}, 31, v0"); e(tokaddr(w0, vT, vT + 1))
    e(f"v_add_u32 v{vT}, 32, v{vT}"); e(tokaddr(w1, vT, vT + 1))
    e(f"""v_lshrrev_b32 v{vT}, 5, v0
v_lshl_add_u32 v{vT}, v{vT}, 4, s{sM0P}
v_add_u32 v{w0}, v{w0}, v{vT}
v_add_u32 v{w1}, v{w1}, v{vT}
v_lshrrev_b32 v{vT}, 3, v0
v_lshl_add_u32 v{vT}, s{sW}, 3, v{vT}""")
    e(tokaddr(rd_, vT, vT + 1))
    e(f"v_and_b32 v{vT}, 7, v0\nv_lshl_add_u32 v{rd_}, v{vT}, 5, v{rd_}\ns_nop 7")
    for tt in range(2):
        for c in range(2):
            for gq in range(4):
                e(f"ds_write_b128 v{w0+tt}, {vr(vA2+32*tt+16*c+4*gq,4)} offset:{c*128+gq*32}")
    srd(rMISC, pOUT, 2048 * 896)
    e("s_waitcnt vmcnt(0)")
    vF = vWP; vG = vWP + 8
    for d in range(4):
        e(f"""v_lshlrev_b32 v{vF+2*d}, 16, v{vXR+d}
v_and_b32 v{vF+2*d+1}, 0xffff0000, v{vXR+d}
v_lshlrev_b32 v{vG+2*d}, 16, v{vB2+d}
v_and_b32 v{vG+2*d+1}, 0xffff0000, v{vB2+d}""")
    for d in range(4): e(f"v_pk_add_f32 {vr(vF+2*d,2)}, {vr(vF+2*d,2)}, {vr(vG+2*d,2)}")
    e("s_waitcnt lgkmcnt(0)\ns_barrier")
    rt = []
    for q in range(8):
        for hh in range(2): rt.append(e(f"ds_read_b128 {vr(vH+8*q+4*hh,4)}, v{rd_} offset:{q*6144+16*hh}"))
    for q in range(8):
        k.wait(lg=rt[2 * q + 1])
        for d in range(4): e(f"v_pk_add_f32 {vr(vF+2*d,2)}, {vr(vF+2*d,2)}, {vr(vH+8*q+2*d,2)}")
    for d in range(4): e(f"v_cvt_pk_bf16_f32 v{vXR+d}, v{vF+2*d}, v{vF+2*d+1}")
    e(f"buffer_store_dwordx4 {vr(vXR,4)}, v1, s[{rMISC}:{rMISC+3}], 0 offen")
    stamp(7)
    e(f"s_or_b32 s{sT0}, s2, s{sW}\ns_cmp_lg_u32 s{sT0}, 0\ns_cbranch_scc1 Lend")
    e(f"s_mov_b32 s{sT0}, {EPOCH}")
    flag_set(sT0, -1)

kn = NAME + '_kernel'
hdr = open(f'cdna_kernels/{NAME}.s.ref').read().split('; Override launch')[0]
head = hdr + f"; @launch grid=(256,1,1) block=(512,1,1) lds={LDS_BYTES}\n"
k.raw('.amdgcn_target "amdgcn-amd-amdhsa--gfx950"\n.text')
k.raw(f".globl {kn}\n.p2align 8\n.type {kn},@function\n{kn}:")
prologue()
st_pro = k.state()
e(f"s_cmp_ge_u32 s{sGSEL}, 6\ns_cbranch_scc1 Lkv")
phase1_M()
k.label('Lp2'); k.set_state(([], []))
phase2()
k.label('Lend'); e("s_endpgm")
k.label('Lkv'); k.set_state(st_pro)
phase1_KV()
e(f"s_cmp_eq_u32 s{sGSEL}, 7\ns_cbranch_scc1 Lred")
e("s_waitcnt lgkmcnt(0)")
for g in p2_dma(2): e(g)
e(f"s_mov_b32 s{sT4}, {DUMP}\ns_branch Lp2")
k.label('Lred')
e("s_waitcnt vmcnt(0)\ns_barrier")
reducer()
e("s_endpgm")
for f in outline: f()
k.label('Lcode_end')
e("s_endpgm")
body, nnop = k.render()
kd = f""".amdhsa_kernel {kn}
  .amdhsa_next_free_vgpr 256
  .amdhsa_next_free_sgpr 102
  .amdhsa_accum_offset 256
  .amdhsa_group_segment_fixed_size 0
  .amdhsa_kernarg_size 88
  .amdhsa_user_sgpr_count 2
  .amdhsa_user_sgpr_kernarg_segment_ptr 1
  .amdhsa_system_sgpr_workgroup_id_x 1
.end_amdhsa_kernel
"""
out = head + body + '.section .rodata,"a"\n.p2align 6\n' + kd
outp = [a for a in sys.argv[1:] if not a.startswith('--')]
open(outp[0] if outp else f'cdna_kernels/{NAME}.s', 'w').write(out)
print("nops inserted:", nnop, "lines:", out.count('\n'))
```

```python
import sys, math, struct
sys.path.insert(0, 'gen')
from dsl import *

NAME = "parallel_sum__linear_attn_block__mixer_channel_mlp__prompt"
STAMPS = '--stamps' in sys.argv
DBG = set(a[6:] for a in sys.argv if a.startswith('--dbg-'))
def opt(name, default):
    for a in sys.argv:
        if a.startswith(f'--{name}='): return int(a.split('=')[1])
    return default
def f32(x): return '0x%08x' % struct.unpack('<I', struct.pack('<f', x))[0]
def lines(s): return [l for l in s.strip().split('\n') if l.strip()]

EPOCH = 0
ZG = 0x1000
FLM = 0x2000
STATS = 0x10000
CSG = 0x18000
MB = 0x40000
FLH = 0xB0000
KVP = 0x100000
HQ = 0x200000
WS_USED = 0xAC0000
DUMP = 0x7000000
STAMP_OFF = 0x8000000
SLOT = 49152
SCR = 3 * SLOT
LDS_BYTES = 163840
EPS = 1e-5
LOG2E = math.log2(math.e)
GC0 = -2.0 * math.sqrt(2.0 / math.pi) * LOG2E
GC1 = 0.044715
SPIN_MAX = 20000

sW = 3
pX, pWQKV, pWO, pBX, pW1, pB1, pW2, pB2, pOUT, pDBG, pWS = 4, 6, 8, 10, 12, 14, 16, 18, 20, 22, 24
sHQO, sFLO = 10, 11
sRHD, sRMB = 22, 23
sXCD, sSUB, sGSEL, sRB, sCC = 26, 27, 28, 29, 30
sT0, sT1, sT2, sT3, sT4 = 31, 32, 33, 34, 35
rX, rW0, rW1, rW2, rWS, rW2G, rMISC = 36, 40, 44, 48, 52, 56, 60
sSOX, sSO0, sSO1, sSO2 = 64, 65, 66, 67
sPSTEP0 = 68
sM0X, sM0W = 71, 72
sLO, sHI = 73, 74
sC0 = 75
sMKH = 76
sHALF = 78
sTAB = 80
sRCT = 87
sEPS = 88
sMKM = 90
sMG = 92
sPD = 93
sTAG = 94
sCT, sTB = 95, 96
sTILE0 = 97
sM0P = 98
sMEAN = 99
sSTAMP = 100

k = K()
e = k.e
outline = []

def srd_s(r, ptr, nbytes):
    return f"s_mov_b32 s{r}, s{ptr}\ns_and_b32 s{r+1}, s{ptr+1}, 0xffff\ns_mov_b32 s{r+2}, {nbytes}\ns_mov_b32 s{r+3}, 0x20000"
def srd(r, ptr, nbytes): e(srd_s(r, ptr, nbytes))
WS = f"s[{rWS}:{rWS+3}]"
HALF = f"s[{sHALF}:{sHALF+1}]"

def stamp(idx, wave=0, chunk=False):
    if not STAMPS: return
    if ('chunks' in DBG) != chunk and idx > 1: return
    L = k.newlabel('Lst')
    st = k.state()
    e(f"s_cmp_lg_u32 s{sW}, {wave}\ns_cbranch_scc1 {L}")
    e(f"s_memrealtime s[{sSTAMP}:{sSTAMP+1}]\ns_memtime vcc\ns_waitcnt lgkmcnt(0)")
    e(f"v_mov_b32 v254, s{sSTAMP}\nv_mov_b32 v255, s{sSTAMP+1}")
    e(f"s_lshl_b32 s{sSTAMP}, s2, 8\ns_add_u32 s{sSTAMP}, s{sSTAMP}, {STAMP_OFF + 8*idx}\nv_mov_b32 v253, s{sSTAMP}")
    e(f"global_store_dwordx2 v253, v[254:255], s[{pWS}:{pWS+1}]")
    e(f"s_nop 1\nv_mov_b32 v254, vcc_lo\nv_mov_b32 v255, vcc_hi")
    e(f"global_store_dwordx2 v253, v[254:255], s[{pWS}:{pWS+1}] offset:128")
    k.label(L)
    k.set_state(st)

def emit_item(x): return x() if callable(x) else e(x)

def capture(fn):
    global e
    items = []
    old = e
    def rec(t): items.append(t); return None
    e = rec
    try: fn()
    finally: e = old
    return items
def split_items(items, n=6):
    out = []
    for t in items:
        if callable(t): out.append(t); continue
        ls = lines(t); cur = []
        for i, l in enumerate(ls):
            cur.append(l)
            nxt = ls[i + 1] if i + 1 < len(ls) else ''
            live = any(x.startswith(('s_cselect', 's_cbranch', 's_addc')) for x in ls[i+1:i+2]) or l.startswith(('s_cmp', 's_add_u32 m0')) \
                   or (any(x.startswith('s_cselect') for x in ls[i+1:i+4]) and any(x.startswith('s_cmp') for x in cur) and not nxt.startswith('s_cmp'))
            if len(cur) >= n and not live: out.append("\n".join(cur)); cur = []
        if cur: out.append("\n".join(cur))
    return out

class Checked:
    def __init__(self): self.log = []
    def load(self, text):
        t = e(text); self.log.append((text, t)); return t
    def check(self, first_tok, last_tok, chk, sleep=1):
        Lc, Ls, Lb = k.newlabel('Lck'), k.newlabel('Lsl'), k.newlabel('Lbk')
        e(f"s_movk_i32 s{sT2}, {SPIN_MAX}")
        k.label(Lc)
        assert last_tok in k.vm
        k.wait(vm=last_tok)
        e(chk); e(f"s_cbranch_scc1 {Ls}")
        k.label(Lb)
        i0 = [t for _, t in self.log].index(first_tok)
        redo = [x for x, _ in self.log[i0:]]
        young = k.vm[:]
        assert all(t in [tt for _, tt in self.log[i0:]] for t in young), "untracked younger vmem op"
        def slow():
            k.label(Ls)
            e(f"s_sub_u32 s{sT2}, s{sT2}, 1\ns_cbranch_scc1 {Lb}")
            if sleep: e(f"s_sleep {sleep}")
            for x in redo: e(x)
            e(f"s_branch {Lc}")
        outline.append(slow)

def poll(vaddr, smask, sleep, recheck=False):
    vd = vaddr - 1
    Lp, Ld, Lc = k.newlabel('Lpl'), k.newlabel('Lpl'), k.newlabel('Lpl')
    test = f"v_cmp_ne_u32 vcc, s{sTAG}, v{vd}\ns_and_b64 vcc, vcc, s[{smask}:{smask+1}]"
    body = f"buffer_load_dword v{vd}, v{vaddr}, {WS}, 0 offen sc1\ns_waitcnt vmcnt(0)"
    if recheck:
        e(test); e(f"s_cbranch_scc1 {Lp}")
        k.label(Ld)
        def slow():
            k.label(Lp)
            e(f"s_movk_i32 s{sT2}, {SPIN_MAX}")
            k.label(Lc)
            e(body); e(test); e(f"s_cbranch_scc0 {Ld}\ns_sub_u32 s{sT2}, s{sT2}, 1\ns_cbranch_scc1 {Ld}\ns_sleep {sleep}\ns_branch {Lc}")
        outline.append(slow)
    else:
        e(f"s_movk_i32 s{sT2}, {SPIN_MAX}")
        k.label(Lp)
        e(body); e(test); e(f"s_cbranch_scc0 {Ld}\ns_sub_u32 s{sT2}, s{sT2}, 1\ns_cbranch_scc1 {Ld}\ns_sleep {sleep}\ns_branch {Lp}")
        k.label(Ld)

def poison_chk(regs, acc):
    regs = list(regs); o = []
    o.append(f"v_max3_u32 v{acc}, v{regs[0]}, v{regs[1]}, v{regs[2]}"); r = regs[3:]
    if len(r) >= 3:
        o.append(f"v_max3_u32 v{acc+1}, v{r[0]}, v{r[1]}, v{r[2]}"); r = r[3:]; two = True
    i = 0
    while len(r) >= 2:
        a = acc + (i & 1); o.append(f"v_max3_u32 v{a}, v{a}, v{r[0]}, v{r[1]}"); r = r[2:]; i += 1
    if r: o.append(f"v_max3_u32 v{acc}, v{acc}, v{acc+1}, v{r[0]}")
    else: o.append(f"v_max_u32 v{acc}, v{acc}, v{acc+1}")
    o.append(f"v_cmp_eq_u32 vcc, -1, v{acc}\ns_cmp_lg_u64 vcc, 0")
    return "\n".join(o)

A_LIST = [6 * (p // 3) + p % 3 for p in range(29)]
B_LIST = [6 * (p // 3) + 3 + p % 3 for p in range(27)]
LISTS = [A_LIST[:28], [A_LIST[28]] + B_LIST]
def tiles_of_wave(w): return list(range(7 * w, 7 * w + 7))
vL16 = 1
vPD0 = 2
vWA = 6
vWP = 208
P_SLOT = [1, 2, 0]
def unit_pos(u):
    if u >= 9: u -= 9
    return P_SLOT[u // 3] * SLOT + (u % 3) * 2048

def p2_setup():
    e(f"s_mul_i32 s{sT0}, s{sW}, 7\ns_add_u32 s{sT1}, s{sT0}, 7\ns_add_u32 s{sTAB}, s{sT0}, s{sCT}" if 'norot' not in DBG else f"s_mul_i32 s{sT0}, s{sW}, 7\ns_add_u32 s{sT1}, s{sT0}, 7\ns_mov_b32 s{sTAB}, s{sT0}")
    e(f"s_cmp_ge_u32 s{sTAB}, s{sT1}\ns_cselect_b32 s{sTAB}, s{sT0}, s{sTAB}")
    for j in range(1, 7): e(f"s_add_u32 s{sTAB+j}, s{sTAB+j-1}, 1\ns_cmp_ge_u32 s{sTAB+j}, s{sT1}\ns_cselect_b32 s{sTAB+j}, s{sT0}, s{sTAB+j}")
    srd(rW2G, pW2, 1792 * 896)
    for w in range(8):
        m = 0
        for t in tiles_of_wave(w): m |= 1 << (t // 3)
        if w == 0: e(f"s_mov_b32 s{sMKH}, {m:#x}")
        else: e(f"s_cmp_eq_u32 s{sW}, {w}\ns_cselect_b32 s{sMKH}, {m:#x}, s{sMKH}")
    e(f"s_mov_b32 s{sMKH+1}, s{sMKH}")
    e(f"""s_cmp_eq_u32 s{sGSEL}, 7
s_cselect_b32 s{rW2G+2}, 0, s{rW2G+2}
v_lshrrev_b32 v4, 3, v0
v_mul_u32_u24 v4, 896, v4
v_bfe_u32 v5, v0, 4, 1
v_lshlrev_b32 v5, 2, v5
v_and_b32 v6, 7, v0
v_xor_b32 v5, v5, v6
v_lshl_add_u32 v4, v5, 4, v4
s_lshl_b32 s{sT0}, s{sCT}, 7
v_add_u32 v{vPD0}, s{sT0}, v4
v_add_u32 v{vPD0+1}, 7168, v{vPD0}
s_mul_i32 s{sM0P}, s{sW}, 6144""")

def w2_prefetch_setup():
    e(f"""s_lshr_b32 s{sT0}, s2, 3
s_lshl_b32 s{sT0}, s{sT0}, 3
s_add_u32 s{sT0}, s{sT0}, s{sW}
s_mul_i32 s{sT0}, s{sT0}, {66*128}
v_lshl_add_u32 v{vPF}, v0, 7, s{sT0}
v_mov_b32 v4, {DUMP}
v_cmp_gt_u32 vcc, {PFN}, v0
v_cndmask_b32 v{vPF}, v4, v{vPF}, vcc""")
PFP = opt('pfp', 4); PFN = -(-66 // PFP)
vPF = 190
def w2_prefetch(p):
    if 'nopf' in DBG: return []
    return [f"buffer_load_dword v249, v{vPF}, s[{rW2G}:{rW2G+3}], 0 offen\nv_add_u32 v{vPF}, {PFN*128}, v{vPF}"]

def unit_dma(u):
    j, s = divmod(u, 2)
    out = []
    for jj in range(2):
        g = ""
        if jj == 0:
            g += f"s_mul_i32 s{sPD}, s{sTAB+j}, 28672\n"
            if s: g += f"s_add_u32 s{sPD}, s{sPD}, 14336\n"
        g = f"s_add_u32 m0, s{sM0P}, {unit_pos(u) + jj*1024}\n" + g
        g += f"buffer_load_dwordx4 v{vPD0+jj}, s[{rW2G}:{rW2G+3}], s{sPD} offen lds"
        out.append(g)
    return out
def p2_dma(pc): return [g for u in range(3 * pc, 3 * pc + 3) for g in unit_dma(u)]

def wa_items():
    return lines(f"""v_lshrrev_b32 v4, 5, v0
v_lshlrev_b32 v4, 2, v4
v_bfe_u32 v5, v0, 2, 2
v_add_u32 v4, v4, v5
v_lshlrev_b32 v4, 7, v4
v_bfe_u32 v5, v0, 4, 1
v_lshl_add_u32 v4, v5, 5, v4
v_and_b32 v5, 3, v0
v_lshl_add_u32 v4, v5, 3, v4
v_bfe_u32 v5, v0, 3, 1
v_lshl_add_u32 v4, v5, 6, v4
v_add_u32 v{vWA}, s{sM0P}, v4
v_xor_b32 v{vWA+1}, 64, v{vWA}
v_add_u32 v{vWA+2}, {SLOT}, v{vWA}
v_add_u32 v{vWA+3}, {SLOT}, v{vWA+1}
v_add_u32 v{vWA+4}, {2*SLOT}, v{vWA}
v_add_u32 v{vWA+5}, {2*SLOT}, v{vWA+1}""")
def wreads(u, dst):
    sl, off = divmod(unit_pos(u), SLOT)
    return [(f"ds_read_b64_tr_b16 {vr(dst+4*c+2*rd,2)}, v{vWA+2*sl+c} offset:{off+rd*1024}", c) for c in range(2) for rd in range(2)]

vDX0, vDX1, vDW0 = 8, 9, 10
vAX = 13; vAW = 17; vAX2 = 21; vBIAS = 25; vSEL = 28
vXB = 32; vWB = 48
vRA = 64
vACC = 72
vCSA = 136
vROW = 148; vRU = 152; vGR = 160
vRT = 164
vSG = 168; vCG = 172
vGA = 188
vFG = 192
vZ0 = 194
vTG = 195

def p1_dma(kind, i):
    slot = (i % 3) * SLOT
    out = []
    out.append(f"s_add_u32 m0, s{sM0X}, {slot}\ns_lshl_b32 s{sSOX}, s{sCC}, 7\nbuffer_load_dwordx4 v{vDX0}, s[{rX}:{rX+3}], s{sSOX} offen lds")
    if kind == 'M':
        out.append(f"s_add_u32 m0, s{sM0X}, {slot + 1024}\ns_mul_i32 s{sSO0}, s{sCC}, s{sPSTEP0}\nbuffer_load_dwordx4 v{vDX1}, s[{rX}:{rX+3}], s{sSOX} offen lds")
        for lc in range(3):
            nx = f"s_mul_i32 s{sSO0+lc+1}, s{sCC}, s{sPSTEP0+lc+1}" if lc < 2 else f"s_add_u32 s{sCC}, s{sCC}, 1"
            out.append(f"s_add_u32 m0, s{sM0W}, {slot + lc*8192}\n{nx}\n"
                       f"buffer_load_dwordx4 v{vDW0+lc}, s[{rW0+4*lc}:{rW0+4*lc+3}], s{sSO0+lc} offen lds")
    else:
        out.append(f"s_add_u32 m0, s{sM0X}, {slot + 1024}\ns_mul_i32 s{sSO0}, s{sCC}, {64*2688}\nbuffer_load_dwordx4 v{vDX1}, s[{rX}:{rX+3}], s{sSOX} offen lds")
        nxs = [f"s_add_u32 s{sSO1}, s{sSO0}, 896", "s_nop 0", "s_nop 0", f"s_add_u32 s{sCC}, s{sCC}, 1"]
        for kv in range(2):
            for jj in range(2):
                out.append(f"s_add_u32 m0, s{sM0W}, {slot + kv*16384 + jj*1024}\n{nxs[2*kv+jj]}\n"
                           f"buffer_load_dwordx4 v{vDW0+jj}, s[{rW0}:{rW0+3}], s{sSO0+kv} offen lds")
    out[-1] += f"\ns_cmp_eq_u32 s{sCC}, 7\ns_cselect_b32 s{sCC}, 0, s{sCC}"
    return out

def prologue():
    e(f"s_load_dwordx16 s[4:19], s[0:1], 0\ns_load_dwordx4 s[20:23], s[0:1], 64\ns_load_dwordx2 s[24:25], s[0:1], 80")
    e(f"s_cmp_ge_u32 s2, 256\ns_cbranch_scc1 Lend")
    e(f"v_lshrrev_b32 v1, 6, v0\nv_and_b32 v0, 63, v0\nv_readfirstlane_b32 s{sW}, v1")
    e(f"s_and_b32 s{sXCD}, s2, 7\ns_lshr_b32 s{sT0}, s2, 3\ns_and_b32 s{sSUB}, s{sT0}, 3\ns_lshr_b32 s{sGSEL}, s{sT0}, 2")
    st = k.state()
    e(f"s_cmp_lg_u32 s{sW}, 7\ns_cbranch_scc1 Lnopf")
    e(f"s_getpc_b64 s[{sMKH}:{sMKH+1}]")
    k.label('Lpc')
    e(f"s_lshl_b32 s{sT0}, s{sSUB}, 13\nv_lshl_add_u32 v4, v0, 7, s{sT0}\nv_min_u32 v4, Lcode_end-Lpc-4, v4")
    e(f"global_load_dword v249, v4, s[{sMKH}:{sMKH+1}]")
    k.label('Lnopf')
    k.set_state(st)
    e(f"s_cmp_ge_u32 s{sGSEL}, 6\ns_cbranch_scc1 Lkv")

def pre_common():
    e(f"s_lshr_b32 s{sT0}, s{sXCD}, 1\ns_lshl_b32 s{sT0}, s{sT0}, 2\ns_add_u32 s{sRB}, s{sT0}, s{sSUB}")
    e(f"s_lshl_b32 s{sT0}, s{sGSEL}, 1\ns_add_u32 s{sT0}, s{sT0}, s{sRB}")
    e(f"s_mul_i32 s{sT1}, s{sT0}, 37\ns_lshr_b32 s{sT1}, s{sT1}, 8\ns_mul_i32 s{sT1}, s{sT1}, 7\ns_sub_u32 s{sCC}, s{sT0}, s{sT1}\ns_mov_b32 s{sC0}, s{sCC}")
    e(f"""s_lshl_b32 s{sT0}, s{sRB}, 7
s_lshl_b32 s{sT1}, s{sW}, 4
s_add_u32 s{sT0}, s{sT0}, s{sT1}
v_lshrrev_b32 v4, 3, v0
v_add_u32 v4, s{sT0}, v4
v_mul_u32_u24 v4, 896, v4
v_and_b32 v5, 7, v0
v_lshrrev_b32 v6, 4, v0
v_xor_b32 v6, v5, v6
v_lshl_add_u32 v{vDX0}, v6, 4, v4
v_xor_b32 v6, 4, v6
v_lshl_add_u32 v{vDX1}, v6, 4, v4
v_add_u32 v{vDX1}, 7168, v{vDX1}
s_lshl_b32 s{sM0X}, s{sW}, 11
s_mov_b32 s{rX+2}, {2048*896}
s_mov_b32 s{rX+3}, 0x20000""")

def pre_row():
    e(f"""s_lshl_b32 s{sMEAN}, s2, 3
s_add_u32 s{sMEAN}, s{sMEAN}, s{sW}
s_mul_i32 s{sT1}, s{sMEAN}, 896
v_lshlrev_b32 v{vL16}, 4, v0
v_add_u32 v7, s{sT1}, v{vL16}
v_mov_b32 v5, {DUMP}
v_cmp_gt_u32 vcc, 56, v0
v_cndmask_b32 v7, v5, v7, vcc
v_cndmask_b32 v{vRT+1}, 0, 1.0, vcc""")

def after_kernarg():
    e("s_waitcnt lgkmcnt(0)")
    e(f"s_load_dword s{sTAG}, s[{pWS}:{pWS+1}], {EPOCH}")
    e(f"s_mov_b32 s{rX}, s{pX}\ns_and_b32 s{rX+1}, s{pX+1}, 0xffff")
    return e(f"buffer_load_dwordx4 {vr(vROW,4)}, v7, s[{rX}:{rX+3}], 0 offen")

def setup_a():
    e(f"s_mov_b32 s{sT0}, s{sMEAN}\nv_mov_b32 v5, {DUMP}")
    e(f"""s_lshl_b32 s{sT0}, s{sT0}, 4
s_add_u32 s{sT0}, s{sT0}, {STATS}
v_mov_b32 v6, s{sT0}
v_cmp_eq_u32 vcc, 63, v0
v_cndmask_b32 v{vRT+2}, v5, v6, vcc
v_cmp_eq_u32 vcc, 0, v0
v_cndmask_b32 v{vZ0}, v5, 0, vcc""")
    srd(rWS, pWS, WS_USED)
    e(f"s_mov_b32 s{sHALF}, 0\ns_mov_b32 s{sHALF+1}, -1\ns_mov_b32 s{sEPS}, {f32(1e-6)}\ns_mov_b32 s{sEPS+1}, {f32(1e-6)}")
    e(f"s_mov_b32 s{sCT}, s{sGSEL}\ns_lshl_b32 s{sTB}, s{sXCD}, 2\ns_add_u32 s{sTB}, s{sTB}, s{sSUB}")
    e(f"""v_lshrrev_b32 v4, 2, v0
v_lshrrev_b32 v5, 4, v0
v_xor_b32 v4, v4, v5
v_and_b32 v4, 1, v4
v_and_b32 v5, 3, v0
v_or_b32 v4, v4, v5
v_cmp_eq_u32 vcc, 0, v4
v_mov_b32 v5, 0x3f803f80
v_cndmask_b32 v{vSEL}, 0, v5, vcc
v_cndmask_b32 v{vSEL+1}, 0, v5, vcc
v_cndmask_b32 v{vSEL+2}, 0, v5, vcc
v_cndmask_b32 v{vSEL+3}, 0, v5, vcc
v_and_b32 v4, 31, v0
v_lshlrev_b32 v5, 7, v4
v_add_u32 v5, s{sT3}, v5
v_bfe_u32 v4, v0, 1, 3
v_lshrrev_b32 v6, 5, v0
v_xor_b32 v4, v4, v6
v_lshl_add_u32 v{vAX}, v4, 4, v5""")
    for j in range(1, 4): e(f"v_xor_b32 v{vAX+j}, {32*j}, v{vAX}")
    for j in range(4): e(f"v_add_u32 v{vAX2+j}, {2*SLOT}, v{vAX+j}")

def wave_sum(r):
    return [f"v_add_f32_dpp v{r}, v{r}, v{r} {m} bank_mask:0xf" for m in
            ("quad_perm:[1,0,3,2] row_mask:0xf", "quad_perm:[2,3,0,1] row_mask:0xf", "row_half_mirror row_mask:0xf", "row_mirror row_mask:0xf",
             "row_bcast:15 row_mask:0xa", "row_bcast:31 row_mask:0xc")]

def rowstat_items(rtok):
    a = vRT
    it = [lambda: k.wait(vm=rtok)]
    for d in range(4):
        it += [f"v_lshlrev_b32 v{vRU+2*d}, 16, v{vROW+d}", f"v_and_b32 v{vRU+2*d+1}, 0xffff0000, v{vROW+d}"]
    for d in range(4): it.append(f"v_add_f32 v{vROW+d}, v{vRU+2*d}, v{vRU+2*d+1}")
    it += [f"v_add_f32 v{vROW}, v{vROW}, v{vROW+1}", f"v_add_f32 v{vROW+2}, v{vROW+2}, v{vROW+3}", f"v_add_f32 v{a}, v{vROW}, v{vROW+2}"]
    it += wave_sum(a)
    it += [f"v_mul_f32 v{vGR}, {f32(1/448)}, v{a}", f"v_readlane_b32 s{sMEAN}, v{vGR}, 63", f"v_mul_f32 v{a}, s{sMEAN}, v{vRT+1}"]
    for d in range(8): it.append(f"v_sub_f32 v{vRU+d}, v{vRU+d}, v{a}")
    it += [f"v_mul_f32 v{vROW}, v{vRU}, v{vRU}", f"v_mul_f32 v{vROW+1}, v{vRU+1}, v{vRU+1}"]
    for d in range(2, 8): it.append(f"v_fmac_f32 v{vROW+(d&1)}, v{vRU+d}, v{vRU+d}")
    it.append(f"v_add_f32 v{a}, v{vROW}, v{vROW+1}")
    it += wave_sum(a)
    it += [f"v_mul_f32 v{vGR+1}, {f32(1/448)}, v{a}", f"v_mov_b32 v{vGR+2}, v{vTG}", f"v_mov_b32 v{vGR+3}, v{vTG}",
           f"buffer_store_dwordx4 {vr(vGR,4)}, v{vRT+2}, {WS}, 0 offen sc1"]
    return it

def colsum_pub_items(nt):
    g = vRU
    it = [f"v_mov_b32 v{g+t}, v{vCSA+4*t}" for t in range(nt)]
    it += [f"v_mov_b32 v{g+t}, v{vTG}" for t in range(nt, 4)]
    it.append(f"buffer_store_dwordx4 {vr(g,4)}, v{vRT+3}, {WS}, 0 offen sc1")
    return it

def gran_addr_setup(slot_s, pub_cond_s, tok0_s, lane_tok):
    e(f"""s_lshl_b32 s{sT0}, s{slot_s}, 12
s_add_u32 s{sT0}, s{sT0}, {CSG}
v_add_u32 v{vGA+1}, s{sT0}, v{vL16}
s_lshl_b32 s{sT1}, s{sC0}, 9
v_add_u32 v4, s{sT1}, v{vGA+1}
v_mov_b32 v5, {DUMP}
v_cndmask_b32 v4, v4, v5, {HALF}
s_cmp_lt_u32 s{sRB}, 7
s_cselect_b32 s{sT1}, s{pub_cond_s}, 1
s_cmp_eq_u32 s{sT1}, 0
s_cselect_b32 s{sT1}, 0, {DUMP}
v_add_u32 v{vRT+3}, s{sT1}, v4
s_lshl_b32 s{sT0}, s{tok0_s}, 4
s_add_u32 s{sT0}, s{sT0}, {STATS}
v_and_b32 v4, {lane_tok}, v0
v_lshl_add_u32 v{vGA}, v4, 4, s{sT0}""")

def gran_loads():
    o = [f"buffer_load_dwordx4 {vr(vSG,4)}, v{vGA}, {WS}, 0 offen sc1"]
    for q in range(4): o.append(f"buffer_load_dwordx4 {vr(vCG+4*q,4)}, v{vGA+1}, {WS}, 0 offen offset:{1024*q} sc1")
    return o

def gran_check_items(tokbox):
    Ls, Lb = k.newlabel('Lgs'), k.newlabel('Lgb')
    a = vSG + 2
    pre = lines(f"""v_cndmask_b32 v{vCG+15}, v{vCG+15}, v{vTG}, {HALF}
v_xor_b32 v{a}, v{vTG}, v{vSG+3}
v_bitop3_b32 v{a}, v{a}, v{vCG+3}, v{vTG} bitop3:0xf6
v_bitop3_b32 v{a}, v{a}, v{vCG+7}, v{vTG} bitop3:0xf6
v_bitop3_b32 v{a}, v{a}, v{vCG+11}, v{vTG} bitop3:0xf6
v_bitop3_b32 v{a}, v{a}, v{vCG+15}, v{vTG} bitop3:0xf6""")
    fin = f"v_cmp_ne_u32 vcc, 0, v{a}\ns_cmp_lg_u64 vcc, 0"
    def last():
        e(fin); e(f"s_cbranch_scc1 {Ls}")
        k.label(Lb)
        stamp(11, chunk=True)
    def slow():
        k.label(Ls)
        Lp = k.newlabel('Lgp')
        e(f"s_movk_i32 s{sT2}, {SPIN_MAX}")
        k.label(Lp)
        e(f"s_sub_u32 s{sT2}, s{sT2}, 1\ns_cbranch_scc1 {Lb}\ns_sleep 8")
        for x in gran_loads(): e(x)
        e("s_waitcnt vmcnt(0)")
        for x in pre: e(x)
        e(fin); e(f"s_cbranch_scc1 {Lp}\ns_branch {Lb}")
    outline.append(slow)
    return [lambda: k.wait(vm=tokbox[0])] + pre + [last]

def colsum_sum_items(nt, dst):
    it = []
    for t in range(nt): it.append(f"v_cndmask_b32 v{vCG+12+t}, v{vCG+12+t}, 0, {HALF}")
    for t in range(nt): it += [f"v_add_f32 v{vCG+t}, v{vCG+t}, v{vCG+4+t}", f"v_add_f32 v{vCG+8+t}, v{vCG+8+t}, v{vCG+12+t}"]
    for t in range(nt): it.append(f"v_add_f32 v{vCG+t}, v{vCG+t}, v{vCG+8+t}")
    for t in range(nt): it.append(f"v_mov_b32 v{vCG+4+t}, v{vCG+t}")
    for t in range(nt): it.append(f"v_permlane32_swap_b32 v{vCG+t}, v{vCG+4+t}")
    for t in range(nt): it.append(f"v_add_f32 v{dst+t}, v{vCG+t}, v{vCG+4+t}")
    return it

def main_loop(kind, dma_tok, fillers, pre_dma, rtok):
    M = kind == 'M'
    nt = 3 if M else 4
    xbuf = (lambda n, u=0: vXB + 4 * (n & 1)) if M else (lambda n, u=0: vXB + 8 * (n & 1) + 4 * u)
    wbuf = (lambda n, t: vWB + 12 * (n & 1) + 4 * t) if M else (lambda n, t: vWB + 8 * (n & 1) + 4 * t)
    def reads(n):
        i, j = divmod(n, 4); sl = i % 3
        xa = (vAX2 if sl == 2 else vAX) + j; xo = SLOT if sl == 1 else 0
        o = []
        if M:
            o.append((f"ds_read_b128 {vr(xbuf(n),4)}, v{xa} offset:{xo}", 'x0'))
            for t in range(3):
                a = vAW + (t & 1) + (2 if sl == 2 else 0); off = xo + j * 2048 + (8192 if t == 2 else 0)
                for rd in range(2):
                    o.append((f"ds_read_b64_tr_b16 {vr(wbuf(n,t)+2*rd,2)}, v{a} offset:{off + rd*512}", f'w{t}'))
        else:
            o.append((f"ds_read_b128 {vr(xbuf(n,0),4)}, v{xa} offset:{xo}", 'x0'))
            for kv in range(2):
                for rd in range(2): o.append((f"ds_read_b64_tr_b16 {vr(wbuf(n,kv)+2*rd,2)}, v{vAW+sl} offset:{kv*16384 + j*4096 + rd*1024}", f'w{kv}'))
            o.append((f"ds_read_b128 {vr(xbuf(n,1),4)}, v{xa} offset:{xo+4096}", 'x1'))
        return o
    per = {n: [] for n in range(28)}
    for first, last, items in fillers:
        ns = last - first + 1
        for q in range(ns):
            per[first + q] += items[len(items) * q // ns: len(items) * (q + 1) // ns]
    rs = rowstat_items(rtok)
    for x in rs[:-3]: emit_item(x)
    e(f"s_waitcnt lgkmcnt(0)\ns_mul_i32 s{sTAG}, s{sTAG}, 1664525\ns_add_u32 s{sTAG}, s{sTAG}, 1013904223\nv_mov_b32 v{vTG}, s{sTAG}")
    for x in rs[-3:]: emit_item(x)
    k.wait(vm=dma_tok[0])
    e("s_barrier")
    stamp(1)
    tok = {}
    for txt, tag in reads(0): tok[tag] = e(txt)
    pend = p1_dma(kind, 2); pend_i = 2
    for n in range(28):
        i, j = divmod(n, 4)
        cur = tok; tok = {}
        if j == 3:
            assert not pend
            e("s_waitcnt lgkmcnt(0)")
            if i < 6: k.wait(vm=dma_tok[i + 1])
            e("s_barrier")
            stamp(2 + i, chunk=True)
            pend_i = i + 3
            pend = list(pre_dma.get(i, [])) + (p1_dma(kind, i + 3) if i + 3 < 7 else p2_dma(i + 3 - 7))
            if i == 6: pend = []
        mf = []
        for t in range(nt):
            acc = vr(vACC + 16 * t, 16); cin = '0' if n == 0 else acc
            if M: mf.append((f"v_mfma_f32_32x32x16_bf16 {acc}, {vr(wbuf(n,t),4)}, {vr(xbuf(n),4)}, {cin}", ['x0', f'w{t}']))
            else:
                u, kv = t >> 1, t & 1
                mf.append((f"v_mfma_f32_32x32x16_bf16 {acc}, {vr(xbuf(n,u),4)}, {vr(wbuf(n,kv),4)}, {cin}", [f'x{u}', f'w{kv}']))
        if i == 0:
            for t in range(3 if M else 2):
                acc = vr(vCSA + 4 * t, 4)
                mf.append((f"v_mfma_f32_16x16x32_bf16 {acc}, {vr(vSEL,4)}, {vr(wbuf(n,t),4)}, {'0' if n == 0 else acc}", [f'w{t}']))
        rd = reads(n + 1) if n < 27 else []
        left = {3: 2, 0: 1, 1: 1, 2: 1}[j] if 3 <= n < 19 else {3: 4, 0: 3, 1: 2, 2: 1}[j] if n >= 19 else {0: 2, 1: 1, 2: 1}[j]
        nd = -(-len(pend) // left)
        dm = pend[:nd]; pend = pend[nd:]
        other = spread([('d', x) for x in dm] or [('n', None)], [('f', x) for x in per[n]])
        other = [f for f in other if f[0] != 'n']
        fill = [('r', x) for x in rd] + other
        for kind_, x in spread([('m', x) for x in mf], fill):
            if kind_ == 'm':
                need = [cur.get(tg) for tg in x[1] if cur.get(tg) in k.lg]
                if need: k.wait(lg=max(need))
                e(x[0])
            elif kind_ == 'r': tok[x[1]] = e(x[0])
            elif kind_ == 'd':
                t = emit_item(x)
                if t is not None: dma_tok[pend_i] = t
            else: emit_item(x)

def gelu_tile(acc, out, kp, sp, tmp):
    o = []
    for h in range(2):
        a = acc + 8 * h; t = tmp + 8 * h
        for p in range(4): o.append(f"v_pk_mul_f32 {vr(t+2*p,2)}, {vr(a+2*p,2)}, {vr(a+2*p,2)}")
        for p in range(4): o.append(f"v_pk_fma_f32 {vr(t+2*p,2)}, {vr(t+2*p,2)}, {vr(kp+2,2)}, {vr(kp,2)} op_sel_hi:[1,0,0]")
        for p in range(4): o.append(f"v_pk_mul_f32 {vr(t+2*p,2)}, {vr(t+2*p,2)}, {vr(a+2*p,2)}")
        for p in range(8): o.append(f"v_exp_f32 v{t+p}, v{t+p}")
        for p in range(4): o.append(f"v_pk_fma_f32 {vr(t+2*p,2)}, {vr(t+2*p,2)}, {vr(sp,2)}, {vr(sp,2)} op_sel_hi:[1,0,0]")
        for p in range(8): o.append(f"v_rcp_f32 v{t+p}, v{t+p}")
        for p in range(4): o.append(f"v_pk_mul_f32 {vr(t+2*p,2)}, {vr(t+2*p,2)}, {vr(a+2*p,2)}")
        for p in range(4): o.append(f"v_cvt_pk_bf16_f32 v{out+4*h+p}, v{t+2*p}, v{t+2*p+1}")
    return o

def phi_tile(acc, out, rfun, rlfun, sel, tmp):
    o = []
    for h in range(2):
        a = acc + 8 * h; t = tmp + 8 * h
        for p in range(4): o.append(f"v_pk_mul_f32 {vr(t+2*p,2)}, {vr(a+2*p,2)}, {rlfun(4*h+p)} op_sel_hi:[1,{sel}]")
        for p in range(4): o.append(f"v_pk_fma_f32 {vr(a+2*p,2)}, {vr(a+2*p,2)}, {rfun(4*h+p)}, {sr(sEPS,2)} op_sel_hi:[1,{sel},0]")
        for p in range(8): o.append(f"v_exp_f32 v{t+p}, v{t+p} clamp")
        for p in range(8): o.append(f"v_max_f32 v{a+p}, s{sEPS}, v{a+p}")
        for p in range(4): o.append(f"v_pk_add_f32 {vr(t+2*p,2)}, {vr(t+2*p,2)}, {vr(a+2*p,2)}")
        for p in range(4): o.append(f"v_cvt_pk_bf16_f32 v{out+4*h+p}, v{t+2*p}, v{t+2*p+1}")
    return o

def flag_item(soff): return f"buffer_store_dword v{vTG}, v{vZ0}, {WS}, s{soff} offen sc1"

def phase1_M():
    mg = sMG
    pre_common()
    e(f"s_and_b32 s{sT0}, s{sXCD}, 1\ns_mul_i32 s{sT0}, s{sT0}, 6\ns_add_u32 s{mg}, s{sT0}, s{sGSEL}")
    e(f"""v_lshrrev_b32 v4, 3, v0
v_lshl_add_u32 v4, s{sW}, 3, v4
v_bfe_u32 v5, v0, 4, 1
v_lshlrev_b32 v5, 2, v5
v_and_b32 v6, 7, v0
v_xor_b32 v5, v5, v6
v_lshlrev_b32 v5, 4, v5
s_lshl_b32 s{sM0W}, s{sW}, 10
s_add_u32 s{sM0W}, s{sM0W}, 16384
s_mul_i32 s{sT3}, s{mg}, 3""")
    for lc in range(3):
        r = rW0 + 4 * lc
        e(f"""s_add_u32 s{sT0}, s{sT3}, {lc}
s_sub_u32 s{sT1}, s{sT0}, 28
s_cmp_lt_u32 s{sT0}, 35
s_cselect_b32 s{r+2}, {448*2688}, 0
s_cmp_lt_u32 s{sT0}, 28
s_cselect_b32 s{r+2}, {448*3584}, s{r+2}
s_cselect_b32 s{sT0}, s{sT0}, s{sT1}
s_movk_i32 s{sT1}, 2688
s_cselect_b32 s{sT1}, 3584, s{sT1}
s_lshl_b32 s{sT0}, s{sT0}, 7
s_lshl_b32 s{sPSTEP0+lc}, s{sT1}, 6
v_mad_u32_u24 v{vDW0+lc}, v4, s{sT1}, v5
v_add_u32 v{vDW0+lc}, s{sT0}, v{vDW0+lc}
s_mov_b32 s{r+3}, 0x20000""")
    pre_row()
    rtok = after_kernarg()
    stamp(0)
    e(f"s_and_b32 s{pW1+1}, s{pW1+1}, 0xffff\ns_and_b32 s{pWQKV+1}, s{pWQKV+1}, 0xffff")
    for lc in range(3):
        r = rW0 + 4 * lc
        e(f"s_cmp_eq_u32 s{sPSTEP0+lc}, {64*3584}\ns_cselect_b32 s{r}, s{pW1}, s{pWQKV}\ns_cselect_b32 s{r+1}, s{pW1+1}, s{pWQKV+1}")
    dma_tok = {}
    for g in p1_dma('M', 0): dma_tok[0] = e(g)
    e(f"s_and_b32 s{sLO}, s{sW}, 3\ns_lshr_b32 s{sHI}, s{sW}, 2\ns_lshl_b32 s{sT3}, s{sLO}, 12")
    setup_a()
    for g in p1_dma('M', 1): dma_tok[1] = e(g)
    e(f"""v_lshrrev_b32 v4, 5, v0
v_lshlrev_b32 v4, 3, v4
v_bfe_u32 v5, v0, 2, 2
v_add_u32 v4, v4, v5
v_lshlrev_b32 v4, 7, v4
v_bfe_u32 v5, v0, 4, 1
v_lshl_add_u32 v4, v5, 5, v4
v_and_b32 v5, 3, v0
v_lshl_add_u32 v4, v5, 3, v4
v_bfe_u32 v5, v0, 3, 1
v_lshl_add_u32 v4, v5, 6, v4""")
    for q in range(2):
        e(f"""s_mul_i32 s{sT0}, s{sHI}, 3
s_add_u32 s{sT0}, s{sT0}, {q}
s_and_b32 s{sT1}, s{sT0}, 1
s_lshl_b32 s{sT1}, s{sT1}, 6
s_lshr_b32 s{sT0}, s{sT0}, 1
s_lshl_b32 s{sT0}, s{sT0}, 13
s_add_u32 s{sT0}, s{sT0}, 16384
v_xor_b32 v5, s{sT1}, v4
v_add_u32 v{vAW+q}, s{sT0}, v5
v_add_u32 v{vAW+2+q}, {2*SLOT}, v{vAW+q}""")
    e(f"""s_mul_i32 s{sTILE0}, s{mg}, 6
s_mul_i32 s{sT0}, s{sHI}, 3
s_add_u32 s{sTILE0}, s{sTILE0}, s{sT0}
s_lshl_b32 s{sT0}, s{sRB}, 2
s_add_u32 s{sT0}, s{sT0}, s{sLO}
s_lshl_b32 s{sFLO}, s{sT0}, 12
s_mul_i32 s{sT0}, s{sT0}, {140*1024}
s_lshl_b32 s{sT1}, s{sTILE0}, 11
s_add_u32 s{sHQO}, s{sT0}, s{sT1}
s_add_u32 s{sHQO}, s{sHQO}, {HQ}
s_lshl_b32 s{sT4}, s{mg}, 1
s_add_u32 s{sT4}, s{sT4}, s{sHI}
s_lshl_b32 s{sT1}, s{sT4}, 7
s_add_u32 s{sFLO}, s{sFLO}, s{sT1}
s_add_u32 s{sFLO}, s{sFLO}, {FLH}""")
    srd(rMISC, pB1, 3584)
    e(f"s_lshl_b32 s{sT0}, s{sTILE0}, 6\nv_and_b32 v4, 31, v0\nv_lshl_add_u32 v{vBIAS+2}, v4, 1, s{sT0}")
    bias = [f"buffer_load_ushort v{vBIAS+t}, v{vBIAS+2}, s[{rMISC}:{rMISC+3}], 0 offen offset:{64*t}" for t in range(3)]
    e(f"s_lshl_b32 s{sT3}, s{sRB}, 7\ns_lshl_b32 s{sT0}, s{sLO}, 5\ns_add_u32 s{sT3}, s{sT3}, s{sT0}")
    gran_addr_setup(sT4, sLO, sT3, 31)
    p2_setup()
    w2_prefetch_setup()
    gbox = [None]
    gl = gran_loads()
    def last_g(): gbox[0] = e(gl[-1])
    m, var = vSG, vSG + 1
    r1, w_, rm, sm = 120, 121, 122, 124
    vK = 128; vBA = 136; vAA = 196; R = vROW; vC = vGR
    aug = gran_check_items(gbox) + lines(f"""v_add_f32 v{r1}, {f32(EPS)}, v{var}
v_mov_b32 v{w_}, {f32(EPS)}
v_fma_f32 v{w_}, v{w_}, v{r1}, v{var}
v_rsq_f32 v{r1}, v{r1}
v_rsq_f32 v{rm}, v{w_}""") + colsum_sum_items(3, vC) + lines(f"""v_mul_f32 v{sm}, v{w_}, v{rm}
v_cvt_pk_bf16_f32 v{R}, -v{m}, v{sm}
v_lshlrev_b32 v{R+1}, 16, v{R}
v_and_b32 v{R+2}, 0xffff0000, v{R}
v_sub_f32 v{R+1}, -v{m}, v{R+1}
v_sub_f32 v{R+2}, v{sm}, v{R+2}
v_cvt_pk_bf16_f32 v{R+3}, -v{m}, v{R+1}
v_cvt_pk_bf16_f32 v{R+4}, v{R+2}, 0
v_cndmask_b32 v{vBA}, v{R+3}, 0, {HALF}
v_cndmask_b32 v{vBA+1}, v{R}, 0, {HALF}
v_cndmask_b32 v{vBA+2}, v{R+4}, 0, {HALF}""")
    for t in range(3):
        c = vC + t; a = vAA + 4 * t
        aug += lines(f"""v_cvt_pk_bf16_f32 v{a}, v{c}, v{c}
v_and_b32 v{R+6}, 0xffff0000, v{a}
v_sub_f32 v{R+6}, v{c}, v{R+6}
v_cvt_pk_bf16_f32 v{a+1}, v{R+6}, v{a+1}""")
    early = [f"v_mov_b32 v{vBA+3}, 0"]
    for t in range(3):
        a = vAA + 4 * t
        early += [f"v_lshlrev_b32 v{a+1}, 16, v{vBIAS+t}", f"v_mov_b32 v{a+2}, v{vBIAS+t}", f"v_mov_b32 v{a+3}, 0"]
    post = lines(f"""v_mul_f32 v{vK}, {f32(GC0)}, v{rm}
v_mul_f32 v{R+5}, v{rm}, v{rm}
v_mul_f32 v{R+5}, {f32(GC1)}, v{R+5}
v_mul_f32 v{vK+2}, v{R+5}, v{vK}
v_mov_b32 v{vK+4}, v{r1}
v_mul_f32 v{vK+6}, {f32(LOG2E)}, v{r1}""")
    fillers = [(5, 5, colsum_pub_items(3)), (2, 2, bias)] + [(st_, st_, w2_prefetch(p)) for p, st_ in enumerate([5, 9, 13, 17, 2, 6][:PFP])] + [
               (16, 17, early), (19, 22, wa_items()), (23, 27, aug)]
    main_loop('M', dma_tok, fillers, {4: gl[:-1] + [last_g]}, rtok)
    k.wait(vm=dma_tok[8])
    pre = [x for u in range(5) for x, _ in wreads(u, vWP + 8 * u)]
    mf = [f"v_mfma_f32_32x32x16_bf16 {vr(vACC+16*t,16)}, {vr(vAA+4*t,4)}, {vr(vBA,4)}, {vr(vACC+16*t,16)}" for t in range(3)]
    for x in spread(mf, pre + post): e(x)
    for g in p2_dma(2): e(g)
    stamp(2); stamp(9, chunk=True)
    e("s_waitcnt lgkmcnt(0)")
    late = [g for u in range(9, 14) for g in unit_dma(u)]
    vT = vXB; vO = vWB
    def store(t):
        e(f"buffer_store_dwordx4 {vr(vO+8*t,4)}, v{vL16}, {WS}, s{sHQO} offen offset:{(2048*t) % 4096} sc1")
        e(f"buffer_store_dwordx4 {vr(vO+8*t+4,4)}, v{vL16}, {WS}, s{sHQO} offen offset:{(2048*t) % 4096 + 1024} sc1")
        if t == 1: e(f"s_add_u32 s{sHQO}, s{sHQO}, 4096")
    ph = lambda t: phi_tile(vACC + 16 * t, vO + 8 * t, lambda p: vr(vK + 4, 2), lambda p: vr(vK + 6, 2), 0, vT)
    e(f"s_cmp_ge_u32 s{sTILE0}, 56\ns_cbranch_scc1 Lphi3")
    st0 = k.state()
    for t in range(2):
        g = gelu_tile(vACC + 16 * t, vO + 8 * t, vK, sm, vT)
        for x in (spread(late, g) if t == 0 else g): e(x)
        store(t)
    e(f"s_cmp_eq_u32 s{sTILE0}, 54\ns_cbranch_scc1 Lphi1")
    for x in gelu_tile(vACC + 32, vO + 16, vK, sm, vT): e(x)
    k.label('Lst2')
    store(2)
    k.label('Lstdone')
    def phis():
        k.label('Lphi3'); k.set_state(st0)
        for x in spread(late, ph(0)): e(x)
        store(0)
        e(f"s_cmp_eq_u32 s{sTILE0}, 69\ns_cbranch_scc1 Lstdone")
        for x in ph(1): e(x)
        store(1)
        k.label('Lphi1')
        for x in ph(2): e(x)
        e("s_branch Lst2")
    outline.append(phis)
    stamp(3); stamp(12, 4)

def reducer_addr_setup():
    e(f"""s_lshr_b32 s{sRHD}, s{sTB}, 1
s_and_b32 s{sT0}, s{sTB}, 1
s_mul_i32 s{sT0}, s{sT0}, 7
s_add_u32 s{sRCT}, s{sT0}, s{sW}
s_mul_i32 s{sRMB}, s{sRCT}, {28*1024}
s_add_u32 s{sRMB}, s{sRMB}, {MB}
s_lshl_b32 s{sFLO}, s{sRCT}, 11
s_lshl_b32 s{sT1}, s{sRHD}, 7
s_add_u32 s{sFLO}, s{sFLO}, s{sT1}
s_add_u32 s{sFLO}, s{sFLO}, {FLM + 4}
s_add_u32 s{sHQO}, s{sT1}, {ZG}
s_cmp_eq_u32 s{sRCT}, 3
s_cselect_b32 s{sT4}, 0x05555555, 0
s_cmp_eq_u32 s{sW}, 7
s_cselect_b32 s{sT1}, 6, s{sGSEL}
s_cmp_eq_u32 s{sT1}, 7
s_cselect_b32 s{sRMB}, s{sRMB}, {DUMP}
s_cselect_b32 s{sFLO}, s{sFLO}, {DUMP}
s_cselect_b32 s{sT4}, s{sT4}, 0
s_mov_b32 s{sT3}, 0
s_mul_i32 s{sT0}, s{sRHD}, 7
v_lshrrev_b32 v6, 5, v0
v_and_b32 v7, 31, v0
v_lshlrev_b32 v7, 4, v7""")
    assert sT4 == sT3 + 1 and sT3 % 2 == 0
    for gq in range(4):
        a = vRA + gq
        e(f"""v_add_u32 v4, s{sT0}, v6
v_add_u32 v4, {2*gq}, v4
v_lshrrev_b32 v5, 2, v4
v_lshl_add_u32 v{a}, v5, 10, v7
v_and_b32 v5, 1, v4
v_lshl_add_u32 v{a}, v5, 9, v{a}
v_bfe_u32 v5, v4, 1, 1
v_lshl_add_u32 v{a}, v5, 3, v{a}""")
    z = vRA + 4
    e(f"""v_mov_b32 v6, {DUMP}
v_cndmask_b32 v{vRA+3}, v{vRA+3}, v6, {HALF}
v_and_b32 v4, 31, v0
v_lshl_add_u32 v{z}, v4, 2, s{sHQO}
v_cndmask_b32 v{z}, v6, v{z}, s[{sT3}:{sT4}]""")
    e("v_mov_b32 v70, -1\nv_mov_b32 v71, -1")
    return [f"buffer_store_dwordx2 v[70:71], v{vRA+gq}, {WS}, s{sRMB} offen sc1" for gq in range(4)]

def phase1_KV():
    g = sMG
    pre_common()
    e(f"""s_and_b32 s{sT0}, s{sXCD}, 1
s_mul_i32 s{sT1}, s{sT0}, 3
s_add_u32 s{sT3}, s{sT0}, 1
s_cmp_eq_u32 s{sGSEL}, 6
s_cselect_b32 s{g}, s{sT1}, s{sT3}
s_mul_i32 s{sT0}, s{g}, 224
s_cmp_eq_u32 s{g}, 3
s_cselect_b32 s{sT0}, 640, s{sT0}
s_add_u32 s{sT0}, s{sT0}, 896
v_lshrrev_b32 v4, 4, v0
v_lshlrev_b32 v5, 2, v4
v_sub_u32 v5, v0, v5
v_and_b32 v5, 15, v5
v_lshl_add_u32 v5, v5, 4, s{sT0}
v_lshl_add_u32 v4, s{sW}, 3, v4
v_mul_u32_u24 v4, 2688, v4
v_add_u32 v{vDW0}, v4, v5
v_add_u32 v{vDW0+1}, {4*2688}, v{vDW0}
s_lshl_b32 s{sM0W}, s{sW}, 11
s_add_u32 s{sM0W}, s{sM0W}, 16384""")
    pre_row()
    rtok = after_kernarg()
    stamp(0)
    srd(rW0, pWQKV, 448 * 2688)
    dma_tok = {}
    for gg in p1_dma('KV', 0): dma_tok[0] = e(gg)
    e(f"s_and_b32 s{sLO}, s{sW}, 3\ns_lshr_b32 s{sHI}, s{sW}, 2\ns_lshl_b32 s{sT3}, s{sHI}, 13")
    setup_a()
    for gg in p1_dma('KV', 1): dma_tok[1] = e(gg)
    e(f"""s_lshl_b32 s{sTILE0}, s{g}, 2
s_add_u32 s{sTILE0}, s{sTILE0}, s{sLO}
s_cmp_eq_u32 s{g}, 3
s_cselect_b32 s{sT1}, 32, 0
s_mul_i32 s{sT0}, s{sLO}, 56
s_add_u32 s{sT1}, s{sT1}, s{sT0}
v_bfe_u32 v4, v0, 2, 2
v_lshl_add_u32 v5, v4, 6, s{sT1}
v_bfe_u32 v6, v0, 4, 1
v_lshl_add_u32 v5, v6, 5, v5
v_and_b32 v6, 3, v0
v_lshl_add_u32 v5, v6, 3, v5
v_and_b32 v5, 255, v5
v_lshrrev_b32 v6, 5, v0
v_lshl_add_u32 v4, v6, 3, v4
v_lshl_add_u32 v5, v4, 8, v5
v_add_u32 v{vAW}, 16384, v5
v_add_u32 v{vAW+1}, {16384+SLOT}, v5
v_add_u32 v{vAW+2}, {16384+2*SLOT}, v5""")
    pst = reducer_addr_setup()
    for x in pst: ptok = e(x)
    e(f"s_add_u32 s{sT4}, s{sTILE0}, 24\ns_lshl_b32 s{sT3}, s{sRB}, 7\ns_lshl_b32 s{sT0}, s{sHI}, 6\ns_add_u32 s{sT3}, s{sT3}, s{sT0}")
    gran_addr_setup(sT4, sHI, sT3, 63)
    p2_setup()
    gbox = [None]
    gl = gran_loads()
    def last_g(): gbox[0] = e(gl[-1])
    m, var = vSG, vSG + 1
    vXA = 136; vWAu = 144; r1 = 152; R = 154; vC = 160
    vR = 184
    early = lines(f"""s_lshl_b32 s{sT0}, s{sW}, 9
s_add_u32 s{sT0}, s{sT0}, {SCR}
v_lshl_add_u32 v6, v0, 2, s{sT0}
v_lshrrev_b32 v7, 5, v0
v_lshl_add_u32 v7, v7, 4, s{sT0}""") + [f"v_mov_b32 v{r}, 0" for r in (vXA+2, vXA+3, vXA+6, vXA+7, vWAu+2, vWAu+3, vWAu+6, vWAu+7)]
    aug = gran_check_items(gbox) + lines(f"""v_add_f32 v{r1}, {f32(EPS)}, v{var}
v_rsq_f32 v{r1}, v{r1}
v_cvt_pk_bf16_f32 v{R}, -v{m}, 0
v_mul_f32 v{r1+1}, {f32(LOG2E)}, v{r1}
ds_write_b32 v6, v{r1}
ds_write_b32 v6, v{r1+1} offset:256""") + colsum_sum_items(2, vC)
    aug += lines(f"""v_lshlrev_b32 v{R+1}, 16, v{R}
v_sub_f32 v{R+1}, -v{m}, v{R+1}
v_cvt_pk_bf16_f32 v{R+3}, -v{m}, v{R+1}
v_cndmask_b32 v{vXA}, v{R+3}, 0, {HALF}
v_cndmask_b32 v{vXA+1}, v{R}, 0, {HALF}
v_cndmask_b32 v{vXA+4}, 0, v{R+3}, {HALF}
v_cndmask_b32 v{vXA+5}, 0, v{R}, {HALF}""")
    for kv in range(2):
        c = vC + kv; a = vWAu + 4 * kv
        aug += lines(f"""v_cvt_pk_bf16_f32 v{a}, v{c}, v{c}
v_and_b32 v{R+4}, 0xffff0000, v{a}
v_sub_f32 v{R+4}, v{c}, v{R+4}
v_cvt_pk_bf16_f32 v{a+1}, v{R+4}, 0""")
    fillers = [(5, 5, colsum_pub_items(2)), (9, 9, [lambda: k.wait(vm=ptok), flag_item(sFLO)]),
               (12, 13, early), (23, 27, aug)]
    main_loop('KV', dma_tok, fillers, {4: gl[:-1] + [last_g]}, rtok)
    rr = []
    for u in range(2):
        for gq in range(4):
            rr.append(f"ds_read_b128 {vr(vR+32+16*u+4*gq,4)}, v7 offset:{256+128*u+32*gq}")
            rr.append(f"ds_read_b128 {vr(vR+16*u+4*gq,4)}, v7 offset:{128*u+32*gq}")
    mf = []
    for t in range(4):
        u, kv = t >> 1, t & 1
        acc = vr(vACC + 16 * t, 16)
        mf.append(f"v_mfma_f32_32x32x16_bf16 {acc}, {vr(vXA+4*u,4)}, {vr(vWAu+4*kv,4)}, {acc}")
    for x in spread(mf, rr): e(x)
    stamp(2); stamp(9, chunk=True)
    vT = vXB; vPK = 48; vPV = 56; vKV = 160
    e(f"""v_mov_b32 v7, 0x3f803f80
s_mov_b32 s{sMKM}, 0x10000000
s_mov_b32 s{sMKM+1}, 0x10000000
s_add_u32 s{sT0}, s{sLO}, 4
s_mul_i32 s{sT0}, s{sT0}, 6144
v_add_u32 v6, s{sT0}, v{vL16}
s_lshl_b32 s{sT0}, s{sTILE0}, 4
s_add_u32 s{sT0}, s{sT0}, s{sRB}
s_lshl_b32 s{sT0}, s{sT0}, 12
s_add_u32 s{sT0}, s{sT0}, {KVP}
v_mov_b32 v5, 0xff
s_lshr_b32 s{sSO0}, s{sTAG}, 8
s_lshr_b32 s{sSO1}, s{sTAG}, 16
s_lshr_b32 s{sSO2}, s{sTAG}, 24
s_waitcnt lgkmcnt(8)""")
    for u in range(2):
        ak, av = vACC + 32 * u, vACC + 32 * u + 16
        if u == 1: e("s_waitcnt lgkmcnt(0)")
        for x in phi_tile(ak, vPK, lambda p: vr(vR + 16 * u + 2 * p, 2), lambda p: vr(vR + 32 + 16 * u + 2 * p, 2), 1, vT): e(x)
        for p in range(8): e(f"v_pk_mul_f32 {vr(av+2*p,2)}, {vr(av+2*p,2)}, {vr(vR+16*u+2*p,2)}")
        for p in range(8): e(f"v_cvt_pk_bf16_f32 v{vPV+p}, v{av+2*p}, v{av+2*p+1}")
        for p in range(8): e(f"v_cndmask_b32 v{vPV+p}, v{vPV+p}, v7, s[{sMKM}:{sMKM+1}]")
        for h in range(2):
            cin = '0' if (u == 0 and h == 0) else vr(vKV, 16)
            e(f"v_mfma_f32_32x32x16_bf16 {vr(vKV,16)}, {vr(vPV+4*h,4)}, {vr(vPK+4*h,4)}, {cin}")
    L1, L2 = k.newlabel('Lc'), k.newlabel('Lc')
    e(f"s_cmp_lg_u32 s{sHI}, 0\ns_cbranch_scc1 {L1}")
    for gq in range(4): e(f"ds_write_b128 v6, {vr(vKV+4*gq,4)} offset:{1024*gq}")
    e("s_waitcnt lgkmcnt(0)")
    k.label(L1)
    e("s_waitcnt vmcnt(0)\ns_barrier")
    st = k.state()
    e(f"s_cmp_eq_u32 s{sHI}, 0\ns_cbranch_scc1 {L2}")
    tk = [e(f"ds_read_b128 {vr(vT+4*gq,4)}, v6 offset:{1024*gq}") for gq in range(4)]
    e("s_nop 3")
    tb = [sTAG, sSO0, sSO1, sSO2]
    for gq in range(4):
        k.wait(lg=tk[gq])
        for p in range(2): e(f"v_pk_add_f32 {vr(vKV+4*gq+2*p,2)}, {vr(vKV+4*gq+2*p,2)}, {vr(vT+4*gq+2*p,2)}")
        for d in range(4): e(f"v_bfi_b32 v{vKV+4*gq+d}, v5, s{tb[d]}, v{vKV+4*gq+d}")
        e(f"buffer_store_dwordx4 {vr(vKV+4*gq,4)}, v{vL16}, {WS}, s{sT0} offen offset:{1024*gq} sc1")
    k.label(L2)
    k.set_state(st)
    stamp(3); stamp(12, 4)

def reducer():
    hd = sRHD
    srd(rMISC, pWO, 448 * 896)
    WOB = SCR + 4096
    WOB = SLOT; AF = SLOT + 16384
    e(f"""s_mul_i32 s{sT0}, s{hd}, 28
v_lshrrev_b32 v4, 2, v0
v_add_u32 v4, s{sT0}, v4
v_mul_u32_u24 v4, 896, v4
v_and_b32 v5, 3, v0
v_lshl_add_u32 v4, v5, 4, v4
s_lshl_b32 s{sT0}, s{sRCT}, 6
v_add_u32 v4, s{sT0}, v4
v_add_u32 v5, {16*896}, v4
s_lshl_b32 s{sT1}, s{sW}, 11
s_add_u32 m0, s{sT1}, {WOB}
buffer_load_dwordx4 v4, s[{rMISC}:{rMISC+3}], 0 offen lds
s_add_u32 m0, s{sT1}, {WOB+1024}""")
    wtok = e(f"buffer_load_dwordx4 v5, s[{rMISC}:{rMISC+3}], 0 offen lds")
    e(f"""v_lshrrev_b32 v6, 5, v0
v_lshlrev_b32 v6, 2, v6
v_bfe_u32 v7, v0, 2, 2
v_add_u32 v6, v6, v7
v_lshlrev_b32 v6, 6, v6
v_bfe_u32 v7, v0, 4, 1
v_lshl_add_u32 v6, v7, 5, v6
v_and_b32 v7, 3, v0
v_lshl_add_u32 v6, v7, 3, v6
s_add_u32 s{sT1}, s{sT1}, {WOB}
v_add_u32 v14, s{sT1}, v6
s_mov_b32 s{sMKM}, 0
s_cmp_eq_u32 s{sW}, 3
s_cselect_b32 s{sMKM+1}, -1, 0""")
    vWF = 16
    L1 = k.newlabel('Lr')
    e(f"s_cmp_ge_u32 s{sW}, 4\ns_cbranch_scc1 {L1}")
    st = k.state()
    vP = 72; vX = 24; vS = 28
    e(f"""s_lshl_b32 s{sT0}, s{hd}, 16
s_lshl_b32 s{sT1}, s{sW}, 10
s_add_u32 s{sT0}, s{sT0}, s{sT1}
s_add_u32 s{sT0}, s{sT0}, {KVP}
v_add_u32 v4, s{sT0}, v{vL16}
s_lshr_b32 s{sT0}, s{sW}, 1
s_lshl_b32 s{sT0}, s{sT0}, 10
s_and_b32 s{sT1}, s{sW}, 1
s_lshl_b32 s{sT1}, s{sT1}, 3
s_add_u32 s{sT0}, s{sT0}, s{sT1}
s_add_u32 s{sT0}, s{sT0}, {AF}
v_add_u32 v5, s{sT0}, v{vL16}""")
    tb = [sTAG, sSO0, sSO1, sSO2]
    ck = Checked()
    toks = []
    for rb in range(16):
        toks.append(ck.load(f"s_movk_i32 s{sT0}, {rb*4096 if rb < 8 else rb*4096-65536}\ns_and_b32 s{sT0}, s{sT0}, 0xffff\nbuffer_load_dwordx4 {vr(vP+4*rb,4)}, v4, {WS}, s{sT0} offen sc1"))
    for gidx in range(4):
        c = []
        for rb in range(4 * gidx, 4 * gidx + 4):
            for d in range(4):
                if rb % 4 == 0: c.append(f"v_xor_b32 v{vX+d}, s{tb[d]}, v{vP+4*rb+d}")
                else: c.append(f"v_bitop3_b32 v{vX+d}, v{vX+d}, v{vP+4*rb+d}, s{tb[d]} bitop3:0xf6")
        c += [f"v_or3_b32 v{vX}, v{vX}, v{vX+1}, v{vX+2}", f"v_or_b32 v{vX}, v{vX}, v{vX+3}", f"v_and_b32 v{vX}, 0xff, v{vX}",
              f"v_cmp_ne_u32 vcc, 0, v{vX}", "s_cmp_lg_u64 vcc, 0"]
        ck.check(toks[4 * gidx], toks[4 * gidx + 3], "\n".join(c), sleep=0)
        b = vP + 16 * gidx
        for p in range(2):
            e(f"v_pk_add_f32 {vr(b+2*p,2)}, {vr(b+2*p,2)}, {vr(b+4+2*p,2)}\nv_pk_add_f32 {vr(b+8+2*p,2)}, {vr(b+8+2*p,2)}, {vr(b+12+2*p,2)}")
        for p in range(2): e(f"v_pk_add_f32 {vr(b+2*p,2)}, {vr(b+2*p,2)}, {vr(b+8+2*p,2)}")
        for p in range(2):
            if gidx == 0: e(f"v_mov_b32 v{vS+2*p}, v{b+2*p}\nv_mov_b32 v{vS+2*p+1}, v{b+2*p+1}")
            else: e(f"v_pk_add_f32 {vr(vS+2*p,2)}, {vr(vS+2*p,2)}, {vr(b+2*p,2)}")
    stamp(4)
    e(f"""v_mov_b32_dpp v6, v{vS} quad_perm:[1,1,3,3] row_mask:0xf bank_mask:0xf
v_cvt_pk_bf16_f32 v12, v{vS}, v{vS+1}
v_cvt_pk_bf16_f32 v13, v{vS+2}, v{vS+3}
v_cvt_pk_bf16_f32 v6, v{vS}, v6
v_cndmask_b32 v12, v12, 0, s[{sMKM}:{sMKM+1}]
v_cndmask_b32 v13, v13, 0, s[{sMKM}:{sMKM+1}]
v_mov_b32 v7, s{sTAG}
ds_write_b64 v5, v[12:13]
buffer_store_dwordx2 v[6:7], v{vRA+4}, {WS}, 0 offen sc1""")
    k.label(L1)
    k.set_state(st)
    e(f"s_cmp_lt_u32 s{sW}, 4\ns_cbranch_scc1 Lr_nw\ns_waitcnt vmcnt(0)")
    k.label('Lr_nw')
    for s in range(2):
        for rd in range(2): e(f"ds_read_b64_tr_b16 {vr(vWF+4*s+2*rd,2)}, v14 offset:{s*1024+rd*512}")
    e(f"v_add_u32 v5, {AF}, v{vL16}\ns_waitcnt lgkmcnt(0)\ns_barrier")
    vAF = 24; vD = 96
    e(f"ds_read_b128 {vr(vAF,4)}, v5\nds_read_b128 {vr(vAF+4,4)}, v5 offset:1024")
    e("s_waitcnt lgkmcnt(1)")
    e(f"v_mfma_f32_32x32x16_bf16 {vr(vD,16)}, {vr(vAF,4)}, {vr(vWF,4)}, 0")
    e("s_waitcnt lgkmcnt(0)")
    e(f"v_mfma_f32_32x32x16_bf16 {vr(vD,16)}, {vr(vAF+4,4)}, {vr(vWF+4,4)}, {vr(vD,16)}")
    for gq in range(4):
        for p in range(2): e(f"v_cvt_pk_bf16_f32 v{112+2*gq+p}, v{vD+4*gq+2*p}, v{vD+4*gq+2*p+1}")
        e(f"buffer_store_dwordx2 {vr(112+2*gq,2)}, v{vRA+gq}, {WS}, s{sRMB} offen sc1")
    stamp(5)

def phase2():
    vHO = 4
    vXR = 12; vB2 = 248
    vWB2 = 16
    vA2 = 32
    vH = 96
    vT = 252; vPA = 255 if not STAMPS else 31; vPD_ = 254 if not STAMPS else 30
    vOUT = 3
    t0, t1 = vA2, vA2 + 1
    srd(rMISC, pB2, 896)
    e(f"""s_lshl_b32 s{sT0}, s{sTB}, 1
s_add_u32 s{sT1}, s{sT0}, s{sHI}
s_mul_i32 s{sT1}, s{sT1}, {140*1024}
s_add_u32 s{sT1}, s{sT1}, {HQ}
v_add_u32 v{vHO}, s{sT1}, v{vL16}
s_xor_b32 s{sT1}, s{sHI}, 1
s_add_u32 s{sT1}, s{sT0}, s{sT1}
s_mul_i32 s{sT1}, s{sT1}, {140*1024}
s_add_u32 s{sT1}, s{sT1}, {HQ}
v_add_u32 v{vHO+1}, s{sT1}, v{vL16}""")
    for j in range(7): e(f"s_lshl_b32 s{sTAB+j}, s{sTAB+j}, 11")
    e(f"""v_lshrrev_b32 v{t0}, 3, v0
s_lshl_b32 s{sT0}, s{sTB}, 6
s_lshl_b32 s{sT1}, s{sW}, 3
s_add_u32 s{sT0}, s{sT0}, s{sT1}
v_add_u32 v{t0}, s{sT0}, v{t0}
v_mul_u32_u24 v{t0}, 896, v{t0}
v_and_b32 v{t1}, 7, v0
v_lshlrev_b32 v{t1}, 4, v{t1}
s_lshl_b32 s{sT0}, s{sCT}, 7
v_add_u32 v{t1}, s{sT0}, v{t1}
v_add_u32 v{vOUT}, v{t0}, v{t1}
buffer_load_dwordx4 {vr(vXR,4)}, v{vOUT}, s[{rX}:{rX+3}], 0 offen
buffer_load_dwordx4 {vr(vB2,4)}, v{t1}, s[{rMISC}:{rMISC+3}], 0 offen""")
    e(f"""s_lshl_b32 s{sT0}, s{sTB}, 13
s_add_u32 s{sT0}, s{sT0}, {FLH}
v_lshl_add_u32 v{vPA}, v0, 7, s{sT0}
s_cmp_eq_u32 s{sHI}, 0
s_cselect_b32 s{sMKM}, 0xfc0000, 0
s_cselect_b32 s{sMKM+1}, 0, 0xfc0000
s_or_b64 vcc, s[{sMKM}:{sMKM+1}], s[{sMKH}:{sMKH+1}]
v_mov_b32 v{t0}, {DUMP}
v_cndmask_b32 v{vPA}, v{t0}, v{vPA}, vcc
v_mov_b32 v{t0}, s{sTAG}
v_mov_b32 v{t1}, 0
s_waitcnt vmcnt(2)
s_mov_b64 exec, 1
buffer_store_dword v{t0}, v{t1}, {WS}, s{sFLO} offen sc1
s_mov_b64 exec, -1""")
    stamp(8); stamp(13, 4)
    if 'nobar' not in DBG: e("s_barrier")
    poll(vPA, sMKH, opt('psleep', 2))
    ck = Checked()
    htok = {}
    for j in range(7):
        for s in range(2):
            for tt in range(2):
                htok[(2*j+s, tt)] = e(f"buffer_load_dwordx4 {vr(vH+16*j+8*s+4*tt,4)}, v{vHO+tt}, {WS}, s{sTAB+j} offen offset:{1024*s} sc1")
    stamp(9); stamp(15, 4)
    e(f"""s_mul_i32 s{sSO0}, s{sLO}, {7*1024}
s_add_u32 s{sSO1}, s{sSO0}, {112*1024}
s_add_u32 s{sSO2}, s{sSO1}, 4096
s_mul_i32 s{sT0}, s{sCT}, {56*1024}
s_add_u32 s{sT0}, s{sT0}, s{sSO0}
s_add_u32 s{sT0}, s{sT0}, {MB}
s_add_u32 s{sT1}, s{sT0}, 4096
s_add_u32 s{sT4}, s{sT0}, {28*1024}
s_add_u32 s{sSOX}, s{sT4}, 4096
v_lshrrev_b32 v2, 5, v0
v_lshlrev_b32 v2, 4, v2""")
    vQ = vH
    vZ = vWP
    vM = vH + 32
    vZA = vWP + 28; vZD = vWP + 38
    tok = {}
    for j in range(7):
        base = vH + 16 * j
        for s in range(2):
            u = 2 * j + s
            cur = tok; tok = {}
            rd = wreads(u + 1, vWB2 + 8 * ((u + 1) & 1)) if 5 <= u + 1 < 14 else []
            wsrc = vWP + 8 * u if u < 5 else vWB2 + 8 * (u & 1)
            mf = []
            for tt in range(2):
                for c in range(2):
                    acc = vr(vA2 + 32 * tt + 16 * c, 16)
                    mf.append(('m', (f"v_mfma_f32_32x32x16_bf16 {acc}, {vr(wsrc+4*c,4)}, {vr(base+8*s+4*tt,4)}, {'0' if u == 0 else acc}", c, tt)))
            for kind_, x in spread(mf, [('r', x) for x in rd]):
                if kind_ == 'm':
                    k.wait(vm=htok[(u, x[2])], lg=cur.get(x[1])); e(x[0])
                else: tok[x[1]] = e(x[0])
        if j == 1:
            poll(vPA, sMKM, 2, recheck=True)
            qt = [e(f"buffer_load_dwordx4 {vr(vQ+4*s,4)}, v{vHO}, {WS}, s{sSO1 if s < 4 else sSO2} offen offset:{1024*(s&3)} sc1") for s in range(7)]
        if j == 2:
            e(f"""v_mul_u32_u24 v{vZ}, 37, v0
v_lshrrev_b32 v{vZ}, 9, v{vZ}
v_lshlrev_b32 v{vZ+1}, 3, v0
v_lshl_add_u32 v{vZ+1}, v{vZ}, 4, v{vZ+1}
s_lshl_b32 s{sT3}, s{sLO}, 9
s_add_u32 s{sPD}, s{sT3}, {ZG}
v_add_u32 v{vZ+1}, s{sPD}, v{vZ+1}
v_bfe_u32 v{vZ+2}, v0, 2, 1
v_lshlrev_b32 v{vZ+2}, 11, v{vZ+2}
v_and_b32 v{vZ+3}, 3, v0
v_lshl_add_u32 v{vZ+2}, v{vZ+3}, 7, v{vZ+2}
s_lshl_b32 s{sPD}, s{sCT}, 12
s_add_u32 s{sPD}, s{sPD}, s{sT3}
s_add_u32 s{sPD}, s{sPD}, {FLM}
v_add_u32 v{vZ+2}, s{sPD}, v{vZ+2}
v_cmp_gt_u32 vcc, 56, v0
v_cndmask_b32 v{vZA}, v{vZ+2}, v{vZ+1}, vcc""")
            e(f"""v_lshrrev_b32 v{vZ}, 3, v0
v_lshlrev_b32 v{vZ}, 5, v{vZ}
v_bfe_u32 v{vZ+1}, v0, 1, 1
v_lshl_add_u32 v{vZ}, v{vZ+1}, 4, v{vZ}
v_bfe_u32 v{vZ+1}, v0, 2, 1
v_lshl_add_u32 v{vZ}, v{vZ+1}, 3, v{vZ}
v_and_b32 v{vZ+1}, 1, v0
v_lshl_add_u32 v{vZ}, v{vZ+1}, 2, v{vZ}
s_lshl_b32 s{sPD}, s{sW}, 8
s_add_u32 s{sPD}, s{sPD}, {SCR + 8192}
v_add_u32 v{vZA+1}, s{sPD}, v{vZ}
v_add_u32 v{vZA+2}, s{sPD}, v2""")
        if j == 5:
            zt = ck.load(f"buffer_load_dwordx2 {vr(vZD,2)}, v{vZA}, {WS}, 0 offen sc1")
    stamp(4); stamp(14, 4)
    PITCH = 272
    def tokaddr(dst, tokreg, tmp):
        return f"""v_mul_u32_u24 v{tmp}, 47, v{tokreg}
v_lshrrev_b32 v{tmp}, 10, v{tmp}
v_mul_u32_u24 v{dst}, {PITCH}, v{tokreg}
v_mul_u32_u24 v{tmp}, {SLOT - 22*PITCH}, v{tmp}
v_add_u32 v{dst}, v{dst}, v{tmp}"""
    w0, w1, rd_, x0, x1 = vWA, vWA + 1, vWA + 2, vWA + 3, vWA + 4
    e(f"v_and_b32 v{x0}, 31, v0\ns_lshl_b32 s{sPD}, s{sHI}, 5\nv_add_u32 v{x0}, s{sPD}, v{x0}"); e(tokaddr(w0, x0, x1))
    e(f"v_xor_b32 v{x0}, 32, v{x0}"); e(tokaddr(w1, x0, x1))
    e(f"""v_add_u32 v{x0}, s{sM0P}, v2
v_add_u32 v{w0}, v{w0}, v{x0}
v_add_u32 v{w1}, v{w1}, v{x0}
v_lshrrev_b32 v{x0}, 3, v0
v_lshl_add_u32 v{x0}, s{sW}, 3, v{x0}""")
    e(tokaddr(rd_, x0, x1))
    e(f"v_and_b32 v{x0}, 7, v0\nv_lshl_add_u32 v{rd_}, v{x0}, 5, v{rd_}")
    for c in range(2):
        for gq in range(4): e(f"ds_write_b128 v{w1}, {vr(vA2+32+16*c+4*gq,4)} offset:{c*128+gq*32}")
    vF = vWB2; vG = vWB2 + 8
    for d in range(4):
        e(f"""v_lshlrev_b32 v{vF+2*d}, 16, v{vXR+d}
v_and_b32 v{vF+2*d+1}, 0xffff0000, v{vXR+d}
v_lshlrev_b32 v{vG+2*d}, 16, v{vB2+d}
v_and_b32 v{vG+2*d+1}, 0xffff0000, v{vB2+d}""")
    for d in range(4): e(f"v_pk_add_f32 {vr(vF+2*d,2)}, {vr(vF+2*d,2)}, {vr(vG+2*d,2)}")
    srd(rMISC, pOUT, 2048 * 896)
    stamp(10)
    ck.check(zt, zt, f"v_cmp_ne_u32 vcc, s{sTAG}, v{vZD+1}\ns_cmp_lg_u64 vcc, 0", sleep=opt('zsleep', 4))
    stamp(11)
    e(f"ds_write_b32 v{vZA+1}, v{vZD}")
    for s in range(7): e(f"ds_read_b128 {vr(vZ+4*s,4)}, v{vZA+2} offset:{32*s}")
    mt = {}
    def mloads():
        for s in range(7):
            for c in range(2):
                so = [[sT0, sT1], [sT4, sSOX]][c][s >> 2]
                mt[(s, c)] = ck.load(f"buffer_load_dwordx4 {vr(vM+8*s+4*c,4)}, v{vL16}, {WS}, s{so} offen offset:{1024*(s&3)} sc1")
    MPOS = opt('mpos', 1)
    if MPOS == 0: mloads()
    e("s_waitcnt lgkmcnt(0)")
    vD = vWP + 28
    a = [vD + i for i in range(4)]; t3, t10 = vD + 4, vD + 5
    b = [vD + 6 + i for i in range(4)]
    dst = {0: a[0], 1: a[0], 2: a[0], 3: t3, 4: a[1], 5: a[1], 6: a[1], 7: a[2], 8: a[2], 9: a[2], 10: t10, 11: a[3], 12: a[3], 13: a[3]}
    order = [0, 4, 7, 11, 3, 10, 1, 5, 8, 12, 2, 6, 9, 13]
    vU = vG
    seen = set()
    for d in range(2):
        for q in order:
            r = dst[q]; cin = '0' if r not in seen else f'v{r}'; seen.add(r)
            e(f"v_dot2_f32_bf16 v{r}, v{vQ+2*q+d}, v{vZ+2*q+d}, {cin}")
    e(f"""v_cndmask_b32 v{b[0]}, v{t3}, 0, {HALF}
v_cndmask_b32 v{b[1]}, 0, v{t3}, {HALF}
v_cndmask_b32 v{b[2]}, v{t10}, 0, {HALF}
v_cndmask_b32 v{b[3]}, 0, v{t10}, {HALF}""")
    for i in range(4): e(f"v_add_f32 v{a[i]}, v{a[i]}, v{b[i]}")
    for i in range(4): e(f"v_mov_b32 v{b[i]}, v{a[i]}")
    for i in range(4): e(f"v_permlane32_swap_b32 v{a[i]}, v{b[i]}")
    for i in range(4): e(f"v_add_f32 v{a[i]}, v{a[i]}, v{b[i]}")
    for i in range(4): e(f"v_add_f32 v{a[i]}, s{sEPS}, v{a[i]}")
    for i in range(4): e(f"v_rcp_f32 v{a[i]}, v{a[i]}")
    e(f"v_cndmask_b32 v{t3}, v{a[0]}, v{a[1]}, {HALF}\nv_cndmask_b32 v{t10}, v{a[2]}, v{a[3]}, {HALF}")
    if MPOS == 1: mloads()
    for q in range(14):
        r = dst[q]
        if MPOS == 2 and q == 7: mloads()
        for d in range(2):
            x = vQ + 2 * q + d; lo, hi = vU + 2 * d, vU + 2 * d + 1
            e(f"v_lshlrev_b32 v{lo}, 16, v{x}\nv_and_b32 v{hi}, 0xffff0000, v{x}\nv_mul_f32 v{lo}, v{lo}, v{r}\nv_mul_f32 v{hi}, v{hi}, v{r}\nv_cvt_pk_bf16_f32 v{x}, v{lo}, v{hi}")
    for (s0, s1) in ((0, 4), (4, 7)):
        ck.check(mt[(s0, 0)], mt[(s1 - 1, 1)], poison_chk(range(vM + 8 * s0, vM + 8 * s1), vT))
        for s in range(s0, s1):
            for c in range(2):
                acc = vr(vA2 + 16 * c, 16)
                e(f"v_mfma_f32_32x32x16_bf16 {acc}, {vr(vM+8*s+4*c,4)}, {vr(vQ+4*s,4)}, {acc}")
    stamp(6)
    for c in range(2):
        for gq in range(4): e(f"ds_write_b128 v{w0}, {vr(vA2+16*c+4*gq,4)} offset:{c*128+gq*32}")
    e("s_waitcnt lgkmcnt(0)\ns_barrier")
    rt = []
    for q in range(8):
        for hh in range(2): rt.append(e(f"ds_read_b128 {vr(vH+8*q+4*hh,4)}, v{rd_} offset:{q*6144+16*hh}"))
    for q in range(8):
        k.wait(lg=rt[2 * q + 1])
        for d in range(4): e(f"v_pk_add_f32 {vr(vF+2*d,2)}, {vr(vF+2*d,2)}, {vr(vH+8*q+2*d,2)}")
    for d in range(4): e(f"v_cvt_pk_bf16_f32 v{vXR+d}, v{vF+2*d}, v{vF+2*d+1}")
    e(f"buffer_store_dwordx4 {vr(vXR,4)}, v{vOUT}, s[{rMISC}:{rMISC+3}], 0 offen")
    stamp(7)
    e(f"s_or_b32 s{sT0}, s2, s{sW}\ns_cmp_lg_u32 s{sT0}, 0\ns_cbranch_scc1 Lend")
    e(f"v_mov_b32 v4, s{sTAG}\nv_mov_b32 v5, {EPOCH}\ns_mov_b64 exec, 1\nbuffer_store_dword v4, v5, {WS}, 0 offen")

kn = NAME + '_kernel'
hdr = open(f'cdna_kernels/{NAME}.s.ref').read().split('; Override launch')[0]
head = hdr + f"; @launch grid=(256,1,1) block=(512,1,1) lds={LDS_BYTES}\n"
k.raw('.amdgcn_target "amdgcn-amd-amdhsa--gfx950"\n.text')
k.raw(f".globl {kn}\n.p2align 8\n.type {kn},@function\n{kn}:")
prologue()
st_pro = k.state()
phase1_M()
k.label('Lp2'); k.set_state(([], []))
phase2()
k.label('Lend'); e("s_endpgm")
k.label('Lkv'); k.set_state(st_pro)
phase1_KV()
e(f"s_cmp_eq_u32 s{sGSEL}, 7\ns_cbranch_scc1 Lred")
for x in wa_items(): e(x)
e("s_waitcnt lgkmcnt(0)")
for g in p2_dma(2): e(g)
for u in range(5):
    for x, _ in wreads(u, vWP + 8 * u): e(x)
e("s_waitcnt lgkmcnt(0)")
for u in range(9, 14):
    for g in unit_dma(u): e(g)
e("s_branch Lp2")
k.label('Lred')
k.set_state(([], []))
reducer()
e("s_endpgm")
i = 0
while i < len(outline): outline[i](); i += 1
k.label('Lcode_end')
e("s_endpgm")
body, nnop = k.render()
kd = f""".amdhsa_kernel {kn}
  .amdhsa_next_free_vgpr 256
  .amdhsa_next_free_sgpr 102
  .amdhsa_accum_offset 256
  .amdhsa_group_segment_fixed_size 0
  .amdhsa_kernarg_size 88
  .amdhsa_user_sgpr_count 2
  .amdhsa_user_sgpr_kernarg_segment_ptr 1
  .amdhsa_system_sgpr_workgroup_id_x 1
.end_amdhsa_kernel
"""
out = head + body + '.section .rodata,"a"\n.p2align 6\n' + kd
outp = [a for a in sys.argv[1:] if not a.startswith('--')]
open(outp[0] if outp else f'cdna_kernels/{NAME}.s', 'w').write(out)
print("nops inserted:", nnop, "lines:", out.count('\n'))
```

```python
import sys, math, struct
sys.path.insert(0, 'gen')
from dsl import *

NAME = "parallel_sum__linear_attn_block__mixer_channel_mlp__prompt"
STAMPS = '--stamps' in sys.argv
DBG = set(a[6:] for a in sys.argv if a.startswith('--dbg-'))
def opt(name, default):
    for a in sys.argv:
        if a.startswith(f'--{name}='): return int(a.split('=')[1])
    return default
def f32(x): return '0x%08x' % struct.unpack('<I', struct.pack('<f', x))[0]
def lines(s): return [l for l in s.strip().split('\n') if l.strip()]

EPOCH = 0
ZG = 0x1000
FLM = 0x2000
STATS = 0x10000
CSG = 0x18000
MB = 0x40000
FLH = 0xB0000
KVP = 0x100000
HQ = 0x200000
WS_USED = 0xAC0000
DUMP = 0x7000000
STAMP_OFF = 0x8000000
SLOT = 49152
SCR = 3 * SLOT
LDS_BYTES = 163840
EPS = 1e-5
LOG2E = math.log2(math.e)
GC0 = -2.0 * math.sqrt(2.0 / math.pi) * LOG2E
GC1 = 0.044715
SPIN_MAX = 20000

sW = 3
pX, pWQKV, pWO, pBX, pW1, pB1, pW2, pB2, pOUT, pDBG, pWS = 4, 6, 8, 10, 12, 14, 16, 18, 20, 22, 24
sHQO, sFLO = 10, 11
sRHD, sRMB = 22, 23
sXCD, sSUB, sGSEL, sRB, sCC = 26, 27, 28, 29, 30
sT0, sT1, sT2, sT3, sT4 = 31, 32, 33, 34, 35
rX, rW0, rW1, rW2, rWS, rW2G, rMISC = 36, 40, 44, 48, 52, 56, 60
sSOX, sSO0, sSO1, sSO2 = 64, 65, 66, 67
sPSTEP0 = 68
sM0X, sM0W = 71, 72
sLO, sHI = 73, 74
sC0 = 75
sMKH = 76
sHALF = 78
sTAB = 80
sRCT = 87
sEPS = 88
sMKM = 90
sMG = 92
sPD = 93
sTAG = 94
sCT, sTB = 95, 96
sTILE0 = 97
sM0P = 98
sMEAN = 99
sSTAMP = 100

k = K()
e = k.e
outline = []

def srd_s(r, ptr, nbytes):
    return f"s_mov_b32 s{r}, s{ptr}\ns_and_b32 s{r+1}, s{ptr+1}, 0xffff\ns_mov_b32 s{r+2}, {nbytes}\ns_mov_b32 s{r+3}, 0x20000"
def srd(r, ptr, nbytes): e(srd_s(r, ptr, nbytes))
WS = f"s[{rWS}:{rWS+3}]"
HALF = f"s[{sHALF}:{sHALF+1}]"

def stamp(idx, wave=0, chunk=False):
    if not STAMPS: return
    if ('chunks' in DBG) != chunk and idx > 1: return
    L = k.newlabel('Lst')
    st = k.state()
    e(f"s_cmp_lg_u32 s{sW}, {wave}\ns_cbranch_scc1 {L}")
    e(f"s_memrealtime s[{sSTAMP}:{sSTAMP+1}]\ns_memtime vcc\ns_waitcnt lgkmcnt(0)")
    e(f"v_mov_b32 v254, s{sSTAMP}\nv_mov_b32 v255, s{sSTAMP+1}")
    e(f"s_lshl_b32 s{sSTAMP}, s2, 8\ns_add_u32 s{sSTAMP}, s{sSTAMP}, {STAMP_OFF + 8*idx}\nv_mov_b32 v253, s{sSTAMP}")
    e(f"global_store_dwordx2 v253, v[254:255], s[{pWS}:{pWS+1}]")
    e(f"s_nop 1\nv_mov_b32 v254, vcc_lo\nv_mov_b32 v255, vcc_hi")
    e(f"global_store_dwordx2 v253, v[254:255], s[{pWS}:{pWS+1}] offset:128")
    k.label(L)
    k.set_state(st)

def emit_item(x): return x() if callable(x) else e(x)

def capture(fn):
    global e
    items = []
    old = e
    def rec(t): items.append(t); return None
    e = rec
    try: fn()
    finally: e = old
    return items
def split_items(items, n=6):
    out = []
    for t in items:
        if callable(t): out.append(t); continue
        ls = lines(t); cur = []
        for i, l in enumerate(ls):
            cur.append(l)
            nxt = ls[i + 1] if i + 1 < len(ls) else ''
            live = any(x.startswith(('s_cselect', 's_cbranch', 's_addc')) for x in ls[i+1:i+2]) or l.startswith(('s_cmp', 's_add_u32 m0')) \
                   or (any(x.startswith('s_cselect') for x in ls[i+1:i+4]) and any(x.startswith('s_cmp') for x in cur) and not nxt.startswith('s_cmp'))
            if len(cur) >= n and not live: out.append("\n".join(cur)); cur = []
        if cur: out.append("\n".join(cur))
    return out

class Checked:
    def __init__(self): self.log = []
    def load(self, text):
        t = e(text); self.log.append((text, t)); return t
    def check(self, first_tok, last_tok, chk, sleep=1):
        Lc, Ls, Lb = k.newlabel('Lck'), k.newlabel('Lsl'), k.newlabel('Lbk')
        e(f"s_movk_i32 s{sT2}, {SPIN_MAX}")
        k.label(Lc)
        assert last_tok in k.vm
        k.wait(vm=last_tok)
        e(chk); e(f"s_cbranch_scc1 {Ls}")
        k.label(Lb)
        i0 = [t for _, t in self.log].index(first_tok)
        redo = [x for x, _ in self.log[i0:]]
        young = k.vm[:]
        assert all(t in [tt for _, tt in self.log[i0:]] for t in young), "untracked younger vmem op"
        def slow():
            k.label(Ls)
            e(f"s_sub_u32 s{sT2}, s{sT2}, 1\ns_cbranch_scc1 {Lb}")
            if sleep: e(f"s_sleep {sleep}")
            for x in redo: e(x)
            e(f"s_branch {Lc}")
        outline.append(slow)

def poll(vaddr, smask, sleep, recheck=False):
    vd = vaddr - 1
    Lp, Ld, Lc = k.newlabel('Lpl'), k.newlabel('Lpl'), k.newlabel('Lpl')
    test = f"v_cmp_ne_u32 vcc, s{sTAG}, v{vd}\ns_and_b64 vcc, vcc, s[{smask}:{smask+1}]"
    body = f"buffer_load_dword v{vd}, v{vaddr}, {WS}, 0 offen sc1\ns_waitcnt vmcnt(0)"
    if recheck:
        e(test); e(f"s_cbranch_scc1 {Lp}")
        k.label(Ld)
        def slow():
            k.label(Lp)
            e(f"s_movk_i32 s{sT2}, {SPIN_MAX}")
            k.label(Lc)
            e(body); e(test); e(f"s_cbranch_scc0 {Ld}\ns_sub_u32 s{sT2}, s{sT2}, 1\ns_cbranch_scc1 {Ld}\ns_sleep {sleep}\ns_branch {Lc}")
        outline.append(slow)
    else:
        e(f"s_movk_i32 s{sT2}, {SPIN_MAX}")
        k.label(Lp)
        e(body); e(test); e(f"s_cbranch_scc0 {Ld}\ns_sub_u32 s{sT2}, s{sT2}, 1\ns_cbranch_scc1 {Ld}\ns_sleep {sleep}\ns_branch {Lp}")
        k.label(Ld)

def poison_chk(regs, acc):
    regs = list(regs); o = []
    o.append(f"v_max3_u32 v{acc}, v{regs[0]}, v{regs[1]}, v{regs[2]}"); r = regs[3:]
    if len(r) >= 3:
        o.append(f"v_max3_u32 v{acc+1}, v{r[0]}, v{r[1]}, v{r[2]}"); r = r[3:]; two = True
    i = 0
    while len(r) >= 2:
        a = acc + (i & 1); o.append(f"v_max3_u32 v{a}, v{a}, v{r[0]}, v{r[1]}"); r = r[2:]; i += 1
    if r: o.append(f"v_max3_u32 v{acc}, v{acc}, v{acc+1}, v{r[0]}")
    else: o.append(f"v_max_u32 v{acc}, v{acc}, v{acc+1}")
    o.append(f"v_cmp_eq_u32 vcc, -1, v{acc}\ns_cmp_lg_u64 vcc, 0")
    return "\n".join(o)

A_LIST = [6 * (p // 3) + p % 3 for p in range(29)]
B_LIST = [6 * (p // 3) + 3 + p % 3 for p in range(27)]
LISTS = [A_LIST[:28], [A_LIST[28]] + B_LIST]
def tiles_of_wave(w): return list(range(7 * w, 7 * w + 7))
vL16 = 1
vPD0 = 2
vWA = 6
vWP = 208
P_SLOT = [1, 2, 0]
def unit_pos(u):
    if u >= 9: u -= 9
    return P_SLOT[u // 3] * SLOT + (u % 3) * 2048

def p2_setup():
    e(f"s_mul_i32 s{sTAB}, s{sW}, 7")
    for j in range(1, 7): e(f"s_add_u32 s{sTAB+j}, s{sTAB}, {j}")
    srd(rW2G, pW2, 1792 * 896)
    for w in range(8):
        m = 0
        for t in tiles_of_wave(w): m |= 1 << (t // 3)
        if w == 0: e(f"s_mov_b32 s{sMKH}, {m:#x}")
        else: e(f"s_cmp_eq_u32 s{sW}, {w}\ns_cselect_b32 s{sMKH}, {m:#x}, s{sMKH}")
    e(f"s_mov_b32 s{sMKH+1}, s{sMKH}")
    e(f"""s_cmp_eq_u32 s{sGSEL}, 7
s_cselect_b32 s{rW2G+2}, 0, s{rW2G+2}
v_lshrrev_b32 v4, 3, v0
v_mul_u32_u24 v4, 896, v4
v_bfe_u32 v5, v0, 4, 1
v_lshlrev_b32 v5, 2, v5
v_and_b32 v6, 7, v0
v_xor_b32 v5, v5, v6
v_lshl_add_u32 v4, v5, 4, v4
s_lshl_b32 s{sT0}, s{sCT}, 7
v_add_u32 v{vPD0}, s{sT0}, v4
v_add_u32 v{vPD0+1}, 7168, v{vPD0}
s_mul_i32 s{sM0P}, s{sW}, 6144""")

def w2_prefetch():
    if 'nopf' in DBG: return []
    return [f"""s_lshr_b32 s{sT0}, s2, 3
s_lshl_b32 s{sT0}, s{sT0}, 3
s_add_u32 s{sT0}, s{sT0}, s{sW}
s_mul_i32 s{sT0}, s{sT0}, {49*128}
v_min_u32 v4, 48, v0
v_lshl_add_u32 v4, v4, 7, s{sT0}
global_load_dword v249, v4, s[{pW2}:{pW2+1}]"""]

def unit_dma(u):
    j, s = divmod(u, 2)
    out = []
    for jj in range(2):
        g = ""
        if jj == 0:
            g += f"s_mul_i32 s{sPD}, s{sTAB+j}, 28672\n"
            if s: g += f"s_add_u32 s{sPD}, s{sPD}, 14336\n"
        g = f"s_add_u32 m0, s{sM0P}, {unit_pos(u) + jj*1024}\n" + g
        g += f"buffer_load_dwordx4 v{vPD0+jj}, s[{rW2G}:{rW2G+3}], s{sPD} offen lds"
        out.append(g)
    return out
def p2_dma(pc): return [g for u in range(3 * pc, 3 * pc + 3) for g in unit_dma(u)]

def wa_items():
    return lines(f"""v_lshrrev_b32 v4, 5, v0
v_lshlrev_b32 v4, 2, v4
v_bfe_u32 v5, v0, 2, 2
v_add_u32 v4, v4, v5
v_lshlrev_b32 v4, 7, v4
v_bfe_u32 v5, v0, 4, 1
v_lshl_add_u32 v4, v5, 5, v4
v_and_b32 v5, 3, v0
v_lshl_add_u32 v4, v5, 3, v4
v_bfe_u32 v5, v0, 3, 1
v_lshl_add_u32 v4, v5, 6, v4
v_add_u32 v{vWA}, s{sM0P}, v4
v_xor_b32 v{vWA+1}, 64, v{vWA}
v_add_u32 v{vWA+2}, {SLOT}, v{vWA}
v_add_u32 v{vWA+3}, {SLOT}, v{vWA+1}
v_add_u32 v{vWA+4}, {2*SLOT}, v{vWA}
v_add_u32 v{vWA+5}, {2*SLOT}, v{vWA+1}""")
def wreads(u, dst):
    sl, off = divmod(unit_pos(u), SLOT)
    return [(f"ds_read_b64_tr_b16 {vr(dst+4*c+2*rd,2)}, v{vWA+2*sl+c} offset:{off+rd*1024}", c) for c in range(2) for rd in range(2)]

vDX0, vDX1, vDW0 = 8, 9, 10
vAX = 13; vAW = 17; vAX2 = 21; vBIAS = 25; vSEL = 28
vXB = 32; vWB = 48
vRA = 64
vACC = 72
vCSA = 136
vROW = 148; vRU = 152; vGR = 160
vRT = 164
vSG = 168; vCG = 172
vGA = 188
vFG = 192
vZ0 = 194
vTG = 195

def p1_dma(kind, i):
    slot = (i % 3) * SLOT
    out = []
    out.append(f"s_add_u32 m0, s{sM0X}, {slot}\ns_lshl_b32 s{sSOX}, s{sCC}, 7\nbuffer_load_dwordx4 v{vDX0}, s[{rX}:{rX+3}], s{sSOX} offen lds")
    if kind == 'M':
        out.append(f"s_add_u32 m0, s{sM0X}, {slot + 1024}\ns_mul_i32 s{sSO0}, s{sCC}, s{sPSTEP0}\nbuffer_load_dwordx4 v{vDX1}, s[{rX}:{rX+3}], s{sSOX} offen lds")
        for lc in range(3):
            nx = f"s_mul_i32 s{sSO0+lc+1}, s{sCC}, s{sPSTEP0+lc+1}" if lc < 2 else f"s_add_u32 s{sCC}, s{sCC}, 1"
            out.append(f"s_add_u32 m0, s{sM0W}, {slot + lc*8192}\n{nx}\n"
                       f"buffer_load_dwordx4 v{vDW0+lc}, s[{rW0+4*lc}:{rW0+4*lc+3}], s{sSO0+lc} offen lds")
    else:
        out.append(f"s_add_u32 m0, s{sM0X}, {slot + 1024}\ns_mul_i32 s{sSO0}, s{sCC}, {64*2688}\nbuffer_load_dwordx4 v{vDX1}, s[{rX}:{rX+3}], s{sSOX} offen lds")
        nxs = [f"s_add_u32 s{sSO1}, s{sSO0}, 896", "s_nop 0", "s_nop 0", f"s_add_u32 s{sCC}, s{sCC}, 1"]
        for kv in range(2):
            for jj in range(2):
                out.append(f"s_add_u32 m0, s{sM0W}, {slot + kv*16384 + jj*1024}\n{nxs[2*kv+jj]}\n"
                           f"buffer_load_dwordx4 v{vDW0+jj}, s[{rW0}:{rW0+3}], s{sSO0+kv} offen lds")
    out[-1] += f"\ns_cmp_eq_u32 s{sCC}, 7\ns_cselect_b32 s{sCC}, 0, s{sCC}"
    return out

def prologue():
    e(f"s_load_dwordx16 s[4:19], s[0:1], 0\ns_load_dwordx4 s[20:23], s[0:1], 64\ns_load_dwordx2 s[24:25], s[0:1], 80")
    e(f"s_cmp_ge_u32 s2, 256\ns_cbranch_scc1 Lend")
    e(f"v_lshrrev_b32 v1, 6, v0\nv_and_b32 v0, 63, v0\nv_readfirstlane_b32 s{sW}, v1")
    e(f"s_and_b32 s{sXCD}, s2, 7\ns_lshr_b32 s{sT0}, s2, 3\ns_and_b32 s{sSUB}, s{sT0}, 3\ns_lshr_b32 s{sGSEL}, s{sT0}, 2")
    st = k.state()
    e(f"s_cmp_lg_u32 s{sW}, 7\ns_cbranch_scc1 Lnopf")
    e(f"s_getpc_b64 s[{sMKH}:{sMKH+1}]")
    k.label('Lpc')
    e(f"s_lshl_b32 s{sT0}, s{sSUB}, 13\nv_lshl_add_u32 v4, v0, 7, s{sT0}\nv_min_u32 v4, Lcode_end-Lpc-4, v4")
    e(f"global_load_dword v249, v4, s[{sMKH}:{sMKH+1}]")
    k.label('Lnopf')
    k.set_state(st)
    e(f"s_cmp_ge_u32 s{sGSEL}, 6\ns_cbranch_scc1 Lkv")

def pre_common():
    e(f"s_lshr_b32 s{sT0}, s{sXCD}, 1\ns_lshl_b32 s{sT0}, s{sT0}, 2\ns_add_u32 s{sRB}, s{sT0}, s{sSUB}")
    e(f"s_lshl_b32 s{sT0}, s{sGSEL}, 1\ns_add_u32 s{sT0}, s{sT0}, s{sRB}")
    e(f"s_mul_i32 s{sT1}, s{sT0}, 37\ns_lshr_b32 s{sT1}, s{sT1}, 8\ns_mul_i32 s{sT1}, s{sT1}, 7\ns_sub_u32 s{sCC}, s{sT0}, s{sT1}\ns_mov_b32 s{sC0}, s{sCC}")
    e(f"""s_lshl_b32 s{sT0}, s{sRB}, 7
s_lshl_b32 s{sT1}, s{sW}, 4
s_add_u32 s{sT0}, s{sT0}, s{sT1}
v_lshrrev_b32 v4, 3, v0
v_add_u32 v4, s{sT0}, v4
v_mul_u32_u24 v4, 896, v4
v_and_b32 v5, 7, v0
v_lshrrev_b32 v6, 4, v0
v_xor_b32 v6, v5, v6
v_lshl_add_u32 v{vDX0}, v6, 4, v4
v_xor_b32 v6, 4, v6
v_lshl_add_u32 v{vDX1}, v6, 4, v4
v_add_u32 v{vDX1}, 7168, v{vDX1}
s_lshl_b32 s{sM0X}, s{sW}, 11
s_mov_b32 s{rX+2}, {2048*896}
s_mov_b32 s{rX+3}, 0x20000""")

def after_kernarg():
    e("s_waitcnt lgkmcnt(0)")
    e(f"s_load_dword s{sTAG}, s[{pWS}:{pWS+1}], {EPOCH}")
    e(f"s_mov_b32 s{rX}, s{pX}\ns_and_b32 s{rX+1}, s{pX+1}, 0xffff")

def setup_a():
    e(f"""s_lshl_b32 s{sT0}, s2, 3
s_add_u32 s{sT0}, s{sT0}, s{sW}
s_mul_i32 s{sT1}, s{sT0}, 896
v_lshlrev_b32 v{vL16}, 4, v0
v_add_u32 v7, s{sT1}, v{vL16}
v_mov_b32 v5, {DUMP}
v_cmp_gt_u32 vcc, 56, v0
v_cndmask_b32 v7, v5, v7, vcc
v_cndmask_b32 v{vRT+1}, 0, 1.0, vcc""")
    rtok = e(f"buffer_load_dwordx4 {vr(vROW,4)}, v7, s[{rX}:{rX+3}], 0 offen")
    e(f"""s_lshl_b32 s{sT0}, s{sT0}, 4
s_add_u32 s{sT0}, s{sT0}, {STATS}
v_mov_b32 v6, s{sT0}
v_cmp_eq_u32 vcc, 63, v0
v_cndmask_b32 v{vRT+2}, v5, v6, vcc
v_cmp_eq_u32 vcc, 0, v0
v_cndmask_b32 v{vZ0}, v5, 0, vcc""")
    srd(rWS, pWS, WS_USED)
    e(f"s_mov_b32 s{sHALF}, 0\ns_mov_b32 s{sHALF+1}, -1\ns_mov_b32 s{sEPS}, {f32(1e-6)}\ns_mov_b32 s{sEPS+1}, {f32(1e-6)}")
    e(f"s_mov_b32 s{sCT}, s{sGSEL}\ns_lshl_b32 s{sTB}, s{sXCD}, 2\ns_add_u32 s{sTB}, s{sTB}, s{sSUB}")
    e(f"""v_lshrrev_b32 v4, 2, v0
v_lshrrev_b32 v5, 4, v0
v_xor_b32 v4, v4, v5
v_and_b32 v4, 1, v4
v_and_b32 v5, 3, v0
v_or_b32 v4, v4, v5
v_cmp_eq_u32 vcc, 0, v4
v_mov_b32 v5, 0x3f803f80
v_cndmask_b32 v{vSEL}, 0, v5, vcc
v_cndmask_b32 v{vSEL+1}, 0, v5, vcc
v_cndmask_b32 v{vSEL+2}, 0, v5, vcc
v_cndmask_b32 v{vSEL+3}, 0, v5, vcc
v_and_b32 v4, 31, v0
v_lshlrev_b32 v5, 7, v4
v_add_u32 v5, s{sT3}, v5
v_bfe_u32 v4, v0, 1, 3
v_lshrrev_b32 v6, 5, v0
v_xor_b32 v4, v4, v6
v_lshl_add_u32 v{vAX}, v4, 4, v5""")
    for j in range(1, 4): e(f"v_xor_b32 v{vAX+j}, {32*j}, v{vAX}")
    for j in range(4): e(f"v_add_u32 v{vAX2+j}, {2*SLOT}, v{vAX+j}")
    return rtok

def wave_sum(r):
    return [f"v_add_f32_dpp v{r}, v{r}, v{r} {m} bank_mask:0xf" for m in
            ("quad_perm:[1,0,3,2] row_mask:0xf", "quad_perm:[2,3,0,1] row_mask:0xf", "row_half_mirror row_mask:0xf", "row_mirror row_mask:0xf",
             "row_bcast:15 row_mask:0xa", "row_bcast:31 row_mask:0xc")]

def rowstat_items(rtok):
    a = vRT
    it = [lambda: k.wait(vm=rtok)]
    for d in range(4):
        it += [f"v_lshlrev_b32 v{vRU+2*d}, 16, v{vROW+d}", f"v_and_b32 v{vRU+2*d+1}, 0xffff0000, v{vROW+d}"]
    for d in range(4): it.append(f"v_add_f32 v{vROW+d}, v{vRU+2*d}, v{vRU+2*d+1}")
    it += [f"v_add_f32 v{vROW}, v{vROW}, v{vROW+1}", f"v_add_f32 v{vROW+2}, v{vROW+2}, v{vROW+3}", f"v_add_f32 v{a}, v{vROW}, v{vROW+2}"]
    it += wave_sum(a)
    it += [f"v_mul_f32 v{vGR}, {f32(1/448)}, v{a}", f"v_readlane_b32 s{sMEAN}, v{vGR}, 63", f"v_mul_f32 v{a}, s{sMEAN}, v{vRT+1}"]
    for d in range(8): it.append(f"v_sub_f32 v{vRU+d}, v{vRU+d}, v{a}")
    it += [f"v_mul_f32 v{vROW}, v{vRU}, v{vRU}", f"v_mul_f32 v{vROW+1}, v{vRU+1}, v{vRU+1}"]
    for d in range(2, 8): it.append(f"v_fmac_f32 v{vROW+(d&1)}, v{vRU+d}, v{vRU+d}")
    it.append(f"v_add_f32 v{a}, v{vROW}, v{vROW+1}")
    it += wave_sum(a)
    it += [f"v_mul_f32 v{vGR+1}, {f32(1/448)}, v{a}", f"v_mov_b32 v{vGR+2}, v{vTG}", f"v_mov_b32 v{vGR+3}, v{vTG}",
           f"buffer_store_dwordx4 {vr(vGR,4)}, v{vRT+2}, {WS}, 0 offen sc1"]
    return it

def colsum_pub_items(nt):
    g = vRU
    it = [f"v_mov_b32 v{g+t}, v{vCSA+4*t}" for t in range(nt)]
    it += [f"v_mov_b32 v{g+t}, v{vTG}" for t in range(nt, 4)]
    it.append(f"buffer_store_dwordx4 {vr(g,4)}, v{vRT+3}, {WS}, 0 offen sc1")
    return it

def gran_addr_setup(slot_s, pub_cond_s, tok0_s, lane_tok):
    e(f"""s_lshl_b32 s{sT0}, s{slot_s}, 12
s_add_u32 s{sT0}, s{sT0}, {CSG}
v_add_u32 v{vGA+1}, s{sT0}, v{vL16}
s_lshl_b32 s{sT1}, s{sC0}, 9
v_add_u32 v4, s{sT1}, v{vGA+1}
v_mov_b32 v5, {DUMP}
v_cndmask_b32 v4, v4, v5, {HALF}
s_cmp_lt_u32 s{sRB}, 7
s_cselect_b32 s{sT1}, s{pub_cond_s}, 1
s_cmp_eq_u32 s{sT1}, 0
s_cselect_b32 s{sT1}, 0, {DUMP}
v_add_u32 v{vRT+3}, s{sT1}, v4
s_lshl_b32 s{sT0}, s{tok0_s}, 4
s_add_u32 s{sT0}, s{sT0}, {STATS}
v_and_b32 v4, {lane_tok}, v0
v_lshl_add_u32 v{vGA}, v4, 4, s{sT0}""")

def gran_loads():
    o = [f"buffer_load_dwordx4 {vr(vSG,4)}, v{vGA}, {WS}, 0 offen sc1"]
    for q in range(4): o.append(f"buffer_load_dwordx4 {vr(vCG+4*q,4)}, v{vGA+1}, {WS}, 0 offen offset:{1024*q} sc1")
    return o

def gran_check_items(tokbox):
    Ls, Lb = k.newlabel('Lgs'), k.newlabel('Lgb')
    a = vSG + 2
    pre = lines(f"""v_cndmask_b32 v{vCG+15}, v{vCG+15}, v{vTG}, {HALF}
v_xor_b32 v{a}, v{vTG}, v{vSG+3}
v_bitop3_b32 v{a}, v{a}, v{vCG+3}, v{vTG} bitop3:0xf6
v_bitop3_b32 v{a}, v{a}, v{vCG+7}, v{vTG} bitop3:0xf6
v_bitop3_b32 v{a}, v{a}, v{vCG+11}, v{vTG} bitop3:0xf6
v_bitop3_b32 v{a}, v{a}, v{vCG+15}, v{vTG} bitop3:0xf6""")
    fin = f"v_cmp_ne_u32 vcc, 0, v{a}\ns_cmp_lg_u64 vcc, 0"
    def last():
        e(fin); e(f"s_cbranch_scc1 {Ls}")
        k.label(Lb)
        stamp(11, chunk=True)
    def slow():
        k.label(Ls)
        Lp = k.newlabel('Lgp')
        e(f"s_movk_i32 s{sT2}, {SPIN_MAX}")
        k.label(Lp)
        e(f"s_sub_u32 s{sT2}, s{sT2}, 1\ns_cbranch_scc1 {Lb}\ns_sleep 8")
        for x in gran_loads(): e(x)
        e("s_waitcnt vmcnt(0)")
        for x in pre: e(x)
        e(fin); e(f"s_cbranch_scc1 {Lp}\ns_branch {Lb}")
    outline.append(slow)
    return [lambda: k.wait(vm=tokbox[0])] + pre + [last]

def colsum_sum_items(nt, dst):
    it = []
    for t in range(nt): it.append(f"v_cndmask_b32 v{vCG+12+t}, v{vCG+12+t}, 0, {HALF}")
    for t in range(nt): it += [f"v_add_f32 v{vCG+t}, v{vCG+t}, v{vCG+4+t}", f"v_add_f32 v{vCG+8+t}, v{vCG+8+t}, v{vCG+12+t}"]
    for t in range(nt): it.append(f"v_add_f32 v{vCG+t}, v{vCG+t}, v{vCG+8+t}")
    for t in range(nt): it.append(f"v_mov_b32 v{vCG+4+t}, v{vCG+t}")
    for t in range(nt): it.append(f"v_permlane32_swap_b32 v{vCG+t}, v{vCG+4+t}")
    for t in range(nt): it.append(f"v_add_f32 v{dst+t}, v{vCG+t}, v{vCG+4+t}")
    return it

def main_loop(kind, dma_tok, fillers, pre_dma):
    M = kind == 'M'
    nt = 3 if M else 4
    xbuf = (lambda n, u=0: vXB + 4 * (n & 1)) if M else (lambda n, u=0: vXB + 8 * (n & 1) + 4 * u)
    wbuf = (lambda n, t: vWB + 12 * (n & 1) + 4 * t) if M else (lambda n, t: vWB + 8 * (n & 1) + 4 * t)
    def reads(n):
        i, j = divmod(n, 4); sl = i % 3
        xa = (vAX2 if sl == 2 else vAX) + j; xo = SLOT if sl == 1 else 0
        o = []
        if M:
            o.append((f"ds_read_b128 {vr(xbuf(n),4)}, v{xa} offset:{xo}", 'x0'))
            for t in range(3):
                a = vAW + (t & 1) + (2 if sl == 2 else 0); off = xo + j * 2048 + (8192 if t == 2 else 0)
                for rd in range(2):
                    o.append((f"ds_read_b64_tr_b16 {vr(wbuf(n,t)+2*rd,2)}, v{a} offset:{off + rd*512}", f'w{t}'))
        else:
            o.append((f"ds_read_b128 {vr(xbuf(n,0),4)}, v{xa} offset:{xo}", 'x0'))
            for kv in range(2):
                for rd in range(2): o.append((f"ds_read_b64_tr_b16 {vr(wbuf(n,kv)+2*rd,2)}, v{vAW+sl} offset:{kv*16384 + j*4096 + rd*1024}", f'w{kv}'))
            o.append((f"ds_read_b128 {vr(xbuf(n,1),4)}, v{xa} offset:{xo+4096}", 'x1'))
        return o
    per = {n: [] for n in range(28)}
    for first, last, items in fillers:
        ns = last - first + 1
        for q in range(ns):
            per[first + q] += items[len(items) * q // ns: len(items) * (q + 1) // ns]
    k.wait(vm=dma_tok[0])
    e(f"s_waitcnt lgkmcnt(0)\ns_mul_i32 s{sTAG}, s{sTAG}, 1664525\ns_add_u32 s{sTAG}, s{sTAG}, 1013904223\nv_mov_b32 v{vTG}, s{sTAG}")
    e("s_barrier")
    stamp(1)
    tok = {}
    for txt, tag in reads(0): tok[tag] = e(txt)
    pend = p1_dma(kind, 2); pend_i = 2
    for n in range(28):
        i, j = divmod(n, 4)
        cur = tok; tok = {}
        if j == 3:
            assert not pend
            e("s_waitcnt lgkmcnt(0)")
            if i < 6: k.wait(vm=dma_tok[i + 1])
            e("s_barrier")
            stamp(2 + i, chunk=True)
            pend_i = i + 3
            pend = list(pre_dma.get(i, [])) + (p1_dma(kind, i + 3) if i + 3 < 7 else p2_dma(i + 3 - 7))
            if i == 6: pend = []
        mf = []
        for t in range(nt):
            acc = vr(vACC + 16 * t, 16); cin = '0' if n == 0 else acc
            if M: mf.append((f"v_mfma_f32_32x32x16_bf16 {acc}, {vr(wbuf(n,t),4)}, {vr(xbuf(n),4)}, {cin}", ['x0', f'w{t}']))
            else:
                u, kv = t >> 1, t & 1
                mf.append((f"v_mfma_f32_32x32x16_bf16 {acc}, {vr(xbuf(n,u),4)}, {vr(wbuf(n,kv),4)}, {cin}", [f'x{u}', f'w{kv}']))
        if i == 0:
            for t in range(3 if M else 2):
                acc = vr(vCSA + 4 * t, 4)
                mf.append((f"v_mfma_f32_16x16x32_bf16 {acc}, {vr(vSEL,4)}, {vr(wbuf(n,t),4)}, {'0' if n == 0 else acc}", [f'w{t}']))
        rd = reads(n + 1) if n < 27 else []
        left = {3: 4, 0: 3, 1: 2, 2: 1}[j]
        nd = -(-len(pend) // left)
        dm = pend[:nd]; pend = pend[nd:]
        other = spread([('d', x) for x in dm] or [('n', None)], [('f', x) for x in per[n]])
        other = [f for f in other if f[0] != 'n']
        fill = [('r', x) for x in rd] + other
        for kind_, x in spread([('m', x) for x in mf], fill):
            if kind_ == 'm':
                need = [cur.get(tg) for tg in x[1] if cur.get(tg) in k.lg]
                if need: k.wait(lg=max(need))
                e(x[0])
            elif kind_ == 'r': tok[x[1]] = e(x[0])
            elif kind_ == 'd':
                t = emit_item(x)
                if t is not None: dma_tok[pend_i] = t
            else: emit_item(x)

def gelu_tile(acc, out, kp, sp, tmp):
    o = []
    for h in range(2):
        a = acc + 8 * h; t = tmp + 8 * h
        for p in range(4): o.append(f"v_pk_mul_f32 {vr(t+2*p,2)}, {vr(a+2*p,2)}, {vr(a+2*p,2)}")
        for p in range(4): o.append(f"v_pk_fma_f32 {vr(t+2*p,2)}, {vr(t+2*p,2)}, {vr(kp+2,2)}, {vr(kp,2)} op_sel_hi:[1,0,0]")
        for p in range(4): o.append(f"v_pk_mul_f32 {vr(t+2*p,2)}, {vr(t+2*p,2)}, {vr(a+2*p,2)}")
        for p in range(8): o.append(f"v_exp_f32 v{t+p}, v{t+p}")
        for p in range(4): o.append(f"v_pk_fma_f32 {vr(t+2*p,2)}, {vr(t+2*p,2)}, {vr(sp,2)}, {vr(sp,2)} op_sel_hi:[1,0,0]")
        for p in range(8): o.append(f"v_rcp_f32 v{t+p}, v{t+p}")
        for p in range(4): o.append(f"v_pk_mul_f32 {vr(t+2*p,2)}, {vr(t+2*p,2)}, {vr(a+2*p,2)}")
        for p in range(4): o.append(f"v_cvt_pk_bf16_f32 v{out+4*h+p}, v{t+2*p}, v{t+2*p+1}")
    return o

def phi_tile(acc, out, rfun, rlfun, sel, tmp):
    o = []
    for h in range(2):
        a = acc + 8 * h; t = tmp + 8 * h
        for p in range(4): o.append(f"v_pk_mul_f32 {vr(t+2*p,2)}, {vr(a+2*p,2)}, {rlfun(4*h+p)} op_sel_hi:[1,{sel}]")
        for p in range(4): o.append(f"v_pk_fma_f32 {vr(a+2*p,2)}, {vr(a+2*p,2)}, {rfun(4*h+p)}, {sr(sEPS,2)} op_sel_hi:[1,{sel},0]")
        for p in range(8): o.append(f"v_exp_f32 v{t+p}, v{t+p} clamp")
        for p in range(8): o.append(f"v_max_f32 v{a+p}, s{sEPS}, v{a+p}")
        for p in range(4): o.append(f"v_pk_add_f32 {vr(t+2*p,2)}, {vr(t+2*p,2)}, {vr(a+2*p,2)}")
        for p in range(4): o.append(f"v_cvt_pk_bf16_f32 v{out+4*h+p}, v{t+2*p}, v{t+2*p+1}")
    return o

def flag_item(soff): return f"buffer_store_dword v{vTG}, v{vZ0}, {WS}, s{soff} offen sc1"

def phase1_M():
    mg = sMG
    pre_common()
    e(f"s_and_b32 s{sT0}, s{sXCD}, 1\ns_mul_i32 s{sT0}, s{sT0}, 6\ns_add_u32 s{mg}, s{sT0}, s{sGSEL}")
    e(f"""v_lshrrev_b32 v4, 3, v0
v_lshl_add_u32 v4, s{sW}, 3, v4
v_bfe_u32 v5, v0, 4, 1
v_lshlrev_b32 v5, 2, v5
v_and_b32 v6, 7, v0
v_xor_b32 v5, v5, v6
v_lshlrev_b32 v5, 4, v5
s_lshl_b32 s{sM0W}, s{sW}, 10
s_add_u32 s{sM0W}, s{sM0W}, 16384
s_mul_i32 s{sT3}, s{mg}, 3""")
    for lc in range(3):
        r = rW0 + 4 * lc
        e(f"""s_add_u32 s{sT0}, s{sT3}, {lc}
s_sub_u32 s{sT1}, s{sT0}, 28
s_cmp_lt_u32 s{sT0}, 35
s_cselect_b32 s{r+2}, {448*2688}, 0
s_cmp_lt_u32 s{sT0}, 28
s_cselect_b32 s{r+2}, {448*3584}, s{r+2}
s_cselect_b32 s{sT0}, s{sT0}, s{sT1}
s_movk_i32 s{sT1}, 2688
s_cselect_b32 s{sT1}, 3584, s{sT1}
s_lshl_b32 s{sT0}, s{sT0}, 7
s_lshl_b32 s{sPSTEP0+lc}, s{sT1}, 6
v_mad_u32_u24 v{vDW0+lc}, v4, s{sT1}, v5
v_add_u32 v{vDW0+lc}, s{sT0}, v{vDW0+lc}
s_mov_b32 s{r+3}, 0x20000""")
    after_kernarg()
    stamp(0)
    e(f"s_and_b32 s{pW1+1}, s{pW1+1}, 0xffff\ns_and_b32 s{pWQKV+1}, s{pWQKV+1}, 0xffff")
    for lc in range(3):
        r = rW0 + 4 * lc
        e(f"s_cmp_eq_u32 s{sPSTEP0+lc}, {64*3584}\ns_cselect_b32 s{r}, s{pW1}, s{pWQKV}\ns_cselect_b32 s{r+1}, s{pW1+1}, s{pWQKV+1}")
    dma_tok = {}
    for g in p1_dma('M', 0): dma_tok[0] = e(g)
    e(f"s_and_b32 s{sLO}, s{sW}, 3\ns_lshr_b32 s{sHI}, s{sW}, 2\ns_lshl_b32 s{sT3}, s{sLO}, 12")
    rtok = setup_a()
    for g in p1_dma('M', 1): dma_tok[1] = e(g)
    e(f"""v_lshrrev_b32 v4, 5, v0
v_lshlrev_b32 v4, 3, v4
v_bfe_u32 v5, v0, 2, 2
v_add_u32 v4, v4, v5
v_lshlrev_b32 v4, 7, v4
v_bfe_u32 v5, v0, 4, 1
v_lshl_add_u32 v4, v5, 5, v4
v_and_b32 v5, 3, v0
v_lshl_add_u32 v4, v5, 3, v4
v_bfe_u32 v5, v0, 3, 1
v_lshl_add_u32 v4, v5, 6, v4""")
    for q in range(2):
        e(f"""s_mul_i32 s{sT0}, s{sHI}, 3
s_add_u32 s{sT0}, s{sT0}, {q}
s_and_b32 s{sT1}, s{sT0}, 1
s_lshl_b32 s{sT1}, s{sT1}, 6
s_lshr_b32 s{sT0}, s{sT0}, 1
s_lshl_b32 s{sT0}, s{sT0}, 13
s_add_u32 s{sT0}, s{sT0}, 16384
v_xor_b32 v5, s{sT1}, v4
v_add_u32 v{vAW+q}, s{sT0}, v5
v_add_u32 v{vAW+2+q}, {2*SLOT}, v{vAW+q}""")
    e(f"""s_mul_i32 s{sTILE0}, s{mg}, 6
s_mul_i32 s{sT0}, s{sHI}, 3
s_add_u32 s{sTILE0}, s{sTILE0}, s{sT0}
s_lshl_b32 s{sT0}, s{sRB}, 2
s_add_u32 s{sT0}, s{sT0}, s{sLO}
s_lshl_b32 s{sFLO}, s{sT0}, 12
s_mul_i32 s{sT0}, s{sT0}, {140*1024}
s_lshl_b32 s{sT1}, s{sTILE0}, 11
s_add_u32 s{sHQO}, s{sT0}, s{sT1}
s_add_u32 s{sHQO}, s{sHQO}, {HQ}
s_lshl_b32 s{sT4}, s{mg}, 1
s_add_u32 s{sT4}, s{sT4}, s{sHI}
s_lshl_b32 s{sT1}, s{sT4}, 7
s_add_u32 s{sFLO}, s{sFLO}, s{sT1}
s_add_u32 s{sFLO}, s{sFLO}, {FLH}""")
    srd(rMISC, pB1, 3584)
    e(f"s_lshl_b32 s{sT0}, s{sTILE0}, 6\nv_and_b32 v4, 31, v0\nv_lshl_add_u32 v{vBIAS+2}, v4, 1, s{sT0}")
    bias = [f"buffer_load_ushort v{vBIAS+t}, v{vBIAS+2}, s[{rMISC}:{rMISC+3}], 0 offen offset:{64*t}" for t in range(3)]
    e(f"s_lshl_b32 s{sT3}, s{sRB}, 7\ns_lshl_b32 s{sT0}, s{sLO}, 5\ns_add_u32 s{sT3}, s{sT3}, s{sT0}")
    gran_addr_setup(sT4, sLO, sT3, 31)
    p2_setup()
    gbox = [None]
    gl = gran_loads()
    def last_g(): gbox[0] = e(gl[-1])
    m, var = vSG, vSG + 1
    r1, w_, rm, sm = 120, 121, 122, 124
    vK = 128; vBA = 136; vAA = 196; R = vROW; vC = vGR
    aug = gran_check_items(gbox) + lines(f"""v_add_f32 v{r1}, {f32(EPS)}, v{var}
v_mov_b32 v{w_}, {f32(EPS)}
v_fma_f32 v{w_}, v{w_}, v{r1}, v{var}
v_rsq_f32 v{r1}, v{r1}
v_rsq_f32 v{rm}, v{w_}""") + colsum_sum_items(3, vC) + lines(f"""v_mul_f32 v{sm}, v{w_}, v{rm}
v_cvt_pk_bf16_f32 v{R}, -v{m}, v{sm}
v_lshlrev_b32 v{R+1}, 16, v{R}
v_and_b32 v{R+2}, 0xffff0000, v{R}
v_sub_f32 v{R+1}, -v{m}, v{R+1}
v_sub_f32 v{R+2}, v{sm}, v{R+2}
v_cvt_pk_bf16_f32 v{R+3}, -v{m}, v{R+1}
v_cvt_pk_bf16_f32 v{R+4}, v{R+2}, 0
v_cndmask_b32 v{vBA}, v{R+3}, 0, {HALF}
v_cndmask_b32 v{vBA+1}, v{R}, 0, {HALF}
v_cndmask_b32 v{vBA+2}, v{R+4}, 0, {HALF}""")
    for t in range(3):
        c = vC + t; a = vAA + 4 * t
        aug += lines(f"""v_cvt_pk_bf16_f32 v{a}, v{c}, v{c}
v_and_b32 v{R+6}, 0xffff0000, v{a}
v_sub_f32 v{R+6}, v{c}, v{R+6}
v_cvt_pk_bf16_f32 v{a+1}, v{R+6}, v{a+1}""")
    early = [f"v_mov_b32 v{vBA+3}, 0"]
    for t in range(3):
        a = vAA + 4 * t
        early += [f"v_lshlrev_b32 v{a+1}, 16, v{vBIAS+t}", f"v_mov_b32 v{a+2}, v{vBIAS+t}", f"v_mov_b32 v{a+3}, 0"]
    post = lines(f"""v_mul_f32 v{vK}, {f32(GC0)}, v{rm}
v_mul_f32 v{R+5}, v{rm}, v{rm}
v_mul_f32 v{R+5}, {f32(GC1)}, v{R+5}
v_mul_f32 v{vK+2}, v{R+5}, v{vK}
v_mov_b32 v{vK+4}, v{r1}
v_mul_f32 v{vK+6}, {f32(LOG2E)}, v{r1}""")
    fillers = [(0, 5, rowstat_items(rtok)), (6, 6, colsum_pub_items(3)), (4, 6, bias), (9, 9, w2_prefetch()),
               (16, 17, early), (19, 22, wa_items()), (23, 27, aug)]
    main_loop('M', dma_tok, fillers, {4: gl[:-1] + [last_g]})
    k.wait(vm=dma_tok[8])
    pre = [x for u in range(5) for x, _ in wreads(u, vWP + 8 * u)]
    mf = [f"v_mfma_f32_32x32x16_bf16 {vr(vACC+16*t,16)}, {vr(vAA+4*t,4)}, {vr(vBA,4)}, {vr(vACC+16*t,16)}" for t in range(3)]
    for x in spread(mf, pre + post): e(x)
    for g in p2_dma(2): e(g)
    stamp(2); stamp(9, chunk=True)
    e("s_waitcnt lgkmcnt(0)")
    late = [g for u in range(9, 14) for g in unit_dma(u)]
    vT = vXB; vO = vWB
    def store(t):
        e(f"buffer_store_dwordx4 {vr(vO+8*t,4)}, v{vL16}, {WS}, s{sHQO} offen offset:{(2048*t) % 4096} sc1")
        e(f"buffer_store_dwordx4 {vr(vO+8*t+4,4)}, v{vL16}, {WS}, s{sHQO} offen offset:{(2048*t) % 4096 + 1024} sc1")
        if t == 1: e(f"s_add_u32 s{sHQO}, s{sHQO}, 4096")
    ph = lambda t: phi_tile(vACC + 16 * t, vO + 8 * t, lambda p: vr(vK + 4, 2), lambda p: vr(vK + 6, 2), 0, vT)
    e(f"s_cmp_ge_u32 s{sTILE0}, 56\ns_cbranch_scc1 Lphi3")
    st0 = k.state()
    for t in range(2):
        g = gelu_tile(vACC + 16 * t, vO + 8 * t, vK, sm, vT)
        for x in (spread(late, g) if t == 0 else g): e(x)
        store(t)
    e(f"s_cmp_eq_u32 s{sTILE0}, 54\ns_cbranch_scc1 Lphi1")
    for x in gelu_tile(vACC + 32, vO + 16, vK, sm, vT): e(x)
    k.label('Lst2')
    store(2)
    k.label('Lstdone')
    def phis():
        k.label('Lphi3'); k.set_state(st0)
        for x in spread(late, ph(0)): e(x)
        store(0)
        e(f"s_cmp_eq_u32 s{sTILE0}, 69\ns_cbranch_scc1 Lstdone")
        for x in ph(1): e(x)
        store(1)
        k.label('Lphi1')
        for x in ph(2): e(x)
        e("s_branch Lst2")
    outline.append(phis)
    stamp(3); stamp(12, 4)

def reducer_addr_setup():
    e(f"""s_lshr_b32 s{sRHD}, s{sTB}, 1
s_and_b32 s{sT0}, s{sTB}, 1
s_mul_i32 s{sT0}, s{sT0}, 7
s_add_u32 s{sRCT}, s{sT0}, s{sW}
s_mul_i32 s{sRMB}, s{sRCT}, {28*1024}
s_add_u32 s{sRMB}, s{sRMB}, {MB}
s_lshl_b32 s{sFLO}, s{sRCT}, 11
s_lshl_b32 s{sT1}, s{sRHD}, 7
s_add_u32 s{sFLO}, s{sFLO}, s{sT1}
s_add_u32 s{sFLO}, s{sFLO}, {FLM + 4}
s_add_u32 s{sHQO}, s{sT1}, {ZG}
s_cmp_eq_u32 s{sRCT}, 3
s_cselect_b32 s{sT4}, 0x05555555, 0
s_cmp_eq_u32 s{sW}, 7
s_cselect_b32 s{sT1}, 6, s{sGSEL}
s_cmp_eq_u32 s{sT1}, 7
s_cselect_b32 s{sRMB}, s{sRMB}, {DUMP}
s_cselect_b32 s{sFLO}, s{sFLO}, {DUMP}
s_cselect_b32 s{sT4}, s{sT4}, 0
s_mov_b32 s{sT3}, 0
s_mul_i32 s{sT0}, s{sRHD}, 7
v_lshrrev_b32 v6, 5, v0
v_and_b32 v7, 31, v0
v_lshlrev_b32 v7, 4, v7""")
    assert sT4 == sT3 + 1 and sT3 % 2 == 0
    for gq in range(4):
        a = vRA + gq
        e(f"""v_add_u32 v4, s{sT0}, v6
v_add_u32 v4, {2*gq}, v4
v_lshrrev_b32 v5, 2, v4
v_lshl_add_u32 v{a}, v5, 10, v7
v_and_b32 v5, 1, v4
v_lshl_add_u32 v{a}, v5, 9, v{a}
v_bfe_u32 v5, v4, 1, 1
v_lshl_add_u32 v{a}, v5, 3, v{a}""")
    z = vRA + 4
    e(f"""v_mov_b32 v6, {DUMP}
v_cndmask_b32 v{vRA+3}, v{vRA+3}, v6, {HALF}
v_and_b32 v4, 31, v0
v_lshl_add_u32 v{z}, v4, 2, s{sHQO}
v_cndmask_b32 v{z}, v6, v{z}, s[{sT3}:{sT4}]""")
    e("v_mov_b32 v70, -1\nv_mov_b32 v71, -1")
    return [f"buffer_store_dwordx2 v[70:71], v{vRA+gq}, {WS}, s{sRMB} offen sc1" for gq in range(4)]

def phase1_KV():
    g = sMG
    pre_common()
    e(f"""s_and_b32 s{sT0}, s{sXCD}, 1
s_mul_i32 s{sT1}, s{sT0}, 3
s_add_u32 s{sT3}, s{sT0}, 1
s_cmp_eq_u32 s{sGSEL}, 6
s_cselect_b32 s{g}, s{sT1}, s{sT3}
s_mul_i32 s{sT0}, s{g}, 224
s_cmp_eq_u32 s{g}, 3
s_cselect_b32 s{sT0}, 640, s{sT0}
s_add_u32 s{sT0}, s{sT0}, 896
v_lshrrev_b32 v4, 4, v0
v_lshlrev_b32 v5, 2, v4
v_sub_u32 v5, v0, v5
v_and_b32 v5, 15, v5
v_lshl_add_u32 v5, v5, 4, s{sT0}
v_lshl_add_u32 v4, s{sW}, 3, v4
v_mul_u32_u24 v4, 2688, v4
v_add_u32 v{vDW0}, v4, v5
v_add_u32 v{vDW0+1}, {4*2688}, v{vDW0}
s_lshl_b32 s{sM0W}, s{sW}, 11
s_add_u32 s{sM0W}, s{sM0W}, 16384""")
    after_kernarg()
    stamp(0)
    srd(rW0, pWQKV, 448 * 2688)
    dma_tok = {}
    for gg in p1_dma('KV', 0): dma_tok[0] = e(gg)
    e(f"s_and_b32 s{sLO}, s{sW}, 3\ns_lshr_b32 s{sHI}, s{sW}, 2\ns_lshl_b32 s{sT3}, s{sHI}, 13")
    rtok = setup_a()
    for gg in p1_dma('KV', 1): dma_tok[1] = e(gg)
    e(f"""s_lshl_b32 s{sTILE0}, s{g}, 2
s_add_u32 s{sTILE0}, s{sTILE0}, s{sLO}
s_cmp_eq_u32 s{g}, 3
s_cselect_b32 s{sT1}, 32, 0
s_mul_i32 s{sT0}, s{sLO}, 56
s_add_u32 s{sT1}, s{sT1}, s{sT0}
v_bfe_u32 v4, v0, 2, 2
v_lshl_add_u32 v5, v4, 6, s{sT1}
v_bfe_u32 v6, v0, 4, 1
v_lshl_add_u32 v5, v6, 5, v5
v_and_b32 v6, 3, v0
v_lshl_add_u32 v5, v6, 3, v5
v_and_b32 v5, 255, v5
v_lshrrev_b32 v6, 5, v0
v_lshl_add_u32 v4, v6, 3, v4
v_lshl_add_u32 v5, v4, 8, v5
v_add_u32 v{vAW}, 16384, v5
v_add_u32 v{vAW+1}, {16384+SLOT}, v5
v_add_u32 v{vAW+2}, {16384+2*SLOT}, v5""")
    pst = reducer_addr_setup()
    pbox = [None]
    def last_p(): pbox[0] = e(pst[-1])
    e(f"s_add_u32 s{sT4}, s{sTILE0}, 24\ns_lshl_b32 s{sT3}, s{sRB}, 7\ns_lshl_b32 s{sT0}, s{sHI}, 6\ns_add_u32 s{sT3}, s{sT3}, s{sT0}")
    gran_addr_setup(sT4, sHI, sT3, 63)
    p2_setup()
    gbox = [None]
    gl = gran_loads()
    def last_g(): gbox[0] = e(gl[-1])
    m, var = vSG, vSG + 1
    vXA = 136; vWAu = 144; r1 = 152; R = 154; vC = 160
    vR = 184
    early = lines(f"""s_lshl_b32 s{sT0}, s{sW}, 9
s_add_u32 s{sT0}, s{sT0}, {SCR}
v_lshl_add_u32 v6, v0, 2, s{sT0}
v_lshrrev_b32 v7, 5, v0
v_lshl_add_u32 v7, v7, 4, s{sT0}""") + [f"v_mov_b32 v{r}, 0" for r in (vXA+2, vXA+3, vXA+6, vXA+7, vWAu+2, vWAu+3, vWAu+6, vWAu+7)]
    aug = gran_check_items(gbox) + lines(f"""v_add_f32 v{r1}, {f32(EPS)}, v{var}
v_rsq_f32 v{r1}, v{r1}
v_cvt_pk_bf16_f32 v{R}, -v{m}, 0
v_mul_f32 v{r1+1}, {f32(LOG2E)}, v{r1}
ds_write_b32 v6, v{r1}
ds_write_b32 v6, v{r1+1} offset:256""") + colsum_sum_items(2, vC)
    aug += lines(f"""v_lshlrev_b32 v{R+1}, 16, v{R}
v_sub_f32 v{R+1}, -v{m}, v{R+1}
v_cvt_pk_bf16_f32 v{R+3}, -v{m}, v{R+1}
v_cndmask_b32 v{vXA}, v{R+3}, 0, {HALF}
v_cndmask_b32 v{vXA+1}, v{R}, 0, {HALF}
v_cndmask_b32 v{vXA+4}, 0, v{R+3}, {HALF}
v_cndmask_b32 v{vXA+5}, 0, v{R}, {HALF}""")
    for kv in range(2):
        c = vC + kv; a = vWAu + 4 * kv
        aug += lines(f"""v_cvt_pk_bf16_f32 v{a}, v{c}, v{c}
v_and_b32 v{R+4}, 0xffff0000, v{a}
v_sub_f32 v{R+4}, v{c}, v{R+4}
v_cvt_pk_bf16_f32 v{a+1}, v{R+4}, 0""")
    fillers = [(0, 5, rowstat_items(rtok)), (6, 6, colsum_pub_items(2)), (4, 6, pst[:-1] + [last_p]), (9, 9, w2_prefetch()),
               (16, 16, [lambda: k.wait(vm=pbox[0]), flag_item(sFLO)]), (12, 13, early), (23, 27, aug)]
    main_loop('KV', dma_tok, fillers, {4: gl[:-1] + [last_g]})
    rr = []
    for u in range(2):
        for gq in range(4):
            rr.append(f"ds_read_b128 {vr(vR+32+16*u+4*gq,4)}, v7 offset:{256+128*u+32*gq}")
            rr.append(f"ds_read_b128 {vr(vR+16*u+4*gq,4)}, v7 offset:{128*u+32*gq}")
    mf = []
    for t in range(4):
        u, kv = t >> 1, t & 1
        acc = vr(vACC + 16 * t, 16)
        mf.append(f"v_mfma_f32_32x32x16_bf16 {acc}, {vr(vXA+4*u,4)}, {vr(vWAu+4*kv,4)}, {acc}")
    for x in spread(mf, rr): e(x)
    stamp(2); stamp(9, chunk=True)
    vT = vXB; vPK = 48; vPV = 56; vKV = 160
    e(f"""v_mov_b32 v7, 0x3f803f80
s_mov_b32 s{sMKM}, 0x10000000
s_mov_b32 s{sMKM+1}, 0x10000000
s_add_u32 s{sT0}, s{sLO}, 4
s_mul_i32 s{sT0}, s{sT0}, 6144
v_add_u32 v6, s{sT0}, v{vL16}
s_lshl_b32 s{sT0}, s{sTILE0}, 4
s_add_u32 s{sT0}, s{sT0}, s{sRB}
s_lshl_b32 s{sT0}, s{sT0}, 12
s_add_u32 s{sT0}, s{sT0}, {KVP}
v_mov_b32 v5, 0xff
s_lshr_b32 s{sSO0}, s{sTAG}, 8
s_lshr_b32 s{sSO1}, s{sTAG}, 16
s_lshr_b32 s{sSO2}, s{sTAG}, 24
s_waitcnt lgkmcnt(8)""")
    for u in range(2):
        ak, av = vACC + 32 * u, vACC + 32 * u + 16
        if u == 1: e("s_waitcnt lgkmcnt(0)")
        for x in phi_tile(ak, vPK, lambda p: vr(vR + 16 * u + 2 * p, 2), lambda p: vr(vR + 32 + 16 * u + 2 * p, 2), 1, vT): e(x)
        for p in range(8): e(f"v_pk_mul_f32 {vr(av+2*p,2)}, {vr(av+2*p,2)}, {vr(vR+16*u+2*p,2)}")
        for p in range(8): e(f"v_cvt_pk_bf16_f32 v{vPV+p}, v{av+2*p}, v{av+2*p+1}")
        for p in range(8): e(f"v_cndmask_b32 v{vPV+p}, v{vPV+p}, v7, s[{sMKM}:{sMKM+1}]")
        for h in range(2):
            cin = '0' if (u == 0 and h == 0) else vr(vKV, 16)
            e(f"v_mfma_f32_32x32x16_bf16 {vr(vKV,16)}, {vr(vPV+4*h,4)}, {vr(vPK+4*h,4)}, {cin}")
    L1, L2 = k.newlabel('Lc'), k.newlabel('Lc')
    e(f"s_cmp_lg_u32 s{sHI}, 0\ns_cbranch_scc1 {L1}")
    for gq in range(4): e(f"ds_write_b128 v6, {vr(vKV+4*gq,4)} offset:{1024*gq}")
    e("s_waitcnt lgkmcnt(0)")
    k.label(L1)
    e("s_waitcnt vmcnt(0)\ns_barrier")
    st = k.state()
    e(f"s_cmp_eq_u32 s{sHI}, 0\ns_cbranch_scc1 {L2}")
    tk = [e(f"ds_read_b128 {vr(vT+4*gq,4)}, v6 offset:{1024*gq}") for gq in range(4)]
    e("s_nop 3")
    tb = [sTAG, sSO0, sSO1, sSO2]
    for gq in range(4):
        k.wait(lg=tk[gq])
        for p in range(2): e(f"v_pk_add_f32 {vr(vKV+4*gq+2*p,2)}, {vr(vKV+4*gq+2*p,2)}, {vr(vT+4*gq+2*p,2)}")
        for d in range(4): e(f"v_bfi_b32 v{vKV+4*gq+d}, v5, s{tb[d]}, v{vKV+4*gq+d}")
        e(f"buffer_store_dwordx4 {vr(vKV+4*gq,4)}, v{vL16}, {WS}, s{sT0} offen offset:{1024*gq} sc1")
    k.label(L2)
    k.set_state(st)
    stamp(3); stamp(12, 4)

def reducer():
    hd = sRHD
    srd(rMISC, pWO, 448 * 896)
    WOB = SCR + 4096
    WOB = SLOT; AF = SLOT + 16384
    e(f"""s_mul_i32 s{sT0}, s{hd}, 28
v_lshrrev_b32 v4, 2, v0
v_add_u32 v4, s{sT0}, v4
v_mul_u32_u24 v4, 896, v4
v_and_b32 v5, 3, v0
v_lshl_add_u32 v4, v5, 4, v4
s_lshl_b32 s{sT0}, s{sRCT}, 6
v_add_u32 v4, s{sT0}, v4
v_add_u32 v5, {16*896}, v4
s_lshl_b32 s{sT1}, s{sW}, 11
s_add_u32 m0, s{sT1}, {WOB}
buffer_load_dwordx4 v4, s[{rMISC}:{rMISC+3}], 0 offen lds
s_add_u32 m0, s{sT1}, {WOB+1024}""")
    wtok = e(f"buffer_load_dwordx4 v5, s[{rMISC}:{rMISC+3}], 0 offen lds")
    e(f"""v_lshrrev_b32 v6, 5, v0
v_lshlrev_b32 v6, 2, v6
v_bfe_u32 v7, v0, 2, 2
v_add_u32 v6, v6, v7
v_lshlrev_b32 v6, 6, v6
v_bfe_u32 v7, v0, 4, 1
v_lshl_add_u32 v6, v7, 5, v6
v_and_b32 v7, 3, v0
v_lshl_add_u32 v6, v7, 3, v6
s_add_u32 s{sT1}, s{sT1}, {WOB}
v_add_u32 v14, s{sT1}, v6
s_mov_b32 s{sMKM}, 0
s_cmp_eq_u32 s{sW}, 3
s_cselect_b32 s{sMKM+1}, -1, 0""")
    vWF = 16
    L1 = k.newlabel('Lr')
    e(f"s_cmp_ge_u32 s{sW}, 4\ns_cbranch_scc1 {L1}")
    st = k.state()
    vP = 72; vX = 24; vS = 28
    e(f"""s_lshl_b32 s{sT0}, s{hd}, 16
s_lshl_b32 s{sT1}, s{sW}, 10
s_add_u32 s{sT0}, s{sT0}, s{sT1}
s_add_u32 s{sT0}, s{sT0}, {KVP}
v_add_u32 v4, s{sT0}, v{vL16}
s_lshr_b32 s{sT0}, s{sW}, 1
s_lshl_b32 s{sT0}, s{sT0}, 10
s_and_b32 s{sT1}, s{sW}, 1
s_lshl_b32 s{sT1}, s{sT1}, 3
s_add_u32 s{sT0}, s{sT0}, s{sT1}
s_add_u32 s{sT0}, s{sT0}, {AF}
v_add_u32 v5, s{sT0}, v{vL16}""")
    tb = [sTAG, sSO0, sSO1, sSO2]
    ck = Checked()
    toks = []
    for rb in range(16):
        toks.append(ck.load(f"s_movk_i32 s{sT0}, {rb*4096 if rb < 8 else rb*4096-65536}\ns_and_b32 s{sT0}, s{sT0}, 0xffff\nbuffer_load_dwordx4 {vr(vP+4*rb,4)}, v4, {WS}, s{sT0} offen sc1"))
    for gidx in range(4):
        c = []
        for rb in range(4 * gidx, 4 * gidx + 4):
            for d in range(4):
                if rb % 4 == 0: c.append(f"v_xor_b32 v{vX+d}, s{tb[d]}, v{vP+4*rb+d}")
                else: c.append(f"v_bitop3_b32 v{vX+d}, v{vX+d}, v{vP+4*rb+d}, s{tb[d]} bitop3:0xf6")
        c += [f"v_or3_b32 v{vX}, v{vX}, v{vX+1}, v{vX+2}", f"v_or_b32 v{vX}, v{vX}, v{vX+3}", f"v_and_b32 v{vX}, 0xff, v{vX}",
              f"v_cmp_ne_u32 vcc, 0, v{vX}", "s_cmp_lg_u64 vcc, 0"]
        ck.check(toks[4 * gidx], toks[4 * gidx + 3], "\n".join(c), sleep=0)
        b = vP + 16 * gidx
        for p in range(2):
            e(f"v_pk_add_f32 {vr(b+2*p,2)}, {vr(b+2*p,2)}, {vr(b+4+2*p,2)}\nv_pk_add_f32 {vr(b+8+2*p,2)}, {vr(b+8+2*p,2)}, {vr(b+12+2*p,2)}")
        for p in range(2): e(f"v_pk_add_f32 {vr(b+2*p,2)}, {vr(b+2*p,2)}, {vr(b+8+2*p,2)}")
        for p in range(2):
            if gidx == 0: e(f"v_mov_b32 v{vS+2*p}, v{b+2*p}\nv_mov_b32 v{vS+2*p+1}, v{b+2*p+1}")
            else: e(f"v_pk_add_f32 {vr(vS+2*p,2)}, {vr(vS+2*p,2)}, {vr(b+2*p,2)}")
    stamp(4)
    e(f"""v_mov_b32_dpp v6, v{vS} quad_perm:[1,1,3,3] row_mask:0xf bank_mask:0xf
v_cvt_pk_bf16_f32 v12, v{vS}, v{vS+1}
v_cvt_pk_bf16_f32 v13, v{vS+2}, v{vS+3}
v_cvt_pk_bf16_f32 v6, v{vS}, v6
v_cndmask_b32 v12, v12, 0, s[{sMKM}:{sMKM+1}]
v_cndmask_b32 v13, v13, 0, s[{sMKM}:{sMKM+1}]
v_mov_b32 v7, s{sTAG}
ds_write_b64 v5, v[12:13]
buffer_store_dwordx2 v[6:7], v{vRA+4}, {WS}, 0 offen sc1""")
    k.label(L1)
    k.set_state(st)
    e(f"s_cmp_lt_u32 s{sW}, 4\ns_cbranch_scc1 Lr_nw\ns_waitcnt vmcnt(0)")
    k.label('Lr_nw')
    for s in range(2):
        for rd in range(2): e(f"ds_read_b64_tr_b16 {vr(vWF+4*s+2*rd,2)}, v14 offset:{s*1024+rd*512}")
    e(f"v_add_u32 v5, {AF}, v{vL16}\ns_waitcnt lgkmcnt(0)\ns_barrier")
    vAF = 24; vD = 96
    e(f"ds_read_b128 {vr(vAF,4)}, v5\nds_read_b128 {vr(vAF+4,4)}, v5 offset:1024")
    e("s_waitcnt lgkmcnt(1)")
    e(f"v_mfma_f32_32x32x16_bf16 {vr(vD,16)}, {vr(vAF,4)}, {vr(vWF,4)}, 0")
    e("s_waitcnt lgkmcnt(0)")
    e(f"v_mfma_f32_32x32x16_bf16 {vr(vD,16)}, {vr(vAF+4,4)}, {vr(vWF+4,4)}, {vr(vD,16)}")
    for gq in range(4):
        for p in range(2): e(f"v_cvt_pk_bf16_f32 v{112+2*gq+p}, v{vD+4*gq+2*p}, v{vD+4*gq+2*p+1}")
        e(f"buffer_store_dwordx2 {vr(112+2*gq,2)}, v{vRA+gq}, {WS}, s{sRMB} offen sc1")
    stamp(5)

def phase2():
    vHO = 4
    vXR = 12; vB2 = 248
    vWB2 = 16
    vA2 = 32
    vH = 96
    vT = 252; vPA = 255 if not STAMPS else 31; vPD_ = 254 if not STAMPS else 30
    vOUT = 3
    t0, t1 = vA2, vA2 + 1
    srd(rMISC, pB2, 896)
    e(f"""s_lshl_b32 s{sT0}, s{sTB}, 1
s_add_u32 s{sT1}, s{sT0}, s{sHI}
s_mul_i32 s{sT1}, s{sT1}, {140*1024}
s_add_u32 s{sT1}, s{sT1}, {HQ}
v_add_u32 v{vHO}, s{sT1}, v{vL16}
s_xor_b32 s{sT1}, s{sHI}, 1
s_add_u32 s{sT1}, s{sT0}, s{sT1}
s_mul_i32 s{sT1}, s{sT1}, {140*1024}
s_add_u32 s{sT1}, s{sT1}, {HQ}
v_add_u32 v{vHO+1}, s{sT1}, v{vL16}""")
    for j in range(7): e(f"s_lshl_b32 s{sTAB+j}, s{sTAB+j}, 11")
    e(f"""v_lshrrev_b32 v{t0}, 3, v0
s_lshl_b32 s{sT0}, s{sTB}, 6
s_lshl_b32 s{sT1}, s{sW}, 3
s_add_u32 s{sT0}, s{sT0}, s{sT1}
v_add_u32 v{t0}, s{sT0}, v{t0}
v_mul_u32_u24 v{t0}, 896, v{t0}
v_and_b32 v{t1}, 7, v0
v_lshlrev_b32 v{t1}, 4, v{t1}
s_lshl_b32 s{sT0}, s{sCT}, 7
v_add_u32 v{t1}, s{sT0}, v{t1}
v_add_u32 v{vOUT}, v{t0}, v{t1}
buffer_load_dwordx4 {vr(vXR,4)}, v{vOUT}, s[{rX}:{rX+3}], 0 offen
buffer_load_dwordx4 {vr(vB2,4)}, v{t1}, s[{rMISC}:{rMISC+3}], 0 offen""")
    e(f"""s_lshl_b32 s{sT0}, s{sTB}, 13
s_add_u32 s{sT0}, s{sT0}, {FLH}
v_lshl_add_u32 v{vPA}, v0, 7, s{sT0}
s_cmp_eq_u32 s{sHI}, 0
s_cselect_b32 s{sMKM}, 0xfc0000, 0
s_cselect_b32 s{sMKM+1}, 0, 0xfc0000
s_or_b64 vcc, s[{sMKM}:{sMKM+1}], s[{sMKH}:{sMKH+1}]
v_mov_b32 v{t0}, {DUMP}
v_cndmask_b32 v{vPA}, v{t0}, v{vPA}, vcc
v_mov_b32 v{t0}, s{sTAG}
v_mov_b32 v{t1}, 0
s_waitcnt vmcnt(2)
s_mov_b64 exec, 1
buffer_store_dword v{t0}, v{t1}, {WS}, s{sFLO} offen sc1
s_mov_b64 exec, -1""")
    stamp(8); stamp(13, 4)
    if 'nobar' not in DBG: e("s_barrier")
    poll(vPA, sMKH, opt('psleep', 2))
    ck = Checked()
    htok = {}
    for j in range(7):
        for s in range(2):
            for tt in range(2):
                htok[(2*j+s, tt)] = e(f"buffer_load_dwordx4 {vr(vH+16*j+8*s+4*tt,4)}, v{vHO+tt}, {WS}, s{sTAB+j} offen offset:{1024*s} sc1")
    stamp(9); stamp(15, 4)
    e(f"""s_mul_i32 s{sSO0}, s{sLO}, {7*1024}
s_add_u32 s{sSO1}, s{sSO0}, {112*1024}
s_add_u32 s{sSO2}, s{sSO1}, 4096
s_mul_i32 s{sT0}, s{sCT}, {56*1024}
s_add_u32 s{sT0}, s{sT0}, s{sSO0}
s_add_u32 s{sT0}, s{sT0}, {MB}
s_add_u32 s{sT1}, s{sT0}, 4096
s_add_u32 s{sT4}, s{sT0}, {28*1024}
s_add_u32 s{sSOX}, s{sT4}, 4096
v_lshrrev_b32 v2, 5, v0
v_lshlrev_b32 v2, 4, v2""")
    vQ = vH
    vZ = vWP
    vM = vH + 32
    vZA = vWP + 28; vZD = vWP + 38
    tok = {}
    for j in range(7):
        base = vH + 16 * j
        for s in range(2):
            u = 2 * j + s
            cur = tok; tok = {}
            rd = wreads(u + 1, vWB2 + 8 * ((u + 1) & 1)) if 5 <= u + 1 < 14 else []
            wsrc = vWP + 8 * u if u < 5 else vWB2 + 8 * (u & 1)
            mf = []
            for tt in range(2):
                for c in range(2):
                    acc = vr(vA2 + 32 * tt + 16 * c, 16)
                    mf.append(('m', (f"v_mfma_f32_32x32x16_bf16 {acc}, {vr(wsrc+4*c,4)}, {vr(base+8*s+4*tt,4)}, {'0' if u == 0 else acc}", c, tt)))
            for kind_, x in spread(mf, [('r', x) for x in rd]):
                if kind_ == 'm':
                    k.wait(vm=htok[(u, x[2])], lg=cur.get(x[1])); e(x[0])
                else: tok[x[1]] = e(x[0])
        if j == 1:
            poll(vPA, sMKM, 2, recheck=True)
            qt = [e(f"buffer_load_dwordx4 {vr(vQ+4*s,4)}, v{vHO}, {WS}, s{sSO1 if s < 4 else sSO2} offen offset:{1024*(s&3)} sc1") for s in range(7)]
        if j == 2:
            e(f"""v_mul_u32_u24 v{vZ}, 37, v0
v_lshrrev_b32 v{vZ}, 9, v{vZ}
v_lshlrev_b32 v{vZ+1}, 3, v0
v_lshl_add_u32 v{vZ+1}, v{vZ}, 4, v{vZ+1}
s_lshl_b32 s{sT3}, s{sLO}, 9
s_add_u32 s{sPD}, s{sT3}, {ZG}
v_add_u32 v{vZ+1}, s{sPD}, v{vZ+1}
v_bfe_u32 v{vZ+2}, v0, 2, 1
v_lshlrev_b32 v{vZ+2}, 11, v{vZ+2}
v_and_b32 v{vZ+3}, 3, v0
v_lshl_add_u32 v{vZ+2}, v{vZ+3}, 7, v{vZ+2}
s_lshl_b32 s{sPD}, s{sCT}, 12
s_add_u32 s{sPD}, s{sPD}, s{sT3}
s_add_u32 s{sPD}, s{sPD}, {FLM}
v_add_u32 v{vZ+2}, s{sPD}, v{vZ+2}
v_cmp_gt_u32 vcc, 56, v0
v_cndmask_b32 v{vZA}, v{vZ+2}, v{vZ+1}, vcc""")
            e(f"""v_lshrrev_b32 v{vZ}, 3, v0
v_lshlrev_b32 v{vZ}, 5, v{vZ}
v_bfe_u32 v{vZ+1}, v0, 1, 1
v_lshl_add_u32 v{vZ}, v{vZ+1}, 4, v{vZ}
v_bfe_u32 v{vZ+1}, v0, 2, 1
v_lshl_add_u32 v{vZ}, v{vZ+1}, 3, v{vZ}
v_and_b32 v{vZ+1}, 1, v0
v_lshl_add_u32 v{vZ}, v{vZ+1}, 2, v{vZ}
s_lshl_b32 s{sPD}, s{sW}, 8
s_add_u32 s{sPD}, s{sPD}, {SCR + 8192}
v_add_u32 v{vZA+1}, s{sPD}, v{vZ}
v_add_u32 v{vZA+2}, s{sPD}, v2""")
        if j == 5:
            zt = ck.load(f"buffer_load_dwordx2 {vr(vZD,2)}, v{vZA}, {WS}, 0 offen sc1")
    stamp(4); stamp(14, 4)
    PITCH = 272
    def tokaddr(dst, tokreg, tmp):
        return f"""v_mul_u32_u24 v{tmp}, 47, v{tokreg}
v_lshrrev_b32 v{tmp}, 10, v{tmp}
v_mul_u32_u24 v{dst}, {PITCH}, v{tokreg}
v_mul_u32_u24 v{tmp}, {SLOT - 22*PITCH}, v{tmp}
v_add_u32 v{dst}, v{dst}, v{tmp}"""
    w0, w1, rd_, x0, x1 = vWA, vWA + 1, vWA + 2, vWA + 3, vWA + 4
    e(f"v_and_b32 v{x0}, 31, v0\ns_lshl_b32 s{sPD}, s{sHI}, 5\nv_add_u32 v{x0}, s{sPD}, v{x0}"); e(tokaddr(w0, x0, x1))
    e(f"v_xor_b32 v{x0}, 32, v{x0}"); e(tokaddr(w1, x0, x1))
    e(f"""v_add_u32 v{x0}, s{sM0P}, v2
v_add_u32 v{w0}, v{w0}, v{x0}
v_add_u32 v{w1}, v{w1}, v{x0}
v_lshrrev_b32 v{x0}, 3, v0
v_lshl_add_u32 v{x0}, s{sW}, 3, v{x0}""")
    e(tokaddr(rd_, x0, x1))
    e(f"v_and_b32 v{x0}, 7, v0\nv_lshl_add_u32 v{rd_}, v{x0}, 5, v{rd_}")
    for c in range(2):
        for gq in range(4): e(f"ds_write_b128 v{w1}, {vr(vA2+32+16*c+4*gq,4)} offset:{c*128+gq*32}")
    vF = vWB2; vG = vWB2 + 8
    for d in range(4):
        e(f"""v_lshlrev_b32 v{vF+2*d}, 16, v{vXR+d}
v_and_b32 v{vF+2*d+1}, 0xffff0000, v{vXR+d}
v_lshlrev_b32 v{vG+2*d}, 16, v{vB2+d}
v_and_b32 v{vG+2*d+1}, 0xffff0000, v{vB2+d}""")
    for d in range(4): e(f"v_pk_add_f32 {vr(vF+2*d,2)}, {vr(vF+2*d,2)}, {vr(vG+2*d,2)}")
    srd(rMISC, pOUT, 2048 * 896)
    stamp(10)
    ck.check(zt, zt, f"v_cmp_ne_u32 vcc, s{sTAG}, v{vZD+1}\ns_cmp_lg_u64 vcc, 0", sleep=opt('zsleep', 4))
    stamp(11)
    e(f"ds_write_b32 v{vZA+1}, v{vZD}")
    for s in range(7): e(f"ds_read_b128 {vr(vZ+4*s,4)}, v{vZA+2} offset:{32*s}")
    mt = {}
    def mloads():
        for s in range(7):
            for c in range(2):
                so = [[sT0, sT1], [sT4, sSOX]][c][s >> 2]
                mt[(s, c)] = ck.load(f"buffer_load_dwordx4 {vr(vM+8*s+4*c,4)}, v{vL16}, {WS}, s{so} offen offset:{1024*(s&3)} sc1")
    MPOS = opt('mpos', 1)
    if MPOS == 0: mloads()
    e("s_waitcnt lgkmcnt(0)")
    vD = vWP + 28
    a = [vD + i for i in range(4)]; t3, t10 = vD + 4, vD + 5
    b = [vD + 6 + i for i in range(4)]
    dst = {0: a[0], 1: a[0], 2: a[0], 3: t3, 4: a[1], 5: a[1], 6: a[1], 7: a[2], 8: a[2], 9: a[2], 10: t10, 11: a[3], 12: a[3], 13: a[3]}
    order = [0, 4, 7, 11, 3, 10, 1, 5, 8, 12, 2, 6, 9, 13]
    vU = vG
    seen = set()
    for d in range(2):
        for q in order:
            r = dst[q]; cin = '0' if r not in seen else f'v{r}'; seen.add(r)
            e(f"v_dot2_f32_bf16 v{r}, v{vQ+2*q+d}, v{vZ+2*q+d}, {cin}")
    e(f"""v_cndmask_b32 v{b[0]}, v{t3}, 0, {HALF}
v_cndmask_b32 v{b[1]}, 0, v{t3}, {HALF}
v_cndmask_b32 v{b[2]}, v{t10}, 0, {HALF}
v_cndmask_b32 v{b[3]}, 0, v{t10}, {HALF}""")
    for i in range(4): e(f"v_add_f32 v{a[i]}, v{a[i]}, v{b[i]}")
    for i in range(4): e(f"v_mov_b32 v{b[i]}, v{a[i]}")
    for i in range(4): e(f"v_permlane32_swap_b32 v{a[i]}, v{b[i]}")
    for i in range(4): e(f"v_add_f32 v{a[i]}, v{a[i]}, v{b[i]}")
    for i in range(4): e(f"v_add_f32 v{a[i]}, s{sEPS}, v{a[i]}")
    for i in range(4): e(f"v_rcp_f32 v{a[i]}, v{a[i]}")
    e(f"v_cndmask_b32 v{t3}, v{a[0]}, v{a[1]}, {HALF}\nv_cndmask_b32 v{t10}, v{a[2]}, v{a[3]}, {HALF}")
    if MPOS == 1: mloads()
    for q in range(14):
        r = dst[q]
        if MPOS == 2 and q == 7: mloads()
        for d in range(2):
            x = vQ + 2 * q + d; lo, hi = vU + 2 * d, vU + 2 * d + 1
            e(f"v_lshlrev_b32 v{lo}, 16, v{x}\nv_and_b32 v{hi}, 0xffff0000, v{x}\nv_mul_f32 v{lo}, v{lo}, v{r}\nv_mul_f32 v{hi}, v{hi}, v{r}\nv_cvt_pk_bf16_f32 v{x}, v{lo}, v{hi}")
    for (s0, s1) in ((0, 4), (4, 7)):
        ck.check(mt[(s0, 0)], mt[(s1 - 1, 1)], poison_chk(range(vM + 8 * s0, vM + 8 * s1), vT))
        for s in range(s0, s1):
            for c in range(2):
                acc = vr(vA2 + 16 * c, 16)
                e(f"v_mfma_f32_32x32x16_bf16 {acc}, {vr(vM+8*s+4*c,4)}, {vr(vQ+4*s,4)}, {acc}")
    stamp(6)
    for c in range(2):
        for gq in range(4): e(f"ds_write_b128 v{w0}, {vr(vA2+16*c+4*gq,4)} offset:{c*128+gq*32}")
    e("s_waitcnt lgkmcnt(0)\ns_barrier")
    rt = []
    for q in range(8):
        for hh in range(2): rt.append(e(f"ds_read_b128 {vr(vH+8*q+4*hh,4)}, v{rd_} offset:{q*6144+16*hh}"))
    for q in range(8):
        k.wait(lg=rt[2 * q + 1])
        for d in range(4): e(f"v_pk_add_f32 {vr(vF+2*d,2)}, {vr(vF+2*d,2)}, {vr(vH+8*q+2*d,2)}")
    for d in range(4): e(f"v_cvt_pk_bf16_f32 v{vXR+d}, v{vF+2*d}, v{vF+2*d+1}")
    e(f"buffer_store_dwordx4 {vr(vXR,4)}, v{vOUT}, s[{rMISC}:{rMISC+3}], 0 offen")
    stamp(7)
    e(f"s_or_b32 s{sT0}, s2, s{sW}\ns_cmp_lg_u32 s{sT0}, 0\ns_cbranch_scc1 Lend")
    e(f"v_mov_b32 v4, s{sTAG}\nv_mov_b32 v5, {EPOCH}\ns_mov_b64 exec, 1\nbuffer_store_dword v4, v5, {WS}, 0 offen")

kn = NAME + '_kernel'
hdr = open(f'cdna_kernels/{NAME}.s.ref').read().split('; Override launch')[0]
head = hdr + f"; @launch grid=(256,1,1) block=(512,1,1) lds={LDS_BYTES}\n"
k.raw('.amdgcn_target "amdgcn-amd-amdhsa--gfx950"\n.text')
k.raw(f".globl {kn}\n.p2align 8\n.type {kn},@function\n{kn}:")
prologue()
st_pro = k.state()
phase1_M()
k.label('Lp2'); k.set_state(([], []))
phase2()
k.label('Lend'); e("s_endpgm")
k.label('Lkv'); k.set_state(st_pro)
phase1_KV()
e(f"s_cmp_eq_u32 s{sGSEL}, 7\ns_cbranch_scc1 Lred")
for x in wa_items(): e(x)
e("s_waitcnt lgkmcnt(0)")
for g in p2_dma(2): e(g)
for u in range(5):
    for x, _ in wreads(u, vWP + 8 * u): e(x)
e("s_waitcnt lgkmcnt(0)")
for u in range(9, 14):
    for g in unit_dma(u): e(g)
e("s_branch Lp2")
k.label('Lred')
k.set_state(([], []))
reducer()
e("s_endpgm")
i = 0
while i < len(outline): outline[i](); i += 1
k.label('Lcode_end')
e("s_endpgm")
body, nnop = k.render()
kd = f""".amdhsa_kernel {kn}
  .amdhsa_next_free_vgpr 256
  .amdhsa_next_free_sgpr 102
  .amdhsa_accum_offset 256
  .amdhsa_group_segment_fixed_size 0
  .amdhsa_kernarg_size 88
  .amdhsa_user_sgpr_count 2
  .amdhsa_user_sgpr_kernarg_segment_ptr 1
  .amdhsa_system_sgpr_workgroup_id_x 1
.end_amdhsa_kernel
"""
out = head + body + '.section .rodata,"a"\n.p2align 6\n' + kd
outp = [a for a in sys.argv[1:] if not a.startswith('--')]
open(outp[0] if outp else f'cdna_kernels/{NAME}.s', 'w').write(out)
print("nops inserted:", nnop, "lines:", out.count('\n'))
```

```python
import sys, math, struct
sys.path.insert(0, 'gen')
from dsl import *

NAME = "parallel_sum__linear_attn_block__mixer_channel_mlp__prompt"
STAMPS = '--stamps' in sys.argv
DBG = set(a[6:] for a in sys.argv if a.startswith('--dbg-'))
def opt(name, default):
    for a in sys.argv:
        if a.startswith(f'--{name}='): return int(a.split('=')[1])
    return default
def f32(x): return '0x%08x' % struct.unpack('<I', struct.pack('<f', x))[0]
def lines(s): return [l.strip() for l in s.strip().split('\n') if l.strip()]

EPOCH = 0
ZG = 0x1000
FLM = 0x2000
STATS = 0x10000
CSG = 0x18000
MB = 0x40000
KVP = 0x100000
HQ = 0x200000
FLH = 0xB00000
WS_USED = 0xC00000
DUMP = 0x7000000
STAMP_OFF = 0x8000000
SLOT = 49152
SCR = 3 * SLOT
SCR2 = SCR + 8192
LDS_BYTES = 163840
EPS = 1e-5
LOG2E = math.log2(math.e)
GC0 = -2.0 * math.sqrt(2.0 / math.pi) * LOG2E
GC1 = 0.044715
SPIN_MAX = 20000

sW = 3
pX, pWQKV, pWO, pBX, pW1, pB1, pW2, pB2, pOUT, pDBG, pWS = 4, 6, 8, 10, 12, 14, 16, 18, 20, 22, 24
sHQO, sFLO = 10, 11
sRHD, sRMB = 22, 23
sPM, sQM = 22, 23
sXCD, sSUB, sGSEL, sRB, sCC = 26, 27, 28, 29, 30
sT0, sT1, sT2, sT3, sT4 = 31, 32, 33, 34, 35
rX, rW0, rW1, rW2, rWS, rW2G, rMISC = 36, 40, 44, 48, 52, 56, 60
sSOX, sSO0, sSO1, sSO2 = 64, 65, 66, 67
sPSTEP0 = 68
sM0X, sM0W = 71, 72
sLO, sHI = 73, 74
sC0 = 75
sMK = 76
sHALF = 78
sTAB = 80
sRCT = 87
sEPS = 88
sMKM = 90
sMG = 92
sPD = 93
sTAG = 94
sCT, sTB = 95, 96
sTILE0 = 97
sM0P = 98
sMEAN = 99
sSTAMP = 100
sHT = 40

k = K()
e = k.e
outline = []
WS = f"s[{rWS}:{rWS+3}]"
HALF = f"s[{sHALF}:{sHALF+1}]"
def srd_s(r, ptr, nbytes):
    return f"s_mov_b32 s{r}, s{ptr}\ns_and_b32 s{r+1}, s{ptr+1}, 0xffff\ns_mov_b32 s{r+2}, {nbytes}\ns_mov_b32 s{r+3}, 0x20000\n"

def stamp(idx, wave=0, chunk=False, p2=False):
    if not STAMPS: return
    if 'p2' in DBG:
        if idx > 0 and not p2: return
        if p2: wave = opt('sw', 0)
    elif p2: return
    elif ('chunks' in DBG) != chunk and idx > 1: return
    L = k.newlabel('Lst')
    st = k.state()
    e(f"s_cmp_lg_u32 s{sW}, {wave}\ns_cbranch_scc1 {L}")
    e(f"s_memrealtime s[{sSTAMP}:{sSTAMP+1}]\ns_memtime vcc\ns_waitcnt lgkmcnt(0)")
    e(f"v_mov_b32 v254, s{sSTAMP}\nv_mov_b32 v255, s{sSTAMP+1}")
    e(f"s_lshl_b32 s{sSTAMP}, s2, 8\ns_add_u32 s{sSTAMP}, s{sSTAMP}, {STAMP_OFF + 8*idx}\nv_mov_b32 v253, s{sSTAMP}")
    e(f"global_store_dwordx2 v253, v[254:255], s[{pWS}:{pWS+1}]")
    e(f"s_nop 1\nv_mov_b32 v254, vcc_lo\nv_mov_b32 v255, vcc_hi")
    e(f"global_store_dwordx2 v253, v[254:255], s[{pWS}:{pWS+1}] offset:128")
    k.label(L)
    k.set_state(st)

def emit_item(x): return x() if callable(x) else e(x)

SCC_R = ('s_cselect', 's_cbranch_scc', 's_addc')
SCC_W = ('s_cmp', 's_add', 's_sub', 's_and', 's_or', 's_xor', 's_lshl', 's_lshr', 's_min', 's_max', 's_bfe')
def atoms(text, n=2):
    ls = lines(text); N = len(ls)
    live = [False] * (N + 1); scc = vcc = m0 = False
    for i in range(N - 1, -1, -1):
        ins = Ins(ls[i])
        if ls[i].startswith(SCC_W): scc = False
        if ls[i].startswith(SCC_R): scc = True
        if ('s', 106) in ins.w: vcc = False
        if ('s', 106) in ins.r: vcc = True
        if ('s', 124) in ins.w: m0 = False
        if ('s', 124) in ins.r: m0 = True
        live[i] = scc or vcc or m0
    out = []; cur = []
    for i, l in enumerate(ls):
        cur.append(l)
        if len(cur) >= n and not live[i + 1]: out.append("\n".join(cur)); cur = []
    if cur: out.append("\n".join(cur))
    return out

def distribute(per, first, last, items):
    ns = last - first + 1
    for q in range(ns): per[first + q] += items[len(items) * q // ns: len(items) * (q + 1) // ns]

class Checked:
    def __init__(self): self.log = []
    def load(self, text):
        t = e(text); self.log.append((text, t)); return t
    def check(self, first_tok, last_tok, chk, sleep=1):
        Lc, Ls, Lb = k.newlabel('Lck'), k.newlabel('Lsl'), k.newlabel('Lbk')
        e(f"s_movk_i32 s{sT2}, {SPIN_MAX}")
        k.label(Lc)
        assert last_tok in k.vm
        k.wait(vm=last_tok)
        e(chk); e(f"s_cbranch_scc1 {Ls}")
        k.label(Lb)
        i0 = [t for _, t in self.log].index(first_tok)
        redo = [x for x, _ in self.log[i0:]]
        assert all(t in [tt for _, tt in self.log[i0:]] for t in k.vm), "untracked younger vmem op"
        def slow():
            k.label(Ls)
            e(f"s_sub_u32 s{sT2}, s{sT2}, 1\ns_cbranch_scc1 {Lb}")
            if sleep: e(f"s_sleep {sleep}")
            for x in redo: e(x)
            e(f"s_branch {Lc}")
        outline.append(slow)

def verify(load, test, sleep):
    Lp, Ld, Lc = k.newlabel('Lvs'), k.newlabel('Lvd'), k.newlabel('Lvc')
    e(test); e(f"s_cbranch_scc1 {Lp}")
    k.label(Ld)
    def slow():
        k.label(Lp)
        e(f"s_movk_i32 s{sT2}, {SPIN_MAX}")
        k.label(Lc)
        e(load); e("s_waitcnt vmcnt(0)"); e(test)
        e(f"s_cbranch_scc0 {Ld}\ns_sub_u32 s{sT2}, s{sT2}, 1\ns_cbranch_scc1 {Ld}\ns_sleep {sleep}\ns_branch {Lc}")
    outline.append(slow)

EARLY = sorted([i for i in range(56) if i % 6 < 4], key=lambda i: (i // 6, i & 1, i))
LATE = [i for i in range(56) if i % 6 >= 4]
REST = EARLY[32:] + LATE
def tiles_of_wave(w): return EARLY[4 * w: 4 * w + 4] + REST[3 * w: 3 * w + 3]
def flag_of(i): return (2 * (i // 6) + (i & 1)) + (32 if i % 6 >= 4 else 0)
vL16 = 1
vPD0 = 2
vWA = 6
vPA = 23; vPV_ = 24
vWP = 208
vPF = 251; vDUM = 24
P_SLOT = [1, 2, 0]
def unit_pos(u):
    if u >= 9: u -= 9
    return P_SLOT[u // 3] * SLOT + (u % 3) * 2048

def p2_setup_text():
    t = ""
    for w in range(8):
        v = sum(x << (8 * j) for j, x in enumerate(tiles_of_wave(w)))
        lo, hi = v & 0xffffffff, v >> 32
        if w == 0: t += f"s_mov_b32 s{sTAB}, {lo:#x}\ns_mov_b32 s{sTAB+1}, {hi:#x}\n"
        else: t += f"s_cmp_eq_u32 s{sW}, {w}\ns_cselect_b32 s{sTAB}, {lo:#x}, s{sTAB}\ns_cselect_b32 s{sTAB+1}, {hi:#x}, s{sTAB+1}\n"
    if False:
        t += f"""s_lshl_b32 s{sT0}, s{sCT}, 3
s_sub_u32 s{sT1}, 56, s{sT0}
s_lshr_b64 s[{sTAB+2}:{sTAB+3}], s[{sTAB}:{sTAB+1}], s{sT0}
s_lshl_b64 s[{sTAB}:{sTAB+1}], s[{sTAB}:{sTAB+1}], s{sT1}
s_or_b64 s[{sTAB}:{sTAB+1}], s[{sTAB}:{sTAB+1}], s[{sTAB+2}:{sTAB+3}]
"""
    for j in (6, 5, 4): t += f"s_bfe_u32 s{sTAB+j}, s{sTAB+1}, {0x80000 | (8*(j-4)):#x}\n"
    for j in (3, 2, 1, 0): t += f"s_bfe_u32 s{sTAB+j}, s{sTAB}, {0x80000 | (8*j):#x}\n"
    t += srd_s(rW2G, pW2, 1792 * 896)
    t += f"""s_cmp_eq_u32 s{sGSEL}, 7
s_cselect_b32 s{rW2G+2}, 0, s{rW2G+2}
v_lshrrev_b32 v4, 3, v0
v_mul_u32_u24 v4, 896, v4
v_bfe_u32 v5, v0, 4, 1
v_lshlrev_b32 v5, 2, v5
v_and_b32 v6, 7, v0
v_xor_b32 v5, v5, v6
v_lshl_add_u32 v4, v5, 4, v4
s_lshl_b32 s{sT0}, s{sCT}, 7
v_add_u32 v{vPD0}, s{sT0}, v4
v_add_u32 v{vPD0+1}, 7168, v{vPD0}
s_mul_i32 s{sM0P}, s{sW}, 6144
"""
    return t

vPA2 = 252
def poll_addr_text():
    t = ""
    for w in range(8):
        tl = tiles_of_wave(w)
        f1 = [flag_of(tl[0]), flag_of(tl[2])]; assert flag_of(tl[1]) == f1[0] and flag_of(tl[3]) == f1[1]
        f2 = [flag_of(x) for x in tl[4:]]
        q0 = 56 + (7 * (w & 3) >> 1)
        fq = [flag_of(x) + 64 * (w >> 2) for x in range(q0, q0 + 4)]
        lo = sum(x << (6 * j) for j, x in enumerate(f1 + f2)); hi = sum(x << (8 * j) for j, x in enumerate(fq))
        if w == 0: t += f"s_mov_b32 s{sPM}, {lo:#x}\ns_mov_b32 s{sQM}, {hi:#x}\n"
        else: t += f"s_cmp_eq_u32 s{sW}, {w}\ns_cselect_b32 s{sPM}, {lo:#x}, s{sPM}\ns_cselect_b32 s{sQM}, {hi:#x}, s{sQM}\n"
    t += f"""v_and_b32 v4, 31, v0
v_mul_u32_u24 v4, 6, v4
v_lshrrev_b32 v5, 5, v0
v_lshlrev_b32 v5, 6, v5
v_bfe_u32 v6, s{sPM}, v4, 6
v_add_u32 v6, v6, v5
v_add_u32 v4, 12, v4
v_bfe_u32 v7, s{sPM}, v4, 6
v_add_u32 v7, v7, v5
v_lshlrev_b32 v4, 3, v0
v_bfe_u32 v4, s{sQM}, v4, 8
s_mov_b32 s{sMK}, 0xf0
s_mov_b32 s{sMK+1}, 0
v_cndmask_b32 v7, v7, v4, s[{sMK}:{sMK+1}]
s_lshl_b32 s{sT0}, s{sTB}, 14
s_add_u32 s{sT0}, s{sT0}, {FLH}
v_lshl_add_u32 v6, v6, 7, s{sT0}
v_lshl_add_u32 v7, v7, 7, s{sT0}
v_mov_b32 v5, {DUMP}
s_mov_b32 s{sMK}, 3
s_mov_b32 s{sMK+1}, 3
v_cndmask_b32 v{vPA}, v5, v6, s[{sMK}:{sMK+1}]
s_mov_b32 s{sMK}, 0xf7
s_mov_b32 s{sMK+1}, 7
v_cndmask_b32 v{vPA2}, v5, v7, s[{sMK}:{sMK+1}]
"""
    return t
POLL = f"buffer_load_dword v{vPV_}, v{vPA}, {WS}, 0 offen sc1"
POLL2 = f"buffer_load_dword v{vPV_}, v{vPA2}, {WS}, 0 offen sc1"
def poll_test(lo, hi):
    return f"v_cmp_ne_u32 vcc, s{sTAG}, v{vPV_}\ns_mov_b32 s{sMK}, {lo:#x}\ns_mov_b32 s{sMK+1}, {hi:#x}\ns_and_b64 vcc, vcc, s[{sMK}:{sMK+1}]"
PFP = opt('pfp', 0); PFN = -(-66 // max(PFP, 1))
def pf_setup_text():
    return f"""s_lshr_b32 s{sT0}, s2, 3
s_lshl_b32 s{sT0}, s{sT0}, 3
s_add_u32 s{sT0}, s{sT0}, s{sW}
s_mul_i32 s{sT0}, s{sT0}, {66*128}
v_lshl_add_u32 v4, v0, 7, s{sT0}
v_mov_b32 v5, {DUMP}
v_cmp_gt_u32 vcc, {PFN}, v0
v_cndmask_b32 v{vPF}, v5, v4, vcc
""" + srd_s(rW2G, pW2, 1792 * 896)
def pf_item(): return f"buffer_load_dword v{vDUM}, v{vPF}, s[{rW2G}:{rW2G+3}], 0 offen\nv_add_u32 v{vPF}, {PFN*128}, v{vPF}"

def unit_dma(u):
    j, s = divmod(u, 2)
    out = []
    for jj in range(2):
        g = ""
        if jj == 0:
            g += f"s_mul_i32 s{sPD}, s{sTAB+j}, 28672\n"
            if s: g += f"s_add_u32 s{sPD}, s{sPD}, 14336\n"
        g = f"s_add_u32 m0, s{sM0P}, {unit_pos(u) + jj*1024}\n" + g
        g += f"buffer_load_dwordx4 v{vPD0+jj}, s[{rW2G}:{rW2G+3}], s{sPD} offen lds"
        out.append(g)
    return out
def p2_dma(pc): return [g for u in range(3 * pc, 3 * pc + 3) for g in unit_dma(u)]
def trpat(dst, tmp, hishift, rowshift=7):
    return f"""v_lshrrev_b32 v{dst}, 5, v0
v_lshlrev_b32 v{dst}, {hishift}, v{dst}
v_bfe_u32 v{tmp}, v0, 2, 2
v_add_u32 v{dst}, v{dst}, v{tmp}
v_lshlrev_b32 v{dst}, {rowshift}, v{dst}
v_bfe_u32 v{tmp}, v0, 4, 1
v_lshl_add_u32 v{dst}, v{tmp}, 5, v{dst}
v_and_b32 v{tmp}, 3, v0
v_lshl_add_u32 v{dst}, v{tmp}, 3, v{dst}
v_bfe_u32 v{tmp}, v0, 3, 1
v_lshl_add_u32 v{dst}, v{tmp}, 6, v{dst}
"""
def wa_text():
    return trpat(4, 5, 2) + f"""v_add_u32 v{vWA}, s{sM0P}, v4
v_xor_b32 v{vWA+1}, 64, v{vWA}
v_add_u32 v{vWA+2}, {SLOT}, v{vWA}
v_add_u32 v{vWA+3}, {SLOT}, v{vWA+1}
v_add_u32 v{vWA+4}, {2*SLOT}, v{vWA}
v_add_u32 v{vWA+5}, {2*SLOT}, v{vWA+1}
"""
def wreads(u, dst):
    sl, off = divmod(unit_pos(u), SLOT)
    return [(f"ds_read_b64_tr_b16 {vr(dst+4*c+2*rd,2)}, v{vWA+2*sl+c} offset:{off+rd*1024}", c) for c in range(2) for rd in range(2)]

vDX0, vDX1, vDW0 = 8, 9, 10
vAX = 13
vSEL = 28
vROW = 208; vRU = 212; vGR = 220; vRT = 224
vTG = 248; vZ0 = 249; vGA = 250

def prologue():
    e(f"s_load_dwordx16 s[4:19], s[0:1], 0\ns_load_dwordx4 s[20:23], s[0:1], 64\ns_load_dwordx2 s[24:25], s[0:1], 80")
    e(f"s_cmp_ge_u32 s2, 256\ns_cbranch_scc1 Lend")
    if opt('prio', 1): e("s_setprio 1")
    e(f"v_lshrrev_b32 v1, 6, v0\nv_and_b32 v0, 63, v0\nv_readfirstlane_b32 s{sW}, v1")
    e(f"s_and_b32 s{sXCD}, s2, 7\ns_lshr_b32 s{sT0}, s2, 3\ns_and_b32 s{sSUB}, s{sT0}, 3\ns_lshr_b32 s{sGSEL}, s{sT0}, 2")
    st = k.state()
    e(f"s_cmp_lg_u32 s{sW}, 7\ns_cbranch_scc1 Lnopf")
    e(f"s_getpc_b64 s[{sMK}:{sMK+1}]")
    k.label('Lpc')
    e(f"s_and_b32 s{sT0}, s{sT0}, 7\ns_lshl_b32 s{sT0}, s{sT0}, 13\nv_lshl_add_u32 v4, v0, 7, s{sT0}\nv_min_u32 v4, Lcode_end-Lpc-4, v4")
    e(f"global_load_dword v{vDUM}, v4, s[{sMK}:{sMK+1}]")
    k.label('Lnopf')
    k.set_state(st)
    e(f"s_cmp_ge_u32 s{sGSEL}, 6\ns_cbranch_scc1 Lkv")

def pre_common():
    e(f"s_lshr_b32 s{sT0}, s{sXCD}, 1\ns_lshl_b32 s{sT0}, s{sT0}, 2\ns_add_u32 s{sRB}, s{sT0}, s{sSUB}")
    e(f"s_lshl_b32 s{sT0}, s{sGSEL}, 1\ns_add_u32 s{sT0}, s{sT0}, s{sRB}")
    e(f"s_mul_i32 s{sT1}, s{sT0}, 37\ns_lshr_b32 s{sT1}, s{sT1}, 8\ns_mul_i32 s{sT1}, s{sT1}, 7\ns_sub_u32 s{sCC}, s{sT0}, s{sT1}\ns_mov_b32 s{sC0}, s{sCC}")
    e(f"""s_lshl_b32 s{sT0}, s{sRB}, 7
s_lshl_b32 s{sT1}, s{sW}, 4
s_add_u32 s{sT0}, s{sT0}, s{sT1}
v_lshrrev_b32 v4, 3, v0
v_add_u32 v4, s{sT0}, v4
v_mul_u32_u24 v4, 896, v4
v_and_b32 v5, 7, v0
v_lshrrev_b32 v6, 4, v0
v_xor_b32 v6, v5, v6
v_lshl_add_u32 v{vDX0}, v6, 4, v4
v_xor_b32 v6, 4, v6
v_lshl_add_u32 v{vDX1}, v6, 4, v4
v_add_u32 v{vDX1}, 7168, v{vDX1}
s_lshl_b32 s{sM0X}, s{sW}, 11
s_mov_b32 s{rX+2}, {2048*896}
s_mov_b32 s{rX+3}, 0x20000
s_lshl_b32 s{sMEAN}, s2, 3
s_add_u32 s{sMEAN}, s{sMEAN}, s{sW}
s_mul_i32 s{sT1}, s{sMEAN}, 896
v_lshlrev_b32 v{vL16}, 4, v0
v_add_u32 v7, s{sT1}, v{vL16}
v_mov_b32 v5, {DUMP}
v_cmp_gt_u32 vcc, 56, v0
v_cndmask_b32 v7, v5, v7, vcc
v_cndmask_b32 v{vRT+1}, 0, 1.0, vcc""")

def after_kernarg():
    e("s_waitcnt lgkmcnt(0)")
    e(f"s_load_dword s{sTAG}, s[{pWS}:{pWS+1}], {EPOCH}")
    e(f"s_mov_b32 s{rX}, s{pX}\ns_and_b32 s{rX+1}, s{pX+1}, 0xffff")
    return e(f"buffer_load_dwordx4 {vr(vROW,4)}, v7, s[{rX}:{rX+3}], 0 offen")

def loop_setup(xbias):
    e(f"""v_lshrrev_b32 v4, 2, v0
v_lshrrev_b32 v5, 4, v0
v_xor_b32 v4, v4, v5
v_and_b32 v4, 1, v4
v_and_b32 v5, 3, v0
v_or_b32 v4, v4, v5
v_cmp_eq_u32 vcc, 0, v4
v_mov_b32 v5, 0x3f803f80
v_and_b32 v4, 31, v0
v_cndmask_b32 v{vSEL}, 0, v5, vcc
v_cndmask_b32 v{vSEL+1}, 0, v5, vcc
v_cndmask_b32 v{vSEL+2}, 0, v5, vcc
v_cndmask_b32 v{vSEL+3}, 0, v5, vcc
s_add_u32 s{sT3}, s{sT3}, {xbias}
v_lshl_add_u32 v5, v4, 7, s{sT3}
v_bfe_u32 v4, v0, 1, 3
v_lshrrev_b32 v6, 5, v0
v_xor_b32 v4, v4, v6
v_lshl_add_u32 v{vAX}, v4, 4, v5""")
    for j in range(1, 4): e(f"v_xor_b32 v{vAX+j}, {32*j}, v{vAX}")
    e(f"""s_lshl_b32 s{sT0}, s{sMEAN}, 4
s_add_u32 s{sT0}, s{sT0}, {STATS}
v_mov_b32 v5, {DUMP}
v_mov_b32 v6, s{sT0}
v_cmp_eq_u32 vcc, 63, v0
v_cndmask_b32 v{vRT+2}, v5, v6, vcc""")
    e(srd_s(rWS, pWS, WS_USED))

def misc_text():
    return f"""v_mov_b32 v5, {DUMP}
v_lshlrev_b32 v4, 2, v0
v_cmp_gt_u32 vcc, {1 if 'flag1' in DBG else 32}, v0
v_cndmask_b32 v{vZ0}, v5, v4, vcc
s_mov_b32 s{sHALF}, 0
s_mov_b32 s{sHALF+1}, -1
s_mov_b32 s{sEPS}, {f32(1e-6)}
s_mov_b32 s{sEPS+1}, {f32(1e-6)}
s_mov_b32 s{sCT}, s{sGSEL}
s_lshl_b32 s{sTB}, s{sXCD}, 2
s_add_u32 s{sTB}, s{sTB}, s{sSUB}
"""

def wave_sum(r):
    return [f"v_add_f32_dpp v{r}, v{r}, v{r} {m} bank_mask:0xf" for m in
            ("quad_perm:[1,0,3,2] row_mask:0xf", "quad_perm:[2,3,0,1] row_mask:0xf", "row_half_mirror row_mask:0xf", "row_mirror row_mask:0xf",
             "row_bcast:15 row_mask:0xa", "row_bcast:31 row_mask:0xc")]

def mall_prefetch():
    if opt('mpf', 1) == 0: return
    st = k.state()
    L1, L2 = k.newlabel('Lpf'), k.newlabel('Lpf')
    e(f"s_cmp_lg_u32 s{sW}, 6\ns_cbranch_scc1 {L1}")
    e(f"s_mul_i32 s{sT0}, s2, {49*128}\nv_min_u32 v4, 48, v0\nv_lshl_add_u32 v4, v4, 7, s{sT0}\nglobal_load_dword v{vDUM}, v4, s[{pW2}:{pW2+1}]")
    k.label(L1)
    e(f"s_cmp_lg_u32 s{sW}, 5\ns_cbranch_scc1 {L2}")
    e(f"s_mul_i32 s{sT0}, s2, {13*128}\nv_min_u32 v4, 12, v0\nv_lshl_add_u32 v4, v4, 7, s{sT0}\nv_min_u32 v4, {448*896-4}, v4\nglobal_load_dword v{vDUM}, v4, s[{pWO}:{pWO+1}]")
    e(f"v_min_u32 v4, 6, v0\nv_lshlrev_b32 v4, 7, v4\nglobal_load_dword v{vDUM}, v4, s[{pB2}:{pB2+1}]")
    k.label(L2)
    k.set_state(st)

def rowstat(rtok):
    a = vRT
    k.wait(vm=rtok)
    it = []
    for d in range(4):
        it += [f"v_lshlrev_b32 v{vRU+2*d}, 16, v{vROW+d}", f"v_and_b32 v{vRU+2*d+1}, 0xffff0000, v{vROW+d}"]
    it += [f"v_pk_add_f32 {vr(vROW,2)}, {vr(vRU,2)}, {vr(vRU+2,2)}", f"v_pk_add_f32 {vr(vROW+2,2)}, {vr(vRU+4,2)}, {vr(vRU+6,2)}",
           f"v_pk_add_f32 {vr(vROW,2)}, {vr(vROW,2)}, {vr(vROW+2,2)}", f"v_add_f32 v{a}, v{vROW}, v{vROW+1}"]
    it += wave_sum(a)
    it += [f"v_mul_f32 v{vGR}, {f32(1/448)}, v{a}", f"v_readlane_b32 s{sMEAN}, v{vGR}, 63", f"v_mul_f32 v{a}, s{sMEAN}, v{vRT+1}"]
    for d in range(4): it.append(f"v_pk_add_f32 {vr(vRU+2*d,2)}, {vr(vRU+2*d,2)}, {vr(a,2)} op_sel_hi:[1,0] neg_lo:[0,1] neg_hi:[0,1]")
    it.append(f"v_pk_mul_f32 {vr(vROW,2)}, {vr(vRU,2)}, {vr(vRU,2)}")
    for d in range(1, 4): it.append(f"v_pk_fma_f32 {vr(vROW,2)}, {vr(vRU+2*d,2)}, {vr(vRU+2*d,2)}, {vr(vROW,2)}")
    it.append(f"v_add_f32 v{a}, v{vROW}, v{vROW+1}")
    it += wave_sum(a)
    it.append(f"v_mul_f32 v{vGR+1}, {f32(1/448)}, v{a}")
    for x in it: e(x)
    e(f"s_waitcnt lgkmcnt(0)\ns_mul_i32 s{sTAG}, s{sTAG}, 1664525\ns_add_u32 s{sTAG}, s{sTAG}, 1013904223")
    e(f"v_mov_b32 v{vTG}, s{sTAG}\nv_mov_b32 v{vGR+2}, s{sTAG}\nv_mov_b32 v{vGR+3}, s{sTAG}")
    e(f"buffer_store_dwordx4 {vr(vGR,4)}, v{vRT+2}, {WS}, 0 offen sc1")

def gelu_pk(acc, out, kp, sp, tmp):
    o = []
    for h in range(2):
        a = acc + 8 * h; t = tmp + 8 * h
        for p in range(4): o.append(f"v_pk_mul_f32 {vr(t+2*p,2)}, {vr(a+2*p,2)}, {vr(a+2*p,2)}")
        for p in range(4): o.append(f"v_pk_fma_f32 {vr(t+2*p,2)}, {vr(t+2*p,2)}, {vr(kp+2,2)}, {vr(kp,2)} op_sel_hi:[1,0,0]")
        for p in range(4): o.append(f"v_pk_mul_f32 {vr(t+2*p,2)}, {vr(t+2*p,2)}, {vr(a+2*p,2)}")
        for p in range(8): o.append(f"v_exp_f32 v{t+p}, v{t+p}")
        for p in range(4): o.append(f"v_pk_fma_f32 {vr(t+2*p,2)}, {vr(t+2*p,2)}, {vr(sp,2)}, {vr(sp,2)} op_sel_hi:[1,0,0]")
        for p in range(8): o.append(f"v_rcp_f32 v{t+p}, v{t+p}")
        for p in range(4): o.append(f"v_pk_mul_f32 {vr(t+2*p,2)}, {vr(t+2*p,2)}, {vr(a+2*p,2)}")
        for p in range(4): o.append(f"v_cvt_pk_bf16_f32 v{out+4*h+p}, v{t+2*p}, v{t+2*p+1}")
        o.append(('st', h))
    return o
def phi_pk(acc, out, rfun, rlfun, sel, tmp):
    o = []
    for h in range(2):
        a = acc + 8 * h; t = tmp + 8 * h
        for p in range(4): o.append(f"v_pk_mul_f32 {vr(t+2*p,2)}, {vr(a+2*p,2)}, {rlfun(4*h+p)} op_sel_hi:[1,{sel}]")
        for p in range(4): o.append(f"v_pk_fma_f32 {vr(a+2*p,2)}, {vr(a+2*p,2)}, {rfun(4*h+p)}, {sr(sEPS,2)} op_sel_hi:[1,{sel},0]")
        for p in range(8): o.append(f"v_exp_f32 v{t+p}, v{t+p} clamp")
        for p in range(8): o.append(f"v_max_f32 v{a+p}, s{sEPS}, v{a+p}")
        for p in range(4): o.append(f"v_pk_add_f32 {vr(t+2*p,2)}, {vr(t+2*p,2)}, {vr(a+2*p,2)}")
        for p in range(4): o.append(f"v_cvt_pk_bf16_f32 v{out+4*h+p}, v{t+2*p}, v{t+2*p+1}")
        o.append(('st', h))
    return o
def skew(chains):
    o = []; L = len(chains[0]); n = len(chains)
    for t in range(L + 2 * n):
        for i, c in enumerate(chains):
            s = t - 2 * (i // 2)
            if 0 <= s < len(c) and c[s] is not None: o.append(c[s])
    return o
def gelu_sc(acc, out, kp, sp, tmp, half):
    ch = []
    for p in range(8):
        a = acc + 8 * half + p; t = tmp + p
        c = [f"v_mul_f32 v{t}, v{a}, v{a}", f"v_fma_f32 v{t}, v{t}, v{kp+2}, v{kp}", f"v_mul_f32 v{t}, v{t}, v{a}", f"v_exp_f32 v{t}, v{t}",
             f"v_fma_f32 v{t}, v{t}, v{sp}, v{sp}", f"v_rcp_f32 v{t}, v{t}", f"v_mul_f32 v{t}, v{t}, v{a}",
             f"v_cvt_pk_bf16_f32 v{out+4*half+p//2}, v{t-1}, v{t}" if p & 1 else None]
        ch.append(c)
    return skew(ch)
def phi_sc(acc, out, r, rl, tmp, half):
    ch = []
    for p in range(8):
        a = acc + 8 * half + p; t = tmp + p
        c = [f"v_mul_f32 v{t}, v{a}, v{rl}", f"v_fma_f32 v{a}, v{a}, v{r}, s{sEPS}", f"v_exp_f32 v{t}, v{t} clamp", f"v_max_f32 v{a}, s{sEPS}, v{a}",
             f"v_add_f32 v{t}, v{t}, v{a}", f"v_cvt_pk_bf16_f32 v{out+4*half+p//2}, v{t-1}, v{t}" if p & 1 else None]
        ch.append(c)
    return skew(ch)

vAW = 17
vBIAS = 25
vXB = 32; vWB = 48; vACC = 72; vCS = 136
vAX2 = 120
vSG = 168; vCG = 172; vGA2 = 21; vCP = 22

def p1_dma(kind, i):
    slot = (i % 3) * SLOT
    out = [f"s_add_u32 m0, s{sM0X}, {slot}\ns_lshl_b32 s{sSOX}, s{sCC}, 7\nbuffer_load_dwordx4 v{vDX0}, s[{rX}:{rX+3}], s{sSOX} offen lds"]
    if kind == 'M':
        out.append(f"s_add_u32 m0, s{sM0X}, {slot + 1024}\ns_mul_i32 s{sSO0}, s{sCC}, s{sPSTEP0}\nbuffer_load_dwordx4 v{vDX1}, s[{rX}:{rX+3}], s{sSOX} offen lds")
        for lc in range(3):
            nx = f"s_mul_i32 s{sSO0+lc+1}, s{sCC}, s{sPSTEP0+lc+1}" if lc < 2 else f"s_add_u32 s{sCC}, s{sCC}, 1"
            out.append(f"s_add_u32 m0, s{sM0W}, {slot + lc*8192}\n{nx}\n"
                       f"buffer_load_dwordx4 v{vDW0+lc}, s[{rW0+4*lc}:{rW0+4*lc+3}], s{sSO0+lc} offen lds")
    else:
        out.append(f"s_add_u32 m0, s{sM0X}, {slot + 1024}\ns_mul_i32 s{sSO0}, s{sCC}, {64*2688}\nbuffer_load_dwordx4 v{vDX1}, s[{rX}:{rX+3}], s{sSOX} offen lds")
        nxs = [f"s_add_u32 s{sSO1}, s{sSO0}, 896", "s_nop 0", "s_nop 0", f"s_add_u32 s{sCC}, s{sCC}, 1"]
        for kv in range(2):
            for jj in range(2):
                out.append(f"s_add_u32 m0, s{sM0W}, {slot + kv*16384 + jj*1024}\n{nxs[2*kv+jj]}\n"
                           f"buffer_load_dwordx4 v{vDW0+jj}, s[{rW0}:{rW0+3}], s{sSO0+kv} offen lds")
    out[-1] += f"\ns_cmp_eq_u32 s{sCC}, 7\ns_cselect_b32 s{sCC}, 0, s{sCC}"
    return out

def cs_addr_text(slot_s, pub_s):
    return f"""s_lshl_b32 s{sT0}, s{slot_s}, 12
s_add_u32 s{sT0}, s{sT0}, {CSG}
v_add_u32 v{vGA2}, s{sT0}, v{vL16}
s_lshl_b32 s{sT1}, s{sC0}, 9
v_add_u32 v4, s{sT1}, v{vGA2}
v_mov_b32 v5, {DUMP}
v_cndmask_b32 v4, v4, v5, {HALF}
s_cmp_lt_u32 s{sRB}, 7
s_cselect_b32 s{sT1}, s{pub_s}, 1
s_cmp_eq_u32 s{sT1}, 0
s_cselect_b32 s{sT1}, 0, {DUMP}
v_add_u32 v{vCP}, s{sT1}, v4
"""
def cs_pub(nt, vCS=136):
    return [f"v_mov_b32 v{vRU+t}, v{vCS+4*t}" for t in range(nt)] + [f"v_mov_b32 v{vRU+t}, v{vTG}" for t in range(nt, 4)] + \
           [f"buffer_store_dwordx4 {vr(vRU,4)}, v{vCP}, {WS}, 0 offen sc1"]
def gran_items(vSG=168, vCG=172):
    GL = [f"buffer_load_dwordx4 {vr(vSG,4)}, v{vGA}, {WS}, 0 offen sc1"] + \
         [f"buffer_load_dwordx4 {vr(vCG+4*q,4)}, v{vGA2}, {WS}, 0 offen offset:{1024*q} sc1" for q in range(4)]
    G = {}
    def last_g(): G['g'] = e(GL[-1])
    a_ = vSG + 2
    gtest = f"""v_cndmask_b32 v{vCG+15}, v{vCG+15}, v{vTG}, {HALF}
v_xor_b32 v{a_}, v{vTG}, v{vSG+3}
v_bitop3_b32 v{a_}, v{a_}, v{vCG+3}, v{vTG} bitop3:0xf6
v_bitop3_b32 v{a_}, v{a_}, v{vCG+7}, v{vTG} bitop3:0xf6
v_bitop3_b32 v{a_}, v{a_}, v{vCG+11}, v{vTG} bitop3:0xf6
v_bitop3_b32 v{a_}, v{a_}, v{vCG+15}, v{vTG} bitop3:0xf6
v_cmp_ne_u32 vcc, 0, v{a_}
s_cmp_lg_u64 vcc, 0"""
    def gcheck():
        k.wait(vm=G['g']); verify("\n".join(GL), gtest, 4)
    return GL[:-1] + [last_g], gcheck
def cs_sum(nt, dst, vCG=172):
    it = []
    for t in range(nt): it.append(f"v_cndmask_b32 v{vCG+12+t}, v{vCG+12+t}, 0, {HALF}")
    for t in range(nt): it += [f"v_add_f32 v{vCG+t}, v{vCG+t}, v{vCG+4+t}", f"v_add_f32 v{vCG+8+t}, v{vCG+8+t}, v{vCG+12+t}"]
    for t in range(nt): it.append(f"v_add_f32 v{vCG+t}, v{vCG+t}, v{vCG+8+t}")
    for t in range(nt): it.append(f"v_mov_b32 v{vCG+4+t}, v{vCG+t}")
    for t in range(nt): it.append(f"v_permlane32_swap_b32 v{vCG+t}, v{vCG+4+t}")
    for t in range(nt): it.append(f"v_add_f32 v{dst+t}, v{vCG+t}, v{vCG+4+t}")
    return it

def main_loop(kind, D, per, ax2):
    M = kind == 'M'
    nt = 3 if M else 4
    xbuf = (lambda n, u=0: vXB + 4 * (n & 1)) if M else (lambda n, u=0: vXB + 8 * (n & 1) + 4 * u)
    wbuf = (lambda n, t: vWB + 12 * (n & 1) + 4 * t) if M else (lambda n, t: vWB + 8 * (n & 1) + 4 * t)
    def reads(n):
        i, j = divmod(n, 4); sl = i % 3
        xa = (ax2 if sl == 2 else vAX) + j; xo = SLOT if sl == 1 else 0
        o = [(f"ds_read_b128 {vr(xbuf(n,0),4)}, v{xa} offset:{xo}", 'x0')]
        if M:
            for t in range(3):
                a = vAW + (t & 1) + (2 if sl == 2 else 0); off = xo + j * 2048 + (8192 if t == 2 else 0)
                for rd in range(2): o.append((f"ds_read_b64_tr_b16 {vr(wbuf(n,t)+2*rd,2)}, v{a} offset:{off + rd*512}", f'w{t}'))
        else:
            for kv in range(2):
                for rd in range(2): o.append((f"ds_read_b64_tr_b16 {vr(wbuf(n,kv)+2*rd,2)}, v{vAW+sl} offset:{kv*16384 + j*4096 + rd*1024}", f'w{kv}'))
            o.append((f"ds_read_b128 {vr(xbuf(n,1),4)}, v{xa} offset:{xo+4096}", 'x1'))
        return o
    k.wait(vm=D[0]); e("s_barrier")
    stamp(1)
    tok = {}
    for txt, tag in reads(0): tok[tag] = e(txt)
    pend = p1_dma(kind, 2); pend_i = 2
    for n in range(28):
        i, j = divmod(n, 4)
        cur = tok; tok = {}
        if j == 3:
            e("s_waitcnt lgkmcnt(0)")
            if i < 6: k.wait(vm=D[i + 1])
            e("s_barrier")
            stamp(2 + i, chunk=True)
            pend_i = i + 3
            pend = p1_dma(kind, i + 3) if i + 3 < 7 else p2_dma(i + 3 - 7) if i < 6 else []
        mf = []
        for t in range(nt):
            acc = vr(vACC + 16 * t, 16); cin = '0' if n == 0 else acc
            if M: mf.append((f"v_mfma_f32_32x32x16_bf16 {acc}, {vr(wbuf(n,t),4)}, {vr(xbuf(n),4)}, {cin}", ['x0', f'w{t}']))
            else:
                u, kv = t >> 1, t & 1
                mf.append((f"v_mfma_f32_32x32x16_bf16 {acc}, {vr(xbuf(n,u),4)}, {vr(wbuf(n,kv),4)}, {cin}", [f'x{u}', f'w{kv}']))
        if i == 0:
            for t in range(3 if M else 2):
                acc = vr(vCS + 4 * t, 4)
                mf.append((f"v_mfma_f32_16x16x32_bf16 {acc}, {vr(vSEL,4)}, {vr(wbuf(n,t),4)}, {'0' if n == 0 else acc}", [f'w{t}']))
        rd = reads(n + 1) if n < 27 else []
        left = {3: 3, 0: 2, 1: 1, 2: 1}[j] if 3 <= n < 19 else {3: 4, 0: 3, 1: 2, 2: 1}[j] if n >= 19 else {0: 2, 1: 1, 2: 1}[j]
        nd = -(-len(pend) // left)
        dmm = pend[:nd]; pend = pend[nd:]
        other = spread([('d', x) for x in dmm] or [('n', None)], [('f', x) for x in per[n]])
        other = [f for f in other if f[0] != 'n']
        seq = [('m', mf[0])] + [('r', x) for x in rd] + spread([('m', x) for x in mf[1:]], other)
        first = True
        for kind_, x in seq:
            if kind_ == 'm':
                need = [cur.get(tg) for tg in (cur if first else x[1]) if cur.get(tg) in k.lg]
                if need: k.wait(lg=max(need))
                first = False
                e(x[0])
            elif kind_ == 'r': tok[x[1]] = e(x[0])
            elif kind_ == 'd': D[pend_i] = e(x)
            else: emit_item(x)

FLAG = f"buffer_store_dword v{vTG}, v{vZ0}, {WS}, s{sFLO} offen sc1\ns_add_u32 s{sFLO}, s{sFLO}, 128"

XP = [65536, 81920, 114688]
WP = [[49152, 57344], [98304, 106496], [131072, 139264]]
L2P = [SCR] + [8192 * i for i in range(6)]
def ring(c): return (c + 2) % 3
def phase1_M():
    mg = sMG
    vX = 96; AC = [64, 80]; mCS = 48; vK = 48; vBA = 56; vAA = [228, 232, 60]; sm = 26
    mSG = 208; mCG = 212; R = 236; vC = 244
    WS3 = [32, 40, 240]
    T = {}
    def tokset(key, text):
        def f(): T[key] = e(text)
        return f
    def dma_c(c):
        p = ring(c)
        return [f"s_add_u32 m0, s{sM0X}, {XP[p]}\ns_lshl_b32 s{sSOX}, s{sCC}, 7\nbuffer_load_dwordx4 v{vDX0}, s[{rX}:{rX+3}], s{sSOX} offen lds",
                f"s_add_u32 m0, s{sM0X}, {XP[p]+1024}\ns_mul_i32 s{sSO0}, s{sCC}, s{sPSTEP0}\nbuffer_load_dwordx4 v{vDX1}, s[{rX}:{rX+3}], s{sSOX} offen lds",
                f"s_add_u32 m0, s{sM0W}, {WP[p][0]}\ns_mul_i32 s{sSO1}, s{sCC}, s{sPSTEP0+1}\nbuffer_load_dwordx4 v{vDW0}, s[{rW0}:{rW0+3}], s{sSO0} offen lds",
                f"s_add_u32 m0, s{sM0W}, {WP[p][1]}\ns_add_u32 s{sCC}, s{sCC}, 1\nbuffer_load_dwordx4 v{vDW0+1}, s[{rW1}:{rW1+3}], s{sSO1} offen lds\n"
                f"s_cmp_eq_u32 s{sCC}, 7\ns_cselect_b32 s{sCC}, 0, s{sCC}"]
    def dma_2(c):
        return (f"s_add_u32 m0, s{sM0W}, {L2P[c]}\ns_nop 0\nbuffer_load_dwordx4 v{vDW0+2}, s[{rW2}:{rW2+3}], s{sSO2} offen lds\n"
                f"s_add_u32 s{sSO2}, s{sSO2}, s{sPSTEP0+2}\ns_cmp_eq_u32 s{sSO2}, s{rW2+2}\ns_cselect_b32 s{sSO2}, 0, s{sSO2}")
    def wf(a, j, dst): return [f"ds_read_b64_tr_b16 {vr(dst+2*rd,2)}, v{vAW + (a >> 16)} offset:{(a & 0xffff) + j*2048 + rd*512}" for rd in range(2)]
    pre_common()
    e(f"s_and_b32 s{sT0}, s{sXCD}, 1\ns_mul_i32 s{sT0}, s{sT0}, 6\ns_add_u32 s{mg}, s{sT0}, s{sGSEL}")
    e(f"""v_lshrrev_b32 v4, 3, v0
v_lshl_add_u32 v4, s{sW}, 3, v4
v_bfe_u32 v5, v0, 4, 1
v_lshlrev_b32 v5, 2, v5
v_and_b32 v6, 7, v0
v_xor_b32 v5, v5, v6
v_lshlrev_b32 v5, 4, v5
s_lshl_b32 s{sM0W}, s{sW}, 10
s_mul_i32 s{sT3}, s{mg}, 3""")
    for lc in range(3):
        r = rW0 + 4 * lc
        e(f"""s_add_u32 s{sT0}, s{sT3}, {lc}
s_sub_u32 s{sT1}, s{sT0}, 28
s_cmp_lt_u32 s{sT0}, 35
s_cselect_b32 s{r+2}, {448*2688}, 0
s_cmp_lt_u32 s{sT0}, 28
s_cselect_b32 s{r+2}, {448*3584}, s{r+2}
s_cselect_b32 s{sT0}, s{sT0}, s{sT1}
s_movk_i32 s{sT1}, 2688
s_cselect_b32 s{sT1}, 3584, s{sT1}
s_lshl_b32 s{sT0}, s{sT0}, 7
s_lshl_b32 s{sPSTEP0+lc}, s{sT1}, 6
v_mad_u32_u24 v{vDW0+lc}, v4, s{sT1}, v5
v_add_u32 v{vDW0+lc}, s{sT0}, v{vDW0+lc}
s_mov_b32 s{r+3}, 0x20000""")
    e(f"s_mul_i32 s{sSO2}, s{sC0}, s{sPSTEP0+2}")
    rtok = after_kernarg()
    stamp(0)
    e(f"s_and_b32 s{pW1+1}, s{pW1+1}, 0xffff\ns_and_b32 s{pWQKV+1}, s{pWQKV+1}, 0xffff")
    for lc in range(3):
        r = rW0 + 4 * lc
        e(f"s_cmp_eq_u32 s{sPSTEP0+lc}, {64*3584}\ns_cselect_b32 s{r}, s{pW1}, s{pWQKV}\ns_cselect_b32 s{r+1}, s{pW1+1}, s{pWQKV+1}")
    for g in dma_c(0): T[0] = e(g)
    e(f"s_and_b32 s{sLO}, s{sW}, 3\ns_lshr_b32 s{sHI}, s{sW}, 2\ns_lshl_b32 s{sT3}, s{sLO}, 12")
    loop_setup(65536)
    e(trpat(4, 5, 3) + f"s_lshl_b32 s{sT0}, s{sHI}, 6\nv_xor_b32 v{vAW}, s{sT0}, v4\nv_add_u32 v{vAW+1}, 65536, v{vAW}\nv_add_u32 v{vAW+2}, 131072, v{vAW}")
    e(dma_2(0))
    for g in dma_c(1): T[1] = e(g)
    mall_prefetch()
    rowstat(rtok)
    m, var = mSG, mSG + 1
    r1, w_, rm = R + 5, R + 6, R + 7
    setup1 = misc_text() + f"s_lshl_b32 s{sT4}, s{mg}, 1\ns_add_u32 s{sT4}, s{sT4}, s{sHI}\ns_mul_i32 s{sTILE0}, s{mg}, 6\ns_add_u32 s{sTILE0}, s{sTILE0}, s{sHI}\n" + \
        cs_addr_text(sT4, sLO) + srd_s(rMISC, pB1, 3584) + f"s_lshl_b32 s{sT0}, s{sTILE0}, 6\nv_and_b32 v4, 31, v0\nv_lshl_add_u32 v{vBIAS+2}, v4, 1, s{sT0}\n"
    bias = [f"buffer_load_ushort v{vBIAS+t}, v{vBIAS+2}, s[{rMISC}:{rMISC+3}], 0 offen offset:{128*t}" for t in range(3)]
    setup2 = f"""s_lshl_b32 s{sT0}, s{sRB}, 2
s_add_u32 s{sT0}, s{sT0}, s{sLO}
s_lshl_b32 s{sT1}, s{sT0}, 9
s_add_u32 s{sT1}, s{sT1}, {STATS}
v_and_b32 v4, 31, v0
v_lshl_add_u32 v{vGA}, v4, 4, s{sT1}
s_lshl_b32 s{sFLO}, s{sT0}, 13
s_mul_i32 s{sT0}, s{sT0}, {140*1024}
s_lshl_b32 s{sT1}, s{sTILE0}, 11
s_add_u32 s{sHQO}, s{sT0}, s{sT1}
s_add_u32 s{sHQO}, s{sHQO}, {HQ}
s_lshl_b32 s{sT1}, s{sT4}, 7
s_add_u32 s{sFLO}, s{sFLO}, s{sT1}
s_add_u32 s{sFLO}, s{sFLO}, {FLH}
""" + p2_setup_text()
    early = f"v_mov_b32 v{vBA+3}, 0\n" + "".join(f"v_lshlrev_b32 v{vAA[t]+1}, 16, v{vBIAS+t}\nv_mov_b32 v{vAA[t]+2}, v{vBIAS+t}\nv_mov_b32 v{vAA[t]+3}, 0\n" for t in range(3))
    gl, gcheck = gran_items(mSG, mCG)
    C3 = [mCG + 8, mCG + 9, mCG + 10]
    aug = [gcheck] + lines(f"""v_add_f32 v{vK}, {f32(EPS)}, v{var}
v_mov_b32 v{vK+1}, {f32(EPS)}
v_fma_f32 v{vK+1}, v{vK+1}, v{vK}, v{var}
v_rsq_f32 v{vK+4}, v{vK}
v_rsq_f32 v{vK+3}, v{vK+1}""") + cs_sum(3, mCG + 8, mCG) + lines(f"""v_mul_f32 v{sm}, v{vK+1}, v{vK+3}
v_cvt_pk_bf16_f32 v{R}, -v{m}, v{sm}
v_lshlrev_b32 v{R+1}, 16, v{R}
v_and_b32 v{R+2}, 0xffff0000, v{R}
v_sub_f32 v{R+1}, -v{m}, v{R+1}
v_sub_f32 v{R+2}, v{sm}, v{R+2}
v_cvt_pk_bf16_f32 v{R+3}, -v{m}, v{R+1}
v_cvt_pk_bf16_f32 v{R+2}, v{R+2}, 0
v_cndmask_b32 v{vBA}, v{R+3}, 0, {HALF}
v_cndmask_b32 v{vBA+1}, v{R}, 0, {HALF}
v_cndmask_b32 v{vBA+2}, v{R+2}, 0, {HALF}""")
    for t in range(3):
        c = C3[t]; a = vAA[t]
        aug += lines(f"""v_cvt_pk_bf16_f32 v{a}, v{c}, v{c}
v_and_b32 v{R}, 0xffff0000, v{a}
v_sub_f32 v{R}, v{c}, v{R}
v_cvt_pk_bf16_f32 v{a+1}, v{R}, v{a+1}""")
    post = lines(f"""v_mul_f32 v{vK}, {f32(GC0)}, v{vK+3}
v_mul_f32 v{vK+5}, v{vK+3}, v{vK+3}
v_mul_f32 v{vK+5}, {f32(GC1)}, v{vK+5}
v_mul_f32 v{vK+2}, v{vK+5}, v{vK}
v_mul_f32 v{vK+6}, {f32(LOG2E)}, v{vK+4}""")
    per = {n: [] for n in range(28)}
    dmx = {n: [] for n in range(28)}
    distribute(per, 0, 7, atoms(setup1)); per[9] += cs_pub(3, mCS) + bias
    distribute(per, 10, 17, atoms(setup2)); distribute(per, 19, 20, atoms(early))
    for st_ in [5, 9, 13, 17, 21][:PFP]: per[st_].append(pf_item())
    G0 = opt('gstep', 18)
    distribute(per, G0, G0 + 1, gl)
    distribute(per, 23, 27, aug)
    distribute(dmx, 0, 1, [tokset(2, g) for g in dma_c(2)])
    for c in range(3, 7): distribute(dmx, 4 * (c - 3) + 2, 4 * (c - 3) + 4, [tokset(c, g) for g in dma_c(c)])
    for c, st_ in zip(range(1, 7), (12, 16, 17, 20, 21, 21)): dmx[st_].append(tokset('l2', dma_2(c)))
    distribute(dmx, 22, 27, [tokset('P0', g) for g in p2_dma(0)])
    def reads(n):
        c, j = divmod(n, 4); p = ring(c); ws = WS3[n % 3]
        return [f"ds_read_b128 {vr(vX+4*n,4)}, v{vAX+j} offset:{XP[p]-65536}"] + wf(WP[p][0], j, ws) + wf(WP[p][1], j, ws + 4)
    k.wait(vm=T[0]); e("s_barrier")
    stamp(1)
    RT = {}
    MP = True
    for n in range(2):
        for x in reads(n): RT[n] = e(x)
    CT = {}
    for n in range(28):
        c, j = divmod(n, 4); ws = WS3[n % 3]
        if j == 2:
            e("s_waitcnt lgkmcnt(0)")
            if c < 6: k.wait(vm=T[c + 1])
            e("s_barrier")
            stamp(2 + c, chunk=True)
        mf = [f"v_mfma_f32_32x32x16_bf16 {vr(AC[t],16)}, {vr(ws+4*t,4)}, {vr(vX+4*n,4)}, {'0' if n == 0 else vr(AC[t],16)}" for t in range(2)]
        if c == 0: mf += [f"v_mfma_f32_16x16x32_bf16 {vr(mCS+4*t,4)}, {vr(vSEL,4)}, {vr(ws+4*t,4)}, {'0' if n == 0 else vr(mCS+4*t,4)}" for t in range(2)]
        rd = [tokset(('r', n + 2), x) for x in reads(n + 2)] if n + 2 < 28 else []
        if 2 <= n < 6: rd += [tokset(('c', n - 2), x) for x in wf(L2P[0], n - 2, [60, 228, 232, 236][n - 2])]
        if 4 <= n < 8:
            def csm(q=n - 4):
                k.wait(lg=T[('c', q)])
                e(f"v_mfma_f32_16x16x32_bf16 {vr(mCS+8,4)}, {vr(vSEL,4)}, {vr([60, 228, 232, 236][q],4)}, {'0' if q == 0 else vr(mCS+8,4)}")
            mf.append(csm)
        k.wait(lg=RT[n] if n < 2 else T[('r', n)])
        other = spread(dmx[n], per[n]) if dmx[n] else per[n]
        for x in [mf[0]] + rd + spread(mf[1:], other): emit_item(x)
    for x in spread([f"v_mfma_f32_32x32x16_bf16 {vr(AC[t],16)}, {vr(vAA[t],4)}, {vr(vBA,4)}, {vr(AC[t],16)}" for t in range(2)], post): e(x)
    stamp(2); stamp(9, chunk=True)
    def p1dma(cond, lab):
        st_ = k.state()
        e(f"s_cmp_{cond}_u32 s{sHI}, 0\ns_cbranch_scc1 {lab}")
        for g in p2_dma(1): e(g)
        k.label(lab); k.set_state(st_)
    p1dma('eq', 'Lp1a')
    vT = 32
    def tile(acc, out, kind, last=False):
        ep = gelu_pk(acc, out, vK, sm, vT) if kind == 'G' else phi_pk(acc, out, lambda p: vr(vK + 4, 2), lambda p: vr(vK + 6, 2), 0, vT)
        for x in ep:
            if isinstance(x, tuple):
                h = x[1]
                if last and h == 0: k.wait(vm=T['poll'])
                T['st'] = e(f"buffer_store_dwordx4 {vr(out+4*h,4)}, v{vL16}, {WS}, s{sHQO} offen offset:{1024*h} sc1")
                if h: e(f"s_add_u32 s{sHQO}, s{sHQO}, 4096")
            else: e(x)
    e(f"s_nop 3\ns_cmp_ge_u32 s{mg}, 10\ns_cbranch_scc1 Lphi0")
    st0 = k.state()
    tile(AC[0], 208, 'G')
    e(f"s_cmp_eq_u32 s{mg}, 9\ns_cbranch_scc1 Lphi1")
    tile(AC[1], 216, 'G')
    k.label('Lepi1')
    def phis():
        k.label('Lphi0'); k.set_state(st0); e("s_nop 7")
        tile(AC[0], 208, 'P')
        k.label('Lphi1')
        tile(AC[1], 216, 'P')
        e("s_branch Lepi1")
    T0 = dict(T)
    outline.append(phis)
    stamp(3); stamp(12, 4)
    p1dma('lg', 'Lp1b')
    k.wait(vm=T0['l2'])
    e("s_barrier")
    stamp(10, chunk=True)
    def r2(n): return wf(L2P[n >> 2], n & 3, 32 + 4 * (n & 3))
    W = {}
    for n in range(3):
        for x in r2(n): W[n] = e(x)
    per = {n: [] for n in range(28)}
    FS = opt('fstep', 12)
    distribute(per, 0, FS - 1, atoms(poll_addr_text() + wa_text(), 3))
    per[FS] = ["s_waitcnt vmcnt(0)", f"buffer_store_dword v{vTG}, v{vZ0}, {WS}, s{sFLO} offen sc1\ns_add_u32 s{sFLO}, s{sFLO}, 4096"]
    pre = [tokset('pre', x) for u in range(5) for x, _ in wreads(u, vWP + 8 * u)]
    distribute(per, FS + 1, FS + 4, pre)
    distribute(per, FS + 6, 27, [lambda: k.wait(lg=T['pre'])] + [g for u in range(9, 14) for g in unit_dma(u)])
    for n in range(28):
        k.wait(lg=W[n])
        e(f"v_mfma_f32_32x32x16_bf16 {vr(AC[0],16)}, {vr(32+4*(n&3),4)}, {vr(vX+4*n,4)}, {'0' if n == 0 else vr(AC[0],16)}")
        if n + 3 < 28:
            for x in r2(n + 3): W[n + 3] = e(x)
        for x in per[n]: emit_item(x)
    e(f"v_mfma_f32_32x32x16_bf16 {vr(AC[0],16)}, {vr(vAA[2],4)}, {vr(vBA,4)}, {vr(AC[0],16)}")
    e("s_barrier")
    stamp(11, chunk=True)
    T['poll'] = e(POLL)
    st_ = k.state()
    e(f"s_mov_b32 s{sC0}, s{sHI}\ns_cmp_eq_u32 s{sHI}, 0\ns_cbranch_scc1 Lp2a")
    for g in p2_dma(2): e(g)
    k.label('Lp2a'); k.set_state(st_)
    e(f"s_cmp_eq_u32 s{mg}, 11\ns_cselect_b32 s{sHQO}, {DUMP}, s{sHQO}\ns_nop 7\ns_cmp_ge_u32 s{mg}, 9\ns_cbranch_scc1 Lphi2")
    st1 = k.state()
    tile(AC[0], 80, 'G', True)
    def phi2():
        k.label('Lphi2'); k.set_state(st1)
        tile(AC[0], 80, 'P', True)
        e("s_branch Lp2")
    outline.append(phi2)
    stamp(12, chunk=True)

def phase1_KV():
    g = sMG
    kAX2 = 64; vRA = 68; vZA_ = 25
    pre_common()
    e(f"""s_and_b32 s{sT0}, s{sXCD}, 1
s_mul_i32 s{sT1}, s{sT0}, 3
s_add_u32 s{sT3}, s{sT0}, 1
s_cmp_eq_u32 s{sGSEL}, 6
s_cselect_b32 s{g}, s{sT1}, s{sT3}
s_mul_i32 s{sT0}, s{g}, 224
s_cmp_eq_u32 s{g}, 3
s_cselect_b32 s{sT0}, 640, s{sT0}
s_add_u32 s{sT0}, s{sT0}, 896
v_lshrrev_b32 v4, 4, v0
v_lshlrev_b32 v5, 2, v4
v_sub_u32 v5, v0, v5
v_and_b32 v5, 15, v5
v_lshl_add_u32 v5, v5, 4, s{sT0}
v_lshl_add_u32 v4, s{sW}, 3, v4
v_mul_u32_u24 v4, 2688, v4
v_add_u32 v{vDW0}, v4, v5
v_add_u32 v{vDW0+1}, {4*2688}, v{vDW0}
s_lshl_b32 s{sM0W}, s{sW}, 11
s_add_u32 s{sM0W}, s{sM0W}, 16384""")
    rtok = after_kernarg()
    stamp(0)
    e(srd_s(rW0, pWQKV, 448 * 2688))
    D = {}
    for x in p1_dma('KV', 0): D[0] = e(x)
    e(f"s_and_b32 s{sLO}, s{sW}, 3\ns_lshr_b32 s{sHI}, s{sW}, 2\ns_lshl_b32 s{sT3}, s{sHI}, 13")
    loop_setup(0)
    e(f"""s_cmp_eq_u32 s{g}, 3
s_cselect_b32 s{sT1}, 32, 0
s_mul_i32 s{sT0}, s{sLO}, 56
s_add_u32 s{sT1}, s{sT1}, s{sT0}
v_bfe_u32 v4, v0, 2, 2
v_lshl_add_u32 v5, v4, 6, s{sT1}
v_bfe_u32 v6, v0, 4, 1
v_lshl_add_u32 v5, v6, 5, v5
v_and_b32 v6, 3, v0
v_lshl_add_u32 v5, v6, 3, v5
v_and_b32 v5, 255, v5
v_lshrrev_b32 v6, 5, v0
v_lshl_add_u32 v4, v6, 3, v4
v_lshl_add_u32 v5, v4, 8, v5
v_add_u32 v{vAW}, 16384, v5
v_add_u32 v{vAW+1}, {16384+SLOT}, v5
v_add_u32 v{vAW+2}, {16384+2*SLOT}, v5""")
    for x in p1_dma('KV', 1): D[1] = e(x)
    mall_prefetch()
    rowstat(rtok)
    vXA = 136; vWAu = 144; r1 = 152; R = 154; vC = 160; vR = 184
    setup1 = "".join(f"v_add_u32 v{kAX2+j}, {2*SLOT}, v{vAX+j}\n" for j in range(4)) + misc_text() + \
        f"s_lshl_b32 s{sTILE0}, s{g}, 2\ns_add_u32 s{sTILE0}, s{sTILE0}, s{sLO}\ns_add_u32 s{sT4}, s{sTILE0}, 24\n" + cs_addr_text(sT4, sHI)
    setup2 = f"""s_lshl_b32 s{sT0}, s{sRB}, 11
s_lshl_b32 s{sT1}, s{sHI}, 10
s_add_u32 s{sT0}, s{sT0}, s{sT1}
s_add_u32 s{sT0}, s{sT0}, {STATS}
v_add_u32 v{vGA}, s{sT0}, v{vL16}
""" + p2_setup_text() + poll_addr_text() + f"""s_mov_b32 s{sFLO}, {DUMP}
s_lshl_b32 s{sT0}, s{sW}, 9
s_add_u32 s{sT0}, s{sT0}, {SCR}
v_lshl_add_u32 v6, v0, 2, s{sT0}
v_lshrrev_b32 v7, 5, v0
v_lshl_add_u32 v7, v7, 4, s{sT0}
""" + "".join(f"v_mov_b32 v{r}, 0\n" for r in (vXA+2, vXA+3, vXA+6, vXA+7, vWAu+2, vWAu+3, vWAu+6, vWAu+7)) + f"""s_mov_b32 s{sMKM}, 0x10000000
s_mov_b32 s{sMKM+1}, 0x10000000
s_add_u32 s{sT0}, s{sLO}, 4
s_mul_i32 s{sT0}, s{sT0}, 6144
v_add_u32 v26, s{sT0}, v{vL16}
s_lshl_b32 s{sHQO}, s{sTILE0}, 4
s_add_u32 s{sHQO}, s{sHQO}, s{sRB}
s_lshl_b32 s{sHQO}, s{sHQO}, 12
s_add_u32 s{sHQO}, s{sHQO}, {KVP}
v_mov_b32 v27, 0xff
v_mov_b32 v12, 0x3f803f80
s_lshr_b32 s{sPSTEP0}, s{sTAG}, 8
s_lshr_b32 s{sPSTEP0+1}, s{sTAG}, 16
s_lshr_b32 s{sPSTEP0+2}, s{sTAG}, 24
s_and_b32 s{sT0}, s{sTB}, 1
s_mul_i32 s{sT0}, s{sT0}, 7
s_add_u32 s{sRCT}, s{sT0}, s{sW}
s_lshr_b32 s{sT0}, s{sTB}, 1
s_mul_i32 s{sT0}, s{sT0}, 28
v_lshrrev_b32 v4, 2, v0
v_add_u32 v4, s{sT0}, v4
v_mul_u32_u24 v4, 896, v4
v_and_b32 v5, 3, v0
v_lshl_add_u32 v4, v5, 4, v4
s_lshl_b32 s{sT0}, s{sRCT}, 6
v_add_u32 v68, s{sT0}, v4
v_add_u32 v69, {16*896}, v68
""" + srd_s(rMISC, pWO, 448 * 896) + f"""s_cmp_eq_u32 s{sGSEL}, 7
s_cselect_b32 s{rMISC+2}, s{rMISC+2}, 0
"""
    gl, gcheck = gran_items()
    m, var = vSG, vSG + 1
    aug = [gcheck] + lines(f"""v_add_f32 v{r1}, {f32(EPS)}, v{var}
v_rsq_f32 v{r1}, v{r1}
v_cvt_pk_bf16_f32 v{R}, -v{m}, 0
v_mul_f32 v{r1+1}, {f32(LOG2E)}, v{r1}
ds_write_b32 v6, v{r1}
ds_write_b32 v6, v{r1+1} offset:256""") + cs_sum(2, vC) + lines(f"""v_lshlrev_b32 v{R+1}, 16, v{R}
v_sub_f32 v{R+1}, -v{m}, v{R+1}
v_cvt_pk_bf16_f32 v{R+3}, -v{m}, v{R+1}
v_cndmask_b32 v{vXA}, v{R+3}, 0, {HALF}
v_cndmask_b32 v{vXA+1}, v{R}, 0, {HALF}
v_cndmask_b32 v{vXA+4}, 0, v{R+3}, {HALF}
v_cndmask_b32 v{vXA+5}, 0, v{R}, {HALF}""")
    for kv in range(2):
        c = vC + kv; a = vWAu + 4 * kv
        aug += lines(f"""v_cvt_pk_bf16_f32 v{a}, v{c}, v{c}
v_and_b32 v{R+4}, 0xffff0000, v{a}
v_sub_f32 v{R+4}, v{c}, v{R+4}
v_cvt_pk_bf16_f32 v{a+1}, v{R+4}, 0""")
    rr = []
    for u in range(2):
        for gq in range(4):
            rr.append(f"ds_read_b128 {vr(vR+32+16*u+4*gq,4)}, v7 offset:{256+128*u+32*gq}")
            rr.append(f"ds_read_b128 {vr(vR+16*u+4*gq,4)}, v7 offset:{128*u+32*gq}")
    per = {n: [] for n in range(28)}
    distribute(per, 0, 5, atoms(setup1)); per[6] += cs_pub(2)
    distribute(per, 7, 18, atoms(setup2))
    G0 = opt('kgstep', 14)
    per[G0] += gl
    distribute(per, 22, 25, aug)
    per[27] += [f"s_mov_b32 m0, s{sM0X}\ns_nop 0\nbuffer_load_dwordx4 v68, s[{rMISC}:{rMISC+3}], 0 offen lds",
                f"s_add_u32 m0, s{sM0X}, 1024\ns_nop 0\nbuffer_load_dwordx4 v69, s[{rMISC}:{rMISC+3}], 0 offen lds"] + rr
    main_loop('KV', D, per, kAX2)
    for t in range(4): e(f"v_mfma_f32_32x32x16_bf16 {vr(vACC+16*t,16)}, {vr(vXA+4*(t>>1),4)}, {vr(vWAu+4*(t&1),4)}, {vr(vACC+16*t,16)}")
    stamp(2); stamp(9, chunk=True)
    vT = vXB; vPK = 48; vPVv = 56; vKV = 160
    e("s_waitcnt lgkmcnt(0)")
    for u in range(2):
        ak, av = vACC + 32 * u, vACC + 32 * u + 16
        for x in phi_pk(ak, vPK, lambda p: vr(vR + 16 * u + 2 * p, 2), lambda p: vr(vR + 32 + 16 * u + 2 * p, 2), 1, vT):
            if not isinstance(x, tuple): e(x)
        for p in range(8): e(f"v_pk_mul_f32 {vr(av+2*p,2)}, {vr(av+2*p,2)}, {vr(vR+16*u+2*p,2)}")
        for p in range(8): e(f"v_cvt_pk_bf16_f32 v{vPVv+p}, v{av+2*p}, v{av+2*p+1}")
        for p in range(8): e(f"v_cndmask_b32 v{vPVv+p}, v{vPVv+p}, v12, s[{sMKM}:{sMKM+1}]")
        for h in range(2):
            cin = '0' if (u == 0 and h == 0) else vr(vKV, 16)
            e(f"v_mfma_f32_32x32x16_bf16 {vr(vKV,16)}, {vr(vPVv+4*h,4)}, {vr(vPK+4*h,4)}, {cin}")
    L1, L2 = k.newlabel('Lc'), k.newlabel('Lc')
    e(f"s_cmp_lg_u32 s{sHI}, 0\ns_cbranch_scc1 {L1}")
    for gq in range(4): e(f"ds_write_b128 v26, {vr(vKV+4*gq,4)} offset:{1024*gq}")
    e("s_waitcnt lgkmcnt(0)")
    k.label(L1)
    e("s_waitcnt vmcnt(0)\ns_barrier")
    st = k.state()
    e(f"s_cmp_eq_u32 s{sHI}, 0\ns_cbranch_scc1 {L2}")
    tk = [e(f"ds_read_b128 {vr(vT+4*gq,4)}, v26 offset:{1024*gq}") for gq in range(4)]
    e("s_nop 3")
    tb = [sTAG, sPSTEP0, sPSTEP0 + 1, sPSTEP0 + 2]
    for gq in range(4):
        k.wait(lg=tk[gq])
        for p in range(2): e(f"v_pk_add_f32 {vr(vKV+4*gq+2*p,2)}, {vr(vKV+4*gq+2*p,2)}, {vr(vT+4*gq+2*p,2)}")
        for d in range(4): e(f"v_bfi_b32 v{vKV+4*gq+d}, v27, s{tb[d]}, v{vKV+4*gq+d}")
        e(f"buffer_store_dwordx4 {vr(vKV+4*gq,4)}, v{vL16}, {WS}, s{sHQO} offen offset:{1024*gq} sc1")
    k.label(L2)
    k.set_state(st)
    e("s_barrier")
    stamp(3); stamp(12, 4)

def reducer():
    hd = sRHD
    WOB = 0; AF = SLOT + 16384
    vWF = 16; vP = 72; vXc = 56; vS = 60
    L1 = k.newlabel('Lr')
    e(f"""s_lshr_b32 s{hd}, s{sTB}, 1
s_lshl_b32 s{sT0}, s{hd}, 16
s_lshl_b32 s{sT1}, s{sLO}, 10
s_add_u32 s{sT0}, s{sT0}, s{sT1}
s_add_u32 s{sT0}, s{sT0}, {KVP}
v_add_u32 v12, s{sT0}, v{vL16}
s_lshl_b32 s{sT1}, s{sW}, 11""")
    tb = [sTAG, sPSTEP0, sPSTEP0 + 1, sPSTEP0 + 2]
    st = k.state()
    e(f"s_cmp_ge_u32 s{sW}, 4\ns_cbranch_scc1 Lr_a")
    ck = Checked()
    toks = []
    for rb in range(16):
        toks.append(ck.load(f"s_mov_b32 s{sT0}, {rb*4096}\nbuffer_load_dwordx4 {vr(vP+4*rb,4)}, v12, {WS}, s{sT0} offen sc1"))
    k.label('Lr_a')
    e(f"""v_lshrrev_b32 v6, 5, v0
v_lshlrev_b32 v6, 2, v6
v_bfe_u32 v7, v0, 2, 2
v_add_u32 v6, v6, v7
v_lshlrev_b32 v6, 6, v6
v_bfe_u32 v7, v0, 4, 1
v_lshl_add_u32 v6, v7, 5, v6
v_and_b32 v7, 3, v0
v_lshl_add_u32 v6, v7, 3, v6
s_add_u32 s{sT1}, s{sT1}, {WOB}
v_add_u32 v14, s{sT1}, v6
s_mov_b32 s{sMKM}, 0
s_cmp_eq_u32 s{sW}, 3
s_cselect_b32 s{sMKM+1}, -1, 0
s_lshl_b32 s{sFLO}, s{sRCT}, 11
s_lshl_b32 s{sT1}, s{hd}, 7
s_add_u32 s{sFLO}, s{sFLO}, s{sT1}
s_add_u32 s{sFLO}, s{sFLO}, {FLM + (4 if 'flag1' in DBG else 0)}
s_mul_i32 s{sRMB}, s{sRCT}, {28*1024}
s_mul_i32 s{sT3}, s{hd}, {7*256}
s_add_u32 s{sRMB}, s{sRMB}, s{sT3}
s_add_u32 s{sRMB}, s{sRMB}, {MB}
s_cmp_eq_u32 s{sW}, 7
s_cselect_b32 s{sFLO}, {DUMP}, s{sFLO}
s_cselect_b32 s{sRMB}, {DUMP}, s{sRMB}
v_add_u32 v15, {AF}, v{vL16}
v_lshlrev_b32 v8, 3, v0
v_mov_b32 v6, {DUMP}
v_cndmask_b32 v9, v8, v6, {HALF}
s_add_u32 s{sT1}, s{sT1}, {ZG}
v_and_b32 v4, 31, v0
v_lshl_add_u32 v4, v4, 2, s{sT1}
s_cmp_eq_u32 s{sRCT}, 3
s_mov_b32 vcc_lo, 0
s_cselect_b32 vcc_hi, 0x55555555, 0
v_cndmask_b32 v10, v6, v4, vcc
s_lshr_b32 s{sT3}, s{sW}, 1
s_lshl_b32 s{sT3}, s{sT3}, 10
s_and_b32 s{sT1}, s{sW}, 1
s_lshl_b32 s{sT1}, s{sT1}, 3
s_add_u32 s{sT3}, s{sT3}, s{sT1}
v_add_u32 v5, s{sT3}, v15
v_mov_b32 v7, s{sTAG}""")
    for s in range(2):
        for rd in range(2): e(f"ds_read_b64_tr_b16 {vr(vWF+4*s+2*rd,2)}, v14 offset:{s*1024+rd*512}")
    e(f"s_cmp_ge_u32 s{sW}, 4\ns_cbranch_scc1 Lr_join")
    for gidx in range(4):
        c = []
        for rb in range(4 * gidx, 4 * gidx + 4):
            for d in range(4):
                if rb % 4 == 0: c.append(f"v_xor_b32 v{vXc+d}, s{tb[d]}, v{vP+4*rb+d}")
                else: c.append(f"v_bitop3_b32 v{vXc+d}, v{vXc+d}, v{vP+4*rb+d}, s{tb[d]} bitop3:0xf6")
        c += [f"v_or3_b32 v{vXc}, v{vXc}, v{vXc+1}, v{vXc+2}", f"v_or_b32 v{vXc}, v{vXc}, v{vXc+3}", f"v_and_b32 v{vXc}, 0xff, v{vXc}",
              f"v_cmp_ne_u32 vcc, 0, v{vXc}", "s_cmp_lg_u64 vcc, 0"]
        ck.check(toks[4 * gidx], toks[4 * gidx + 3], "\n".join(c), sleep=opt('rsleep', 2))
        b = vP + 16 * gidx
        for p in range(2):
            e(f"v_pk_add_f32 {vr(b+2*p,2)}, {vr(b+2*p,2)}, {vr(b+4+2*p,2)}\nv_pk_add_f32 {vr(b+8+2*p,2)}, {vr(b+8+2*p,2)}, {vr(b+12+2*p,2)}")
        for p in range(2):
            if gidx == 0: e(f"v_pk_add_f32 {vr(vS+2*p,2)}, {vr(b+2*p,2)}, {vr(b+8+2*p,2)}")
            else: e(f"v_pk_add_f32 {vr(b+2*p,2)}, {vr(b+2*p,2)}, {vr(b+8+2*p,2)}")
        if gidx:
            for p in range(2): e(f"v_pk_add_f32 {vr(vS+2*p,2)}, {vr(vS+2*p,2)}, {vr(b+2*p,2)}")
    stamp(4)
    e(f"""v_cvt_pk_bf16_f32 v12, v{vS}, v{vS+1}
v_cvt_pk_bf16_f32 v13, v{vS+2}, v{vS+3}
v_mov_b32_dpp v6, v{vS} quad_perm:[1,1,3,3] row_mask:0xf bank_mask:0xf
v_cndmask_b32 v12, v12, 0, s[{sMKM}:{sMKM+1}]
v_cndmask_b32 v13, v13, 0, s[{sMKM}:{sMKM+1}]
ds_write_b64 v5, v[12:13]
v_cvt_pk_bf16_f32 v6, v{vS}, v6
buffer_store_dwordx2 v[6:7], v10, {WS}, 0 offen sc1""")
    k.label('Lr_join')
    e(f"s_waitcnt lgkmcnt(0)\ns_barrier")
    vAF = 32; vD = 96
    e(f"ds_read_b128 {vr(vAF,4)}, v15\nds_read_b128 {vr(vAF+4,4)}, v15 offset:1024")
    e("s_waitcnt lgkmcnt(1)")
    e(f"v_mfma_f32_32x32x16_bf16 {vr(vD,16)}, {vr(vAF,4)}, {vr(vWF,4)}, 0")
    e("s_waitcnt lgkmcnt(0)")
    e(f"v_mfma_f32_32x32x16_bf16 {vr(vD,16)}, {vr(vAF+4,4)}, {vr(vWF+4,4)}, {vr(vD,16)}")
    for gq in range(4):
        for p in range(2): e(f"v_cvt_pk_bf16_f32 v{112+2*gq+p}, v{vD+4*gq+2*p}, v{vD+4*gq+2*p+1}")
        e(f"buffer_store_dwordx2 {vr(112+2*gq,2)}, v{9 if gq == 3 else 8}, {WS}, s{sRMB} offen offset:{512*gq} sc1")
    stamp(5)
    e(f"s_waitcnt vmcnt(0)\nbuffer_store_dword v{vTG}, v{vZ0}, {WS}, s{sFLO} offen sc1")
    stamp(6)

def phase2():
    vHO = 4; vXR = 12; vWB2 = 16
    vA2 = 32; vH = 96
    vB2 = 248; vOUT = 3
    if opt('prio', 1):
        e(f"s_cmp_lg_u32 s{sHI}, 0\ns_cbranch_scc1 Lprio\ns_setprio 0")
        k.label('Lprio')
    e(f"""s_mul_i32 s{sT1}, s{sTB}, {280*1024}
s_add_u32 s{sT1}, s{sT1}, {HQ}
s_mul_i32 s{sT0}, s{sHI}, {140*1024}
s_add_u32 s{sT3}, s{sT1}, s{sT0}
v_add_u32 v{vHO}, s{sT3}, v{vL16}
s_sub_u32 s{sT1}, s{sT1}, s{sT0}
s_add_u32 s{sT1}, s{sT1}, {140*1024}
v_add_u32 v{vHO+1}, s{sT1}, v{vL16}""")
    htok = {}
    def hl(j):
        o = []
        for s in range(2):
            for tt in range(2):
                def f(j=j, s=s, tt=tt): htok[(2*j+s, tt)] = e(f"buffer_load_dwordx4 {vr(vH+16*j+8*s+4*tt,4)}, v{vHO+tt}, {WS}, s{sHT+j} offen offset:{1024*s} sc1")
                o.append(f)
        return o
    PS = opt('psleep', 3)
    t0, t1 = vXR, vXR + 1
    e(srd_s(rMISC, pB2, 896))
    e(f"""v_lshrrev_b32 v{t0}, 3, v0
s_lshl_b32 s{sT0}, s{sTB}, 6
s_lshl_b32 s{sT1}, s{sW}, 3
s_add_u32 s{sT0}, s{sT0}, s{sT1}
v_add_u32 v{t0}, s{sT0}, v{t0}
v_mul_u32_u24 v{t0}, 896, v{t0}
v_and_b32 v{t1}, 7, v0
v_lshlrev_b32 v{t1}, 4, v{t1}
s_lshl_b32 s{sT0}, s{sCT}, 7
v_add_u32 v{t1}, s{sT0}, v{t1}
v_add_u32 v{t0}, v{t0}, v{t1}""")
    k.nt += 1; own = k.nt; k.vm.append(own)
    for j in range(7): e(f"s_lshl_b32 s{sHT+j}, s{sTAB+j}, 11")
    FF = opt('flagfirst', 1)
    def ownflag():
        k.wait(vm=own)
        e(f"buffer_store_dword v{vTG}, v{vZ0}, {WS}, s{sFLO} offen sc1")
        stamp(8); stamp(13, 4)
    if FF: ownflag()
    verify(POLL, poll_test(3, 3), PS)
    stamp(9); stamp(15, 4)
    LA = 3
    for j in range(2):
        for f in hl(j): f()
    if not FF: ownflag()
    for f in hl(2): f()
    st_ = k.state()
    e(f"s_cmp_lg_u32 s{sC0}, 0\ns_cbranch_scc1 Lnolate2")
    for g in p2_dma(2): e(g)
    k.label('Lnolate2')
    k.set_state(st_)
    e(f"""s_mul_i32 s{sSO0}, s{sLO}, {7*1024}
s_add_u32 s{sSO1}, s{sSO0}, {112*1024}
s_add_u32 s{sSO2}, s{sSO1}, 4096
v_mov_b32 v{vOUT}, v{t0}
v_lshrrev_b32 v2, 5, v0
v_lshlrev_b32 v2, 4, v2""")
    vZ = vWP
    vZA = vWP + 28; vZD = vWP + 38
    PITCH = 272
    w1, w0, ro, rs, m0_, m1_, x0 = [vWP + 31 + i for i in range(7)]
    x1 = vZ + 3
    addr = f"""v_mul_u32_u24 v{vZ}, 37, v0
v_lshrrev_b32 v{vZ}, 9, v{vZ}
v_lshlrev_b32 v{vZ+1}, 3, v0
v_lshl_add_u32 v{vZ+1}, v{vZ}, 4, v{vZ+1}
s_lshl_b32 s{sT3}, s{sLO}, 9
s_add_u32 s{sPD}, s{sT3}, {ZG}
v_add_u32 v{vZ+1}, s{sPD}, v{vZ+1}
s_lshl_b32 s{sPD}, s{sCT}, 12
s_add_u32 s{sPD}, s{sPD}, s{sT3}
s_lshl_b32 s{sT3}, s{sHI}, 11
s_add_u32 s{sPD}, s{sPD}, s{sT3}
s_add_u32 s{sPD}, s{sPD}, {FLM}
v_and_b32 v{vZ+2}, 3, v0
v_lshl_add_u32 v{vZ+2}, v{vZ+2}, 7, s{sPD}
v_cmp_gt_u32 vcc, 56, v0
v_cndmask_b32 v{vZA}, v{vZ+2}, v{vZ+1}, vcc
v_lshrrev_b32 v{vZ}, 3, v0
v_lshlrev_b32 v{vZ}, 5, v{vZ}
v_bfe_u32 v{vZ+1}, v0, 1, 1
v_lshl_add_u32 v{vZ}, v{vZ+1}, 4, v{vZ}
v_bfe_u32 v{vZ+1}, v0, 2, 1
v_lshl_add_u32 v{vZ}, v{vZ+1}, 3, v{vZ}
v_and_b32 v{vZ+1}, 1, v0
v_lshl_add_u32 v{vZ}, v{vZ+1}, 2, v{vZ}
s_lshl_b32 s{sPD}, s{sW}, 8
s_add_u32 s{sPD}, s{sPD}, {SCR2 + 2048}
v_add_u32 v{vZA+1}, s{sPD}, v{vZ}
v_add_u32 v{vZA+2}, s{sPD}, v2
s_mul_i32 s{sT4}, s{sW}, {7*1024}
s_mul_i32 s{sT0}, s{sCT}, {56*1024}
s_add_u32 s{sT0}, s{sT0}, s{sT4}
s_add_u32 s{sT0}, s{sT0}, {MB}
s_lshl_b32 s{sT4}, s{sW}, 10
s_add_u32 s{sT4}, s{sT4}, {SCR}
v_and_b32 v{x0}, 15, v0
v_mul_u32_u24 v{w1}, {PITCH}, v{x0}
v_bfe_u32 v{x0}, v0, 4, 1
v_mul_u32_u24 v{x0}, {SLOT}, v{x0}
v_add3_u32 v{w1}, v{w1}, v{x0}, v2
s_add_u32 s{sPD}, s{sM0P}, {SLOT}
v_add_u32 v{w1}, s{sPD}, v{w1}
v_lshrrev_b32 v{x0}, 3, v0
s_and_b32 s{sPD}, s{sLO}, 1
v_lshl_add_u32 v{x0}, s{sPD}, 3, v{x0}
v_mul_u32_u24 v{ro}, {PITCH}, v{x0}
v_and_b32 v{x1}, 7, v0
v_lshl_add_u32 v{ro}, v{x1}, 5, v{ro}
s_lshr_b32 s{sPD}, s{sLO}, 1
s_add_u32 s{sPD}, s{sPD}, 1
s_mul_i32 s{sPD}, s{sPD}, {SLOT}
s_xor_b32 s{sT3}, s{sHI}, 1
s_mul_i32 s{sT3}, s{sT3}, {4*6144}
s_add_u32 s{sPD}, s{sPD}, s{sT3}
v_add_u32 v{ro}, s{sPD}, v{ro}
s_lshl_b32 s{sPD}, s{sW}, 13
s_add_u32 s{sT3}, s{sPD}, {SCR - 6*8192}
s_cmp_ge_u32 s{sW}, 6
s_cselect_b32 s{sPD}, s{sT3}, s{sPD}
v_and_b32 v{x0}, 31, v0
v_lshl_add_u32 v{w0}, v{x0}, 8, s{sPD}
v_and_b32 v{x0}, 7, v0
v_lshlrev_b32 v{x0}, 4, v{x0}
v_xor_b32 v{x0}, v{x0}, v2
v_add_u32 v{w0}, v{w0}, v{x0}
v_lshrrev_b32 v{x0}, 3, v0
v_lshlrev_b32 v{x1}, 1, v{x1}
v_xor_b32 v{x1}, v{x1}, v{x0}
v_lshlrev_b32 v{x1}, 4, v{x1}
v_lshl_add_u32 v{rs}, v{x0}, 8, v{x1}
s_lshl_b32 s{sPD}, s{sLO}, 11
s_lshl_b32 s{sT3}, s{sHI}, 15
s_add_u32 s{sPD}, s{sPD}, s{sT3}
v_add_u32 v{rs}, s{sPD}, v{rs}
s_mul_i32 s{sPD}, s{sLO}, 6144
v_lshlrev_b32 v{x0}, 3, v0
v_add_u32 v{m0_}, s{sPD}, v{x0}
s_lshl_b32 s{sPD}, s{sLO}, 10
s_add_u32 s{sPD}, s{sPD}, {SCR}
v_add_u32 v{m1_}, s{sPD}, v{x0}
""" + srd_s(rMISC, pOUT, 2048 * 896)
    per = {u: [] for u in range(14)}
    Z = {}
    vQ = vH
    ZL = f"buffer_load_dwordx2 {vr(vZD,2)}, v{vZA}, {WS}, 0 offen sc1"
    ql = [f"buffer_load_dwordx4 {vr(vQ+4*q,4)}, v{vHO}, {WS}, s{sSO1 if q < 4 else sSO2} offen offset:{1024*(q&3)} sc1" for q in range(7)]
    per[0] += hl(3)
    per[1] += [lambda: Z.__setitem__('p', e(POLL2)), f"buffer_load_dwordx4 {vr(vB2,4)}, v{t1}, s[{rMISC}:{rMISC+3}], 0 offen", f"buffer_load_dwordx4 {vr(vXR,4)}, v{vOUT}, s[{rX}:{rX+3}], 0 offen"]
    per[4] += hl(4); per[5] += hl(5); per[6] += hl(6); per[7] += ql[:4]; per[8] += ql[4:]
    distribute(per, 5, 11, atoms(addr, 3))
    per[12] += [ZL]
    tok = {}
    for u in range(14):
        j, s = divmod(u, 2); base = vH + 16 * j
        cur = tok; tok = {}
        stamp(1 + u, p2=True)
        rd = wreads(u + 1, vWB2 + 8 * ((u + 1) & 1)) if 5 <= u + 1 < 14 else []
        wsrc = vWP + 8 * u if u < 5 else vWB2 + 8 * (u & 1)
        mf = []
        for tt in ((1, 0) if u == 13 else (0, 1)):
            for c in range(2):
                acc = vr(vA2 + 32 * tt + 16 * c, 16)
                mf.append(('m', (f"v_mfma_f32_32x32x16_bf16 {acc}, {vr(wsrc+4*c,4)}, {vr(base+8*s+4*tt,4)}, {'0' if u == 0 else acc}", c, tt)))
        if u == 4:
            k.wait(vm=Z['p'])
            verify(POLL2, poll_test(0xf7, 7), PS)
            stamp(10)
        for kind_, x in spread(mf, [('r', x) for x in rd] + [('f', x) for x in per[u]]):
            if kind_ == 'm':
                k.wait(vm=htok[(u, x[2])], lg=cur.get(x[1])); e(x[0])
            elif kind_ == 'r': tok[x[1]] = e(x[0])
            else: emit_item(x)
    stamp(4); stamp(14, 4); stamp(15, p2=True)
    vF = vWB2; vG = vWB2 + 8
    for d in range(4):
        e(f"""v_lshlrev_b32 v{vF+2*d}, 16, v{vXR+d}
v_and_b32 v{vF+2*d+1}, 0xffff0000, v{vXR+d}
v_lshlrev_b32 v{vG+2*d}, 16, v{vB2+d}
v_and_b32 v{vG+2*d+1}, 0xffff0000, v{vB2+d}""")
    def mdma():
        for q in range(7):
            m = f"s_add_u32 m0, s{sM0P}, {1024*q}" if q < 6 else f"s_mov_b32 m0, s{sT4}"
            e(f"{m}\ns_add_u32 s{sT1}, s{sT0}, {1024*q}\nbuffer_load_dwordx4 v{vL16}, {WS}, s{sT1} offen sc1 lds")
    ztest = lambda lo, hi: f"v_cmp_ne_u32 vcc, s{sTAG}, v{vZD+1}\ns_mov_b32 s{sMK}, {lo:#x}\ns_mov_b32 s{sMK+1}, {hi:#x}\ns_and_b64 vcc, vcc, s[{sMK}:{sMK+1}]"
    e("s_waitcnt vmcnt(0)")
    e(f"s_mov_b32 s{sC0}, 0"); e(ztest(0, 0xff000000)); e("s_cbranch_scc1 Lnom")
    e(f"s_mov_b32 s{sC0}, 1"); mdma()
    k.label('Lnom')
    for c in range(2):
        for gq in range(4): e(f"ds_write_b128 v{w1}, {vr(vA2+32+16*c+4*gq,4)} offset:{c*128+gq*32}")
    for d in range(8): e(f"v_add_f32 v{vF+d}, v{vF+d}, v{vG+d}")
    tgt = {}
    for hi in range(2):
        for r in range(4): tgt[r + 4 * hi] = r
        tgt[8 + 4 * hi] = hi; tgt[9 + 4 * hi] = 2 + hi
    def rowmask(h): return sum(1 << i for i, t in tgt.items() if t == h)
    slot = {0: 0, 1: 0, 2: 0, 3: 4, 4: 1, 5: 1, 6: 1, 7: 2, 8: 2, 9: 2, 10: 5, 11: 3, 12: 3, 13: 3}
    vU = vG; vDN = vH + 32; R = 4
    def den_scale():
        e(f"ds_write_b32 v{vZA+1}, v{vZD}")
        for s in range(7): e(f"ds_read_b128 {vr(vZ+4*s,4)}, v{vZA+2} offset:{32*s}")
        e("s_waitcnt lgkmcnt(0)")
        prev = None
        for s in range(7):
            for q in (2 * s, 2 * s + 1):
                mk = (rowmask(2 * q // 7), rowmask((2 * q + 1) // 7))
                if mk != prev: e(f"s_mov_b32 s{sMK}, {mk[0]:#x}\ns_mov_b32 s{sMK+1}, {mk[1]:#x}"); prev = mk
                for d in range(2): e(f"v_cndmask_b32 v{vZ+2*q+d}, 0, v{vZ+2*q+d}, s[{sMK}:{sMK+1}]")
            if s: e(f"v_mfma_f32_32x32x16_bf16 {vr(vDN,16)}, {vr(vZ+4*s-4,4)}, {vr(vQ+4*s-4,4)}, {'0' if s == 1 else vr(vDN,16)}")
        e(f"v_mfma_f32_32x32x16_bf16 {vr(vDN,16)}, {vr(vZ+24,4)}, {vr(vQ+24,4)}, {vr(vDN,16)}")
        UP = vH + 48
        for x in range(28): e(f"v_lshlrev_b32 v{UP+2*x}, 16, v{vQ+x}\nv_and_b32 v{UP+2*x+1}, 0xffff0000, v{vQ+x}")
        for i in range(6): e(f"v_add_f32 v{R+2*i}, s{sEPS}, v{vDN+i}")
        for i in range(6): e(f"v_rcp_f32 v{R+2*i}, v{R+2*i}")
        for x in range(28): e(f"v_pk_mul_f32 {vr(UP+2*x,2)}, {vr(UP+2*x,2)}, {vr(R+2*slot[x>>1],2)} op_sel_hi:[1,0]")
        for x in range(28): e(f"v_cvt_pk_bf16_f32 v{vQ+x}, v{UP+2*x}, v{UP+2*x+1}")
    verify(ZL, ztest(0xffffffff, 0x00ffffff), opt('zsleep', 3))
    stamp(11)
    den_scale()
    e(f"s_cmp_lg_u32 s{sC0}, 0\ns_cbranch_scc1 Lhavem")
    e(ZL); e("s_waitcnt vmcnt(0)")
    verify(ZL, ztest(0, 0xff000000), opt('zsleep', 3))
    mdma()
    k.label('Lhavem')
    stamp(5)
    e("s_waitcnt vmcnt(0)\ns_barrier")
    vM = vH + 32
    mt = {}
    for s in range(7):
        for c in range(2):
            if s < 6: mt[(s, c)] = e(f"ds_read2st64_b64 {vr(vM+8*s+4*c,4)}, v{m0_} offset0:{48*c+2*s} offset1:{48*c+2*s+1}")
            else: mt[(s, c)] = e(f"ds_read2st64_b64 {vr(vM+8*s+4*c,4)}, v{m1_} offset0:{8*c} offset1:{8*c+1}")
    ot = []
    for q in range(4):
        for hh in range(2): ot.append(e(f"ds_read_b128 {vr(vA2+32+8*q+4*hh,4)}, v{ro} offset:{q*6144+16*hh}"))
    for c in range(2):
        for s in range(7):
            k.wait(lg=mt[(s, c)] if c == 0 else mt[(6, 1)])
            if c == 1 and s == 0: e("s_barrier")
            acc = vr(vA2 + 16 * c, 16)
            e(f"v_mfma_f32_32x32x16_bf16 {acc}, {vr(vM+8*s+4*c,4)}, {vr(vQ+4*s,4)}, {acc}")
            if c == 1 and s >= 3:
                q = s - 3
                k.wait(lg=ot[2 * q + 1])
                for d in range(8): e(f"v_add_f32 v{vF+d}, v{vF+d}, v{vA2+32+8*q+d}")
    stamp(6)
    for i in range(1, 4): e(f"v_xor_b32 v{vZ+i}, {32*i}, v{w0}")
    e(f"v_mov_b32 v{vZ}, v{w0}\nv_xor_b32 v{vZ+4}, 16, v{rs}\ns_mul_i32 s{sT1}, s{sHI}, {SCR - 6*8192}\nv_add_u32 v{vZ+5}, s{sT1}, v{rs}\nv_add_u32 v{vZ+6}, s{sT1}, v{vZ+4}")
    for c in range(2):
        for gq in range(4): e(f"ds_write_b128 v{vZ+gq}, {vr(vA2+16*c+4*gq,4)} offset:{c*128}")
    e("s_waitcnt lgkmcnt(0)\ns_barrier")
    rt = []
    for q in range(4):
        for hh in range(2):
            a_ = [[rs, vZ + 4], [vZ + 5, vZ + 6]][q >> 1][hh]
            rt.append(e(f"ds_read_b128 {vr(vH+8*q+4*hh,4)}, v{a_} offset:{q*8192}"))
    for q in range(4):
        k.wait(lg=rt[2 * q + 1])
        for d in range(4): e(f"v_pk_add_f32 {vr(vF+2*d,2)}, {vr(vF+2*d,2)}, {vr(vH+8*q+2*d,2)}")
    for d in range(4): e(f"v_cvt_pk_bf16_f32 v{vG+d}, v{vF+2*d}, v{vF+2*d+1}")
    e(f"buffer_store_dwordx4 {vr(vG,4)}, v{vOUT}, s[{rMISC}:{rMISC+3}], 0 offen")
    stamp(7)
    e(f"s_or_b32 s{sT0}, s2, s{sW}\ns_cmp_lg_u32 s{sT0}, 0\ns_cbranch_scc1 Lend")
    e(f"v_mov_b32 v4, s{sTAG}\nv_mov_b32 v5, {EPOCH}\ns_mov_b64 exec, 1\nbuffer_store_dword v4, v5, {WS}, 0 offen")

kn = NAME + '_kernel'
hdr = open(f'cdna_kernels/{NAME}.s.ref').read().split('; Override launch')[0]
head = hdr + f"; @launch grid=(256,1,1) block=(512,1,1) lds={LDS_BYTES}\n"
k.raw('.amdgcn_target "amdgcn-amd-amdhsa--gfx950"\n.text')
k.raw(f".globl {kn}\n.p2align 8\n.type {kn},@function\n{kn}:")
prologue()
st_pro = k.state()
phase1_M()
k.label('Lp2'); k.set_state(([], []))
phase2()
k.label('Lend'); e("s_endpgm")
k.label('Lkv'); k.set_state(st_pro)
phase1_KV()
e(f"s_cmp_eq_u32 s{sGSEL}, 7\ns_cbranch_scc1 Lred")
e(wa_text())
for u in range(5):
    for x, _ in wreads(u, vWP + 8 * u): e(x)
ptk = e(POLL)
e("s_waitcnt lgkmcnt(0)")
for g in p2_dma(2) + [g for u in range(9, 14) for g in unit_dma(u)]: e(g)
k.wait(vm=ptk)
e(f"s_mov_b32 s{sC0}, 1\ns_branch Lp2")
k.label('Lred')
k.set_state(([], []))
reducer()
e("s_endpgm")
i = 0
while i < len(outline): outline[i](); i += 1
k.label('Lcode_end')
e("s_endpgm")
body, nnop = k.render()
kd = f""".amdhsa_kernel {kn}
  .amdhsa_next_free_vgpr 256
  .amdhsa_next_free_sgpr 102
  .amdhsa_accum_offset 256
  .amdhsa_group_segment_fixed_size 0
  .amdhsa_kernarg_size 88
  .amdhsa_user_sgpr_count 2
  .amdhsa_user_sgpr_kernarg_segment_ptr 1
  .amdhsa_system_sgpr_workgroup_id_x 1
.end_amdhsa_kernel
"""
out = head + body + '.section .rodata,"a"\n.p2align 6\n' + kd
outp = [a for a in sys.argv[1:] if not a.startswith('--')]
open(outp[0] if outp else f'cdna_kernels/{NAME}.s', 'w').write(out)
print("nops inserted:", nnop, "lines:", out.count('\n'))
```

```python
import sys, math, struct
sys.path.insert(0, 'gen')
from dsl import *

NAME = "parallel_sum__linear_attn_block__mixer_channel_mlp__prompt"
STAMPS = '--stamps' in sys.argv
DBG = set(a[6:] for a in sys.argv if a.startswith('--dbg-'))
def opt(name, default):
    for a in sys.argv:
        if a.startswith(f'--{name}='): return int(a.split('=')[1])
    return default
def f32(x): return '0x%08x' % struct.unpack('<I', struct.pack('<f', x))[0]
def lines(s): return [l.strip() for l in s.strip().split('\n') if l.strip()]

EPOCH = 0
ZG = 0x1000
FLM = 0x2000
STATS = 0x10000
CSG = 0x18000
MB = 0x40000
KVP = 0x100000
HQ = 0x200000
FLH = 0xB00000
WS_USED = 0xC00000
DUMP = 0x7000000
STAMP_OFF = 0x8000000
SLOT = 49152
SCR = 3 * SLOT
SCR2 = SCR + 8192
LDS_BYTES = 163840
EPS = 1e-5
LOG2E = math.log2(math.e)
GC0 = -2.0 * math.sqrt(2.0 / math.pi) * LOG2E
GC1 = 0.044715
SPIN_MAX = 20000

sW = 3
pX, pWQKV, pWO, pBX, pW1, pB1, pW2, pB2, pOUT, pDBG, pWS = 4, 6, 8, 10, 12, 14, 16, 18, 20, 22, 24
sHQO, sFLO = 10, 11
sRHD, sRMB = 22, 23
sPM, sQM = 22, 23
sXCD, sSUB, sGSEL, sRB, sCC = 26, 27, 28, 29, 30
sT0, sT1, sT2, sT3, sT4 = 31, 32, 33, 34, 35
rX, rW0, rW1, rW2, rWS, rW2G, rMISC = 36, 40, 44, 48, 52, 56, 60
sSOX, sSO0, sSO1, sSO2 = 64, 65, 66, 67
sPSTEP0 = 68
sM0X, sM0W = 71, 72
sLO, sHI = 73, 74
sC0 = 75
sMK = 76
sHALF = 78
sTAB = 80
sRCT = 87
sEPS = 88
sMKM = 90
sMG = 92
sPD = 93
sTAG = 94
sCT, sTB = 95, 96
sTILE0 = 97
sM0P = 98
sMEAN = 99
sSTAMP = 100
sHT = 40

k = K()
e = k.e
outline = []
WS = f"s[{rWS}:{rWS+3}]"
HALF = f"s[{sHALF}:{sHALF+1}]"
def srd_s(r, ptr, nbytes):
    return f"s_mov_b32 s{r}, s{ptr}\ns_and_b32 s{r+1}, s{ptr+1}, 0xffff\ns_mov_b32 s{r+2}, {nbytes}\ns_mov_b32 s{r+3}, 0x20000\n"

def stamp(idx, wave=0, chunk=False, p2=False):
    if not STAMPS: return
    if 'p2' in DBG:
        if idx > 0 and not p2: return
        if p2: wave = opt('sw', 0)
    elif p2: return
    elif ('chunks' in DBG) != chunk and idx > 1: return
    L = k.newlabel('Lst')
    st = k.state()
    e(f"s_cmp_lg_u32 s{sW}, {wave}\ns_cbranch_scc1 {L}")
    e(f"s_memrealtime s[{sSTAMP}:{sSTAMP+1}]\ns_memtime vcc\ns_waitcnt lgkmcnt(0)")
    e(f"v_mov_b32 v254, s{sSTAMP}\nv_mov_b32 v255, s{sSTAMP+1}")
    e(f"s_lshl_b32 s{sSTAMP}, s2, 8\ns_add_u32 s{sSTAMP}, s{sSTAMP}, {STAMP_OFF + 8*idx}\nv_mov_b32 v253, s{sSTAMP}")
    e(f"global_store_dwordx2 v253, v[254:255], s[{pWS}:{pWS+1}]")
    e(f"s_nop 1\nv_mov_b32 v254, vcc_lo\nv_mov_b32 v255, vcc_hi")
    e(f"global_store_dwordx2 v253, v[254:255], s[{pWS}:{pWS+1}] offset:128")
    k.label(L)
    k.set_state(st)

def emit_item(x): return x() if callable(x) else e(x)

SCC_R = ('s_cselect', 's_cbranch_scc', 's_addc')
SCC_W = ('s_cmp', 's_add', 's_sub', 's_and', 's_or', 's_xor', 's_lshl', 's_lshr', 's_min', 's_max', 's_bfe')
def atoms(text, n=2):
    ls = lines(text); N = len(ls)
    live = [False] * (N + 1); scc = vcc = m0 = False
    for i in range(N - 1, -1, -1):
        ins = Ins(ls[i])
        if ls[i].startswith(SCC_W): scc = False
        if ls[i].startswith(SCC_R): scc = True
        if ('s', 106) in ins.w: vcc = False
        if ('s', 106) in ins.r: vcc = True
        if ('s', 124) in ins.w: m0 = False
        if ('s', 124) in ins.r: m0 = True
        live[i] = scc or vcc or m0
    out = []; cur = []
    for i, l in enumerate(ls):
        cur.append(l)
        if len(cur) >= n and not live[i + 1]: out.append("\n".join(cur)); cur = []
    if cur: out.append("\n".join(cur))
    return out

def distribute(per, first, last, items):
    ns = last - first + 1
    for q in range(ns): per[first + q] += items[len(items) * q // ns: len(items) * (q + 1) // ns]

class Checked:
    def __init__(self): self.log = []
    def load(self, text):
        t = e(text); self.log.append((text, t)); return t
    def check(self, first_tok, last_tok, chk, sleep=1):
        Lc, Ls, Lb = k.newlabel('Lck'), k.newlabel('Lsl'), k.newlabel('Lbk')
        e(f"s_movk_i32 s{sT2}, {SPIN_MAX}")
        k.label(Lc)
        assert last_tok in k.vm
        k.wait(vm=last_tok)
        e(chk); e(f"s_cbranch_scc1 {Ls}")
        k.label(Lb)
        i0 = [t for _, t in self.log].index(first_tok)
        redo = [x for x, _ in self.log[i0:]]
        assert all(t in [tt for _, tt in self.log[i0:]] for t in k.vm), "untracked younger vmem op"
        def slow():
            k.label(Ls)
            e(f"s_sub_u32 s{sT2}, s{sT2}, 1\ns_cbranch_scc1 {Lb}")
            if sleep: e(f"s_sleep {sleep}")
            for x in redo: e(x)
            e(f"s_branch {Lc}")
        outline.append(slow)

def verify(load, test, sleep):
    Lp, Ld, Lc = k.newlabel('Lvs'), k.newlabel('Lvd'), k.newlabel('Lvc')
    e(test); e(f"s_cbranch_scc1 {Lp}")
    k.label(Ld)
    def slow():
        k.label(Lp)
        e(f"s_movk_i32 s{sT2}, {SPIN_MAX}")
        k.label(Lc)
        e(load); e("s_waitcnt vmcnt(0)"); e(test)
        e(f"s_cbranch_scc0 {Ld}\ns_sub_u32 s{sT2}, s{sT2}, 1\ns_cbranch_scc1 {Ld}\ns_sleep {sleep}\ns_branch {Lc}")
    outline.append(slow)

EA = [i for i in range(56) if i % 6 < 4 and not i & 1]
EB = [i for i in range(56) if i % 6 < 4 and i & 1]
LATE = [i for i in range(56) if i % 6 >= 4]
RESTA = EA[16:] + EB[12:] + LATE
def tiles_of_wave(w):
    q = w & 3
    if w >= 4: return EA[4 * q: 4 * q + 4] + EB[3 * q: 3 * q + 3]
    return RESTA[q::4]
def flag_of(i): return 2 * (i // 6) + 32 if i % 6 >= 4 else 2 * (i // 6) + (i & 1)
vL16 = 1
vPD0 = 2
vWA = 6
vPA = 23; vPV_ = 24
vWP = 208
vPF = 251; vDUM = 24
P_SLOT = [1, 2, 0]
def unit_pos(u):
    if u >= 9: u -= 9
    return P_SLOT[u // 3] * SLOT + (u % 3) * 2048

def p2_setup_text():
    t = ""
    for w in range(8):
        v = sum(x << (8 * j) for j, x in enumerate(tiles_of_wave(w)))
        lo, hi = v & 0xffffffff, v >> 32
        if w == 0: t += f"s_mov_b32 s{sTAB}, {lo:#x}\ns_mov_b32 s{sTAB+1}, {hi:#x}\n"
        else: t += f"s_cmp_eq_u32 s{sW}, {w}\ns_cselect_b32 s{sTAB}, {lo:#x}, s{sTAB}\ns_cselect_b32 s{sTAB+1}, {hi:#x}, s{sTAB+1}\n"
    if False:
        t += f"""s_lshl_b32 s{sT0}, s{sCT}, 3
s_sub_u32 s{sT1}, 56, s{sT0}
s_lshr_b64 s[{sTAB+2}:{sTAB+3}], s[{sTAB}:{sTAB+1}], s{sT0}
s_lshl_b64 s[{sTAB}:{sTAB+1}], s[{sTAB}:{sTAB+1}], s{sT1}
s_or_b64 s[{sTAB}:{sTAB+1}], s[{sTAB}:{sTAB+1}], s[{sTAB+2}:{sTAB+3}]
"""
    for j in (6, 5, 4): t += f"s_bfe_u32 s{sTAB+j}, s{sTAB+1}, {0x80000 | (8*(j-4)):#x}\n"
    for j in (3, 2, 1, 0): t += f"s_bfe_u32 s{sTAB+j}, s{sTAB}, {0x80000 | (8*j):#x}\n"
    t += srd_s(rW2G, pW2, 1792 * 896)
    t += f"""s_cmp_eq_u32 s{sGSEL}, 7
s_cselect_b32 s{rW2G+2}, 0, s{rW2G+2}
v_lshrrev_b32 v4, 3, v0
v_mul_u32_u24 v4, 896, v4
v_bfe_u32 v5, v0, 4, 1
v_lshlrev_b32 v5, 2, v5
v_and_b32 v6, 7, v0
v_xor_b32 v5, v5, v6
v_lshl_add_u32 v4, v5, 4, v4
s_lshl_b32 s{sT0}, s{sCT}, 7
v_add_u32 v{vPD0}, s{sT0}, v4
v_add_u32 v{vPD0+1}, 7168, v{vPD0}
s_mul_i32 s{sM0P}, s{sW}, 6144
"""
    return t

vPA2 = 252
def poll_addr_text():
    t = ""
    for w in range(8):
        tl = tiles_of_wave(w)
        f1 = [flag_of(x) for x in tl[:4]]; f2 = [flag_of(x) for x in tl[4:]]
        q0 = 56 + (7 * (w & 3) >> 1)
        fq = [flag_of(x) + 64 * (w >> 2) for x in range(q0, q0 + 4)]
        vals = [sum(x << (8 * j) for j, x in enumerate(f)) for f in (f1, f2, fq)]
        regs = [sPM, sT1, sQM]
        if w == 0: t += "".join(f"s_mov_b32 s{r}, {v:#x}\n" for r, v in zip(regs, vals))
        else: t += f"s_cmp_eq_u32 s{sW}, {w}\n" + "".join(f"s_cselect_b32 s{r}, {v:#x}, s{r}\n" for r, v in zip(regs, vals))
    t += f"""v_lshlrev_b32 v4, 3, v0
v_lshrrev_b32 v5, 5, v0
v_lshlrev_b32 v5, 6, v5
v_bfe_u32 v6, s{sPM}, v4, 8
v_add_u32 v6, v6, v5
v_bfe_u32 v7, s{sT1}, v4, 8
v_add_u32 v7, v7, v5
v_bfe_u32 v4, s{sQM}, v4, 8
s_mov_b32 s{sMK}, 0xf0
s_mov_b32 s{sMK+1}, 0
v_cndmask_b32 v7, v7, v4, s[{sMK}:{sMK+1}]
s_lshl_b32 s{sT0}, s{sTB}, 14
s_add_u32 s{sT0}, s{sT0}, {FLH}
v_lshl_add_u32 v6, v6, 7, s{sT0}
v_lshl_add_u32 v7, v7, 7, s{sT0}
v_mov_b32 v5, {DUMP}
s_mov_b32 s{sMK}, 15
s_mov_b32 s{sMK+1}, 15
v_cndmask_b32 v{vPA}, v5, v6, s[{sMK}:{sMK+1}]
s_mov_b32 s{sMK}, 0xf7
s_mov_b32 s{sMK+1}, 7
v_cndmask_b32 v{vPA2}, v5, v7, s[{sMK}:{sMK+1}]
"""
    return t
POLL = f"buffer_load_dword v{vPV_}, v{vPA}, {WS}, 0 offen sc1"
POLL2 = f"buffer_load_dword v{vPV_}, v{vPA2}, {WS}, 0 offen sc1"
def poll_test(lo, hi):
    return f"v_cmp_ne_u32 vcc, s{sTAG}, v{vPV_}\ns_mov_b32 s{sMK}, {lo:#x}\ns_mov_b32 s{sMK+1}, {hi:#x}\ns_and_b64 vcc, vcc, s[{sMK}:{sMK+1}]"
PFP = opt('pfp', 0); PFN = -(-66 // max(PFP, 1))
def pf_setup_text():
    return f"""s_lshr_b32 s{sT0}, s2, 3
s_lshl_b32 s{sT0}, s{sT0}, 3
s_add_u32 s{sT0}, s{sT0}, s{sW}
s_mul_i32 s{sT0}, s{sT0}, {66*128}
v_lshl_add_u32 v4, v0, 7, s{sT0}
v_mov_b32 v5, {DUMP}
v_cmp_gt_u32 vcc, {PFN}, v0
v_cndmask_b32 v{vPF}, v5, v4, vcc
""" + srd_s(rW2G, pW2, 1792 * 896)
def pf_item(): return f"buffer_load_dword v{vDUM}, v{vPF}, s[{rW2G}:{rW2G+3}], 0 offen\nv_add_u32 v{vPF}, {PFN*128}, v{vPF}"

def unit_dma(u, stage=False):
    j, s = divmod(u, 2)
    out = []
    for jj in range(2):
        g = ""
        if jj == 0:
            g += f"s_mul_i32 s{sPD}, s{sTAB+j}, 28672\n"
            if s: g += f"s_add_u32 s{sPD}, s{sPD}, 14336\n"
        g = (f"s_add_u32 m0, s{sM0X}, {SCR + jj*1024}\n" if stage else f"s_add_u32 m0, s{sM0P}, {unit_pos(u) + jj*1024}\n") + g
        g += f"buffer_load_dwordx4 v{vPD0+jj}, s[{rW2G}:{rW2G+3}], s{sPD} offen lds"
        out.append(g)
    return out
def p2_dma(pc): return [g for u in range(3 * pc, 3 * pc + 3) for g in unit_dma(u)]
def trpat(dst, tmp, hishift, rowshift=7):
    return f"""v_lshrrev_b32 v{dst}, 5, v0
v_lshlrev_b32 v{dst}, {hishift}, v{dst}
v_bfe_u32 v{tmp}, v0, 2, 2
v_add_u32 v{dst}, v{dst}, v{tmp}
v_lshlrev_b32 v{dst}, {rowshift}, v{dst}
v_bfe_u32 v{tmp}, v0, 4, 1
v_lshl_add_u32 v{dst}, v{tmp}, 5, v{dst}
v_and_b32 v{tmp}, 3, v0
v_lshl_add_u32 v{dst}, v{tmp}, 3, v{dst}
v_bfe_u32 v{tmp}, v0, 3, 1
v_lshl_add_u32 v{dst}, v{tmp}, 6, v{dst}
"""
def wa_text():
    return trpat(4, 5, 2) + f"""v_add_u32 v{vWA}, s{sM0P}, v4
v_xor_b32 v{vWA+1}, 64, v{vWA}
v_add_u32 v{vWA+2}, {SLOT}, v{vWA}
v_add_u32 v{vWA+3}, {SLOT}, v{vWA+1}
v_add_u32 v{vWA+4}, {2*SLOT}, v{vWA}
v_add_u32 v{vWA+5}, {2*SLOT}, v{vWA+1}
"""
def wreads(u, dst):
    sl, off = divmod(unit_pos(u), SLOT)
    return [(f"ds_read_b64_tr_b16 {vr(dst+4*c+2*rd,2)}, v{vWA+2*sl+c} offset:{off+rd*1024}", c) for c in range(2) for rd in range(2)]

vDX0, vDX1, vDW0 = 8, 9, 10
vAX = 13
vSEL = 28
vROW = 208; vRU = 212; vGR = 220; vRT = 224
vTG = 248; vZ0 = 249; vGA = 250

def prologue():
    e(f"s_load_dwordx16 s[4:19], s[0:1], 0\ns_load_dwordx4 s[20:23], s[0:1], 64\ns_load_dwordx2 s[24:25], s[0:1], 80")
    e(f"s_cmp_ge_u32 s2, 256\ns_cbranch_scc1 Lend")
    if opt('prio', 1): e("s_setprio 1")
    e(f"v_lshrrev_b32 v1, 6, v0\nv_and_b32 v0, 63, v0\nv_readfirstlane_b32 s{sW}, v1")
    e(f"s_and_b32 s{sXCD}, s2, 7\ns_lshr_b32 s{sT0}, s2, 3\ns_and_b32 s{sSUB}, s{sT0}, 3\ns_lshr_b32 s{sGSEL}, s{sT0}, 2")
    st = k.state()
    e(f"s_cmp_lg_u32 s{sW}, 7\ns_cbranch_scc1 Lnopf")
    e(f"s_getpc_b64 s[{sMK}:{sMK+1}]")
    k.label('Lpc')
    e(f"s_and_b32 s{sT0}, s{sT0}, 7\ns_lshl_b32 s{sT0}, s{sT0}, 13\nv_lshl_add_u32 v4, v0, 7, s{sT0}\nv_min_u32 v4, Lcode_end-Lpc-4, v4")
    e(f"global_load_dword v{vDUM}, v4, s[{sMK}:{sMK+1}]")
    k.label('Lnopf')
    k.set_state(st)
    pre_common()
    e(f"s_cmp_lt_u32 s{sGSEL}, 6\ns_cbranch_scc1 Lm")

def pre_common():
    e(f"s_lshr_b32 s{sT0}, s{sXCD}, 1\ns_lshl_b32 s{sT0}, s{sT0}, 2\ns_add_u32 s{sRB}, s{sT0}, s{sSUB}")
    e(f"s_lshl_b32 s{sT0}, s{sGSEL}, 1\ns_add_u32 s{sT0}, s{sT0}, s{sRB}")
    e(f"s_mul_i32 s{sT1}, s{sT0}, 37\ns_lshr_b32 s{sT1}, s{sT1}, 8\ns_mul_i32 s{sT1}, s{sT1}, 7\ns_sub_u32 s{sCC}, s{sT0}, s{sT1}\ns_mov_b32 s{sC0}, s{sCC}")
    if 'norot1' in DBG: e(f"s_mov_b32 s{sCC}, 0")
    if 'rot2' in DBG: e(f"s_and_b32 s{sCC}, s{sCC}, 1\ns_mul_i32 s{sCC}, s{sCC}, 3")
    e(f"""s_lshl_b32 s{sT0}, s{sRB}, 7
s_lshl_b32 s{sT1}, s{sW}, 4
s_add_u32 s{sT0}, s{sT0}, s{sT1}
v_lshrrev_b32 v4, 3, v0
v_add_u32 v4, s{sT0}, v4
v_mul_u32_u24 v4, 896, v4
v_and_b32 v5, 7, v0
v_lshrrev_b32 v6, 4, v0
v_xor_b32 v6, v5, v6
v_lshl_add_u32 v{vDX0}, v6, 4, v4
v_xor_b32 v6, 4, v6
v_lshl_add_u32 v{vDX1}, v6, 4, v4
v_add_u32 v{vDX1}, 7168, v{vDX1}
s_lshl_b32 s{sM0X}, s{sW}, 11
s_mov_b32 s{rX+2}, {2048*896}
s_mov_b32 s{rX+3}, 0x20000
s_lshl_b32 s{sMEAN}, s2, 3
s_add_u32 s{sMEAN}, s{sMEAN}, s{sW}
s_mul_i32 s{sT1}, s{sMEAN}, 896
v_lshlrev_b32 v{vL16}, 4, v0
v_add_u32 v7, s{sT1}, v{vL16}
v_mov_b32 v5, {DUMP}
v_cmp_gt_u32 vcc, 56, v0
v_cndmask_b32 v7, v5, v7, vcc
v_cndmask_b32 v{vRT+1}, 0, 1.0, vcc""")

def after_kernarg():
    e("s_waitcnt lgkmcnt(0)")
    e(f"s_load_dword s{sTAG}, s[{pWS}:{pWS+1}], {EPOCH}")
    e(f"s_mov_b32 s{rX}, s{pX}\ns_and_b32 s{rX+1}, s{pX+1}, 0xffff")
    return e(f"buffer_load_dwordx4 {vr(vROW,4)}, v7, s[{rX}:{rX+3}], 0 offen")

def loop_setup(xbias):
    e(f"""v_lshrrev_b32 v4, 2, v0
v_lshrrev_b32 v5, 4, v0
v_xor_b32 v4, v4, v5
v_and_b32 v4, 1, v4
v_and_b32 v5, 3, v0
v_or_b32 v4, v4, v5
v_cmp_eq_u32 vcc, 0, v4
v_mov_b32 v5, 0x3f803f80
v_and_b32 v4, 31, v0
v_cndmask_b32 v{vSEL}, 0, v5, vcc
v_cndmask_b32 v{vSEL+1}, 0, v5, vcc
v_cndmask_b32 v{vSEL+2}, 0, v5, vcc
v_cndmask_b32 v{vSEL+3}, 0, v5, vcc
s_add_u32 s{sT3}, s{sT3}, {xbias}
v_lshl_add_u32 v5, v4, 7, s{sT3}
v_bfe_u32 v4, v0, 1, 3
v_lshrrev_b32 v6, 5, v0
v_xor_b32 v4, v4, v6
v_lshl_add_u32 v{vAX}, v4, 4, v5""")
    for j in range(1, 4): e(f"v_xor_b32 v{vAX+j}, {32*j}, v{vAX}")
    e(f"""s_lshl_b32 s{sT0}, s{sMEAN}, 4
s_add_u32 s{sT0}, s{sT0}, {STATS}
v_mov_b32 v5, {DUMP}
v_mov_b32 v6, s{sT0}
v_cmp_eq_u32 vcc, 63, v0
v_cndmask_b32 v{vRT+2}, v5, v6, vcc""")
    e(srd_s(rWS, pWS, WS_USED))

def misc_text():
    return f"""v_mov_b32 v5, {DUMP}
v_lshlrev_b32 v4, 2, v0
v_cmp_gt_u32 vcc, {1 if 'flag1' in DBG else 32}, v0
v_cndmask_b32 v{vZ0}, v5, v4, vcc
s_mov_b32 s{sHALF}, 0
s_mov_b32 s{sHALF+1}, -1
s_mov_b32 s{sEPS}, {f32(1e-6)}
s_mov_b32 s{sEPS+1}, {f32(1e-6)}
s_mov_b32 s{sCT}, s{sGSEL}
s_lshl_b32 s{sTB}, s{sXCD}, 2
s_add_u32 s{sTB}, s{sTB}, s{sSUB}
"""

def wave_sum(r):
    return [f"v_add_f32_dpp v{r}, v{r}, v{r} {m} bank_mask:0xf" for m in
            ("quad_perm:[1,0,3,2] row_mask:0xf", "quad_perm:[2,3,0,1] row_mask:0xf", "row_half_mirror row_mask:0xf", "row_mirror row_mask:0xf",
             "row_bcast:15 row_mask:0xa", "row_bcast:31 row_mask:0xc")]

def mall_prefetch():
    if opt('mpf', 1) == 0: return
    st = k.state()
    L1, L2 = k.newlabel('Lpf'), k.newlabel('Lpf')
    e(f"s_cmp_lg_u32 s{sW}, 6\ns_cbranch_scc1 {L1}")
    e(f"s_mul_i32 s{sT0}, s2, {49*128}\nv_min_u32 v4, 48, v0\nv_lshl_add_u32 v4, v4, 7, s{sT0}\nglobal_load_dword v{vDUM}, v4, s[{pW2}:{pW2+1}]")
    k.label(L1)
    e(f"s_cmp_lg_u32 s{sW}, 5\ns_cbranch_scc1 {L2}")
    e(f"s_mul_i32 s{sT0}, s2, {13*128}\nv_min_u32 v4, 12, v0\nv_lshl_add_u32 v4, v4, 7, s{sT0}\nv_min_u32 v4, {448*896-4}, v4\nglobal_load_dword v{vDUM}, v4, s[{pWO}:{pWO+1}]")
    e(f"v_min_u32 v4, 6, v0\nv_lshlrev_b32 v4, 7, v4\nglobal_load_dword v{vDUM}, v4, s[{pB2}:{pB2+1}]")
    k.label(L2)
    L3 = k.newlabel('Lpf')
    e(f"s_cmp_lg_u32 s{sW}, {4 if opt('c6', 1) else 9}\ns_cbranch_scc1 {L3}")
    e(f"s_lshr_b32 s{sT0}, s2, 3\ns_mul_i32 s{sT0}, s{sT0}, {56*896}\ns_add_u32 s{sT0}, s{sT0}, 768\nv_min_u32 v4, 55, v0\nv_mul_u32_u24 v4, 896, v4\nv_add_u32 v4, s{sT0}, v4\nglobal_load_dword v{vDUM}, v4, s[{pW2}:{pW2+1}]")
    k.label(L3)
    k.set_state(st)

def rowstat(rtok):
    a = vRT
    k.wait(vm=rtok)
    it = []
    for d in range(4):
        it += [f"v_lshlrev_b32 v{vRU+2*d}, 16, v{vROW+d}", f"v_and_b32 v{vRU+2*d+1}, 0xffff0000, v{vROW+d}"]
    it += [f"v_pk_add_f32 {vr(vROW,2)}, {vr(vRU,2)}, {vr(vRU+2,2)}", f"v_pk_add_f32 {vr(vROW+2,2)}, {vr(vRU+4,2)}, {vr(vRU+6,2)}",
           f"v_pk_add_f32 {vr(vROW,2)}, {vr(vROW,2)}, {vr(vROW+2,2)}", f"v_add_f32 v{a}, v{vROW}, v{vROW+1}"]
    it += wave_sum(a)
    it += [f"v_mul_f32 v{vGR}, {f32(1/448)}, v{a}", f"v_readlane_b32 s{sMEAN}, v{vGR}, 63", f"v_mul_f32 v{a}, s{sMEAN}, v{vRT+1}"]
    for d in range(4): it.append(f"v_pk_add_f32 {vr(vRU+2*d,2)}, {vr(vRU+2*d,2)}, {vr(a,2)} op_sel_hi:[1,0] neg_lo:[0,1] neg_hi:[0,1]")
    it.append(f"v_pk_mul_f32 {vr(vROW,2)}, {vr(vRU,2)}, {vr(vRU,2)}")
    for d in range(1, 4): it.append(f"v_pk_fma_f32 {vr(vROW,2)}, {vr(vRU+2*d,2)}, {vr(vRU+2*d,2)}, {vr(vROW,2)}")
    it.append(f"v_add_f32 v{a}, v{vROW}, v{vROW+1}")
    it += wave_sum(a)
    it.append(f"v_mul_f32 v{vGR+1}, {f32(1/448)}, v{a}")
    for x in it: e(x)
    e(f"s_waitcnt lgkmcnt(0)\ns_mul_i32 s{sTAG}, s{sTAG}, 1664525\ns_add_u32 s{sTAG}, s{sTAG}, 1013904223")
    e(f"v_mov_b32 v{vTG}, s{sTAG}\nv_mov_b32 v{vGR+2}, s{sTAG}\nv_mov_b32 v{vGR+3}, s{sTAG}")
    e(f"buffer_store_dwordx4 {vr(vGR,4)}, v{vRT+2}, {WS}, 0 offen sc1")

def gelu_pk(acc, out, kp, sp, tmp):
    o = []
    for h in range(2):
        a = acc + 8 * h; t = tmp + 8 * h
        for p in range(4): o.append(f"v_pk_mul_f32 {vr(t+2*p,2)}, {vr(a+2*p,2)}, {vr(a+2*p,2)}")
        for p in range(4): o.append(f"v_pk_fma_f32 {vr(t+2*p,2)}, {vr(t+2*p,2)}, {vr(kp+2,2)}, {vr(kp,2)} op_sel_hi:[1,0,0]")
        for p in range(4): o.append(f"v_pk_mul_f32 {vr(t+2*p,2)}, {vr(t+2*p,2)}, {vr(a+2*p,2)}")
        for p in range(8): o.append(f"v_exp_f32 v{t+p}, v{t+p}")
        for p in range(4): o.append(f"v_pk_fma_f32 {vr(t+2*p,2)}, {vr(t+2*p,2)}, {vr(sp,2)}, {vr(sp,2)} op_sel_hi:[1,0,0]")
        for p in range(8): o.append(f"v_rcp_f32 v{t+p}, v{t+p}")
        for p in range(4): o.append(f"v_pk_mul_f32 {vr(t+2*p,2)}, {vr(t+2*p,2)}, {vr(a+2*p,2)}")
        for p in range(4): o.append(f"v_cvt_pk_bf16_f32 v{out+4*h+p}, v{t+2*p}, v{t+2*p+1}")
        o.append(('st', h))
    return o
def phi_pk(acc, out, rfun, rlfun, sel, tmp):
    o = []
    for h in range(2):
        a = acc + 8 * h; t = tmp + 8 * h
        for p in range(4): o.append(f"v_pk_mul_f32 {vr(t+2*p,2)}, {vr(a+2*p,2)}, {rlfun(4*h+p)} op_sel_hi:[1,{sel}]")
        for p in range(4): o.append(f"v_pk_fma_f32 {vr(a+2*p,2)}, {vr(a+2*p,2)}, {rfun(4*h+p)}, {sr(sEPS,2)} op_sel_hi:[1,{sel},0]")
        for p in range(8): o.append(f"v_exp_f32 v{t+p}, v{t+p} clamp")
        for p in range(8): o.append(f"v_max_f32 v{a+p}, s{sEPS}, v{a+p}")
        for p in range(4): o.append(f"v_pk_add_f32 {vr(t+2*p,2)}, {vr(t+2*p,2)}, {vr(a+2*p,2)}")
        for p in range(4): o.append(f"v_cvt_pk_bf16_f32 v{out+4*h+p}, v{t+2*p}, v{t+2*p+1}")
        o.append(('st', h))
    return o
def skew(chains):
    o = []; L = len(chains[0]); n = len(chains)
    for t in range(L + 2 * n):
        for i, c in enumerate(chains):
            s = t - 3 * (i // 4)
            if 0 <= s < len(c) and c[s] is not None: o.append(c[s])
    return o
def gelu_sc(acc, out, kp, sp, tmp, half):
    ch = []
    for p in range(8):
        a = acc + 8 * half + p; t = tmp + p
        c = [f"v_mul_f32 v{t}, v{a}, v{a}", f"v_fma_f32 v{t}, v{t}, v{kp+2}, v{kp}", f"v_mul_f32 v{t}, v{t}, v{a}", f"v_exp_f32 v{t}, v{t}",
             f"v_fma_f32 v{t}, v{t}, v{sp}, v{sp}", f"v_rcp_f32 v{t}, v{t}", f"v_mul_f32 v{t}, v{t}, v{a}",
             f"v_cvt_pk_bf16_f32 v{out+4*half+p//2}, v{t-1}, v{t}" if p & 1 else None]
        ch.append(c)
    return skew(ch)
def phi_sc(acc, out, r, rl, tmp, half):
    ch = []
    for p in range(8):
        a = acc + 8 * half + p; t = tmp + p
        c = [f"v_mul_f32 v{t}, v{a}, v{rl}", f"v_fma_f32 v{a}, v{a}, v{r}, s{sEPS}", f"v_exp_f32 v{t}, v{t} clamp", f"v_max_f32 v{a}, s{sEPS}, v{a}",
             f"v_add_f32 v{t}, v{t}, v{a}", f"v_cvt_pk_bf16_f32 v{out+4*half+p//2}, v{t-1}, v{t}" if p & 1 else None]
        ch.append(c)
    return skew(ch)

vAW = 17
vBIAS = 25
vXB = 32; vWB = 48; vACC = 72; vCS = 136
vAX2 = 120
vSG = 168; vCG = 172; vGA2 = 21; vCP = 22

def p1_dma(kind, i):
    slot = (i % 3) * SLOT
    out = [f"s_add_u32 m0, s{sM0X}, {slot}\ns_lshl_b32 s{sSOX}, s{sCC}, 7\nbuffer_load_dwordx4 v{vDX0}, s[{rX}:{rX+3}], s{sSOX} offen lds"]
    if kind == 'M':
        out.append(f"s_add_u32 m0, s{sM0X}, {slot + 1024}\ns_mul_i32 s{sSO0}, s{sCC}, s{sPSTEP0}\nbuffer_load_dwordx4 v{vDX1}, s[{rX}:{rX+3}], s{sSOX} offen lds")
        for lc in range(3):
            nx = f"s_mul_i32 s{sSO0+lc+1}, s{sCC}, s{sPSTEP0+lc+1}" if lc < 2 else f"s_add_u32 s{sCC}, s{sCC}, 1"
            out.append(f"s_add_u32 m0, s{sM0W}, {slot + lc*8192}\n{nx}\n"
                       f"buffer_load_dwordx4 v{vDW0+lc}, s[{rW0+4*lc}:{rW0+4*lc+3}], s{sSO0+lc} offen lds")
    else:
        out.append(f"s_add_u32 m0, s{sM0X}, {slot + 1024}\ns_mul_i32 s{sSO0}, s{sCC}, {64*2688}\nbuffer_load_dwordx4 v{vDX1}, s[{rX}:{rX+3}], s{sSOX} offen lds")
        nxs = [f"s_add_u32 s{sSO1}, s{sSO0}, 896", "s_nop 0", "s_nop 0", f"s_add_u32 s{sCC}, s{sCC}, 1"]
        for kv in range(2):
            for jj in range(2):
                out.append(f"s_add_u32 m0, s{sM0W}, {slot + kv*16384 + jj*1024}\n{nxs[2*kv+jj]}\n"
                           f"buffer_load_dwordx4 v{vDW0+jj}, s[{rW0}:{rW0+3}], s{sSO0+kv} offen lds")
    out[-1] += f"\ns_cmp_eq_u32 s{sCC}, 7\ns_cselect_b32 s{sCC}, 0, s{sCC}"
    return out

def cs_addr_text(slot_s, pub_s):
    return f"""s_lshl_b32 s{sT0}, s{slot_s}, 12
s_add_u32 s{sT0}, s{sT0}, {CSG}
v_add_u32 v{vGA2}, s{sT0}, v{vL16}
s_lshl_b32 s{sT1}, s{sC0}, 9
v_add_u32 v4, s{sT1}, v{vGA2}
v_mov_b32 v5, {DUMP}
v_cndmask_b32 v4, v4, v5, {HALF}
s_cmp_lt_u32 s{sRB}, 7
s_cselect_b32 s{sT1}, s{pub_s}, 1
s_cmp_eq_u32 s{sT1}, 0
s_cselect_b32 s{sT1}, 0, {DUMP}
v_add_u32 v{vCP}, s{sT1}, v4
"""
def cs_pub(nt, vCS=136, vRU=212):
    return [f"v_mov_b32 v{vRU+t}, v{vCS+4*t}" for t in range(nt)] + [f"v_mov_b32 v{vRU+t}, v{vTG}" for t in range(nt, 4)] + \
           [f"buffer_store_dwordx4 {vr(vRU,4)}, v{vCP}, {WS}, 0 offen sc1"]
def gran_items(vSG=168, vCG=172):
    GL = [f"buffer_load_dwordx4 {vr(vSG,4)}, v{vGA}, {WS}, 0 offen sc1"] + \
         [f"buffer_load_dwordx4 {vr(vCG+4*q,4)}, v{vGA2}, {WS}, 0 offen offset:{1024*q} sc1" for q in range(4)]
    G = {}
    def last_g(): G['g'] = e(GL[-1])
    a_ = vSG + 2
    gtest = f"""v_cndmask_b32 v{vCG+15}, v{vCG+15}, v{vTG}, {HALF}
v_xor_b32 v{a_}, v{vTG}, v{vSG+3}
v_bitop3_b32 v{a_}, v{a_}, v{vCG+3}, v{vTG} bitop3:0xf6
v_bitop3_b32 v{a_}, v{a_}, v{vCG+7}, v{vTG} bitop3:0xf6
v_bitop3_b32 v{a_}, v{a_}, v{vCG+11}, v{vTG} bitop3:0xf6
v_bitop3_b32 v{a_}, v{a_}, v{vCG+15}, v{vTG} bitop3:0xf6
v_cmp_ne_u32 vcc, 0, v{a_}
s_cmp_lg_u64 vcc, 0"""
    def gcheck():
        k.wait(vm=G['g']); verify("\n".join(GL), gtest, 4)
    return GL[:-1] + [last_g], gcheck
def cs_sum(nt, dst, vCG=172):
    it = []
    for t in range(nt): it.append(f"v_cndmask_b32 v{vCG+12+t}, v{vCG+12+t}, 0, {HALF}")
    for t in range(nt): it += [f"v_add_f32 v{vCG+t}, v{vCG+t}, v{vCG+4+t}", f"v_add_f32 v{vCG+8+t}, v{vCG+8+t}, v{vCG+12+t}"]
    for t in range(nt): it.append(f"v_add_f32 v{vCG+t}, v{vCG+t}, v{vCG+8+t}")
    for t in range(nt): it.append(f"v_mov_b32 v{vCG+4+t}, v{vCG+t}")
    for t in range(nt): it.append(f"v_permlane32_swap_b32 v{vCG+t}, v{vCG+4+t}")
    for t in range(nt): it.append(f"v_add_f32 v{dst+t}, v{vCG+t}, v{vCG+4+t}")
    return it

def main_loop(kind, D, per, ax2, tail=None, lead=None):
    SETS = [32, 48, 232]
    xbuf = lambda n, u: SETS[n % 3] + 4 * u
    wbuf = lambda n, t: SETS[n % 3] + 8 + 4 * t
    def reads(n):
        i, j = divmod(n, 4); sl = i % 3
        xa = (ax2 if sl == 2 else vAX) + j; xo = SLOT if sl == 1 else 0
        o = [f"ds_read_b128 {vr(xbuf(n,0),4)}, v{xa} offset:{xo}"]
        for kv in range(2):
            for rd in range(2): o.append(f"ds_read_b64_tr_b16 {vr(wbuf(n,kv)+2*rd,2)}, v{vAW+sl} offset:{kv*16384 + j*4096 + rd*1024}")
        o.append(f"ds_read_b128 {vr(xbuf(n,1),4)}, v{xa} offset:{xo+4096}")
        return o
    k.wait(vm=D[0]); e("s_barrier")
    stamp(1)
    RT = {}
    for n in range(2):
        for x in reads(n): RT[n] = e(x)
    pend = p1_dma(kind, 2); pend_i = 2
    for n in range(28):
        i, j = divmod(n, 4)
        mf = []
        for t in range(4):
            acc = vr(vACC + 16 * t, 16); u, kv = t >> 1, t & 1
            mf.append(f"v_mfma_f32_32x32x16_bf16 {acc}, {vr(xbuf(n,u),4)}, {vr(wbuf(n,kv),4)}, {'0' if n == 0 else acc}")
        if i == 0:
            for t in range(2):
                acc = vr(vCS + 4 * t, 4)
                mf.append(f"v_mfma_f32_16x16x32_bf16 {acc}, {vr(vSEL,4)}, {vr(wbuf(n,t),4)}, {'0' if n == 0 else acc}")
        k.wait(lg=RT[n])
        e(mf[0])
        if j == 2:
            assert not pend
            e(mf[1]); mf = mf[1:]
            e("s_waitcnt lgkmcnt(0)")
            if i < 6: k.wait(vm=D[i + 1])
            e("s_barrier")
            stamp(2 + i, chunk=True)
            pend_i = i + 3
            pend = (lead or {}).get(i, []) + (p1_dma(kind, i + 3) if i + 3 < 7 else tail[i + 3 - 7] if i < 6 else [])
        if n + 2 < 28:
            for x in reads(n + 2): RT[n + 2] = e(x)
        left = {2: 3, 3: 2, 0: 1, 1: 1}[j] if n >= 2 else 2 - n
        nd = -(-len(pend) // left)
        dmm = pend[:nd]; pend = pend[nd:]
        other = spread([('d', x) for x in dmm] or [('n', None)], [('f', x) for x in per[n]])
        other = [f for f in other if f[0] != 'n']
        for kind_, x in spread([('m', x) for x in mf[1:]], other):
            t_ = emit_item(x)
            if kind_ == 'd' and t_ is not None: D[pend_i] = t_

FLAG = f"buffer_store_dword v{vTG}, v{vZ0}, {WS}, s{sFLO} offen sc1\ns_add_u32 s{sFLO}, s{sFLO}, 128"

XP = [65536, 81920, 114688]
WP = [[49152, 57344], [98304, 106496], [131072, 139264]]
L2P = [SCR] + [8192 * i for i in range(6)]
def ring(c): return (c + 2) % 3
def phase1_M():
    mg = sMG
    vX = 96; AC = [64, 80]; mCS = 48; vK = 48; vBA = 56; vAA = [228, 232, 60]; sm = 26
    mSG = 208; mCG = 212; R = 236; vC = 244
    WS3 = [32, 40, 240]
    T = {}
    def tokset(key, text):
        def f(): T[key] = e(text)
        return f
    def dma_c(c):
        p = ring(c)
        return [f"s_add_u32 m0, s{sM0X}, {XP[p]}\ns_lshl_b32 s{sSOX}, s{sCC}, 7\nbuffer_load_dwordx4 v{vDX0}, s[{rX}:{rX+3}], s{sSOX} offen lds",
                f"s_add_u32 m0, s{sM0X}, {XP[p]+1024}\ns_mul_i32 s{sSO0}, s{sCC}, s{sPSTEP0}\nbuffer_load_dwordx4 v{vDX1}, s[{rX}:{rX+3}], s{sSOX} offen lds",
                f"s_add_u32 m0, s{sM0W}, {WP[p][0]}\ns_mul_i32 s{sSO1}, s{sCC}, s{sPSTEP0+1}\nbuffer_load_dwordx4 v{vDW0}, s[{rW0}:{rW0+3}], s{sSO0} offen lds",
                f"s_add_u32 m0, s{sM0W}, {WP[p][1]}\ns_add_u32 s{sCC}, s{sCC}, 1\nbuffer_load_dwordx4 v{vDW0+1}, s[{rW1}:{rW1+3}], s{sSO1} offen lds\n"
                f"s_cmp_eq_u32 s{sCC}, 7\ns_cselect_b32 s{sCC}, 0, s{sCC}"]
    def dma_2(c):
        return (f"s_add_u32 m0, s{sM0W}, {L2P[c]}\ns_nop 0\nbuffer_load_dwordx4 v{vDW0+2}, s[{rW2}:{rW2+3}], s{sSO2} offen lds\n"
                f"s_add_u32 s{sSO2}, s{sSO2}, s{sPSTEP0+2}\ns_cmp_eq_u32 s{sSO2}, s{rW2+2}\ns_cselect_b32 s{sSO2}, 0, s{sSO2}")
    def wf(a, j, dst): return [f"ds_read_b64_tr_b16 {vr(dst+2*rd,2)}, v{vAW + (a >> 16)} offset:{(a & 0xffff) + j*2048 + rd*512}" for rd in range(2)]
    e(f"s_and_b32 s{sT0}, s{sXCD}, 1\ns_mul_i32 s{sT0}, s{sT0}, 6\ns_add_u32 s{mg}, s{sT0}, s{sGSEL}")
    e(f"""v_lshrrev_b32 v4, 3, v0
v_lshl_add_u32 v4, s{sW}, 3, v4
v_bfe_u32 v5, v0, 4, 1
v_lshlrev_b32 v5, 2, v5
v_and_b32 v6, 7, v0
v_xor_b32 v5, v5, v6
v_lshlrev_b32 v5, 4, v5
s_lshl_b32 s{sM0W}, s{sW}, 10
s_mul_i32 s{sT3}, s{mg}, 3""")
    for lc in range(3):
        r = rW0 + 4 * lc
        e(f"""s_add_u32 s{sT0}, s{sT3}, {lc}
s_sub_u32 s{sT1}, s{sT0}, 28
s_cmp_lt_u32 s{sT0}, 35
s_cselect_b32 s{r+2}, {448*2688}, 0
s_cmp_lt_u32 s{sT0}, 28
s_cselect_b32 s{r+2}, {448*3584}, s{r+2}
s_cselect_b32 s{sT0}, s{sT0}, s{sT1}
s_movk_i32 s{sT1}, 2688
s_cselect_b32 s{sT1}, 3584, s{sT1}
s_lshl_b32 s{sT0}, s{sT0}, 7
s_lshl_b32 s{sPSTEP0+lc}, s{sT1}, 6
v_mad_u32_u24 v{vDW0+lc}, v4, s{sT1}, v5
v_add_u32 v{vDW0+lc}, s{sT0}, v{vDW0+lc}
s_mov_b32 s{r+3}, 0x20000""")
    e(f"s_mul_i32 s{sSO2}, s{sCC}, s{sPSTEP0+2}")
    rtok = after_kernarg()
    stamp(0)
    e(f"s_and_b32 s{pW1+1}, s{pW1+1}, 0xffff\ns_and_b32 s{pWQKV+1}, s{pWQKV+1}, 0xffff")
    for lc in range(3):
        r = rW0 + 4 * lc
        e(f"s_cmp_eq_u32 s{sPSTEP0+lc}, {64*3584}\ns_cselect_b32 s{r}, s{pW1}, s{pWQKV}\ns_cselect_b32 s{r+1}, s{pW1+1}, s{pWQKV+1}")
    for g in dma_c(0): T[0] = e(g)
    e(f"s_and_b32 s{sLO}, s{sW}, 3\ns_lshr_b32 s{sHI}, s{sW}, 2\ns_lshl_b32 s{sT3}, s{sLO}, 12")
    loop_setup(65536)
    e(trpat(4, 5, 3) + f"s_lshl_b32 s{sT0}, s{sHI}, 6\nv_xor_b32 v{vAW}, s{sT0}, v4\nv_add_u32 v{vAW+1}, 65536, v{vAW}\nv_add_u32 v{vAW+2}, 131072, v{vAW}")
    e(dma_2(0))
    for g in dma_c(1): T[1] = e(g)
    mall_prefetch()
    rowstat(rtok)
    m, var = mSG, mSG + 1
    r1, w_, rm = R + 5, R + 6, R + 7
    setup1 = misc_text() + f"s_lshl_b32 s{sT4}, s{mg}, 1\ns_add_u32 s{sT4}, s{sT4}, s{sHI}\ns_mul_i32 s{sTILE0}, s{mg}, 6\ns_add_u32 s{sTILE0}, s{sTILE0}, s{sHI}\n" + \
        cs_addr_text(sT4, sLO) + srd_s(rMISC, pB1, 3584) + f"s_lshl_b32 s{sT0}, s{sTILE0}, 6\nv_and_b32 v4, 31, v0\nv_lshl_add_u32 v{vBIAS+2}, v4, 1, s{sT0}\n"
    bias = [f"buffer_load_ushort v{vBIAS+t}, v{vBIAS+2}, s[{rMISC}:{rMISC+3}], 0 offen offset:{128*t}" for t in range(3)]
    setup2 = f"""s_lshl_b32 s{sT0}, s{sRB}, 2
s_add_u32 s{sT0}, s{sT0}, s{sLO}
s_lshl_b32 s{sT1}, s{sT0}, 9
s_add_u32 s{sT1}, s{sT1}, {STATS}
v_and_b32 v4, 31, v0
v_lshl_add_u32 v{vGA}, v4, 4, s{sT1}
s_lshl_b32 s{sFLO}, s{sT0}, 13
s_mul_i32 s{sT0}, s{sT0}, {140*1024}
s_lshl_b32 s{sT1}, s{sTILE0}, 11
s_add_u32 s{sHQO}, s{sT0}, s{sT1}
s_add_u32 s{sHQO}, s{sHQO}, {HQ}
s_lshl_b32 s{sT1}, s{sT4}, 7
s_add_u32 s{sFLO}, s{sFLO}, s{sT1}
s_add_u32 s{sFLO}, s{sFLO}, {FLH}
""" + p2_setup_text()
    early = f"v_mov_b32 v{vBA+3}, 0\n" + "".join(f"v_lshlrev_b32 v{vAA[t]+1}, 16, v{vBIAS+t}\nv_mov_b32 v{vAA[t]+2}, v{vBIAS+t}\nv_mov_b32 v{vAA[t]+3}, 0\n" for t in range(3))
    gl, gcheck = gran_items(mSG, mCG)
    C3 = [mCG + 8, mCG + 9, mCG + 10]
    aug = [gcheck] + lines(f"""v_add_f32 v{vK}, {f32(EPS)}, v{var}
v_mov_b32 v{vK+1}, {f32(EPS)}
v_fma_f32 v{vK+1}, v{vK+1}, v{vK}, v{var}
v_rsq_f32 v{vK+4}, v{vK}
v_rsq_f32 v{vK+3}, v{vK+1}""") + cs_sum(3, mCG + 8, mCG) + lines(f"""v_mul_f32 v{sm}, v{vK+1}, v{vK+3}
v_cvt_pk_bf16_f32 v{R}, -v{m}, v{sm}
v_lshlrev_b32 v{R+1}, 16, v{R}
v_and_b32 v{R+2}, 0xffff0000, v{R}
v_sub_f32 v{R+1}, -v{m}, v{R+1}
v_sub_f32 v{R+2}, v{sm}, v{R+2}
v_cvt_pk_bf16_f32 v{R+3}, -v{m}, v{R+1}
v_cvt_pk_bf16_f32 v{R+2}, v{R+2}, 0
v_cndmask_b32 v{vBA}, v{R+3}, 0, {HALF}
v_cndmask_b32 v{vBA+1}, v{R}, 0, {HALF}
v_cndmask_b32 v{vBA+2}, v{R+2}, 0, {HALF}""")
    for t in range(3):
        c = C3[t]; a = vAA[t]
        aug += lines(f"""v_cvt_pk_bf16_f32 v{a}, v{c}, v{c}
v_and_b32 v{R}, 0xffff0000, v{a}
v_sub_f32 v{R}, v{c}, v{R}
v_cvt_pk_bf16_f32 v{a+1}, v{R}, v{a+1}""")
    post = lines(f"""v_mul_f32 v{vK}, {f32(GC0)}, v{vK+3}
v_mul_f32 v{vK+5}, v{vK+3}, v{vK+3}
v_mul_f32 v{vK+5}, {f32(GC1)}, v{vK+5}
v_mul_f32 v{vK+2}, v{vK+5}, v{vK}
v_mul_f32 v{vK+6}, {f32(LOG2E)}, v{vK+4}""")
    per = {n: [] for n in range(28)}
    dmx = {n: [] for n in range(28)}
    distribute(per, 0, 7, atoms(setup1)); per[9] += cs_pub(3, mCS) + bias
    distribute(per, 10, 17, atoms(setup2)); distribute(per, 19, 20, atoms(early)); distribute(per, 20, 22, atoms(wa_text(), 2))
    for st_ in [5, 9, 13, 17, 21][:PFP]: per[st_].append(pf_item())
    G0 = opt('gstep', 18)
    distribute(per, G0, G0 + 1, gl)
    distribute(per, 23, 27, aug)
    distribute(dmx, 0, 1, [tokset(2, g) for g in dma_c(2)])
    for c in range(3, 7): distribute(dmx, 4 * (c - 3) + 2, 4 * (c - 3) + 4, [tokset(c, g) for g in dma_c(c)])
    for c, st_ in zip(range(1, 7), (12, 16, 17, 20, 21, 21)): dmx[st_].append(tokset('l2', dma_2(c)))
    distribute(dmx, 22, 27, [tokset('P0', g) for g in p2_dma(0)])
    def reads(n):
        c, j = divmod(n, 4); p = ring(c); ws = WS3[n % 3]
        return [f"ds_read_b128 {vr(vX+4*n,4)}, v{vAX+j} offset:{XP[p]-65536}"] + wf(WP[p][0], j, ws) + wf(WP[p][1], j, ws + 4)
    k.wait(vm=T[0]); e("s_barrier")
    stamp(1)
    RT = {}
    MP = True
    for n in range(2):
        for x in reads(n): RT[n] = e(x)
    CT = {}
    for n in range(28):
        c, j = divmod(n, 4); ws = WS3[n % 3]
        if j == 2:
            e("s_waitcnt lgkmcnt(0)")
            k.wait(vm=T[c + 1] if c < 6 else T['l2'])
            e("s_barrier")
            stamp(2 + c, chunk=True)
        mf = [f"v_mfma_f32_32x32x16_bf16 {vr(AC[t],16)}, {vr(ws+4*t,4)}, {vr(vX+4*n,4)}, {'0' if n == 0 else vr(AC[t],16)}" for t in range(2)]
        if c == 0: mf += [f"v_mfma_f32_16x16x32_bf16 {vr(mCS+4*t,4)}, {vr(vSEL,4)}, {vr(ws+4*t,4)}, {'0' if n == 0 else vr(mCS+4*t,4)}" for t in range(2)]
        rd = [tokset(('r', n + 2), x) for x in reads(n + 2)] if n + 2 < 28 else []
        if 2 <= n < 6: rd += [tokset(('c', n - 2), x) for x in wf(L2P[0], n - 2, [60, 228, 232, 236][n - 2])]
        if 4 <= n < 8:
            def csm(q=n - 4):
                k.wait(lg=T[('c', q)])
                e(f"v_mfma_f32_16x16x32_bf16 {vr(mCS+8,4)}, {vr(vSEL,4)}, {vr([60, 228, 232, 236][q],4)}, {'0' if q == 0 else vr(mCS+8,4)}")
            mf.append(csm)
        k.wait(lg=RT[n] if n < 2 else T[('r', n)])
        other = spread(dmx[n], per[n]) if dmx[n] else per[n]
        for x in [mf[0]] + rd + spread(mf[1:], other): emit_item(x)
    for x in spread([f"v_mfma_f32_32x32x16_bf16 {vr(AC[t],16)}, {vr(vAA[t],4)}, {vr(vBA,4)}, {vr(AC[t],16)}" for t in range(2)], post): e(x)
    stamp(2); stamp(9, chunk=True)
    vT = 32
    PADDR = poll_addr_text().replace('v4', 'v12').replace('v5', 'v13').replace('v6', 'v14').replace('v7', 'v15')
    def hst(out, h, inc):
        T['st'] = e(f"buffer_store_dwordx4 {vr(out+4*h,4)}, v{vL16}, {WS}, s{sHQO} offen offset:{1024*h} sc1")
        if h: e(f"s_add_u32 s{sHQO}, s{sHQO}, {inc}")
    def tile(acc, out, kind, inc=4096):
        ep = gelu_pk(acc, out, vK, sm, vT) if kind == 'G' else phi_pk(acc, out, lambda p: vr(vK + 4, 2), lambda p: vr(vK + 6, 2), 0, vT)
        for x in ep:
            if isinstance(x, tuple): hst(out, x[1], inc)
            else: e(x)
    def tile_sc(acc, out, kind):
        for h in range(2):
            for x in (gelu_sc(acc, out, vK, sm, vT + 8 * h, h) if kind == 'G' else phi_sc(acc, out, vK + 4, vK + 6, vT + 8 * h, h)): e(x)
            hst(out, h, 4096)
    FLAGST = f"buffer_store_dword v{vTG}, v{vZ0}, {WS}, s{sFLO} offen sc1"
    e(f"s_lshl_b32 s{sT0}, s{sLO}, 10\ns_add_u32 s{sT0}, s{sT0}, {SCR2 + 4096}\nv_add_u32 v16, s{sT0}, v{vL16}")
    e(f"s_cmp_eq_u32 s{sHI}, 0\ns_cbranch_scc1 Lnow")
    e(f"ds_write_b128 v16, {vr(vAA[2],4)}")
    k.label('Lnow')
    e(f"v_mov_b32 v22, {SCR2}\nv_mov_b32 v13, 0\nds_write_b32 v22, v13\ns_waitcnt lgkmcnt(0)\ns_barrier")
    def slot0_free():
        Lp, Ld = k.newlabel('Lsf'), k.newlabel('Lsf')
        e(f"s_movk_i32 s{sT2}, {SPIN_MAX}")
        k.label(Lp)
        e(f"ds_read_b32 v13, v22\ns_waitcnt lgkmcnt(0)\nv_readfirstlane_b32 s{sT0}, v13\ns_cmp_ge_u32 s{sT0}, 256\ns_cbranch_scc1 {Ld}")
        e(f"s_sub_u32 s{sT2}, s{sT2}, 1\ns_cbranch_scc1 {Ld}\ns_sleep 1\ns_branch {Lp}")
        k.label(Ld)
    e(f"s_cmp_lg_u32 s{sHI}, 0\ns_cbranch_scc1 LstrB")
    stF = (k.state(), dict(T))
    e(f"s_cmp_ge_u32 s{mg}, 10\ns_cbranch_scc1 Lphi0")
    st0 = k.state()
    tile(AC[0], 208, 'G')
    e(f"s_cmp_eq_u32 s{mg}, 9\ns_cbranch_scc1 Lphi1")
    tile(AC[1], 216, 'G')
    k.label('Lepi1')
    stok = T['st']
    def phis():
        k.label('Lphi0'); k.set_state(st0); e("s_nop 7")
        tile(AC[0], 208, 'P')
        k.label('Lphi1')
        tile(AC[1], 216, 'P')
        e("s_branch Lepi1")
    outline.append(phis)
    stamp(3)
    for q in (0, 2): e(f"v_xor_b32 v{20 + (q >> 1)}, 64, v{vAW+q}")
    RB = lambda n: [32, 40, 224, 232, 240][n % 5]
    def r2(n):
        a_ = L2P[n >> 2]; o = wf(a_, n & 3, RB(n))
        o += [f"ds_read_b64_tr_b16 {vr(RB(n)+4+2*rd,2)}, v{20 + (a_ >> 17)} offset:{(a_ & 0xffff) + (n & 3)*2048 + rd*512}" for rd in range(2)]
        return o
    W = {}
    for n in range(3):
        for x in r2(n): W[n] = e(x)
    stamp(10, chunk=True)
    per = {n: [] for n in range(28)}
    per[1] += [f"ds_read_b128 v[28:31], v16"]
    per[opt('fstep', 12)] += [lambda: k.wait(vm=stok), FLAGST + f"\ns_add_u32 s{sFLO}, s{sFLO}, 4096"]
    distribute(per, 2, 27, atoms(PADDR, 2))
    for n in range(28):
        k.wait(lg=W[n])
        mf = [f"v_mfma_f32_32x32x16_bf16 {vr(AC[t],16)}, {vr(RB(n)+4*t,4)}, {vr(vX+4*n,4)}, {'0' if n == 0 else vr(AC[t],16)}" for t in range(2)]
        e(mf[0])
        if n + 3 < 28:
            for x in r2(n + 3): W[n + 3] = e(x)
        e(mf[1])
        for x in per[n]: emit_item(x)
    e(f"v_mfma_f32_32x32x16_bf16 {vr(AC[0],16)}, {vr(vAA[2],4)}, {vr(vBA,4)}, {vr(AC[0],16)}")
    e(f"v_mfma_f32_32x32x16_bf16 {vr(AC[1],16)}, v[28:31], {vr(vBA,4)}, {vr(AC[1],16)}")
    e("v_mov_b32 v13, 1\nds_add_u32 v22, v13")
    stamp(11, chunk=True)
    for u in range(3):
        for x, _ in wreads(u, vWP + 8 * u): e(x)
    e(f"s_cmp_eq_u32 s{mg}, 11\ns_cselect_b32 s{sHQO}, {DUMP}, s{sHQO}\ns_cmp_ge_u32 s{mg}, 9\ns_cbranch_scc1 Lphi2")
    st1 = k.state()
    tile(AC[0], 96, 'G', 2048); tile(AC[1], 104, 'G', 2048)
    k.label('Lepi2')
    def phi2():
        k.label('Lphi2'); k.set_state(st1)
        tile(AC[0], 96, 'P', 2048); tile(AC[1], 104, 'P', 2048)
        e("s_branch Lepi2")
    outline.append(phi2)
    stamp(12, chunk=True)
    e("s_waitcnt vmcnt(0) lgkmcnt(0)"); e(FLAGST)
    stamp(8)
    e(POLL)
    for g in p2_dma(1): T['p1'] = e(g)
    slot0_free()
    for g in p2_dma(2) + [g for u in range(9, 12) for g in unit_dma(u)]: e(g)
    k.wait(vm=T['p1'])
    for u in range(3, 5):
        for x, _ in wreads(u, vWP + 8 * u): e(x)
    e("s_waitcnt lgkmcnt(0)")
    for g in [g for u in range(12, 14) for g in unit_dma(u)]: e(g)
    def streamB():
        k.label('LstrB'); k.set_state(stF[0]); T.clear(); T.update(stF[1])
        for g in p2_dma(1): T['p1'] = e(g)
        k.wait(vm=T['P0'])
        for u in range(3):
            for x, _ in wreads(u, vWP + 8 * u): e(x)
        e(PADDR)
        e("s_waitcnt lgkmcnt(0)")
        for g in [g for u in range(9, 12) for g in unit_dma(u)]: e(g)
        def mid():
            k.wait(vm=T['p1'])
            for u in range(3, 5):
                for x, _ in wreads(u, vWP + 8 * u): e(x)
        e(f"s_cmp_ge_u32 s{mg}, 10\ns_cbranch_scc1 LBphi0")
        sb = k.state()
        tile_sc(AC[0], 192, 'G'); mid()
        e(f"s_cmp_eq_u32 s{mg}, 9\ns_cbranch_scc1 LBphi1")
        tile_sc(AC[1], 200, 'G')
        e("s_branch LBepi")
        k.label('LBphi0'); k.set_state(sb)
        tile_sc(AC[0], 192, 'P'); mid()
        k.label('LBphi1')
        tile_sc(AC[1], 200, 'P')
        k.label('LBepi')
        stamp(12, 4)
        e(POLL)
        e("s_waitcnt vmcnt(0) lgkmcnt(0)"); e(FLAGST)
        stamp(13, 4)
        for g in [g for u in range(12, 14) for g in unit_dma(u)]: e(g)
        slot0_free()
        for g in p2_dma(2): e(g)
        e("s_branch Lp2")
    outline.append(streamB)

def phase1_KV():
    g = sMG
    kAX2 = 64; vRA = 68; vZA_ = 25
    e(f"""s_and_b32 s{sT0}, s{sXCD}, 1
s_mul_i32 s{sT1}, s{sT0}, 3
s_add_u32 s{sT3}, s{sT0}, 1
s_cmp_eq_u32 s{sGSEL}, 6
s_cselect_b32 s{g}, s{sT1}, s{sT3}
s_mul_i32 s{sT0}, s{g}, 224
s_cmp_eq_u32 s{g}, 3
s_cselect_b32 s{sT0}, 640, s{sT0}
s_add_u32 s{sT0}, s{sT0}, 896
v_lshrrev_b32 v4, 4, v0
v_lshlrev_b32 v5, 2, v4
v_sub_u32 v5, v0, v5
v_and_b32 v5, 15, v5
v_lshl_add_u32 v5, v5, 4, s{sT0}
v_lshl_add_u32 v4, s{sW}, 3, v4
v_mul_u32_u24 v4, 2688, v4
v_add_u32 v{vDW0}, v4, v5
v_add_u32 v{vDW0+1}, {4*2688}, v{vDW0}
s_lshl_b32 s{sM0W}, s{sW}, 11
s_add_u32 s{sM0W}, s{sM0W}, 16384""")
    rtok = after_kernarg()
    stamp(0)
    e(srd_s(rW0, pWQKV, 448 * 2688))
    D = {}
    for x in p1_dma('KV', 0): D[0] = e(x)
    e('s_branch Lkv2')
    yield
    k.label('Lkv2')
    e(f"s_and_b32 s{sLO}, s{sW}, 3\ns_lshr_b32 s{sHI}, s{sW}, 2\ns_lshl_b32 s{sT3}, s{sHI}, 13")
    loop_setup(0)
    e(f"""s_cmp_eq_u32 s{g}, 3
s_cselect_b32 s{sT1}, 32, 0
s_mul_i32 s{sT0}, s{sLO}, 56
s_add_u32 s{sT1}, s{sT1}, s{sT0}
v_bfe_u32 v4, v0, 2, 2
v_lshl_add_u32 v5, v4, 6, s{sT1}
v_bfe_u32 v6, v0, 4, 1
v_lshl_add_u32 v5, v6, 5, v5
v_and_b32 v6, 3, v0
v_lshl_add_u32 v5, v6, 3, v5
v_and_b32 v5, 255, v5
v_lshrrev_b32 v6, 5, v0
v_lshl_add_u32 v4, v6, 3, v4
v_lshl_add_u32 v5, v4, 8, v5
v_add_u32 v{vAW}, 16384, v5
v_add_u32 v{vAW+1}, {16384+SLOT}, v5
v_add_u32 v{vAW+2}, {16384+2*SLOT}, v5""")
    for x in p1_dma('KV', 1): D[1] = e(x)
    mall_prefetch()
    rowstat(rtok)
    vXA = 136; vWAu = 144; r1 = 152; R = 154; vC = 160; vR = 176
    setup1 = "".join(f"v_add_u32 v{kAX2+j}, {2*SLOT}, v{vAX+j}\n" for j in range(4)) + \
        f"s_lshl_b32 s{sTILE0}, s{g}, 2\ns_add_u32 s{sTILE0}, s{sTILE0}, s{sLO}\ns_add_u32 s{sT4}, s{sTILE0}, 24\n" + cs_addr_text(sT4, sHI)
    setup2 = f"""s_lshl_b32 s{sT0}, s{sRB}, 11
s_lshl_b32 s{sT1}, s{sHI}, 10
s_add_u32 s{sT0}, s{sT0}, s{sT1}
s_add_u32 s{sT0}, s{sT0}, {STATS}
v_add_u32 v{vGA}, s{sT0}, v{vL16}
""" + p2_setup_text() + poll_addr_text() + f"""s_mov_b32 s{sFLO}, {DUMP}
s_add_u32 s{sT0}, s{sM0X}, {SCR}
v_lshl_add_u32 v6, v0, 2, s{sT0}
v_lshrrev_b32 v7, 5, v0
v_lshl_add_u32 v7, v7, 4, s{sT0}
""" + "".join(f"v_mov_b32 v{r}, 0\n" for r in (vXA+2, vXA+3, vXA+6, vXA+7, vWAu+2, vWAu+3, vWAu+6, vWAu+7)) + f"""s_mov_b32 s{sMKM}, 0x10000000
s_mov_b32 s{sMKM+1}, 0x10000000
s_lshl_b32 s{sT0}, s{sLO}, 12
s_add_u32 s{sT0}, s{sT0}, {SCR}
v_add_u32 v26, s{sT0}, v{vL16}
s_lshl_b32 s{sHQO}, s{sTILE0}, 4
s_add_u32 s{sHQO}, s{sHQO}, s{sRB}
s_lshl_b32 s{sHQO}, s{sHQO}, 12
s_add_u32 s{sHQO}, s{sHQO}, {KVP}
v_mov_b32 v27, 0xff
v_mov_b32 v12, 0x3f803f80
s_lshr_b32 s{sPSTEP0}, s{sTAG}, 8
s_lshr_b32 s{sPSTEP0+1}, s{sTAG}, 16
s_lshr_b32 s{sPSTEP0+2}, s{sTAG}, 24
s_and_b32 s{sT0}, s{sTB}, 1
s_mul_i32 s{sT0}, s{sT0}, 7
s_add_u32 s{sRCT}, s{sT0}, s{sW}
s_lshr_b32 s{sT0}, s{sTB}, 1
s_mul_i32 s{sT0}, s{sT0}, 28
v_lshrrev_b32 v4, 2, v0
v_add_u32 v4, s{sT0}, v4
v_mul_u32_u24 v4, 896, v4
v_and_b32 v5, 3, v0
v_lshl_add_u32 v4, v5, 4, v4
s_lshl_b32 s{sT0}, s{sRCT}, 6
v_add_u32 v68, s{sT0}, v4
v_add_u32 v69, {16*896}, v68
""" + srd_s(rMISC, pWO, 448 * 896) + f"""s_cmp_eq_u32 s{sGSEL}, 7
s_cselect_b32 s{rMISC+2}, s{rMISC+2}, 0
"""
    gl, gcheck = gran_items()
    m, var = vSG, vSG + 1
    aug = [gcheck] + lines(f"""v_add_f32 v{r1}, {f32(EPS)}, v{var}
v_rsq_f32 v{r1}, v{r1}
v_cvt_pk_bf16_f32 v{R}, -v{m}, 0
v_mul_f32 v{r1+1}, {f32(LOG2E)}, v{r1}
ds_write_b32 v6, v{r1+1}""") + cs_sum(2, vC) + lines(f"""v_lshlrev_b32 v{R+1}, 16, v{R}
v_sub_f32 v{R+1}, -v{m}, v{R+1}
v_cvt_pk_bf16_f32 v{R+3}, -v{m}, v{R+1}
v_cndmask_b32 v{vXA}, v{R+3}, 0, {HALF}
v_cndmask_b32 v{vXA+1}, v{R}, 0, {HALF}
v_cndmask_b32 v{vXA+4}, 0, v{R+3}, {HALF}
v_cndmask_b32 v{vXA+5}, 0, v{R}, {HALF}""")
    for kv in range(2):
        c = vC + kv; a = vWAu + 4 * kv
        aug += lines(f"""v_cvt_pk_bf16_f32 v{a}, v{c}, v{c}
v_and_b32 v{R+4}, 0xffff0000, v{a}
v_sub_f32 v{R+4}, v{c}, v{R+4}
v_cvt_pk_bf16_f32 v{a+1}, v{R+4}, 0""")
    rr = []
    for u in range(2):
        for gq in range(4):
            rr.append(f"ds_read_b128 {vr(vR+16*u+4*gq,4)}, v7 offset:{128*u+32*gq}")
    per = {n: [] for n in range(28)}
    distribute(per, 0, 4, atoms(misc_text() + setup1, 3)); per[5] = cs_pub(2, 136, 188) + per[5]
    distribute(per, 6, 17, atoms(setup2))
    G0 = opt('kgstep', 13)
    per[G0] += gl
    distribute(per, 19, 23, aug)
    distribute(per, 24, 25, rr)
    distribute(per, 26, 27, atoms(wa_text(), 3))
    main_loop('KV', D, per, kAX2, [p2_dma(0), p2_dma(1)])
    for t in range(4): e(f"v_mfma_f32_32x32x16_bf16 {vr(vACC+16*t,16)}, {vr(vXA+4*(t>>1),4)}, {vr(vWAu+4*(t&1),4)}, {vr(vACC+16*t,16)}")
    stamp(2); stamp(9, chunk=True)
    vT = vXB; vPK = 48; vPVv = 56; vKV = 160
    e(f"s_mov_b32 s{sMK}, 0x3f317218\ns_mov_b32 s{sMK+1}, 0x3f317218")
    k.wait(vm=D[8])
    for u in range(5):
        for x, _ in wreads(u, vWP + 8 * u): e(x)
    def w2tail(cond):
        L, Lh = k.newlabel('Lkt'), k.newlabel('Lkt'); st_ = k.state()
        e(f"s_cmp_{cond}_u32 s{sHI}, 0\ns_cbranch_scc1 {L}")
        e(f"s_cmp_eq_u32 s{sGSEL}, 7\ns_cbranch_scc1 {Lh}")
        for g in p2_dma(2): e(g)
        e("s_waitcnt lgkmcnt(0)")
        for g in [g for u in range(9, 14) for g in unit_dma(u)]: e(g)
        e(f"s_branch {L}")
        k.label(Lh)
        e(f"s_mov_b32 m0, s{sM0X}\ns_nop 0\nbuffer_load_dwordx4 v68, s[{rMISC}:{rMISC+3}], 0 offen lds")
        e(f"s_add_u32 m0, s{sM0X}, 1024\ns_nop 0\nbuffer_load_dwordx4 v69, s[{rMISC}:{rMISC+3}], 0 offen lds")
        k.label(L); k.set_state(st_)
    w2tail('eq')
    e("s_nop 7")
    for u in range(2):
        ak, av = vACC + 32 * u, vACC + 32 * u + 16
        for h in range(2):
            a_ = ak + 8 * h; t_ = vT + 8 * h; r_ = vR + 16 * u + 8 * h
            for p in range(4): e(f"v_pk_mul_f32 {vr(a_+2*p,2)}, {vr(a_+2*p,2)}, {vr(r_+2*p,2)}")
            for p in range(8): e(f"v_exp_f32 v{t_+p}, v{a_+p} clamp")
            for p in range(8): e(f"v_max_f32 v{a_+p}, 0, v{a_+p}")
            for p in range(4): e(f"v_pk_add_f32 {vr(t_+2*p,2)}, {vr(t_+2*p,2)}, {sr(sEPS,2)}")
            for p in range(4): e(f"v_pk_fma_f32 {vr(t_+2*p,2)}, {vr(a_+2*p,2)}, {sr(sMK,2)}, {vr(t_+2*p,2)}")
            for p in range(4): e(f"v_cvt_pk_bf16_f32 v{vPK+4*h+p}, v{t_+2*p}, v{t_+2*p+1}")
        for p in range(8): e(f"v_pk_mul_f32 {vr(av+2*p,2)}, {vr(av+2*p,2)}, {vr(vR+16*u+2*p,2)}")
        for p in range(8): e(f"v_cvt_pk_bf16_f32 v{vPVv+p}, v{av+2*p}, v{av+2*p+1}")
        for p in range(8): e(f"v_cndmask_b32 v{vPVv+p}, v{vPVv+p}, v12, s[{sMKM}:{sMKM+1}]")
        for h in range(2):
            cin = '0' if (u == 0 and h == 0) else vr(vKV, 16)
            e(f"v_mfma_f32_32x32x16_bf16 {vr(vKV,16)}, {vr(vPVv+4*h,4)}, {vr(vPK+4*h,4)}, {cin}")
    L1, L2 = k.newlabel('Lc'), k.newlabel('Lc')
    e(f"s_cmp_lg_u32 s{sHI}, 0\ns_cbranch_scc1 {L1}")
    for gq in range(4): e(f"ds_write_b128 v26, {vr(vKV+4*gq,4)} offset:{1024*gq}")
    e("s_waitcnt lgkmcnt(0)")
    k.label(L1)
    if opt('ktail', 0): w2tail('lg')
    e("s_barrier")
    st = k.state()
    e(f"s_cmp_eq_u32 s{sHI}, 0\ns_cbranch_scc1 {L2}")
    tk = [e(f"ds_read_b128 {vr(vT+4*gq,4)}, v26 offset:{1024*gq}") for gq in range(4)]
    e("s_nop 3")
    tb = [sTAG, sPSTEP0, sPSTEP0 + 1, sPSTEP0 + 2]
    for gq in range(4):
        k.wait(lg=tk[gq])
        for p in range(2): e(f"v_pk_add_f32 {vr(vKV+4*gq+2*p,2)}, {vr(vKV+4*gq+2*p,2)}, {vr(vT+4*gq+2*p,2)}")
        for d in range(4): e(f"v_bfi_b32 v{vKV+4*gq+d}, v27, s{tb[d]}, v{vKV+4*gq+d}")
        e(f"buffer_store_dwordx4 {vr(vKV+4*gq,4)}, v{vL16}, {WS}, s{sHQO} offen offset:{1024*gq} sc1")
    k.label(L2)
    k.set_state(st)
    e("s_barrier")
    if not opt('ktail', 0): w2tail('lg')
    stamp(3); stamp(12, 4)

def reducer():
    hd = sRHD
    WOB = 0; AF = SLOT + 16384
    vWF = 16; vP = 72; vXc = 56; vS = 60
    L1 = k.newlabel('Lr')
    e(f"""s_lshr_b32 s{hd}, s{sTB}, 1
s_lshl_b32 s{sT0}, s{hd}, 16
s_lshl_b32 s{sT1}, s{sLO}, 10
s_add_u32 s{sT0}, s{sT0}, s{sT1}
s_add_u32 s{sT0}, s{sT0}, {KVP}
v_add_u32 v12, s{sT0}, v{vL16}
s_lshl_b32 s{sT1}, s{sW}, 11""")
    tb = [sTAG, sPSTEP0, sPSTEP0 + 1, sPSTEP0 + 2]
    st = k.state()
    e(f"s_cmp_ge_u32 s{sW}, 4\ns_cbranch_scc1 Lr_a")
    ck = Checked()
    toks = []
    for rb in range(16):
        toks.append(ck.load(f"s_mov_b32 s{sT0}, {rb*4096}\nbuffer_load_dwordx4 {vr(vP+4*rb,4)}, v12, {WS}, s{sT0} offen sc1"))
    k.label('Lr_a')
    e(f"""v_lshrrev_b32 v6, 5, v0
v_lshlrev_b32 v6, 2, v6
v_bfe_u32 v7, v0, 2, 2
v_add_u32 v6, v6, v7
v_lshlrev_b32 v6, 6, v6
v_bfe_u32 v7, v0, 4, 1
v_lshl_add_u32 v6, v7, 5, v6
v_and_b32 v7, 3, v0
v_lshl_add_u32 v6, v7, 3, v6
s_add_u32 s{sT1}, s{sT1}, {WOB}
v_add_u32 v14, s{sT1}, v6
s_mov_b32 s{sMKM}, 0
s_cmp_eq_u32 s{sW}, 3
s_cselect_b32 s{sMKM+1}, -1, 0
s_lshl_b32 s{sFLO}, s{sRCT}, 11
s_lshl_b32 s{sT1}, s{hd}, 7
s_add_u32 s{sFLO}, s{sFLO}, s{sT1}
s_add_u32 s{sFLO}, s{sFLO}, {FLM + (4 if 'flag1' in DBG else 0)}
s_mul_i32 s{sRMB}, s{sRCT}, {28*1024}
s_mul_i32 s{sT3}, s{hd}, {7*256}
s_add_u32 s{sRMB}, s{sRMB}, s{sT3}
s_add_u32 s{sRMB}, s{sRMB}, {MB}
s_cmp_eq_u32 s{sW}, 7
s_cselect_b32 s{sFLO}, {DUMP}, s{sFLO}
s_cselect_b32 s{sRMB}, {DUMP}, s{sRMB}
v_add_u32 v15, {AF}, v{vL16}
v_lshlrev_b32 v8, 3, v0
v_mov_b32 v6, {DUMP}
v_cndmask_b32 v9, v8, v6, {HALF}
s_add_u32 s{sT1}, s{sT1}, {ZG}
v_and_b32 v4, 31, v0
v_lshl_add_u32 v4, v4, 2, s{sT1}
s_cmp_eq_u32 s{sRCT}, 3
s_mov_b32 vcc_lo, 0
s_cselect_b32 vcc_hi, 0x55555555, 0
v_cndmask_b32 v10, v6, v4, vcc
s_lshr_b32 s{sT3}, s{sW}, 1
s_lshl_b32 s{sT3}, s{sT3}, 10
s_and_b32 s{sT1}, s{sW}, 1
s_lshl_b32 s{sT1}, s{sT1}, 3
s_add_u32 s{sT3}, s{sT3}, s{sT1}
v_add_u32 v5, s{sT3}, v15
v_mov_b32 v7, s{sTAG}""")
    st_b = k.state()
    e(f"s_cmp_lt_u32 s{sW}, 4\ns_cbranch_scc1 Lr_b\ns_waitcnt vmcnt(4)")
    k.label('Lr_b'); k.set_state(st_b)
    e("s_waitcnt vmcnt(16)")
    for s in range(2):
        for rd in range(2): e(f"ds_read_b64_tr_b16 {vr(vWF+4*s+2*rd,2)}, v14 offset:{s*1024+rd*512}")
    e(f"s_cmp_ge_u32 s{sW}, 4\ns_cbranch_scc1 Lr_join")
    for gidx in range(4):
        c = []
        for rb in range(4 * gidx, 4 * gidx + 4):
            for d in range(4):
                if rb % 4 == 0: c.append(f"v_xor_b32 v{vXc+d}, s{tb[d]}, v{vP+4*rb+d}")
                else: c.append(f"v_bitop3_b32 v{vXc+d}, v{vXc+d}, v{vP+4*rb+d}, s{tb[d]} bitop3:0xf6")
        c += [f"v_or3_b32 v{vXc}, v{vXc}, v{vXc+1}, v{vXc+2}", f"v_or_b32 v{vXc}, v{vXc}, v{vXc+3}", f"v_and_b32 v{vXc}, 0xff, v{vXc}",
              f"v_cmp_ne_u32 vcc, 0, v{vXc}", "s_cmp_lg_u64 vcc, 0"]
        ck.check(toks[4 * gidx], toks[4 * gidx + 3], "\n".join(c), sleep=opt('rsleep', 2))
        b = vP + 16 * gidx
        for p in range(2):
            e(f"v_pk_add_f32 {vr(b+2*p,2)}, {vr(b+2*p,2)}, {vr(b+4+2*p,2)}\nv_pk_add_f32 {vr(b+8+2*p,2)}, {vr(b+8+2*p,2)}, {vr(b+12+2*p,2)}")
        for p in range(2):
            if gidx == 0: e(f"v_pk_add_f32 {vr(vS+2*p,2)}, {vr(b+2*p,2)}, {vr(b+8+2*p,2)}")
            else: e(f"v_pk_add_f32 {vr(b+2*p,2)}, {vr(b+2*p,2)}, {vr(b+8+2*p,2)}")
        if gidx:
            for p in range(2): e(f"v_pk_add_f32 {vr(vS+2*p,2)}, {vr(vS+2*p,2)}, {vr(b+2*p,2)}")
    stamp(4)
    e(f"""v_pk_mul_f32 {vr(vXc,2)}, {vr(vS,2)}, {sr(sMK,2)}
v_pk_mul_f32 {vr(vXc+2,2)}, {vr(vS+2,2)}, {sr(sMK,2)}
v_mov_b32_dpp v6, v{vS} quad_perm:[1,1,3,3] row_mask:0xf bank_mask:0xf
v_cvt_pk_bf16_f32 v12, v{vXc}, v{vXc+1}
v_cvt_pk_bf16_f32 v13, v{vXc+2}, v{vXc+3}
v_cndmask_b32 v12, v12, 0, s[{sMKM}:{sMKM+1}]
v_cndmask_b32 v13, v13, 0, s[{sMKM}:{sMKM+1}]
ds_write_b64 v5, v[12:13]
v_cvt_pk_bf16_f32 v6, v{vS}, v6
buffer_store_dwordx2 v[6:7], v10, {WS}, 0 offen sc1""")
    k.label('Lr_join')
    e(f"s_waitcnt lgkmcnt(0)\ns_barrier")
    vAF = 32; vD = 96
    e(f"ds_read_b128 {vr(vAF,4)}, v15\nds_read_b128 {vr(vAF+4,4)}, v15 offset:1024")
    e("s_waitcnt lgkmcnt(1)")
    e(f"v_mfma_f32_32x32x16_bf16 {vr(vD,16)}, {vr(vAF,4)}, {vr(vWF,4)}, 0")
    e("s_waitcnt lgkmcnt(0)")
    e(f"v_mfma_f32_32x32x16_bf16 {vr(vD,16)}, {vr(vAF+4,4)}, {vr(vWF+4,4)}, {vr(vD,16)}")
    for gq in range(4):
        for p in range(2): e(f"v_cvt_pk_bf16_f32 v{112+2*gq+p}, v{vD+4*gq+2*p}, v{vD+4*gq+2*p+1}")
        e(f"buffer_store_dwordx2 {vr(112+2*gq,2)}, v{9 if gq == 3 else 8}, {WS}, s{sRMB} offen offset:{512*gq} sc1")
    stamp(5)
    e(f"s_waitcnt vmcnt(0)\nbuffer_store_dword v{vTG}, v{vZ0}, {WS}, s{sFLO} offen sc1")
    stamp(6)

def phase2():
    vHO = 4; vXR = 12; vWB2 = 16
    vA2 = 32; vH = 96
    vB2 = 248; vOUT = 3
    if opt('prio', 1):
        e(f"s_cmp_lg_u32 s{sHI}, 0\ns_cbranch_scc1 Lprio\ns_setprio 0")
        k.label('Lprio')
    e(f"""s_mul_i32 s{sT1}, s{sTB}, {280*1024}
s_add_u32 s{sT1}, s{sT1}, {HQ}
s_mul_i32 s{sT0}, s{sHI}, {140*1024}
s_add_u32 s{sT3}, s{sT1}, s{sT0}
v_add_u32 v{vHO}, s{sT3}, v{vL16}
s_sub_u32 s{sT1}, s{sT1}, s{sT0}
s_add_u32 s{sT1}, s{sT1}, {140*1024}
v_add_u32 v{vHO+1}, s{sT1}, v{vL16}""")
    htok = {}
    def hl(j):
        o = []
        for s in range(2):
            for tt in range(2):
                def f(j=j, s=s, tt=tt): htok[(2*j+s, tt)] = e(f"buffer_load_dwordx4 {vr(vH+16*j+8*s+4*tt,4)}, v{vHO+tt}, {WS}, s{sHT+j} offen offset:{1024*s} sc1")
                o.append(f)
        return o
    PS = opt('psleep', 3)
    t0, t1 = vXR, vXR + 1
    e(srd_s(rMISC, pB2, 896))
    e(f"""v_lshrrev_b32 v{t0}, 3, v0
s_lshl_b32 s{sT0}, s{sTB}, 6
s_lshl_b32 s{sT1}, s{sW}, 3
s_add_u32 s{sT0}, s{sT0}, s{sT1}
v_add_u32 v{t0}, s{sT0}, v{t0}
v_mul_u32_u24 v{t0}, 896, v{t0}
v_and_b32 v{t1}, 7, v0
v_lshlrev_b32 v{t1}, 4, v{t1}
s_lshl_b32 s{sT0}, s{sCT}, 7
v_add_u32 v{t1}, s{sT0}, v{t1}
v_add_u32 v{t0}, v{t0}, v{t1}""")
    for j in range(7): e(f"s_lshl_b32 s{sHT+j}, s{sTAB+j}, 11")
    verify(POLL, poll_test(15, 15), PS)
    stamp(9); stamp(15, 4)
    LA = 3
    for j in range(3):
        for f in hl(j): f()
    e(f"""s_mul_i32 s{sSO0}, s{sLO}, {7*1024}
s_add_u32 s{sSO1}, s{sSO0}, {112*1024}
s_add_u32 s{sSO2}, s{sSO1}, 4096
v_mov_b32 v{vOUT}, v{t0}
v_lshrrev_b32 v2, 5, v0
v_lshlrev_b32 v2, 4, v2""")
    vZ = vWP
    vZA = vWP + 28; vZD = vWP + 38
    PITCH = 272
    w1, w0, ro, rs, m0_, m1_, x0 = [vWP + 31 + i for i in range(7)]
    x1 = vZ + 3
    addr = f"""v_mul_u32_u24 v{vZ}, 37, v0
v_lshrrev_b32 v{vZ}, 9, v{vZ}
v_lshlrev_b32 v{vZ+1}, 3, v0
v_lshl_add_u32 v{vZ+1}, v{vZ}, 4, v{vZ+1}
s_lshl_b32 s{sT3}, s{sLO}, 9
s_add_u32 s{sPD}, s{sT3}, {ZG}
v_add_u32 v{vZ+1}, s{sPD}, v{vZ+1}
s_lshl_b32 s{sPD}, s{sCT}, 12
s_add_u32 s{sPD}, s{sPD}, s{sT3}
s_lshl_b32 s{sT3}, s{sHI}, 11
s_add_u32 s{sPD}, s{sPD}, s{sT3}
s_add_u32 s{sPD}, s{sPD}, {FLM}
v_and_b32 v{vZ+2}, 3, v0
v_lshl_add_u32 v{vZ+2}, v{vZ+2}, 7, s{sPD}
v_cmp_gt_u32 vcc, 56, v0
v_cndmask_b32 v{vZA}, v{vZ+2}, v{vZ+1}, vcc
v_lshrrev_b32 v{vZ}, 3, v0
v_lshlrev_b32 v{vZ}, 5, v{vZ}
v_bfe_u32 v{vZ+1}, v0, 1, 1
v_lshl_add_u32 v{vZ}, v{vZ+1}, 4, v{vZ}
v_bfe_u32 v{vZ+1}, v0, 2, 1
v_lshl_add_u32 v{vZ}, v{vZ+1}, 3, v{vZ}
v_and_b32 v{vZ+1}, 1, v0
v_lshl_add_u32 v{vZ}, v{vZ+1}, 2, v{vZ}
s_lshl_b32 s{sPD}, s{sW}, 8
s_add_u32 s{sPD}, s{sPD}, {SCR2 + 2048}
v_add_u32 v{vZA+1}, s{sPD}, v{vZ}
v_add_u32 v{vZA+2}, s{sPD}, v2
s_mul_i32 s{sT4}, s{sW}, {7*1024}
s_mul_i32 s{sT0}, s{sCT}, {56*1024}
s_add_u32 s{sT0}, s{sT0}, s{sT4}
s_add_u32 s{sT0}, s{sT0}, {MB}
s_lshl_b32 s{sT4}, s{sW}, 10
s_add_u32 s{sT4}, s{sT4}, {SCR}
v_and_b32 v{x0}, 15, v0
v_mul_u32_u24 v{w1}, {PITCH}, v{x0}
v_bfe_u32 v{x0}, v0, 4, 1
v_mul_u32_u24 v{x0}, {SLOT}, v{x0}
v_add3_u32 v{w1}, v{w1}, v{x0}, v2
s_add_u32 s{sPD}, s{sM0P}, {SLOT}
v_add_u32 v{w1}, s{sPD}, v{w1}
v_lshrrev_b32 v{x0}, 3, v0
s_and_b32 s{sPD}, s{sLO}, 1
v_lshl_add_u32 v{x0}, s{sPD}, 3, v{x0}
v_mul_u32_u24 v{ro}, {PITCH}, v{x0}
v_and_b32 v{x1}, 7, v0
v_lshl_add_u32 v{ro}, v{x1}, 5, v{ro}
s_lshr_b32 s{sPD}, s{sLO}, 1
s_add_u32 s{sPD}, s{sPD}, 1
s_mul_i32 s{sPD}, s{sPD}, {SLOT}
s_xor_b32 s{sT3}, s{sHI}, 1
s_mul_i32 s{sT3}, s{sT3}, {4*6144}
s_add_u32 s{sPD}, s{sPD}, s{sT3}
v_add_u32 v{ro}, s{sPD}, v{ro}
s_lshl_b32 s{sPD}, s{sW}, 13
s_add_u32 s{sT3}, s{sPD}, {SCR - 6*8192}
s_cmp_ge_u32 s{sW}, 6
s_cselect_b32 s{sPD}, s{sT3}, s{sPD}
v_and_b32 v{x0}, 31, v0
v_lshl_add_u32 v{w0}, v{x0}, 8, s{sPD}
v_and_b32 v{x0}, 7, v0
v_lshlrev_b32 v{x0}, 4, v{x0}
v_xor_b32 v{x0}, v{x0}, v2
v_add_u32 v{w0}, v{w0}, v{x0}
v_lshrrev_b32 v{x0}, 3, v0
v_lshlrev_b32 v{x1}, 1, v{x1}
v_xor_b32 v{x1}, v{x1}, v{x0}
v_lshlrev_b32 v{x1}, 4, v{x1}
v_lshl_add_u32 v{rs}, v{x0}, 8, v{x1}
s_lshl_b32 s{sPD}, s{sLO}, 11
s_lshl_b32 s{sT3}, s{sHI}, 15
s_add_u32 s{sPD}, s{sPD}, s{sT3}
v_add_u32 v{rs}, s{sPD}, v{rs}
s_mul_i32 s{sPD}, s{sLO}, 6144
v_lshlrev_b32 v{x0}, 3, v0
v_add_u32 v{m0_}, s{sPD}, v{x0}
s_lshl_b32 s{sPD}, s{sLO}, 10
s_add_u32 s{sPD}, s{sPD}, {SCR}
v_add_u32 v{m1_}, s{sPD}, v{x0}
""" + srd_s(rMISC, pOUT, 2048 * 896)
    per = {u: [] for u in range(14)}
    Z = {}
    vQ = vH
    ZL = f"buffer_load_dwordx2 {vr(vZD,2)}, v{vZA}, {WS}, 0 offen sc1"
    ql = [f"buffer_load_dwordx4 {vr(vQ+4*q,4)}, v{vHO}, {WS}, s{sSO1 if q < 4 else sSO2} offen offset:{1024*(q&3)} sc1" for q in range(7)]
    per[0] += hl(3)
    per[1] += [lambda: Z.__setitem__('p', e(POLL2)), f"buffer_load_dwordx4 {vr(vB2,4)}, v{t1}, s[{rMISC}:{rMISC+3}], 0 offen", f"buffer_load_dwordx4 {vr(vXR,4)}, v{vOUT}, s[{rX}:{rX+3}], 0 offen"]
    per[4] += hl(4); per[5] += hl(5); per[6] += hl(6)
    POLL3 = f"buffer_load_dword v{vZD}, v{vPA2}, {WS}, 0 offen sc1"
    per[5] = [lambda: Z.__setitem__('q', e(POLL3))] + per[5]
    QU = opt('qu', 8)
    per[QU] += ql[:4]; per[QU + 1] += ql[4:]
    distribute(per, 5, 11, atoms(addr, 3))
    per[opt('zu', 12)] += [ZL]
    tok = {}
    for u in range(14):
        j, s = divmod(u, 2); base = vH + 16 * j
        cur = tok; tok = {}
        stamp(1 + u, p2=True)
        rd = wreads(u + 1, vWB2 + 8 * ((u + 1) & 1)) if 5 <= u + 1 < 14 else []
        wsrc = vWP + 8 * u if u < 5 else vWB2 + 8 * (u & 1)
        mf = []
        for tt in ((1, 0) if u == 13 else (0, 1)):
            for c in range(2):
                acc = vr(vA2 + 32 * tt + 16 * c, 16)
                mf.append(('m', (f"v_mfma_f32_32x32x16_bf16 {acc}, {vr(wsrc+4*c,4)}, {vr(base+8*s+4*tt,4)}, {'0' if u == 0 else acc}", c, tt)))
        if u == 4:
            k.wait(vm=Z['p'])
            verify(POLL2, poll_test(7, 7), PS)
            stamp(10)
        if u == QU:
            k.wait(vm=Z['q'])
            verify(POLL3, f"v_cmp_ne_u32 vcc, s{sTAG}, v{vZD}\ns_and_b32 s{sMK}, vcc_lo, 0xf0", PS)
        for kind_, x in spread(mf, [('r', x) for x in rd] + [('f', x) for x in per[u]]):
            if kind_ == 'm':
                k.wait(vm=htok[(u, x[2])], lg=cur.get(x[1])); e(x[0])
            elif kind_ == 'r': tok[x[1]] = e(x[0])
            else: emit_item(x)
    stamp(4); stamp(14, 4); stamp(15, p2=True)
    vF = vWB2; vG = vWB2 + 8
    for d in range(4):
        e(f"""v_lshlrev_b32 v{vF+2*d}, 16, v{vXR+d}
v_and_b32 v{vF+2*d+1}, 0xffff0000, v{vXR+d}
v_lshlrev_b32 v{vG+2*d}, 16, v{vB2+d}
v_and_b32 v{vG+2*d+1}, 0xffff0000, v{vB2+d}""")
    def mdma():
        for q in range(7):
            m = f"s_add_u32 m0, s{sM0P}, {1024*q}" if q < 6 else f"s_mov_b32 m0, s{sT4}"
            e(f"{m}\ns_add_u32 s{sT1}, s{sT0}, {1024*q}\nbuffer_load_dwordx4 v{vL16}, {WS}, s{sT1} offen sc1 lds")
    ZM = 0 if 'nozm' in DBG else 0xffffffff
    ztest = lambda lo, hi: ztest_(lo & ZM, hi & ZM)
    ztest_ = lambda lo, hi: f"v_cmp_ne_u32 vcc, s{sTAG}, v{vZD+1}\ns_mov_b32 s{sMK}, {lo:#x}\ns_mov_b32 s{sMK+1}, {hi:#x}\ns_and_b64 vcc, vcc, s[{sMK}:{sMK+1}]"
    e("s_waitcnt vmcnt(0)")
    e(f"s_mov_b32 s{sC0}, 0"); e(ztest(0, 0xff000000)); e("s_cbranch_scc1 Lnom")
    e(f"s_mov_b32 s{sC0}, 1"); mdma()
    k.label('Lnom')
    for c in range(2):
        for gq in range(4): e(f"ds_write_b128 v{w1}, {vr(vA2+32+16*c+4*gq,4)} offset:{c*128+gq*32}")
    for d in range(8): e(f"v_add_f32 v{vF+d}, v{vF+d}, v{vG+d}")
    tgt = {}
    for hi in range(2):
        for r in range(4): tgt[r + 4 * hi] = r
        tgt[8 + 4 * hi] = hi; tgt[9 + 4 * hi] = 2 + hi
    def rowmask(h): return sum(1 << i for i, t in tgt.items() if t == h)
    slot = {0: 0, 1: 0, 2: 0, 3: 4, 4: 1, 5: 1, 6: 1, 7: 2, 8: 2, 9: 2, 10: 5, 11: 3, 12: 3, 13: 3}
    vU = vG; vDN = vH + 32; R = 4
    def den_scale():
        e(f"ds_write_b32 v{vZA+1}, v{vZD}")
        for s in range(7): e(f"ds_read_b128 {vr(vZ+4*s,4)}, v{vZA+2} offset:{32*s}")
        e("s_waitcnt lgkmcnt(0)")
        prev = None
        for s in range(7):
            for q in (2 * s, 2 * s + 1):
                mk = (rowmask(2 * q // 7), rowmask((2 * q + 1) // 7))
                if mk != prev: e(f"s_mov_b32 s{sMK}, {mk[0]:#x}\ns_mov_b32 s{sMK+1}, {mk[1]:#x}"); prev = mk
                for d in range(2): e(f"v_cndmask_b32 v{vZ+2*q+d}, 0, v{vZ+2*q+d}, s[{sMK}:{sMK+1}]")
            if s: e(f"v_mfma_f32_32x32x16_bf16 {vr(vDN,16)}, {vr(vZ+4*s-4,4)}, {vr(vQ+4*s-4,4)}, {'0' if s == 1 else vr(vDN,16)}")
        e(f"v_mfma_f32_32x32x16_bf16 {vr(vDN,16)}, {vr(vZ+24,4)}, {vr(vQ+24,4)}, {vr(vDN,16)}")
        UP = vH + 48
        for x in range(28): e(f"v_lshlrev_b32 v{UP+2*x}, 16, v{vQ+x}\nv_and_b32 v{UP+2*x+1}, 0xffff0000, v{vQ+x}")
        for i in range(6): e(f"v_add_f32 v{R+2*i}, s{sEPS}, v{vDN+i}")
        for i in range(6): e(f"v_rcp_f32 v{R+2*i}, v{R+2*i}")
        for x in range(28): e(f"v_pk_mul_f32 {vr(UP+2*x,2)}, {vr(UP+2*x,2)}, {vr(R+2*slot[x>>1],2)} op_sel_hi:[1,0]")
        for x in range(28): e(f"v_cvt_pk_bf16_f32 v{vQ+x}, v{UP+2*x}, v{UP+2*x+1}")
    verify(ZL, ztest(0xffffffff, 0x00ffffff), opt('zsleep', 3))
    stamp(11)
    den_scale()
    e(f"s_cmp_lg_u32 s{sC0}, 0\ns_cbranch_scc1 Lhavem")
    e(ZL); e("s_waitcnt vmcnt(0)")
    verify(ZL, ztest(0, 0xff000000), opt('zsleep', 3))
    mdma()
    k.label('Lhavem')
    stamp(5)
    for i in range(1, 4): e(f"v_xor_b32 v{vZ+i}, {32*i}, v{w0}")
    e(f"v_mov_b32 v{vZ}, v{w0}\nv_xor_b32 v{vZ+4}, 16, v{rs}\ns_mul_i32 s{sT1}, s{sHI}, {SCR - 6*8192}\nv_add_u32 v{vZ+5}, s{sT1}, v{rs}\nv_add_u32 v{vZ+6}, s{sT1}, v{vZ+4}")
    e("s_waitcnt vmcnt(0)\ns_barrier")
    vM = vH + 32
    mt = {}
    for s in range(7):
        for c in range(2):
            pass
    def mread(i):
        c, s = divmod(i, 7)
        for jj in range(2):
            if s < 6: mt[i] = e(f"ds_read_b64 {vr(vM+4*i+2*jj,2)}, v{m0_} offset:{24576*c+1024*s+512*jj}")
            else: mt[i] = e(f"ds_read_b64 {vr(vM+4*i+2*jj,2)}, v{m1_} offset:{4096*c+512*jj}")
    for i in range(6): mread(i)
    ot = []
    for i in range(14):
        c, s = divmod(i, 7)
        k.wait(lg=mt[i])
        acc = vr(vA2 + 16 * c, 16)
        e(f"v_mfma_f32_32x32x16_bf16 {acc}, {vr(vM+4*i,4)}, {vr(vQ+4*s,4)}, {acc}")
        if i < 4: mread(6 + 2 * i); mread(7 + 2 * i)
        if i == 4:
            for q in range(4):
                for hh in range(2): ot.append(e(f"ds_read_b128 {vr(vA2+32+8*q+4*hh,4)}, v{ro} offset:{q*6144+16*hh}"))
        if i == 6:
            k.wait(lg=mt[13]); e("s_barrier")
        if i == 10:
            for gq in range(4): e(f"ds_write_b128 v{vZ+gq}, {vr(vA2+4*gq,4)}")
        if 7 <= i < 11:
            q = i - 7
            k.wait(lg=ot[2 * q + 1])
            for d in range(8): e(f"v_add_f32 v{vF+d}, v{vF+d}, v{vA2+32+8*q+d}")
    stamp(6)
    for gq in range(4): e(f"ds_write_b128 v{vZ+gq}, {vr(vA2+16+4*gq,4)} offset:128")
    e("s_waitcnt lgkmcnt(0)\ns_barrier")
    rt = []
    for q in range(4):
        for hh in range(2):
            a_ = [[rs, vZ + 4], [vZ + 5, vZ + 6]][q >> 1][hh]
            rt.append(e(f"ds_read_b128 {vr(vH+8*q+4*hh,4)}, v{a_} offset:{q*8192}"))
    for q in range(4):
        k.wait(lg=rt[2 * q + 1])
        for d in range(4): e(f"v_pk_add_f32 {vr(vF+2*d,2)}, {vr(vF+2*d,2)}, {vr(vH+8*q+2*d,2)}")
    for d in range(4): e(f"v_cvt_pk_bf16_f32 v{vG+d}, v{vF+2*d}, v{vF+2*d+1}")
    e(f"buffer_store_dwordx4 {vr(vG,4)}, v{vOUT}, s[{rMISC}:{rMISC+3}], 0 offen")
    stamp(7)
    e(f"s_or_b32 s{sT0}, s2, s{sW}\ns_cmp_lg_u32 s{sT0}, 0\ns_cbranch_scc1 Lend")
    e(f"v_mov_b32 v4, s{sTAG}\nv_mov_b32 v5, {EPOCH}\ns_mov_b64 exec, 1\nbuffer_store_dword v4, v5, {WS}, 0 offen")

kn = NAME + '_kernel'
hdr = open(f'cdna_kernels/{NAME}.s.ref').read().split('; Override launch')[0]
head = hdr + f"; @launch grid=(256,1,1) block=(512,1,1) lds={LDS_BYTES}\n"
k.raw('.amdgcn_target "amdgcn-amd-amdhsa--gfx950"\n.text')
k.raw(f".globl {kn}\n.p2align 8\n.type {kn},@function\n{kn}:")
prologue()
st_pro = k.state()
kvgen = phase1_KV()
next(kvgen)
st_kv = k.state()
k.label('Lm'); k.set_state(st_pro)
phase1_M()
k.label('Lp2'); k.set_state(([], []))
phase2()
k.label('Lend'); e("s_endpgm")
k.set_state(st_kv)
for _ in kvgen: pass
e(f"s_cmp_eq_u32 s{sGSEL}, 7\ns_cbranch_scc1 Lred")
e(POLL)
e(f"s_waitcnt vmcnt(0) lgkmcnt(0)\ns_branch Lp2")
k.label('Lred')
k.set_state(([], []))
reducer()
e("s_endpgm")
i = 0
while i < len(outline): outline[i](); i += 1
k.label('Lcode_end')
e("s_endpgm")
body, nnop = k.render()
kd = f""".amdhsa_kernel {kn}
  .amdhsa_next_free_vgpr 256
  .amdhsa_next_free_sgpr 102
  .amdhsa_accum_offset 256
  .amdhsa_group_segment_fixed_size 0
  .amdhsa_kernarg_size 88
  .amdhsa_user_sgpr_count 2
  .amdhsa_user_sgpr_kernarg_segment_ptr 1
  .amdhsa_system_sgpr_workgroup_id_x 1
.end_amdhsa_kernel
"""
out = head + body + '.section .rodata,"a"\n.p2align 6\n' + kd
outp = [a for a in sys.argv[1:] if not a.startswith('--')]
open(outp[0] if outp else f'cdna_kernels/{NAME}.s', 'w').write(out)
print("nops inserted:", nnop, "lines:", out.count('\n'))
```

```python
import sys, math, struct
sys.path.insert(0, 'gen')
from dsl import *

NAME = "parallel_sum__linear_attn_block__mixer_channel_mlp__prompt"
STAMPS = '--stamps' in sys.argv
DBG = set(a[6:] for a in sys.argv if a.startswith('--dbg-'))
def opt(name, default):
    for a in sys.argv:
        if a.startswith(f'--{name}='): return int(a.split('=')[1])
    return default
def f32(x): return '0x%08x' % struct.unpack('<I', struct.pack('<f', x))[0]
def lines(s): return [l.strip() for l in s.strip().split('\n') if l.strip()]

EPOCH = 0
ZG = 0x1000
FLM = 0x2000
STATS = 0x10000
CSG = 0x18000
MB = 0x40000
KVP = 0x100000
HQ = 0x200000
FLH = 0xB00000
WS_USED = 0xC00000
DUMP = 0x7000000
STAMP_OFF = 0x8000000
SLOT = 49152
SCR = 3 * SLOT
SCR2 = SCR + 8192
LDS_BYTES = 163840
EPS = 1e-5
LOG2E = math.log2(math.e)
GC0 = -2.0 * math.sqrt(2.0 / math.pi) * LOG2E
GC1 = 0.044715
SPIN_MAX = 20000

sW = 3
pX, pWQKV, pWO, pBX, pW1, pB1, pW2, pB2, pOUT, pDBG, pWS = 4, 6, 8, 10, 12, 14, 16, 18, 20, 22, 24
sHQO, sFLO = 10, 11
sRHD, sRMB = 22, 23
sPM, sQM = 22, 23
sXCD, sSUB, sGSEL, sRB, sCC = 26, 27, 28, 29, 30
sT0, sT1, sT2, sT3, sT4 = 31, 32, 33, 34, 35
rX, rW0, rW1, rW2, rWS, rW2G, rMISC = 36, 40, 44, 48, 52, 56, 60
sSOX, sSO0, sSO1, sSO2 = 64, 65, 66, 67
sPSTEP0 = 68
sM0X, sM0W = 71, 72
sLO, sHI = 73, 74
sC0 = 75
sMK = 76
sHALF = 78
sTAB = 80
sRCT = 87
sEPS = 88
sMKM = 90
sMG = 92
sPD = 93
sTAG = 94
sCT, sTB = 95, 96
sTILE0 = 97
sM0P = 98
sMEAN = 99
sSTAMP = 100
sHT = 40

k = K()
e = k.e
outline = []
WS = f"s[{rWS}:{rWS+3}]"
HALF = f"s[{sHALF}:{sHALF+1}]"
def srd_s(r, ptr, nbytes):
    return f"s_mov_b32 s{r}, s{ptr}\ns_and_b32 s{r+1}, s{ptr+1}, 0xffff\ns_mov_b32 s{r+2}, {nbytes}\ns_mov_b32 s{r+3}, 0x20000\n"

def stamp(idx, wave=0, chunk=False, p2=False):
    if not STAMPS: return
    if 'p2' in DBG:
        if idx > 0 and not p2: return
        if p2: wave = opt('sw', 0)
    elif p2: return
    elif ('chunks' in DBG) != chunk and idx > 1: return
    L = k.newlabel('Lst')
    st = k.state()
    e(f"s_cmp_lg_u32 s{sW}, {wave}\ns_cbranch_scc1 {L}")
    e(f"s_memrealtime s[{sSTAMP}:{sSTAMP+1}]\ns_memtime vcc\ns_waitcnt lgkmcnt(0)")
    e(f"v_mov_b32 v254, s{sSTAMP}\nv_mov_b32 v255, s{sSTAMP+1}")
    e(f"s_lshl_b32 s{sSTAMP}, s2, 8\ns_add_u32 s{sSTAMP}, s{sSTAMP}, {STAMP_OFF + 8*idx}\nv_mov_b32 v253, s{sSTAMP}")
    e(f"global_store_dwordx2 v253, v[254:255], s[{pWS}:{pWS+1}]")
    e(f"s_nop 1\nv_mov_b32 v254, vcc_lo\nv_mov_b32 v255, vcc_hi")
    e(f"global_store_dwordx2 v253, v[254:255], s[{pWS}:{pWS+1}] offset:128")
    k.label(L)
    k.set_state(st)

def emit_item(x): return x() if callable(x) else e(x)

SCC_R = ('s_cselect', 's_cbranch_scc', 's_addc')
SCC_W = ('s_cmp', 's_add', 's_sub', 's_and', 's_or', 's_xor', 's_lshl', 's_lshr', 's_min', 's_max', 's_bfe')
def atoms(text, n=2):
    ls = lines(text); N = len(ls)
    live = [False] * (N + 1); scc = vcc = m0 = False
    for i in range(N - 1, -1, -1):
        ins = Ins(ls[i])
        if ls[i].startswith(SCC_W): scc = False
        if ls[i].startswith(SCC_R): scc = True
        if ('s', 106) in ins.w: vcc = False
        if ('s', 106) in ins.r: vcc = True
        if ('s', 124) in ins.w: m0 = False
        if ('s', 124) in ins.r: m0 = True
        live[i] = scc or vcc or m0
    out = []; cur = []
    for i, l in enumerate(ls):
        cur.append(l)
        if len(cur) >= n and not live[i + 1]: out.append("\n".join(cur)); cur = []
    if cur: out.append("\n".join(cur))
    return out

def distribute(per, first, last, items):
    ns = last - first + 1
    for q in range(ns): per[first + q] += items[len(items) * q // ns: len(items) * (q + 1) // ns]

class Checked:
    def __init__(self): self.log = []
    def load(self, text):
        t = e(text); self.log.append((text, t)); return t
    def check(self, first_tok, last_tok, chk, sleep=1):
        Lc, Ls, Lb = k.newlabel('Lck'), k.newlabel('Lsl'), k.newlabel('Lbk')
        e(f"s_movk_i32 s{sT2}, {SPIN_MAX}")
        k.label(Lc)
        assert last_tok in k.vm
        k.wait(vm=last_tok)
        e(chk); e(f"s_cbranch_scc1 {Ls}")
        k.label(Lb)
        i0 = [t for _, t in self.log].index(first_tok)
        redo = [x for x, _ in self.log[i0:]]
        assert all(t in [tt for _, tt in self.log[i0:]] for t in k.vm), "untracked younger vmem op"
        def slow():
            k.label(Ls)
            e(f"s_sub_u32 s{sT2}, s{sT2}, 1\ns_cbranch_scc1 {Lb}")
            if sleep: e(f"s_sleep {sleep}")
            for x in redo: e(x)
            e(f"s_branch {Lc}")
        outline.append(slow)

def verify(load, test, sleep):
    Lp, Ld, Lc = k.newlabel('Lvs'), k.newlabel('Lvd'), k.newlabel('Lvc')
    e(test); e(f"s_cbranch_scc1 {Lp}")
    k.label(Ld)
    def slow():
        k.label(Lp)
        e(f"s_movk_i32 s{sT2}, {SPIN_MAX}")
        k.label(Lc)
        e(load); e("s_waitcnt vmcnt(0)"); e(test)
        e(f"s_cbranch_scc0 {Ld}\ns_sub_u32 s{sT2}, s{sT2}, 1\ns_cbranch_scc1 {Ld}\ns_sleep {sleep}\ns_branch {Lc}")
    outline.append(slow)

EARLY = sorted([i for i in range(56) if i % 6 < 4], key=lambda i: (i // 6, i & 1, i))
LATE = [i for i in range(56) if i % 6 >= 4]
REST = EARLY[32:] + LATE
def tiles_of_wave(w): return EARLY[4 * w: 4 * w + 4] + REST[3 * w: 3 * w + 3]
def flag_of(i): return (2 * (i // 6) + (i & 1)) + (32 if i % 6 >= 4 else 0)
vL16 = 1
vPD0 = 2
vWA = 6
vPA = 23; vPV_ = 24
vWP = 208
vPF = 251; vDUM = 24
P_SLOT = [1, 2, 0]
def unit_pos(u):
    if u >= 9: u -= 9
    return P_SLOT[u // 3] * SLOT + (u % 3) * 2048

def p2_setup_text():
    t = ""
    for w in range(8):
        v = sum(x << (8 * j) for j, x in enumerate(tiles_of_wave(w)))
        lo, hi = v & 0xffffffff, v >> 32
        if w == 0: t += f"s_mov_b32 s{sTAB}, {lo:#x}\ns_mov_b32 s{sTAB+1}, {hi:#x}\n"
        else: t += f"s_cmp_eq_u32 s{sW}, {w}\ns_cselect_b32 s{sTAB}, {lo:#x}, s{sTAB}\ns_cselect_b32 s{sTAB+1}, {hi:#x}, s{sTAB+1}\n"
    if False:
        t += f"""s_lshl_b32 s{sT0}, s{sCT}, 3
s_sub_u32 s{sT1}, 56, s{sT0}
s_lshr_b64 s[{sTAB+2}:{sTAB+3}], s[{sTAB}:{sTAB+1}], s{sT0}
s_lshl_b64 s[{sTAB}:{sTAB+1}], s[{sTAB}:{sTAB+1}], s{sT1}
s_or_b64 s[{sTAB}:{sTAB+1}], s[{sTAB}:{sTAB+1}], s[{sTAB+2}:{sTAB+3}]
"""
    for j in (6, 5, 4): t += f"s_bfe_u32 s{sTAB+j}, s{sTAB+1}, {0x80000 | (8*(j-4)):#x}\n"
    for j in (3, 2, 1, 0): t += f"s_bfe_u32 s{sTAB+j}, s{sTAB}, {0x80000 | (8*j):#x}\n"
    t += srd_s(rW2G, pW2, 1792 * 896)
    t += f"""s_cmp_eq_u32 s{sGSEL}, 7
s_cselect_b32 s{rW2G+2}, 0, s{rW2G+2}
v_lshrrev_b32 v4, 3, v0
v_mul_u32_u24 v4, 896, v4
v_bfe_u32 v5, v0, 4, 1
v_lshlrev_b32 v5, 2, v5
v_and_b32 v6, 7, v0
v_xor_b32 v5, v5, v6
v_lshl_add_u32 v4, v5, 4, v4
s_lshl_b32 s{sT0}, s{sCT}, 7
v_add_u32 v{vPD0}, s{sT0}, v4
v_add_u32 v{vPD0+1}, 7168, v{vPD0}
s_mul_i32 s{sM0P}, s{sW}, 6144
"""
    return t

vPA2 = 252
def poll_addr_text():
    t = ""
    for w in range(8):
        tl = tiles_of_wave(w)
        f1 = [flag_of(tl[0]), flag_of(tl[2])]; assert flag_of(tl[1]) == f1[0] and flag_of(tl[3]) == f1[1]
        f2 = [flag_of(x) for x in tl[4:]]
        q0 = 56 + (7 * (w & 3) >> 1)
        fq = [flag_of(x) + 64 * (w >> 2) for x in range(q0, q0 + 4)]
        lo = sum(x << (6 * j) for j, x in enumerate(f1 + f2)); hi = sum(x << (8 * j) for j, x in enumerate(fq))
        if w == 0: t += f"s_mov_b32 s{sPM}, {lo:#x}\ns_mov_b32 s{sQM}, {hi:#x}\n"
        else: t += f"s_cmp_eq_u32 s{sW}, {w}\ns_cselect_b32 s{sPM}, {lo:#x}, s{sPM}\ns_cselect_b32 s{sQM}, {hi:#x}, s{sQM}\n"
    t += f"""v_and_b32 v4, 31, v0
v_mul_u32_u24 v4, 6, v4
v_lshrrev_b32 v5, 5, v0
v_lshlrev_b32 v5, 6, v5
v_bfe_u32 v6, s{sPM}, v4, 6
v_add_u32 v6, v6, v5
v_add_u32 v4, 12, v4
v_bfe_u32 v7, s{sPM}, v4, 6
v_add_u32 v7, v7, v5
v_lshlrev_b32 v4, 3, v0
v_bfe_u32 v4, s{sQM}, v4, 8
s_mov_b32 s{sMK}, 0xf0
s_mov_b32 s{sMK+1}, 0
v_cndmask_b32 v7, v7, v4, s[{sMK}:{sMK+1}]
s_lshl_b32 s{sT0}, s{sTB}, 14
s_add_u32 s{sT0}, s{sT0}, {FLH}
v_lshl_add_u32 v6, v6, 7, s{sT0}
v_lshl_add_u32 v7, v7, 7, s{sT0}
v_mov_b32 v5, {DUMP}
s_mov_b32 s{sMK}, 3
s_mov_b32 s{sMK+1}, 3
v_cndmask_b32 v{vPA}, v5, v6, s[{sMK}:{sMK+1}]
s_mov_b32 s{sMK}, 0xf7
s_mov_b32 s{sMK+1}, 7
v_cndmask_b32 v{vPA2}, v5, v7, s[{sMK}:{sMK+1}]
"""
    return t
POLL = f"buffer_load_dword v{vPV_}, v{vPA}, {WS}, 0 offen sc1"
POLL2 = f"buffer_load_dword v{vPV_}, v{vPA2}, {WS}, 0 offen sc1"
def poll_test(lo, hi):
    return f"v_cmp_ne_u32 vcc, s{sTAG}, v{vPV_}\ns_mov_b32 s{sMK}, {lo:#x}\ns_mov_b32 s{sMK+1}, {hi:#x}\ns_and_b64 vcc, vcc, s[{sMK}:{sMK+1}]"
PFP = opt('pfp', 0); PFN = -(-66 // max(PFP, 1))
def pf_setup_text():
    return f"""s_lshr_b32 s{sT0}, s2, 3
s_lshl_b32 s{sT0}, s{sT0}, 3
s_add_u32 s{sT0}, s{sT0}, s{sW}
s_mul_i32 s{sT0}, s{sT0}, {66*128}
v_lshl_add_u32 v4, v0, 7, s{sT0}
v_mov_b32 v5, {DUMP}
v_cmp_gt_u32 vcc, {PFN}, v0
v_cndmask_b32 v{vPF}, v5, v4, vcc
""" + srd_s(rW2G, pW2, 1792 * 896)
def pf_item(): return f"buffer_load_dword v{vDUM}, v{vPF}, s[{rW2G}:{rW2G+3}], 0 offen\nv_add_u32 v{vPF}, {PFN*128}, v{vPF}"

def unit_dma(u, stage=False):
    j, s = divmod(u, 2)
    out = []
    for jj in range(2):
        g = ""
        if jj == 0:
            g += f"s_mul_i32 s{sPD}, s{sTAB+j}, 28672\n"
            if s: g += f"s_add_u32 s{sPD}, s{sPD}, 14336\n"
        g = (f"s_add_u32 m0, s{sM0X}, {SCR + jj*1024}\n" if stage else f"s_add_u32 m0, s{sM0P}, {unit_pos(u) + jj*1024}\n") + g
        g += f"buffer_load_dwordx4 v{vPD0+jj}, s[{rW2G}:{rW2G+3}], s{sPD} offen lds"
        out.append(g)
    return out
def p2_dma(pc): return [g for u in range(3 * pc, 3 * pc + 3) for g in unit_dma(u)]
def trpat(dst, tmp, hishift, rowshift=7):
    return f"""v_lshrrev_b32 v{dst}, 5, v0
v_lshlrev_b32 v{dst}, {hishift}, v{dst}
v_bfe_u32 v{tmp}, v0, 2, 2
v_add_u32 v{dst}, v{dst}, v{tmp}
v_lshlrev_b32 v{dst}, {rowshift}, v{dst}
v_bfe_u32 v{tmp}, v0, 4, 1
v_lshl_add_u32 v{dst}, v{tmp}, 5, v{dst}
v_and_b32 v{tmp}, 3, v0
v_lshl_add_u32 v{dst}, v{tmp}, 3, v{dst}
v_bfe_u32 v{tmp}, v0, 3, 1
v_lshl_add_u32 v{dst}, v{tmp}, 6, v{dst}
"""
def wa_text():
    return trpat(4, 5, 2) + f"""v_add_u32 v{vWA}, s{sM0P}, v4
v_xor_b32 v{vWA+1}, 64, v{vWA}
v_add_u32 v{vWA+2}, {SLOT}, v{vWA}
v_add_u32 v{vWA+3}, {SLOT}, v{vWA+1}
v_add_u32 v{vWA+4}, {2*SLOT}, v{vWA}
v_add_u32 v{vWA+5}, {2*SLOT}, v{vWA+1}
"""
def wreads(u, dst):
    sl, off = divmod(unit_pos(u), SLOT)
    return [(f"ds_read_b64_tr_b16 {vr(dst+4*c+2*rd,2)}, v{vWA+2*sl+c} offset:{off+rd*1024}", c) for c in range(2) for rd in range(2)]

vDX0, vDX1, vDW0 = 8, 9, 10
vAX = 13
vSEL = 28
vROW = 208; vRU = 212; vGR = 220; vRT = 224
vTG = 248; vZ0 = 249; vGA = 250

def prologue():
    e(f"s_load_dwordx16 s[4:19], s[0:1], 0\ns_load_dwordx4 s[20:23], s[0:1], 64\ns_load_dwordx2 s[24:25], s[0:1], 80")
    e(f"s_cmp_ge_u32 s2, 256\ns_cbranch_scc1 Lend")
    if opt('prio', 1): e("s_setprio 1")
    e(f"v_lshrrev_b32 v1, 6, v0\nv_and_b32 v0, 63, v0\nv_readfirstlane_b32 s{sW}, v1")
    e(f"s_and_b32 s{sXCD}, s2, 7\ns_lshr_b32 s{sT0}, s2, 3\ns_and_b32 s{sSUB}, s{sT0}, 3\ns_lshr_b32 s{sGSEL}, s{sT0}, 2")
    st = k.state()
    e(f"s_cmp_lg_u32 s{sW}, 7\ns_cbranch_scc1 Lnopf")
    e(f"s_getpc_b64 s[{sMK}:{sMK+1}]")
    k.label('Lpc')
    e(f"s_and_b32 s{sT0}, s{sT0}, 7\ns_lshl_b32 s{sT0}, s{sT0}, 13\nv_lshl_add_u32 v4, v0, 7, s{sT0}\nv_min_u32 v4, Lcode_end-Lpc-4, v4")
    e(f"global_load_dword v{vDUM}, v4, s[{sMK}:{sMK+1}]")
    k.label('Lnopf')
    k.set_state(st)
    pre_common()
    e(f"s_cmp_lt_u32 s{sGSEL}, 6\ns_cbranch_scc1 Lm")

def pre_common():
    e(f"s_lshr_b32 s{sT0}, s{sXCD}, 1\ns_lshl_b32 s{sT0}, s{sT0}, 2\ns_add_u32 s{sRB}, s{sT0}, s{sSUB}")
    e(f"s_lshl_b32 s{sT0}, s{sGSEL}, 1\ns_add_u32 s{sT0}, s{sT0}, s{sRB}")
    e(f"s_mul_i32 s{sT1}, s{sT0}, 37\ns_lshr_b32 s{sT1}, s{sT1}, 8\ns_mul_i32 s{sT1}, s{sT1}, 7\ns_sub_u32 s{sCC}, s{sT0}, s{sT1}\ns_mov_b32 s{sC0}, s{sCC}")
    if 'norot1' in DBG: e(f"s_mov_b32 s{sCC}, 0")
    if 'rot2' in DBG: e(f"s_and_b32 s{sCC}, s{sCC}, 1\ns_mul_i32 s{sCC}, s{sCC}, 3")
    e(f"""s_lshl_b32 s{sT0}, s{sRB}, 7
s_lshl_b32 s{sT1}, s{sW}, 4
s_add_u32 s{sT0}, s{sT0}, s{sT1}
v_lshrrev_b32 v4, 3, v0
v_add_u32 v4, s{sT0}, v4
v_mul_u32_u24 v4, 896, v4
v_and_b32 v5, 7, v0
v_lshrrev_b32 v6, 4, v0
v_xor_b32 v6, v5, v6
v_lshl_add_u32 v{vDX0}, v6, 4, v4
v_xor_b32 v6, 4, v6
v_lshl_add_u32 v{vDX1}, v6, 4, v4
v_add_u32 v{vDX1}, 7168, v{vDX1}
s_lshl_b32 s{sM0X}, s{sW}, 11
s_mov_b32 s{rX+2}, {2048*896}
s_mov_b32 s{rX+3}, 0x20000
s_lshl_b32 s{sMEAN}, s2, 3
s_add_u32 s{sMEAN}, s{sMEAN}, s{sW}
s_mul_i32 s{sT1}, s{sMEAN}, 896
v_lshlrev_b32 v{vL16}, 4, v0
v_add_u32 v7, s{sT1}, v{vL16}
v_mov_b32 v5, {DUMP}
v_cmp_gt_u32 vcc, 56, v0
v_cndmask_b32 v7, v5, v7, vcc
v_cndmask_b32 v{vRT+1}, 0, 1.0, vcc""")

def after_kernarg():
    e("s_waitcnt lgkmcnt(0)")
    e(f"s_load_dword s{sTAG}, s[{pWS}:{pWS+1}], {EPOCH}")
    e(f"s_mov_b32 s{rX}, s{pX}\ns_and_b32 s{rX+1}, s{pX+1}, 0xffff")
    return e(f"buffer_load_dwordx4 {vr(vROW,4)}, v7, s[{rX}:{rX+3}], 0 offen")

def loop_setup(xbias):
    e(f"""v_lshrrev_b32 v4, 2, v0
v_lshrrev_b32 v5, 4, v0
v_xor_b32 v4, v4, v5
v_and_b32 v4, 1, v4
v_and_b32 v5, 3, v0
v_or_b32 v4, v4, v5
v_cmp_eq_u32 vcc, 0, v4
v_mov_b32 v5, 0x3f803f80
v_and_b32 v4, 31, v0
v_cndmask_b32 v{vSEL}, 0, v5, vcc
v_cndmask_b32 v{vSEL+1}, 0, v5, vcc
v_cndmask_b32 v{vSEL+2}, 0, v5, vcc
v_cndmask_b32 v{vSEL+3}, 0, v5, vcc
s_add_u32 s{sT3}, s{sT3}, {xbias}
v_lshl_add_u32 v5, v4, 7, s{sT3}
v_bfe_u32 v4, v0, 1, 3
v_lshrrev_b32 v6, 5, v0
v_xor_b32 v4, v4, v6
v_lshl_add_u32 v{vAX}, v4, 4, v5""")
    for j in range(1, 4): e(f"v_xor_b32 v{vAX+j}, {32*j}, v{vAX}")
    e(f"""s_lshl_b32 s{sT0}, s{sMEAN}, 4
s_add_u32 s{sT0}, s{sT0}, {STATS}
v_mov_b32 v5, {DUMP}
v_mov_b32 v6, s{sT0}
v_cmp_eq_u32 vcc, 63, v0
v_cndmask_b32 v{vRT+2}, v5, v6, vcc""")
    e(srd_s(rWS, pWS, WS_USED))

def misc_text():
    return f"""v_mov_b32 v5, {DUMP}
v_lshlrev_b32 v4, 2, v0
v_cmp_gt_u32 vcc, {1 if 'flag1' in DBG else 32}, v0
v_cndmask_b32 v{vZ0}, v5, v4, vcc
s_mov_b32 s{sHALF}, 0
s_mov_b32 s{sHALF+1}, -1
s_mov_b32 s{sEPS}, {f32(1e-6)}
s_mov_b32 s{sEPS+1}, {f32(1e-6)}
s_mov_b32 s{sCT}, s{sGSEL}
s_lshl_b32 s{sTB}, s{sXCD}, 2
s_add_u32 s{sTB}, s{sTB}, s{sSUB}
"""

def wave_sum(r):
    return [f"v_add_f32_dpp v{r}, v{r}, v{r} {m} bank_mask:0xf" for m in
            ("quad_perm:[1,0,3,2] row_mask:0xf", "quad_perm:[2,3,0,1] row_mask:0xf", "row_half_mirror row_mask:0xf", "row_mirror row_mask:0xf",
             "row_bcast:15 row_mask:0xa", "row_bcast:31 row_mask:0xc")]

def mall_prefetch():
    if opt('mpf', 1) == 0: return
    st = k.state()
    L1, L2 = k.newlabel('Lpf'), k.newlabel('Lpf')
    e(f"s_cmp_lg_u32 s{sW}, 6\ns_cbranch_scc1 {L1}")
    e(f"s_mul_i32 s{sT0}, s2, {49*128}\nv_min_u32 v4, 48, v0\nv_lshl_add_u32 v4, v4, 7, s{sT0}\nglobal_load_dword v{vDUM}, v4, s[{pW2}:{pW2+1}]")
    k.label(L1)
    e(f"s_cmp_lg_u32 s{sW}, 5\ns_cbranch_scc1 {L2}")
    e(f"s_mul_i32 s{sT0}, s2, {13*128}\nv_min_u32 v4, 12, v0\nv_lshl_add_u32 v4, v4, 7, s{sT0}\nv_min_u32 v4, {448*896-4}, v4\nglobal_load_dword v{vDUM}, v4, s[{pWO}:{pWO+1}]")
    e(f"v_min_u32 v4, 6, v0\nv_lshlrev_b32 v4, 7, v4\nglobal_load_dword v{vDUM}, v4, s[{pB2}:{pB2+1}]")
    k.label(L2)
    L3 = k.newlabel('Lpf')
    e(f"s_cmp_lg_u32 s{sW}, {4 if opt('c6', 1) else 9}\ns_cbranch_scc1 {L3}")
    e(f"s_lshr_b32 s{sT0}, s2, 3\ns_mul_i32 s{sT0}, s{sT0}, {56*896}\ns_add_u32 s{sT0}, s{sT0}, 768\nv_min_u32 v4, 55, v0\nv_mul_u32_u24 v4, 896, v4\nv_add_u32 v4, s{sT0}, v4\nglobal_load_dword v{vDUM}, v4, s[{pW2}:{pW2+1}]")
    k.label(L3)
    if opt('tlb', 0):
        L4 = k.newlabel('Lpf'); G = opt('tlb', 0)
        n = (WS_USED // 1024 // G + 31) // 32
        e(f"s_cmp_lg_u32 s{sW}, 3\ns_cbranch_scc1 {L4}")
        e(f"s_lshr_b32 s{sT0}, s2, 3\ns_mul_i32 s{sT1}, s{sT0}, {n}\nv_min_u32 v4, {n-1}, v0\nv_add_u32 v4, s{sT1}, v4\nv_mul_u32_u24 v4, {G*1024}, v4\nv_add_u32 v4, 0x800, v4\nglobal_load_dword v{vDUM}, v4, s[{pWS}:{pWS+1}]")
        m = (2048 * 896 // 1024 // G + 31) // 32
        e(f"s_mul_i32 s{sT1}, s{sT0}, {m}\nv_min_u32 v4, {m-1}, v0\nv_add_u32 v4, s{sT1}, v4\nv_mul_u32_u24 v4, {G*1024}, v4\nv_min_u32 v4, {2048*896-4}, v4\nglobal_load_dword v{vDUM}, v4, s[{pOUT}:{pOUT+1}]")
        k.label(L4)
    k.set_state(st)

def rowstat(rtok):
    a = vRT
    k.wait(vm=rtok)
    it = []
    for d in range(4):
        it += [f"v_lshlrev_b32 v{vRU+2*d}, 16, v{vROW+d}", f"v_and_b32 v{vRU+2*d+1}, 0xffff0000, v{vROW+d}"]
    it += [f"v_pk_add_f32 {vr(vROW,2)}, {vr(vRU,2)}, {vr(vRU+2,2)}", f"v_pk_add_f32 {vr(vROW+2,2)}, {vr(vRU+4,2)}, {vr(vRU+6,2)}",
           f"v_pk_add_f32 {vr(vROW,2)}, {vr(vROW,2)}, {vr(vROW+2,2)}", f"v_add_f32 v{a}, v{vROW}, v{vROW+1}"]
    it += wave_sum(a)
    it += [f"v_mul_f32 v{vGR}, {f32(1/448)}, v{a}", f"v_readlane_b32 s{sMEAN}, v{vGR}, 63", f"v_mul_f32 v{a}, s{sMEAN}, v{vRT+1}"]
    for d in range(4): it.append(f"v_pk_add_f32 {vr(vRU+2*d,2)}, {vr(vRU+2*d,2)}, {vr(a,2)} op_sel_hi:[1,0] neg_lo:[0,1] neg_hi:[0,1]")
    it.append(f"v_pk_mul_f32 {vr(vROW,2)}, {vr(vRU,2)}, {vr(vRU,2)}")
    for d in range(1, 4): it.append(f"v_pk_fma_f32 {vr(vROW,2)}, {vr(vRU+2*d,2)}, {vr(vRU+2*d,2)}, {vr(vROW,2)}")
    it.append(f"v_add_f32 v{a}, v{vROW}, v{vROW+1}")
    it += wave_sum(a)
    it.append(f"v_mul_f32 v{vGR+1}, {f32(1/448)}, v{a}")
    for x in it: e(x)
    e(f"s_waitcnt lgkmcnt(0)\ns_mul_i32 s{sTAG}, s{sTAG}, 1664525\ns_add_u32 s{sTAG}, s{sTAG}, 1013904223")
    e(f"v_mov_b32 v{vTG}, s{sTAG}\nv_mov_b32 v{vGR+2}, s{sTAG}\nv_mov_b32 v{vGR+3}, s{sTAG}")
    e(f"buffer_store_dwordx4 {vr(vGR,4)}, v{vRT+2}, {WS}, 0 offen sc1")

def gelu_pk(acc, out, kp, sp, tmp):
    o = []
    for h in range(2):
        a = acc + 8 * h; t = tmp + 8 * h
        for p in range(4): o.append(f"v_pk_mul_f32 {vr(t+2*p,2)}, {vr(a+2*p,2)}, {vr(a+2*p,2)}")
        for p in range(4): o.append(f"v_pk_fma_f32 {vr(t+2*p,2)}, {vr(t+2*p,2)}, {vr(kp+2,2)}, {vr(kp,2)} op_sel_hi:[1,0,0]")
        for p in range(4): o.append(f"v_pk_mul_f32 {vr(t+2*p,2)}, {vr(t+2*p,2)}, {vr(a+2*p,2)}")
        for p in range(8): o.append(f"v_exp_f32 v{t+p}, v{t+p}")
        for p in range(4): o.append(f"v_pk_fma_f32 {vr(t+2*p,2)}, {vr(t+2*p,2)}, {vr(sp,2)}, {vr(sp,2)} op_sel_hi:[1,0,0]")
        for p in range(8): o.append(f"v_rcp_f32 v{t+p}, v{t+p}")
        for p in range(4): o.append(f"v_pk_mul_f32 {vr(t+2*p,2)}, {vr(t+2*p,2)}, {vr(a+2*p,2)}")
        for p in range(4): o.append(f"v_cvt_pk_bf16_f32 v{out+4*h+p}, v{t+2*p}, v{t+2*p+1}")
        o.append(('st', h))
    return o
def phi_pk(acc, out, rfun, rlfun, sel, tmp):
    o = []
    for h in range(2):
        a = acc + 8 * h; t = tmp + 8 * h
        for p in range(4): o.append(f"v_pk_mul_f32 {vr(t+2*p,2)}, {vr(a+2*p,2)}, {rlfun(4*h+p)} op_sel_hi:[1,{sel}]")
        for p in range(4): o.append(f"v_pk_fma_f32 {vr(a+2*p,2)}, {vr(a+2*p,2)}, {rfun(4*h+p)}, {sr(sEPS,2)} op_sel_hi:[1,{sel},0]")
        for p in range(8): o.append(f"v_exp_f32 v{t+p}, v{t+p} clamp")
        for p in range(8): o.append(f"v_max_f32 v{a+p}, s{sEPS}, v{a+p}")
        for p in range(4): o.append(f"v_pk_add_f32 {vr(t+2*p,2)}, {vr(t+2*p,2)}, {vr(a+2*p,2)}")
        for p in range(4): o.append(f"v_cvt_pk_bf16_f32 v{out+4*h+p}, v{t+2*p}, v{t+2*p+1}")
        o.append(('st', h))
    return o
def skew(chains):
    o = []; L = len(chains[0]); n = len(chains)
    for t in range(L + 2 * n):
        for i, c in enumerate(chains):
            s = t - 2 * (i // 2)
            if 0 <= s < len(c) and c[s] is not None: o.append(c[s])
    return o
def gelu_sc(acc, out, kp, sp, tmp, half):
    ch = []
    for p in range(8):
        a = acc + 8 * half + p; t = tmp + p
        c = [f"v_mul_f32 v{t}, v{a}, v{a}", f"v_fma_f32 v{t}, v{t}, v{kp+2}, v{kp}", f"v_mul_f32 v{t}, v{t}, v{a}", f"v_exp_f32 v{t}, v{t}",
             f"v_fma_f32 v{t}, v{t}, v{sp}, v{sp}", f"v_rcp_f32 v{t}, v{t}", f"v_mul_f32 v{t}, v{t}, v{a}",
             f"v_cvt_pk_bf16_f32 v{out+4*half+p//2}, v{t-1}, v{t}" if p & 1 else None]
        ch.append(c)
    return skew(ch)
def phi_sc(acc, out, r, rl, tmp, half):
    ch = []
    for p in range(8):
        a = acc + 8 * half + p; t = tmp + p
        c = [f"v_mul_f32 v{t}, v{a}, v{rl}", f"v_fma_f32 v{a}, v{a}, v{r}, s{sEPS}", f"v_exp_f32 v{t}, v{t} clamp", f"v_max_f32 v{a}, s{sEPS}, v{a}",
             f"v_add_f32 v{t}, v{t}, v{a}", f"v_cvt_pk_bf16_f32 v{out+4*half+p//2}, v{t-1}, v{t}" if p & 1 else None]
        ch.append(c)
    return skew(ch)

vAW = 17
vBIAS = 25
vXB = 32; vWB = 48; vACC = 72; vCS = 136
vAX2 = 120
vSG = 168; vCG = 172; vGA2 = 21; vCP = 22

def p1_dma(kind, i):
    slot = (i % 3) * SLOT
    out = [f"s_add_u32 m0, s{sM0X}, {slot}\ns_lshl_b32 s{sSOX}, s{sCC}, 7\nbuffer_load_dwordx4 v{vDX0}, s[{rX}:{rX+3}], s{sSOX} offen lds"]
    if kind == 'M':
        out.append(f"s_add_u32 m0, s{sM0X}, {slot + 1024}\ns_mul_i32 s{sSO0}, s{sCC}, s{sPSTEP0}\nbuffer_load_dwordx4 v{vDX1}, s[{rX}:{rX+3}], s{sSOX} offen lds")
        for lc in range(3):
            nx = f"s_mul_i32 s{sSO0+lc+1}, s{sCC}, s{sPSTEP0+lc+1}" if lc < 2 else f"s_add_u32 s{sCC}, s{sCC}, 1"
            out.append(f"s_add_u32 m0, s{sM0W}, {slot + lc*8192}\n{nx}\n"
                       f"buffer_load_dwordx4 v{vDW0+lc}, s[{rW0+4*lc}:{rW0+4*lc+3}], s{sSO0+lc} offen lds")
    else:
        out.append(f"s_add_u32 m0, s{sM0X}, {slot + 1024}\ns_mul_i32 s{sSO0}, s{sCC}, {64*2688}\nbuffer_load_dwordx4 v{vDX1}, s[{rX}:{rX+3}], s{sSOX} offen lds")
        nxs = [f"s_add_u32 s{sSO1}, s{sSO0}, 896", "s_nop 0", "s_nop 0", f"s_add_u32 s{sCC}, s{sCC}, 1"]
        for kv in range(2):
            for jj in range(2):
                out.append(f"s_add_u32 m0, s{sM0W}, {slot + kv*16384 + jj*1024}\n{nxs[2*kv+jj]}\n"
                           f"buffer_load_dwordx4 v{vDW0+jj}, s[{rW0}:{rW0+3}], s{sSO0+kv} offen lds")
    out[-1] += f"\ns_cmp_eq_u32 s{sCC}, 7\ns_cselect_b32 s{sCC}, 0, s{sCC}"
    return out

def cs_addr_text(slot_s, pub_s):
    return f"""s_lshl_b32 s{sT0}, s{slot_s}, 12
s_add_u32 s{sT0}, s{sT0}, {CSG}
v_add_u32 v{vGA2}, s{sT0}, v{vL16}
s_lshl_b32 s{sT1}, s{sC0}, 9
v_add_u32 v4, s{sT1}, v{vGA2}
v_mov_b32 v5, {DUMP}
v_cndmask_b32 v4, v4, v5, {HALF}
s_cmp_lt_u32 s{sRB}, 7
s_cselect_b32 s{sT1}, s{pub_s}, 1
s_cmp_eq_u32 s{sT1}, 0
s_cselect_b32 s{sT1}, 0, {DUMP}
v_add_u32 v{vCP}, s{sT1}, v4
"""
def cs_pub(nt, vCS=136, vRU=212):
    return [f"v_mov_b32 v{vRU+t}, v{vCS+4*t}" for t in range(nt)] + [f"v_mov_b32 v{vRU+t}, v{vTG}" for t in range(nt, 4)] + \
           [f"buffer_store_dwordx4 {vr(vRU,4)}, v{vCP}, {WS}, 0 offen sc1"]
def gran_items(vSG=168, vCG=172):
    GL = [f"buffer_load_dwordx4 {vr(vSG,4)}, v{vGA}, {WS}, 0 offen sc1"] + \
         [f"buffer_load_dwordx4 {vr(vCG+4*q,4)}, v{vGA2}, {WS}, 0 offen offset:{1024*q} sc1" for q in range(4)]
    G = {}
    def last_g(): G['g'] = e(GL[-1])
    a_ = vSG + 2
    gtest = f"""v_cndmask_b32 v{vCG+15}, v{vCG+15}, v{vTG}, {HALF}
v_xor_b32 v{a_}, v{vTG}, v{vSG+3}
v_bitop3_b32 v{a_}, v{a_}, v{vCG+3}, v{vTG} bitop3:0xf6
v_bitop3_b32 v{a_}, v{a_}, v{vCG+7}, v{vTG} bitop3:0xf6
v_bitop3_b32 v{a_}, v{a_}, v{vCG+11}, v{vTG} bitop3:0xf6
v_bitop3_b32 v{a_}, v{a_}, v{vCG+15}, v{vTG} bitop3:0xf6
v_cmp_ne_u32 vcc, 0, v{a_}
s_cmp_lg_u64 vcc, 0"""
    def gcheck():
        k.wait(vm=G['g']); verify("\n".join(GL), gtest, 4)
    return GL[:-1] + [last_g], gcheck
def cs_sum(nt, dst, vCG=172):
    it = []
    for t in range(nt): it.append(f"v_cndmask_b32 v{vCG+12+t}, v{vCG+12+t}, 0, {HALF}")
    for t in range(nt): it += [f"v_add_f32 v{vCG+t}, v{vCG+t}, v{vCG+4+t}", f"v_add_f32 v{vCG+8+t}, v{vCG+8+t}, v{vCG+12+t}"]
    for t in range(nt): it.append(f"v_add_f32 v{vCG+t}, v{vCG+t}, v{vCG+8+t}")
    for t in range(nt): it.append(f"v_mov_b32 v{vCG+4+t}, v{vCG+t}")
    for t in range(nt): it.append(f"v_permlane32_swap_b32 v{vCG+t}, v{vCG+4+t}")
    for t in range(nt): it.append(f"v_add_f32 v{dst+t}, v{vCG+t}, v{vCG+4+t}")
    return it

def main_loop(kind, D, per, ax2, tail=None, lead=None):
    SETS = [32, 48, 232]
    xbuf = lambda n, u: SETS[n % 3] + 4 * u
    wbuf = lambda n, t: SETS[n % 3] + 8 + 4 * t
    def reads(n):
        i, j = divmod(n, 4); sl = i % 3
        xa = (ax2 if sl == 2 else vAX) + j; xo = SLOT if sl == 1 else 0
        o = [f"ds_read_b128 {vr(xbuf(n,0),4)}, v{xa} offset:{xo}"]
        for kv in range(2):
            for rd in range(2): o.append(f"ds_read_b64_tr_b16 {vr(wbuf(n,kv)+2*rd,2)}, v{vAW+sl} offset:{kv*16384 + j*4096 + rd*1024}")
        o.append(f"ds_read_b128 {vr(xbuf(n,1),4)}, v{xa} offset:{xo+4096}")
        return o
    k.wait(vm=D[0]); e("s_barrier")
    stamp(1)
    RT = {}
    for n in range(2):
        for x in reads(n): RT[n] = e(x)
    pend = p1_dma(kind, 2); pend_i = 2
    for n in range(28):
        i, j = divmod(n, 4)
        mf = []
        for t in range(4):
            acc = vr(vACC + 16 * t, 16); u, kv = t >> 1, t & 1
            mf.append(f"v_mfma_f32_32x32x16_bf16 {acc}, {vr(xbuf(n,u),4)}, {vr(wbuf(n,kv),4)}, {'0' if n == 0 else acc}")
        if i == 0:
            for t in range(2):
                acc = vr(vCS + 4 * t, 4)
                mf.append(f"v_mfma_f32_16x16x32_bf16 {acc}, {vr(vSEL,4)}, {vr(wbuf(n,t),4)}, {'0' if n == 0 else acc}")
        k.wait(lg=RT[n])
        e(mf[0])
        if j == 2:
            assert not pend
            e(mf[1]); mf = mf[1:]
            e("s_waitcnt lgkmcnt(0)")
            if i < 6: k.wait(vm=D[i + 1])
            e("s_barrier")
            stamp(2 + i, chunk=True)
            pend_i = i + 3
            pend = (lead or {}).get(i, []) + (p1_dma(kind, i + 3) if i + 3 < 7 else tail[i + 3 - 7] if i < 6 else [])
        if n + 2 < 28:
            for x in reads(n + 2): RT[n + 2] = e(x)
        left = {2: 3, 3: 2, 0: 1, 1: 1}[j] if n >= 2 else 2 - n
        nd = -(-len(pend) // left)
        dmm = pend[:nd]; pend = pend[nd:]
        other = spread([('d', x) for x in dmm] or [('n', None)], [('f', x) for x in per[n]])
        other = [f for f in other if f[0] != 'n']
        for kind_, x in spread([('m', x) for x in mf[1:]], other):
            t_ = emit_item(x)
            if kind_ == 'd' and t_ is not None: D[pend_i] = t_

FLAG = f"buffer_store_dword v{vTG}, v{vZ0}, {WS}, s{sFLO} offen sc1\ns_add_u32 s{sFLO}, s{sFLO}, 128"

XP = [65536, 81920, 114688]
WP = [[49152, 57344], [98304, 106496], [131072, 139264]]
L2P = [SCR] + [8192 * i for i in range(6)]
def ring(c): return (c + 2) % 3
def phase1_M():
    mg = sMG
    vX = 96; AC = [64, 80]; mCS = 48; vK = 48; vBA = 56; vAA = [228, 232, 60]; sm = 26
    mSG = 208; mCG = 212; R = 236; vC = 244
    WS3 = [32, 40, 240]
    T = {}
    def tokset(key, text):
        def f(): T[key] = e(text)
        return f
    def dma_c(c):
        p = ring(c)
        return [f"s_add_u32 m0, s{sM0X}, {XP[p]}\ns_lshl_b32 s{sSOX}, s{sCC}, 7\nbuffer_load_dwordx4 v{vDX0}, s[{rX}:{rX+3}], s{sSOX} offen lds",
                f"s_add_u32 m0, s{sM0X}, {XP[p]+1024}\ns_mul_i32 s{sSO0}, s{sCC}, s{sPSTEP0}\nbuffer_load_dwordx4 v{vDX1}, s[{rX}:{rX+3}], s{sSOX} offen lds",
                f"s_add_u32 m0, s{sM0W}, {WP[p][0]}\ns_mul_i32 s{sSO1}, s{sCC}, s{sPSTEP0+1}\nbuffer_load_dwordx4 v{vDW0}, s[{rW0}:{rW0+3}], s{sSO0} offen lds",
                f"s_add_u32 m0, s{sM0W}, {WP[p][1]}\ns_add_u32 s{sCC}, s{sCC}, 1\nbuffer_load_dwordx4 v{vDW0+1}, s[{rW1}:{rW1+3}], s{sSO1} offen lds\n"
                f"s_cmp_eq_u32 s{sCC}, 7\ns_cselect_b32 s{sCC}, 0, s{sCC}"]
    def dma_2(c):
        return (f"s_add_u32 m0, s{sM0W}, {L2P[c]}\ns_nop 0\nbuffer_load_dwordx4 v{vDW0+2}, s[{rW2}:{rW2+3}], s{sSO2} offen lds\n"
                f"s_add_u32 s{sSO2}, s{sSO2}, s{sPSTEP0+2}\ns_cmp_eq_u32 s{sSO2}, s{rW2+2}\ns_cselect_b32 s{sSO2}, 0, s{sSO2}")
    def wf(a, j, dst): return [f"ds_read_b64_tr_b16 {vr(dst+2*rd,2)}, v{vAW + (a >> 16)} offset:{(a & 0xffff) + j*2048 + rd*512}" for rd in range(2)]
    e(f"s_and_b32 s{sT0}, s{sXCD}, 1\ns_mul_i32 s{sT0}, s{sT0}, 6\ns_add_u32 s{mg}, s{sT0}, s{sGSEL}")
    e(f"""v_lshrrev_b32 v4, 3, v0
v_lshl_add_u32 v4, s{sW}, 3, v4
v_bfe_u32 v5, v0, 4, 1
v_lshlrev_b32 v5, 2, v5
v_and_b32 v6, 7, v0
v_xor_b32 v5, v5, v6
v_lshlrev_b32 v5, 4, v5
s_lshl_b32 s{sM0W}, s{sW}, 10
s_mul_i32 s{sT3}, s{mg}, 3""")
    for lc in range(3):
        r = rW0 + 4 * lc
        e(f"""s_add_u32 s{sT0}, s{sT3}, {lc}
s_sub_u32 s{sT1}, s{sT0}, 28
s_cmp_lt_u32 s{sT0}, 35
s_cselect_b32 s{r+2}, {448*2688}, 0
s_cmp_lt_u32 s{sT0}, 28
s_cselect_b32 s{r+2}, {448*3584}, s{r+2}
s_cselect_b32 s{sT0}, s{sT0}, s{sT1}
s_movk_i32 s{sT1}, 2688
s_cselect_b32 s{sT1}, 3584, s{sT1}
s_lshl_b32 s{sT0}, s{sT0}, 7
s_lshl_b32 s{sPSTEP0+lc}, s{sT1}, 6
v_mad_u32_u24 v{vDW0+lc}, v4, s{sT1}, v5
v_add_u32 v{vDW0+lc}, s{sT0}, v{vDW0+lc}
s_mov_b32 s{r+3}, 0x20000""")
    e(f"s_mul_i32 s{sSO2}, s{sCC}, s{sPSTEP0+2}")
    rtok = after_kernarg()
    stamp(0)
    e(f"s_and_b32 s{pW1+1}, s{pW1+1}, 0xffff\ns_and_b32 s{pWQKV+1}, s{pWQKV+1}, 0xffff")
    for lc in range(3):
        r = rW0 + 4 * lc
        e(f"s_cmp_eq_u32 s{sPSTEP0+lc}, {64*3584}\ns_cselect_b32 s{r}, s{pW1}, s{pWQKV}\ns_cselect_b32 s{r+1}, s{pW1+1}, s{pWQKV+1}")
    for g in dma_c(0): T[0] = e(g)
    e(f"s_and_b32 s{sLO}, s{sW}, 3\ns_lshr_b32 s{sHI}, s{sW}, 2\ns_lshl_b32 s{sT3}, s{sLO}, 12")
    loop_setup(65536)
    e(trpat(4, 5, 3) + f"s_lshl_b32 s{sT0}, s{sHI}, 6\nv_xor_b32 v{vAW}, s{sT0}, v4\nv_add_u32 v{vAW+1}, 65536, v{vAW}\nv_add_u32 v{vAW+2}, 131072, v{vAW}")
    e(dma_2(0))
    for g in dma_c(1): T[1] = e(g)
    mall_prefetch()
    rowstat(rtok)
    m, var = mSG, mSG + 1
    r1, w_, rm = R + 5, R + 6, R + 7
    setup1 = misc_text() + f"s_lshl_b32 s{sT4}, s{mg}, 1\ns_add_u32 s{sT4}, s{sT4}, s{sHI}\ns_mul_i32 s{sTILE0}, s{mg}, 6\ns_add_u32 s{sTILE0}, s{sTILE0}, s{sHI}\n" + \
        cs_addr_text(sT4, sLO) + srd_s(rMISC, pB1, 3584) + f"s_lshl_b32 s{sT0}, s{sTILE0}, 6\nv_and_b32 v4, 31, v0\nv_lshl_add_u32 v{vBIAS+2}, v4, 1, s{sT0}\n"
    bias = [f"buffer_load_ushort v{vBIAS+t}, v{vBIAS+2}, s[{rMISC}:{rMISC+3}], 0 offen offset:{128*t}" for t in range(3)]
    setup2 = f"""s_lshl_b32 s{sT0}, s{sRB}, 2
s_add_u32 s{sT0}, s{sT0}, s{sLO}
s_lshl_b32 s{sT1}, s{sT0}, 9
s_add_u32 s{sT1}, s{sT1}, {STATS}
v_and_b32 v4, 31, v0
v_lshl_add_u32 v{vGA}, v4, 4, s{sT1}
s_lshl_b32 s{sFLO}, s{sT0}, 13
s_mul_i32 s{sT0}, s{sT0}, {140*1024}
s_lshl_b32 s{sT1}, s{sTILE0}, 11
s_add_u32 s{sHQO}, s{sT0}, s{sT1}
s_add_u32 s{sHQO}, s{sHQO}, {HQ}
s_lshl_b32 s{sT1}, s{sT4}, 7
s_add_u32 s{sFLO}, s{sFLO}, s{sT1}
s_add_u32 s{sFLO}, s{sFLO}, {FLH}
""" + p2_setup_text()
    early = f"v_mov_b32 v{vBA+3}, 0\n" + "".join(f"v_lshlrev_b32 v{vAA[t]+1}, 16, v{vBIAS+t}\nv_mov_b32 v{vAA[t]+2}, v{vBIAS+t}\nv_mov_b32 v{vAA[t]+3}, 0\n" for t in range(3))
    gl, gcheck = gran_items(mSG, mCG)
    C3 = [mCG + 8, mCG + 9, mCG + 10]
    aug = [gcheck] + lines(f"""v_add_f32 v{vK}, {f32(EPS)}, v{var}
v_mov_b32 v{vK+1}, {f32(EPS)}
v_fma_f32 v{vK+1}, v{vK+1}, v{vK}, v{var}
v_rsq_f32 v{vK+4}, v{vK}
v_rsq_f32 v{vK+3}, v{vK+1}""") + cs_sum(3, mCG + 8, mCG) + lines(f"""v_mul_f32 v{sm}, v{vK+1}, v{vK+3}
v_cvt_pk_bf16_f32 v{R}, -v{m}, v{sm}
v_lshlrev_b32 v{R+1}, 16, v{R}
v_and_b32 v{R+2}, 0xffff0000, v{R}
v_sub_f32 v{R+1}, -v{m}, v{R+1}
v_sub_f32 v{R+2}, v{sm}, v{R+2}
v_cvt_pk_bf16_f32 v{R+3}, -v{m}, v{R+1}
v_cvt_pk_bf16_f32 v{R+2}, v{R+2}, 0
v_cndmask_b32 v{vBA}, v{R+3}, 0, {HALF}
v_cndmask_b32 v{vBA+1}, v{R}, 0, {HALF}
v_cndmask_b32 v{vBA+2}, v{R+2}, 0, {HALF}""")
    for t in range(3):
        c = C3[t]; a = vAA[t]
        aug += lines(f"""v_cvt_pk_bf16_f32 v{a}, v{c}, v{c}
v_and_b32 v{R}, 0xffff0000, v{a}
v_sub_f32 v{R}, v{c}, v{R}
v_cvt_pk_bf16_f32 v{a+1}, v{R}, v{a+1}""")
    post = lines(f"""v_mul_f32 v{vK}, {f32(GC0)}, v{vK+3}
v_mul_f32 v{vK+5}, v{vK+3}, v{vK+3}
v_mul_f32 v{vK+5}, {f32(GC1)}, v{vK+5}
v_mul_f32 v{vK+2}, v{vK+5}, v{vK}
v_mul_f32 v{vK+6}, {f32(LOG2E)}, v{vK+4}""")
    per = {n: [] for n in range(28)}
    dmx = {n: [] for n in range(28)}
    distribute(per, 0, 7, atoms(setup1)); per[9] += cs_pub(3, mCS) + bias
    distribute(per, 10, 17, atoms(setup2)); distribute(per, 19, 20, atoms(early))
    for st_ in [5, 9, 13, 17, 21][:PFP]: per[st_].append(pf_item())
    G0 = opt('gstep', 18)
    distribute(per, G0, G0 + 1, gl)
    distribute(per, 23, 27, aug)
    distribute(dmx, 0, 1, [tokset(2, g) for g in dma_c(2)])
    for c in range(3, 7): distribute(dmx, 4 * (c - 3) + 2, 4 * (c - 3) + 4, [tokset(c, g) for g in dma_c(c)])
    for c, st_ in zip(range(1, 7), (12, 16, 17, 20, 21, 21)): dmx[st_].append(tokset('l2', dma_2(c)))
    distribute(dmx, 22, 27, [tokset('P0', g) for g in p2_dma(0)])
    def reads(n):
        c, j = divmod(n, 4); p = ring(c); ws = WS3[n % 3]
        return [f"ds_read_b128 {vr(vX+4*n,4)}, v{vAX+j} offset:{XP[p]-65536}"] + wf(WP[p][0], j, ws) + wf(WP[p][1], j, ws + 4)
    k.wait(vm=T[0]); e("s_barrier")
    stamp(1)
    RT = {}
    MP = True
    for n in range(2):
        for x in reads(n): RT[n] = e(x)
    CT = {}
    for n in range(28):
        c, j = divmod(n, 4); ws = WS3[n % 3]
        if j == 2:
            e("s_waitcnt lgkmcnt(0)")
            if c < 6: k.wait(vm=T[c + 1])
            e("s_barrier")
            stamp(2 + c, chunk=True)
        mf = [f"v_mfma_f32_32x32x16_bf16 {vr(AC[t],16)}, {vr(ws+4*t,4)}, {vr(vX+4*n,4)}, {'0' if n == 0 else vr(AC[t],16)}" for t in range(2)]
        if c == 0: mf += [f"v_mfma_f32_16x16x32_bf16 {vr(mCS+4*t,4)}, {vr(vSEL,4)}, {vr(ws+4*t,4)}, {'0' if n == 0 else vr(mCS+4*t,4)}" for t in range(2)]
        rd = [tokset(('r', n + 2), x) for x in reads(n + 2)] if n + 2 < 28 else []
        if 2 <= n < 6: rd += [tokset(('c', n - 2), x) for x in wf(L2P[0], n - 2, [60, 228, 232, 236][n - 2])]
        if 4 <= n < 8:
            def csm(q=n - 4):
                k.wait(lg=T[('c', q)])
                e(f"v_mfma_f32_16x16x32_bf16 {vr(mCS+8,4)}, {vr(vSEL,4)}, {vr([60, 228, 232, 236][q],4)}, {'0' if q == 0 else vr(mCS+8,4)}")
            mf.append(csm)
        k.wait(lg=RT[n] if n < 2 else T[('r', n)])
        other = spread(dmx[n], per[n]) if dmx[n] else per[n]
        for x in [mf[0]] + rd + spread(mf[1:], other): emit_item(x)
    for x in spread([f"v_mfma_f32_32x32x16_bf16 {vr(AC[t],16)}, {vr(vAA[t],4)}, {vr(vBA,4)}, {vr(AC[t],16)}" for t in range(2)], post): e(x)
    stamp(2); stamp(9, chunk=True)
    def p1dma(cond, lab):
        st_ = k.state()
        e(f"s_cmp_{cond}_u32 s{sHI}, 0\ns_cbranch_scc1 {lab}")
        for g in p2_dma(1): e(g)
        k.label(lab); k.set_state(st_)
    p1dma('eq', 'Lp1a')
    vT = 32
    def tile(acc, out, kind, last=False):
        ep = gelu_pk(acc, out, vK, sm, vT) if kind == 'G' else phi_pk(acc, out, lambda p: vr(vK + 4, 2), lambda p: vr(vK + 6, 2), 0, vT)
        for x in ep:
            if isinstance(x, tuple):
                h = x[1]
                if last and h == 0: k.wait(vm=T['poll'])
                T['st'] = e(f"buffer_store_dwordx4 {vr(out+4*h,4)}, v{vL16}, {WS}, s{sHQO} offen offset:{1024*h} sc1")
                if h: e(f"s_add_u32 s{sHQO}, s{sHQO}, 4096")
            else: e(x)
    e(f"s_nop 3\ns_cmp_ge_u32 s{mg}, 10\ns_cbranch_scc1 Lphi0")
    st0 = k.state()
    tile(AC[0], 208, 'G')
    e(f"s_cmp_eq_u32 s{mg}, 9\ns_cbranch_scc1 Lphi1")
    tile(AC[1], 216, 'G')
    k.label('Lepi1')
    def phis():
        k.label('Lphi0'); k.set_state(st0); e("s_nop 7")
        tile(AC[0], 208, 'P')
        k.label('Lphi1')
        tile(AC[1], 216, 'P')
        e("s_branch Lepi1")
    T0 = dict(T)
    outline.append(phis)
    stamp(3); stamp(12, 4)
    p1dma('lg', 'Lp1b')
    k.wait(vm=T0['l2'])
    e("s_barrier")
    stamp(10, chunk=True)
    def r2(n): return wf(L2P[n >> 2], n & 3, 32 + 4 * (n & 3))
    W = {}
    for n in range(3):
        for x in r2(n): W[n] = e(x)
    per = {n: [] for n in range(28)}
    FS = opt('fstep', 12)
    distribute(per, 0, FS - 1, atoms(poll_addr_text() + wa_text(), 3))
    per[FS] = ["s_waitcnt vmcnt(0)", f"buffer_store_dword v{vTG}, v{vZ0}, {WS}, s{sFLO} offen sc1\ns_add_u32 s{sFLO}, s{sFLO}, 4096"]
    pre = [tokset('pre', x) for u in range(5) for x, _ in wreads(u, vWP + 8 * u)]
    distribute(per, FS + 1, FS + 4, pre)
    distribute(per, FS + 6, 27, [lambda: k.wait(lg=T['pre'])] + [g for u in range(9, 14) for g in unit_dma(u)])
    for n in range(28):
        k.wait(lg=W[n])
        e(f"v_mfma_f32_32x32x16_bf16 {vr(AC[0],16)}, {vr(32+4*(n&3),4)}, {vr(vX+4*n,4)}, {'0' if n == 0 else vr(AC[0],16)}")
        if n + 3 < 28:
            for x in r2(n + 3): W[n + 3] = e(x)
        for x in per[n]: emit_item(x)
    e(f"v_mfma_f32_32x32x16_bf16 {vr(AC[0],16)}, {vr(vAA[2],4)}, {vr(vBA,4)}, {vr(AC[0],16)}")
    e("s_barrier")
    stamp(11, chunk=True)
    T['poll'] = e(POLL)
    st_ = k.state()
    e(f"s_mov_b32 s{sC0}, s{sHI}\ns_cmp_eq_u32 s{sHI}, 0\ns_cbranch_scc1 Lp2a")
    for g in p2_dma(2): e(g)
    k.label('Lp2a'); k.set_state(st_)
    e(f"s_cmp_eq_u32 s{mg}, 11\ns_cselect_b32 s{sHQO}, {DUMP}, s{sHQO}\ns_nop 7\ns_cmp_ge_u32 s{mg}, 9\ns_cbranch_scc1 Lphi2")
    st1 = k.state()
    tile(AC[0], 80, 'G', True)
    def phi2():
        k.label('Lphi2'); k.set_state(st1)
        tile(AC[0], 80, 'P', True)
        e("s_branch Lp2")
    outline.append(phi2)
    stamp(12, chunk=True)

def phase1_KV():
    g = sMG
    kAX2 = 64; vRA = 68; vZA_ = 25
    e(f"""s_and_b32 s{sT0}, s{sXCD}, 1
s_mul_i32 s{sT1}, s{sT0}, 3
s_add_u32 s{sT3}, s{sT0}, 1
s_cmp_eq_u32 s{sGSEL}, 6
s_cselect_b32 s{g}, s{sT1}, s{sT3}
s_mul_i32 s{sT0}, s{g}, 224
s_cmp_eq_u32 s{g}, 3
s_cselect_b32 s{sT0}, 640, s{sT0}
s_add_u32 s{sT0}, s{sT0}, 896
v_lshrrev_b32 v4, 4, v0
v_lshlrev_b32 v5, 2, v4
v_sub_u32 v5, v0, v5
v_and_b32 v5, 15, v5
v_lshl_add_u32 v5, v5, 4, s{sT0}
v_lshl_add_u32 v4, s{sW}, 3, v4
v_mul_u32_u24 v4, 2688, v4
v_add_u32 v{vDW0}, v4, v5
v_add_u32 v{vDW0+1}, {4*2688}, v{vDW0}
s_lshl_b32 s{sM0W}, s{sW}, 11
s_add_u32 s{sM0W}, s{sM0W}, 16384""")
    rtok = after_kernarg()
    stamp(0)
    e(srd_s(rW0, pWQKV, 448 * 2688))
    D = {}
    for x in p1_dma('KV', 0): D[0] = e(x)
    e('s_branch Lkv2')
    yield
    k.label('Lkv2')
    e(f"s_and_b32 s{sLO}, s{sW}, 3\ns_lshr_b32 s{sHI}, s{sW}, 2\ns_lshl_b32 s{sT3}, s{sHI}, 13")
    loop_setup(0)
    e(f"""s_cmp_eq_u32 s{g}, 3
s_cselect_b32 s{sT1}, 32, 0
s_mul_i32 s{sT0}, s{sLO}, 56
s_add_u32 s{sT1}, s{sT1}, s{sT0}
v_bfe_u32 v4, v0, 2, 2
v_lshl_add_u32 v5, v4, 6, s{sT1}
v_bfe_u32 v6, v0, 4, 1
v_lshl_add_u32 v5, v6, 5, v5
v_and_b32 v6, 3, v0
v_lshl_add_u32 v5, v6, 3, v5
v_and_b32 v5, 255, v5
v_lshrrev_b32 v6, 5, v0
v_lshl_add_u32 v4, v6, 3, v4
v_lshl_add_u32 v5, v4, 8, v5
v_add_u32 v{vAW}, 16384, v5
v_add_u32 v{vAW+1}, {16384+SLOT}, v5
v_add_u32 v{vAW+2}, {16384+2*SLOT}, v5""")
    for x in p1_dma('KV', 1): D[1] = e(x)
    mall_prefetch()
    rowstat(rtok)
    vXA = 136; vWAu = 144; r1 = 152; R = 154; vC = 160; vR = 176
    setup1 = "".join(f"v_add_u32 v{kAX2+j}, {2*SLOT}, v{vAX+j}\n" for j in range(4)) + \
        f"s_lshl_b32 s{sTILE0}, s{g}, 2\ns_add_u32 s{sTILE0}, s{sTILE0}, s{sLO}\ns_add_u32 s{sT4}, s{sTILE0}, 24\n" + cs_addr_text(sT4, sHI)
    setup2 = f"""s_lshl_b32 s{sT0}, s{sRB}, 11
s_lshl_b32 s{sT1}, s{sHI}, 10
s_add_u32 s{sT0}, s{sT0}, s{sT1}
s_add_u32 s{sT0}, s{sT0}, {STATS}
v_add_u32 v{vGA}, s{sT0}, v{vL16}
""" + p2_setup_text() + poll_addr_text() + f"""s_mov_b32 s{sFLO}, {DUMP}
s_add_u32 s{sT0}, s{sM0X}, {SCR}
v_lshl_add_u32 v6, v0, 2, s{sT0}
v_lshrrev_b32 v7, 5, v0
v_lshl_add_u32 v7, v7, 4, s{sT0}
""" + "".join(f"v_mov_b32 v{r}, 0\n" for r in (vXA+2, vXA+3, vXA+6, vXA+7, vWAu+2, vWAu+3, vWAu+6, vWAu+7)) + f"""s_mov_b32 s{sMKM}, 0x10000000
s_mov_b32 s{sMKM+1}, 0x10000000
s_lshl_b32 s{sT0}, s{sLO}, 12
s_add_u32 s{sT0}, s{sT0}, {SCR}
v_add_u32 v26, s{sT0}, v{vL16}
s_lshl_b32 s{sHQO}, s{sTILE0}, 4
s_add_u32 s{sHQO}, s{sHQO}, s{sRB}
s_lshl_b32 s{sHQO}, s{sHQO}, 12
s_add_u32 s{sHQO}, s{sHQO}, {KVP}
v_mov_b32 v27, 0xff
v_mov_b32 v12, 0x3f803f80
s_lshr_b32 s{sPSTEP0}, s{sTAG}, 8
s_lshr_b32 s{sPSTEP0+1}, s{sTAG}, 16
s_lshr_b32 s{sPSTEP0+2}, s{sTAG}, 24
s_and_b32 s{sT0}, s{sTB}, 1
s_mul_i32 s{sT0}, s{sT0}, 7
s_add_u32 s{sRCT}, s{sT0}, s{sW}
s_lshr_b32 s{sT0}, s{sTB}, 1
s_mul_i32 s{sT0}, s{sT0}, 28
v_lshrrev_b32 v4, 2, v0
v_add_u32 v4, s{sT0}, v4
v_mul_u32_u24 v4, 896, v4
v_and_b32 v5, 3, v0
v_lshl_add_u32 v4, v5, 4, v4
s_lshl_b32 s{sT0}, s{sRCT}, 6
v_add_u32 v68, s{sT0}, v4
v_add_u32 v69, {16*896}, v68
""" + srd_s(rMISC, pWO, 448 * 896) + f"""s_cmp_eq_u32 s{sGSEL}, 7
s_cselect_b32 s{rMISC+2}, s{rMISC+2}, 0
"""
    gl, gcheck = gran_items()
    m, var = vSG, vSG + 1
    aug = [gcheck] + lines(f"""v_add_f32 v{r1}, {f32(EPS)}, v{var}
v_rsq_f32 v{r1}, v{r1}
v_cvt_pk_bf16_f32 v{R}, -v{m}, 0
v_mul_f32 v{r1+1}, {f32(LOG2E)}, v{r1}
ds_write_b32 v6, v{r1+1}""") + cs_sum(2, vC) + lines(f"""v_lshlrev_b32 v{R+1}, 16, v{R}
v_sub_f32 v{R+1}, -v{m}, v{R+1}
v_cvt_pk_bf16_f32 v{R+3}, -v{m}, v{R+1}
v_cndmask_b32 v{vXA}, v{R+3}, 0, {HALF}
v_cndmask_b32 v{vXA+1}, v{R}, 0, {HALF}
v_cndmask_b32 v{vXA+4}, 0, v{R+3}, {HALF}
v_cndmask_b32 v{vXA+5}, 0, v{R}, {HALF}""")
    for kv in range(2):
        c = vC + kv; a = vWAu + 4 * kv
        aug += lines(f"""v_cvt_pk_bf16_f32 v{a}, v{c}, v{c}
v_and_b32 v{R+4}, 0xffff0000, v{a}
v_sub_f32 v{R+4}, v{c}, v{R+4}
v_cvt_pk_bf16_f32 v{a+1}, v{R+4}, 0""")
    rr = []
    for u in range(2):
        for gq in range(4):
            rr.append(f"ds_read_b128 {vr(vR+16*u+4*gq,4)}, v7 offset:{128*u+32*gq}")
    per = {n: [] for n in range(28)}
    distribute(per, 0, 4, atoms(misc_text() + setup1, 3)); per[5] = cs_pub(2, 136, 188) + per[5]
    distribute(per, 6, 17, atoms(setup2))
    G0 = opt('kgstep', 13)
    per[G0] += gl
    distribute(per, 19, 23, aug)
    distribute(per, 24, 25, rr)
    distribute(per, 26, 27, atoms(wa_text(), 3))
    main_loop('KV', D, per, kAX2, [p2_dma(0), p2_dma(1)])
    for t in range(4): e(f"v_mfma_f32_32x32x16_bf16 {vr(vACC+16*t,16)}, {vr(vXA+4*(t>>1),4)}, {vr(vWAu+4*(t&1),4)}, {vr(vACC+16*t,16)}")
    stamp(2); stamp(9, chunk=True)
    vT = vXB; vPK = 48; vPVv = 56; vKV = 160
    e(f"s_mov_b32 s{sMK}, 0x3f317218\ns_mov_b32 s{sMK+1}, 0x3f317218")
    k.wait(vm=D[8])
    for u in range(5):
        for x, _ in wreads(u, vWP + 8 * u): e(x)
    def w2tail(cond):
        L, Lh = k.newlabel('Lkt'), k.newlabel('Lkt'); st_ = k.state()
        e(f"s_cmp_{cond}_u32 s{sHI}, 0\ns_cbranch_scc1 {L}")
        e(f"s_cmp_eq_u32 s{sGSEL}, 7\ns_cbranch_scc1 {Lh}")
        for g in p2_dma(2): e(g)
        e("s_waitcnt lgkmcnt(0)")
        for g in [g for u in range(9, 14) for g in unit_dma(u)]: e(g)
        e(f"s_branch {L}")
        k.label(Lh)
        e(f"s_mov_b32 m0, s{sM0X}\ns_nop 0\nbuffer_load_dwordx4 v68, s[{rMISC}:{rMISC+3}], 0 offen lds")
        e(f"s_add_u32 m0, s{sM0X}, 1024\ns_nop 0\nbuffer_load_dwordx4 v69, s[{rMISC}:{rMISC+3}], 0 offen lds")
        k.label(L); k.set_state(st_)
    w2tail('eq')
    e("s_nop 7")
    for u in range(2):
        ak, av = vACC + 32 * u, vACC + 32 * u + 16
        for h in range(2):
            a_ = ak + 8 * h; t_ = vT + 8 * h; r_ = vR + 16 * u + 8 * h
            for p in range(4): e(f"v_pk_mul_f32 {vr(a_+2*p,2)}, {vr(a_+2*p,2)}, {vr(r_+2*p,2)}")
            for p in range(8): e(f"v_exp_f32 v{t_+p}, v{a_+p} clamp")
            for p in range(8): e(f"v_max_f32 v{a_+p}, 0, v{a_+p}")
            for p in range(4): e(f"v_pk_add_f32 {vr(t_+2*p,2)}, {vr(t_+2*p,2)}, {sr(sEPS,2)}")
            for p in range(4): e(f"v_pk_fma_f32 {vr(t_+2*p,2)}, {vr(a_+2*p,2)}, {sr(sMK,2)}, {vr(t_+2*p,2)}")
            for p in range(4): e(f"v_cvt_pk_bf16_f32 v{vPK+4*h+p}, v{t_+2*p}, v{t_+2*p+1}")
        for p in range(8): e(f"v_pk_mul_f32 {vr(av+2*p,2)}, {vr(av+2*p,2)}, {vr(vR+16*u+2*p,2)}")
        for p in range(8): e(f"v_cvt_pk_bf16_f32 v{vPVv+p}, v{av+2*p}, v{av+2*p+1}")
        for p in range(8): e(f"v_cndmask_b32 v{vPVv+p}, v{vPVv+p}, v12, s[{sMKM}:{sMKM+1}]")
        for h in range(2):
            cin = '0' if (u == 0 and h == 0) else vr(vKV, 16)
            e(f"v_mfma_f32_32x32x16_bf16 {vr(vKV,16)}, {vr(vPVv+4*h,4)}, {vr(vPK+4*h,4)}, {cin}")
    L1, L2 = k.newlabel('Lc'), k.newlabel('Lc')
    e(f"s_cmp_lg_u32 s{sHI}, 0\ns_cbranch_scc1 {L1}")
    for gq in range(4): e(f"ds_write_b128 v26, {vr(vKV+4*gq,4)} offset:{1024*gq}")
    e("s_waitcnt lgkmcnt(0)")
    k.label(L1)
    if opt('ktail', 1): w2tail('lg')
    e("s_barrier")
    st = k.state()
    e(f"s_cmp_eq_u32 s{sHI}, 0\ns_cbranch_scc1 {L2}")
    tk = [e(f"ds_read_b128 {vr(vT+4*gq,4)}, v26 offset:{1024*gq}") for gq in range(4)]
    e("s_nop 3")
    tb = [sTAG, sPSTEP0, sPSTEP0 + 1, sPSTEP0 + 2]
    for gq in range(4):
        k.wait(lg=tk[gq])
        for p in range(2): e(f"v_pk_add_f32 {vr(vKV+4*gq+2*p,2)}, {vr(vKV+4*gq+2*p,2)}, {vr(vT+4*gq+2*p,2)}")
        for d in range(4): e(f"v_bfi_b32 v{vKV+4*gq+d}, v27, s{tb[d]}, v{vKV+4*gq+d}")
        e(f"buffer_store_dwordx4 {vr(vKV+4*gq,4)}, v{vL16}, {WS}, s{sHQO} offen offset:{1024*gq} sc1")
    k.label(L2)
    k.set_state(st)
    e("s_barrier")
    if not opt('ktail', 1): w2tail('lg')
    stamp(3); stamp(12, 4)

def reducer():
    hd = sRHD
    WOB = 0; AF = SLOT + 16384
    vWF = 16; vP = 72; vXc = 56; vS = 60
    L1 = k.newlabel('Lr')
    e(f"""s_lshr_b32 s{hd}, s{sTB}, 1
s_lshl_b32 s{sT0}, s{hd}, 16
s_lshl_b32 s{sT1}, s{sLO}, 10
s_add_u32 s{sT0}, s{sT0}, s{sT1}
s_add_u32 s{sT0}, s{sT0}, {KVP}
v_add_u32 v12, s{sT0}, v{vL16}
s_lshl_b32 s{sT1}, s{sW}, 11""")
    tb = [sTAG, sPSTEP0, sPSTEP0 + 1, sPSTEP0 + 2]
    st = k.state()
    e(f"s_cmp_ge_u32 s{sW}, 4\ns_cbranch_scc1 Lr_a")
    ck = Checked()
    toks = []
    for rb in range(16):
        toks.append(ck.load(f"s_mov_b32 s{sT0}, {rb*4096}\nbuffer_load_dwordx4 {vr(vP+4*rb,4)}, v12, {WS}, s{sT0} offen sc1"))
    k.label('Lr_a')
    e(f"""v_lshrrev_b32 v6, 5, v0
v_lshlrev_b32 v6, 2, v6
v_bfe_u32 v7, v0, 2, 2
v_add_u32 v6, v6, v7
v_lshlrev_b32 v6, 6, v6
v_bfe_u32 v7, v0, 4, 1
v_lshl_add_u32 v6, v7, 5, v6
v_and_b32 v7, 3, v0
v_lshl_add_u32 v6, v7, 3, v6
s_add_u32 s{sT1}, s{sT1}, {WOB}
v_add_u32 v14, s{sT1}, v6
s_mov_b32 s{sMKM}, 0
s_cmp_eq_u32 s{sW}, 3
s_cselect_b32 s{sMKM+1}, -1, 0
s_lshl_b32 s{sFLO}, s{sRCT}, 11
s_lshl_b32 s{sT1}, s{hd}, 7
s_add_u32 s{sFLO}, s{sFLO}, s{sT1}
s_add_u32 s{sFLO}, s{sFLO}, {FLM + (4 if 'flag1' in DBG else 0)}
s_mul_i32 s{sRMB}, s{sRCT}, {28*1024}
s_mul_i32 s{sT3}, s{hd}, {7*256}
s_add_u32 s{sRMB}, s{sRMB}, s{sT3}
s_add_u32 s{sRMB}, s{sRMB}, {MB}
s_cmp_eq_u32 s{sW}, 7
s_cselect_b32 s{sFLO}, {DUMP}, s{sFLO}
s_cselect_b32 s{sRMB}, {DUMP}, s{sRMB}
v_add_u32 v15, {AF}, v{vL16}
v_lshlrev_b32 v8, 3, v0
v_mov_b32 v6, {DUMP}
v_cndmask_b32 v9, v8, v6, {HALF}
s_add_u32 s{sT1}, s{sT1}, {ZG}
v_and_b32 v4, 31, v0
v_lshl_add_u32 v4, v4, 2, s{sT1}
s_cmp_eq_u32 s{sRCT}, 3
s_mov_b32 vcc_lo, 0
s_cselect_b32 vcc_hi, 0x55555555, 0
v_cndmask_b32 v10, v6, v4, vcc
s_lshr_b32 s{sT3}, s{sW}, 1
s_lshl_b32 s{sT3}, s{sT3}, 10
s_and_b32 s{sT1}, s{sW}, 1
s_lshl_b32 s{sT1}, s{sT1}, 3
s_add_u32 s{sT3}, s{sT3}, s{sT1}
v_add_u32 v5, s{sT3}, v15
v_mov_b32 v7, s{sTAG}""")
    st_b = k.state()
    e(f"s_cmp_lt_u32 s{sW}, 4\ns_cbranch_scc1 Lr_b\ns_waitcnt vmcnt(4)")
    k.label('Lr_b'); k.set_state(st_b)
    e("s_waitcnt vmcnt(16)")
    for s in range(2):
        for rd in range(2): e(f"ds_read_b64_tr_b16 {vr(vWF+4*s+2*rd,2)}, v14 offset:{s*1024+rd*512}")
    e(f"s_cmp_ge_u32 s{sW}, 4\ns_cbranch_scc1 Lr_join")
    for gidx in range(4):
        c = []
        for rb in range(4 * gidx, 4 * gidx + 4):
            for d in range(4):
                if rb % 4 == 0: c.append(f"v_xor_b32 v{vXc+d}, s{tb[d]}, v{vP+4*rb+d}")
                else: c.append(f"v_bitop3_b32 v{vXc+d}, v{vXc+d}, v{vP+4*rb+d}, s{tb[d]} bitop3:0xf6")
        c += [f"v_or3_b32 v{vXc}, v{vXc}, v{vXc+1}, v{vXc+2}", f"v_or_b32 v{vXc}, v{vXc}, v{vXc+3}", f"v_and_b32 v{vXc}, 0xff, v{vXc}",
              f"v_cmp_ne_u32 vcc, 0, v{vXc}", "s_cmp_lg_u64 vcc, 0"]
        ck.check(toks[4 * gidx], toks[4 * gidx + 3], "\n".join(c), sleep=opt('rsleep', 2))
        b = vP + 16 * gidx
        for p in range(2):
            e(f"v_pk_add_f32 {vr(b+2*p,2)}, {vr(b+2*p,2)}, {vr(b+4+2*p,2)}\nv_pk_add_f32 {vr(b+8+2*p,2)}, {vr(b+8+2*p,2)}, {vr(b+12+2*p,2)}")
        for p in range(2):
            if gidx == 0: e(f"v_pk_add_f32 {vr(vS+2*p,2)}, {vr(b+2*p,2)}, {vr(b+8+2*p,2)}")
            else: e(f"v_pk_add_f32 {vr(b+2*p,2)}, {vr(b+2*p,2)}, {vr(b+8+2*p,2)}")
        if gidx:
            for p in range(2): e(f"v_pk_add_f32 {vr(vS+2*p,2)}, {vr(vS+2*p,2)}, {vr(b+2*p,2)}")
    stamp(4)
    e(f"""v_pk_mul_f32 {vr(vXc,2)}, {vr(vS,2)}, {sr(sMK,2)}
v_pk_mul_f32 {vr(vXc+2,2)}, {vr(vS+2,2)}, {sr(sMK,2)}
v_mov_b32_dpp v6, v{vS} quad_perm:[1,1,3,3] row_mask:0xf bank_mask:0xf
v_cvt_pk_bf16_f32 v12, v{vXc}, v{vXc+1}
v_cvt_pk_bf16_f32 v13, v{vXc+2}, v{vXc+3}
v_cndmask_b32 v12, v12, 0, s[{sMKM}:{sMKM+1}]
v_cndmask_b32 v13, v13, 0, s[{sMKM}:{sMKM+1}]
ds_write_b64 v5, v[12:13]
v_cvt_pk_bf16_f32 v6, v{vS}, v6
buffer_store_dwordx2 v[6:7], v10, {WS}, 0 offen sc1""")
    k.label('Lr_join')
    e(f"s_waitcnt lgkmcnt(0)\ns_barrier")
    vAF = 32; vD = 96
    e(f"ds_read_b128 {vr(vAF,4)}, v15\nds_read_b128 {vr(vAF+4,4)}, v15 offset:1024")
    e("s_waitcnt lgkmcnt(1)")
    e(f"v_mfma_f32_32x32x16_bf16 {vr(vD,16)}, {vr(vAF,4)}, {vr(vWF,4)}, 0")
    e("s_waitcnt lgkmcnt(0)")
    e(f"v_mfma_f32_32x32x16_bf16 {vr(vD,16)}, {vr(vAF+4,4)}, {vr(vWF+4,4)}, {vr(vD,16)}")
    for gq in range(4):
        for p in range(2): e(f"v_cvt_pk_bf16_f32 v{112+2*gq+p}, v{vD+4*gq+2*p}, v{vD+4*gq+2*p+1}")
        e(f"buffer_store_dwordx2 {vr(112+2*gq,2)}, v{9 if gq == 3 else 8}, {WS}, s{sRMB} offen offset:{512*gq} sc1")
    stamp(5)
    e(f"s_waitcnt vmcnt(0)\nbuffer_store_dword v{vTG}, v{vZ0}, {WS}, s{sFLO} offen sc1")
    stamp(6)

def phase2():
    vHO = 4; vXR = 12; vWB2 = 16
    vA2 = 32; vH = 96
    vB2 = 248; vOUT = 3
    if opt('prio', 1):
        e(f"s_cmp_lg_u32 s{sHI}, 0\ns_cbranch_scc1 Lprio\ns_setprio 0")
        k.label('Lprio')
    e(f"""s_mul_i32 s{sT1}, s{sTB}, {280*1024}
s_add_u32 s{sT1}, s{sT1}, {HQ}
s_mul_i32 s{sT0}, s{sHI}, {140*1024}
s_add_u32 s{sT3}, s{sT1}, s{sT0}
v_add_u32 v{vHO}, s{sT3}, v{vL16}
s_sub_u32 s{sT1}, s{sT1}, s{sT0}
s_add_u32 s{sT1}, s{sT1}, {140*1024}
v_add_u32 v{vHO+1}, s{sT1}, v{vL16}""")
    htok = {}
    def hl(j):
        o = []
        for s in range(2):
            for tt in range(2):
                def f(j=j, s=s, tt=tt): htok[(2*j+s, tt)] = e(f"buffer_load_dwordx4 {vr(vH+16*j+8*s+4*tt,4)}, v{vHO+tt}, {WS}, s{sHT+j} offen offset:{1024*s} sc1")
                o.append(f)
        return o
    PS = opt('psleep', 3)
    t0, t1 = vXR, vXR + 1
    e(srd_s(rMISC, pB2, 896))
    e(f"""v_lshrrev_b32 v{t0}, 3, v0
s_lshl_b32 s{sT0}, s{sTB}, 6
s_lshl_b32 s{sT1}, s{sW}, 3
s_add_u32 s{sT0}, s{sT0}, s{sT1}
v_add_u32 v{t0}, s{sT0}, v{t0}
v_mul_u32_u24 v{t0}, 896, v{t0}
v_and_b32 v{t1}, 7, v0
v_lshlrev_b32 v{t1}, 4, v{t1}
s_lshl_b32 s{sT0}, s{sCT}, 7
v_add_u32 v{t1}, s{sT0}, v{t1}
v_add_u32 v{t0}, v{t0}, v{t1}""")
    k.nt += 1; own = k.nt; k.vm.append(own)
    for j in range(7): e(f"s_lshl_b32 s{sHT+j}, s{sTAB+j}, 11")
    FF = opt('flagfirst', 1)
    def ownflag():
        k.wait(vm=own)
        e(f"buffer_store_dword v{vTG}, v{vZ0}, {WS}, s{sFLO} offen sc1")
        stamp(8); stamp(13, 4)
    if FF: ownflag()
    verify(POLL, poll_test(3, 3), PS)
    stamp(9); stamp(15, 4)
    LA = 3
    for j in range(2):
        for f in hl(j): f()
    if not FF: ownflag()
    for f in hl(2): f()
    st_ = k.state()
    e(f"s_cmp_lg_u32 s{sC0}, 0\ns_cbranch_scc1 Lnolate2")
    for g in p2_dma(2): e(g)
    k.label('Lnolate2')
    k.set_state(st_)
    e(f"""s_mul_i32 s{sSO0}, s{sLO}, {7*1024}
s_add_u32 s{sSO1}, s{sSO0}, {112*1024}
s_add_u32 s{sSO2}, s{sSO1}, 4096
v_mov_b32 v{vOUT}, v{t0}
v_lshrrev_b32 v2, 5, v0
v_lshlrev_b32 v2, 4, v2""")
    vZ = vWP
    vZA = vWP + 28; vZD = vWP + 38
    PITCH = 272
    w1, w0, ro, rs, m0_, m1_, x0 = [vWP + 31 + i for i in range(7)]
    x1 = vZ + 3
    addr = f"""v_mul_u32_u24 v{vZ}, 37, v0
v_lshrrev_b32 v{vZ}, 9, v{vZ}
v_lshlrev_b32 v{vZ+1}, 3, v0
v_lshl_add_u32 v{vZ+1}, v{vZ}, 4, v{vZ+1}
s_lshl_b32 s{sT3}, s{sLO}, 9
s_add_u32 s{sPD}, s{sT3}, {ZG}
v_add_u32 v{vZ+1}, s{sPD}, v{vZ+1}
s_lshl_b32 s{sPD}, s{sCT}, 12
s_add_u32 s{sPD}, s{sPD}, s{sT3}
s_lshl_b32 s{sT3}, s{sHI}, 11
s_add_u32 s{sPD}, s{sPD}, s{sT3}
s_add_u32 s{sPD}, s{sPD}, {FLM}
v_and_b32 v{vZ+2}, 3, v0
v_lshl_add_u32 v{vZ+2}, v{vZ+2}, 7, s{sPD}
v_cmp_gt_u32 vcc, 56, v0
v_cndmask_b32 v{vZA}, v{vZ+2}, v{vZ+1}, vcc
v_lshrrev_b32 v{vZ}, 3, v0
v_lshlrev_b32 v{vZ}, 5, v{vZ}
v_bfe_u32 v{vZ+1}, v0, 1, 1
v_lshl_add_u32 v{vZ}, v{vZ+1}, 4, v{vZ}
v_bfe_u32 v{vZ+1}, v0, 2, 1
v_lshl_add_u32 v{vZ}, v{vZ+1}, 3, v{vZ}
v_and_b32 v{vZ+1}, 1, v0
v_lshl_add_u32 v{vZ}, v{vZ+1}, 2, v{vZ}
s_lshl_b32 s{sPD}, s{sW}, 8
s_add_u32 s{sPD}, s{sPD}, {SCR2 + 2048}
v_add_u32 v{vZA+1}, s{sPD}, v{vZ}
v_add_u32 v{vZA+2}, s{sPD}, v2
s_mul_i32 s{sT4}, s{sW}, {7*1024}
s_mul_i32 s{sT0}, s{sCT}, {56*1024}
s_add_u32 s{sT0}, s{sT0}, s{sT4}
s_add_u32 s{sT0}, s{sT0}, {MB}
s_lshl_b32 s{sT4}, s{sW}, 10
s_add_u32 s{sT4}, s{sT4}, {SCR}
v_and_b32 v{x0}, 15, v0
v_mul_u32_u24 v{w1}, {PITCH}, v{x0}
v_bfe_u32 v{x0}, v0, 4, 1
v_mul_u32_u24 v{x0}, {SLOT}, v{x0}
v_add3_u32 v{w1}, v{w1}, v{x0}, v2
s_add_u32 s{sPD}, s{sM0P}, {SLOT}
v_add_u32 v{w1}, s{sPD}, v{w1}
v_lshrrev_b32 v{x0}, 3, v0
s_and_b32 s{sPD}, s{sLO}, 1
v_lshl_add_u32 v{x0}, s{sPD}, 3, v{x0}
v_mul_u32_u24 v{ro}, {PITCH}, v{x0}
v_and_b32 v{x1}, 7, v0
v_lshl_add_u32 v{ro}, v{x1}, 5, v{ro}
s_lshr_b32 s{sPD}, s{sLO}, 1
s_add_u32 s{sPD}, s{sPD}, 1
s_mul_i32 s{sPD}, s{sPD}, {SLOT}
s_xor_b32 s{sT3}, s{sHI}, 1
s_mul_i32 s{sT3}, s{sT3}, {4*6144}
s_add_u32 s{sPD}, s{sPD}, s{sT3}
v_add_u32 v{ro}, s{sPD}, v{ro}
s_lshl_b32 s{sPD}, s{sW}, 13
s_add_u32 s{sT3}, s{sPD}, {SCR - 6*8192}
s_cmp_ge_u32 s{sW}, 6
s_cselect_b32 s{sPD}, s{sT3}, s{sPD}
v_and_b32 v{x0}, 31, v0
v_lshl_add_u32 v{w0}, v{x0}, 8, s{sPD}
v_and_b32 v{x0}, 7, v0
v_lshlrev_b32 v{x0}, 4, v{x0}
v_xor_b32 v{x0}, v{x0}, v2
v_add_u32 v{w0}, v{w0}, v{x0}
v_lshrrev_b32 v{x0}, 3, v0
v_lshlrev_b32 v{x1}, 1, v{x1}
v_xor_b32 v{x1}, v{x1}, v{x0}
v_lshlrev_b32 v{x1}, 4, v{x1}
v_lshl_add_u32 v{rs}, v{x0}, 8, v{x1}
s_lshl_b32 s{sPD}, s{sLO}, 11
s_lshl_b32 s{sT3}, s{sHI}, 15
s_add_u32 s{sPD}, s{sPD}, s{sT3}
v_add_u32 v{rs}, s{sPD}, v{rs}
s_mul_i32 s{sPD}, s{sLO}, 6144
v_lshlrev_b32 v{x0}, 3, v0
v_add_u32 v{m0_}, s{sPD}, v{x0}
s_lshl_b32 s{sPD}, s{sLO}, 10
s_add_u32 s{sPD}, s{sPD}, {SCR}
v_add_u32 v{m1_}, s{sPD}, v{x0}
""" + srd_s(rMISC, pOUT, 2048 * 896)
    per = {u: [] for u in range(14)}
    Z = {}
    vQ = vH
    ZL = f"buffer_load_dwordx2 {vr(vZD,2)}, v{vZA}, {WS}, 0 offen sc1"
    ql = [f"buffer_load_dwordx4 {vr(vQ+4*q,4)}, v{vHO}, {WS}, s{sSO1 if q < 4 else sSO2} offen offset:{1024*(q&3)} sc1" for q in range(7)]
    per[0] += hl(3)
    per[1] += [lambda: Z.__setitem__('p', e(POLL2)), f"buffer_load_dwordx4 {vr(vB2,4)}, v{t1}, s[{rMISC}:{rMISC+3}], 0 offen", f"buffer_load_dwordx4 {vr(vXR,4)}, v{vOUT}, s[{rX}:{rX+3}], 0 offen"]
    if opt('qfirst', 1): per[4] += hl(4); per[5] += ql[:4]; per[6] += ql[4:] + hl(5)[:1]; per[7] += hl(5)[1:]; per[8] += hl(6)
    else: per[4] += hl(4); per[5] += hl(5); per[6] += hl(6); per[7] += ql[:4]; per[8] += ql[4:]
    distribute(per, 5, 11, atoms(addr, 3))
    per[opt('zu', 10)] += [ZL]
    tok = {}
    for u in range(14):
        j, s = divmod(u, 2); base = vH + 16 * j
        cur = tok; tok = {}
        stamp(1 + u, p2=True)
        rd = wreads(u + 1, vWB2 + 8 * ((u + 1) & 1)) if 5 <= u + 1 < 14 else []
        wsrc = vWP + 8 * u if u < 5 else vWB2 + 8 * (u & 1)
        mf = []
        for tt in ((1, 0) if u == 13 else (0, 1)):
            for c in range(2):
                acc = vr(vA2 + 32 * tt + 16 * c, 16)
                mf.append(('m', (f"v_mfma_f32_32x32x16_bf16 {acc}, {vr(wsrc+4*c,4)}, {vr(base+8*s+4*tt,4)}, {'0' if u == 0 else acc}", c, tt)))
        if u == 4:
            k.wait(vm=Z['p'])
            if 'nopoll2' not in DBG: verify(POLL2, poll_test(0xf7, 7), PS)
            stamp(10)
        for kind_, x in spread(mf, [('r', x) for x in rd] + [('f', x) for x in per[u]]):
            if kind_ == 'm':
                k.wait(vm=htok[(u, x[2])], lg=cur.get(x[1])); e(x[0])
            elif kind_ == 'r': tok[x[1]] = e(x[0])
            else: emit_item(x)
    stamp(4); stamp(14, 4); stamp(15, p2=True)
    vF = vWB2; vG = vWB2 + 8
    for d in range(4):
        e(f"""v_lshlrev_b32 v{vF+2*d}, 16, v{vXR+d}
v_and_b32 v{vF+2*d+1}, 0xffff0000, v{vXR+d}
v_lshlrev_b32 v{vG+2*d}, 16, v{vB2+d}
v_and_b32 v{vG+2*d+1}, 0xffff0000, v{vB2+d}""")
    def mdma():
        for q in range(7):
            m = f"s_add_u32 m0, s{sM0P}, {1024*q}" if q < 6 else f"s_mov_b32 m0, s{sT4}"
            e(f"{m}\ns_add_u32 s{sT1}, s{sT0}, {1024*q}\nbuffer_load_dwordx4 v{vL16}, {WS}, s{sT1} offen sc1 lds")
    ZM = 0 if 'nozm' in DBG else 0xffffffff
    ztest = lambda lo, hi: ztest_(lo & ZM, hi & ZM)
    ztest_ = lambda lo, hi: f"v_cmp_ne_u32 vcc, s{sTAG}, v{vZD+1}\ns_mov_b32 s{sMK}, {lo:#x}\ns_mov_b32 s{sMK+1}, {hi:#x}\ns_and_b64 vcc, vcc, s[{sMK}:{sMK+1}]"
    e("s_waitcnt vmcnt(0)")
    e(f"s_mov_b32 s{sC0}, 0"); e(ztest(0, 0xff000000)); e("s_cbranch_scc1 Lnom")
    e(f"s_mov_b32 s{sC0}, 1"); mdma()
    k.label('Lnom')
    for c in range(2):
        for gq in range(4): e(f"ds_write_b128 v{w1}, {vr(vA2+32+16*c+4*gq,4)} offset:{c*128+gq*32}")
    for d in range(8): e(f"v_add_f32 v{vF+d}, v{vF+d}, v{vG+d}")
    tgt = {}
    for hi in range(2):
        for r in range(4): tgt[r + 4 * hi] = r
        tgt[8 + 4 * hi] = hi; tgt[9 + 4 * hi] = 2 + hi
    def rowmask(h): return sum(1 << i for i, t in tgt.items() if t == h)
    slot = {0: 0, 1: 0, 2: 0, 3: 4, 4: 1, 5: 1, 6: 1, 7: 2, 8: 2, 9: 2, 10: 5, 11: 3, 12: 3, 13: 3}
    vU = vG; vDN = vH + 32; R = 4
    def den_scale():
        e(f"ds_write_b32 v{vZA+1}, v{vZD}")
        for s in range(7): e(f"ds_read_b128 {vr(vZ+4*s,4)}, v{vZA+2} offset:{32*s}")
        e("s_waitcnt lgkmcnt(0)")
        prev = None
        for s in range(7):
            for q in (2 * s, 2 * s + 1):
                mk = (rowmask(2 * q // 7), rowmask((2 * q + 1) // 7))
                if mk != prev: e(f"s_mov_b32 s{sMK}, {mk[0]:#x}\ns_mov_b32 s{sMK+1}, {mk[1]:#x}"); prev = mk
                for d in range(2): e(f"v_cndmask_b32 v{vZ+2*q+d}, 0, v{vZ+2*q+d}, s[{sMK}:{sMK+1}]")
            if s: e(f"v_mfma_f32_32x32x16_bf16 {vr(vDN,16)}, {vr(vZ+4*s-4,4)}, {vr(vQ+4*s-4,4)}, {'0' if s == 1 else vr(vDN,16)}")
        e(f"v_mfma_f32_32x32x16_bf16 {vr(vDN,16)}, {vr(vZ+24,4)}, {vr(vQ+24,4)}, {vr(vDN,16)}")
        UP = vH + 48
        for x in range(28): e(f"v_lshlrev_b32 v{UP+2*x}, 16, v{vQ+x}\nv_and_b32 v{UP+2*x+1}, 0xffff0000, v{vQ+x}")
        for i in range(6): e(f"v_add_f32 v{R+2*i}, s{sEPS}, v{vDN+i}")
        for i in range(6): e(f"v_rcp_f32 v{R+2*i}, v{R+2*i}")
        for x in range(28): e(f"v_pk_mul_f32 {vr(UP+2*x,2)}, {vr(UP+2*x,2)}, {vr(R+2*slot[x>>1],2)} op_sel_hi:[1,0]")
        for x in range(28): e(f"v_cvt_pk_bf16_f32 v{vQ+x}, v{UP+2*x}, v{UP+2*x+1}")
    verify(ZL, ztest(0xffffffff, 0x00ffffff), opt('zsleep', 3))
    stamp(11)
    den_scale()
    e(f"s_cmp_lg_u32 s{sC0}, 0\ns_cbranch_scc1 Lhavem")
    e(ZL); e("s_waitcnt vmcnt(0)")
    verify(ZL, ztest(0, 0xff000000), opt('zsleep', 3))
    mdma()
    k.label('Lhavem')
    stamp(5)
    for i in range(1, 4): e(f"v_xor_b32 v{vZ+i}, {32*i}, v{w0}")
    e(f"v_mov_b32 v{vZ}, v{w0}\nv_xor_b32 v{vZ+4}, 16, v{rs}\ns_mul_i32 s{sT1}, s{sHI}, {SCR - 6*8192}\nv_add_u32 v{vZ+5}, s{sT1}, v{rs}\nv_add_u32 v{vZ+6}, s{sT1}, v{vZ+4}")
    e("s_waitcnt vmcnt(0)\ns_barrier")
    vM = vH + 32
    mt = {}
    for s in range(7):
        for c in range(2):
            pass
    def mread(i):
        c, s = divmod(i, 7)
        for jj in range(2):
            if s < 6: mt[i] = e(f"ds_read_b64 {vr(vM+4*i+2*jj,2)}, v{m0_} offset:{24576*c+1024*s+512*jj}")
            else: mt[i] = e(f"ds_read_b64 {vr(vM+4*i+2*jj,2)}, v{m1_} offset:{4096*c+512*jj}")
    for i in range(6): mread(i)
    ot = []
    for i in range(14):
        c, s = divmod(i, 7)
        k.wait(lg=mt[i])
        acc = vr(vA2 + 16 * c, 16)
        e(f"v_mfma_f32_32x32x16_bf16 {acc}, {vr(vM+4*i,4)}, {vr(vQ+4*s,4)}, {acc}")
        if i < 4: mread(6 + 2 * i); mread(7 + 2 * i)
        if i == 4:
            for q in range(4):
                for hh in range(2): ot.append(e(f"ds_read_b128 {vr(vA2+32+8*q+4*hh,4)}, v{ro} offset:{q*6144+16*hh}"))
        if i == 6:
            k.wait(lg=mt[13]); e("s_barrier")
        if i == 10:
            for gq in range(4): e(f"ds_write_b128 v{vZ+gq}, {vr(vA2+4*gq,4)}")
        if 7 <= i < 11:
            q = i - 7
            k.wait(lg=ot[2 * q + 1])
            for d in range(8): e(f"v_add_f32 v{vF+d}, v{vF+d}, v{vA2+32+8*q+d}")
    stamp(6)
    for gq in range(4): e(f"ds_write_b128 v{vZ+gq}, {vr(vA2+16+4*gq,4)} offset:128")
    e("s_waitcnt lgkmcnt(0)\ns_barrier")
    rt = []
    for q in range(4):
        for hh in range(2):
            a_ = [[rs, vZ + 4], [vZ + 5, vZ + 6]][q >> 1][hh]
            rt.append(e(f"ds_read_b128 {vr(vH+8*q+4*hh,4)}, v{a_} offset:{q*8192}"))
    for q in range(4):
        k.wait(lg=rt[2 * q + 1])
        for d in range(4): e(f"v_pk_add_f32 {vr(vF+2*d,2)}, {vr(vF+2*d,2)}, {vr(vH+8*q+2*d,2)}")
    for d in range(4): e(f"v_cvt_pk_bf16_f32 v{vG+d}, v{vF+2*d}, v{vF+2*d+1}")
    e(f"buffer_store_dwordx4 {vr(vG,4)}, v{vOUT}, s[{rMISC}:{rMISC+3}], 0 offen")
    stamp(7)
    e(f"s_or_b32 s{sT0}, s2, s{sW}\ns_cmp_lg_u32 s{sT0}, 0\ns_cbranch_scc1 Lend")
    e(f"v_mov_b32 v4, s{sTAG}\nv_mov_b32 v5, {EPOCH}\ns_mov_b64 exec, 1\nbuffer_store_dword v4, v5, {WS}, 0 offen")

kn = NAME + '_kernel'
hdr = open(f'cdna_kernels/{NAME}.s.ref').read().split('; Override launch')[0]
head = hdr + f"; @launch grid=(256,1,1) block=(512,1,1) lds={LDS_BYTES}\n"
k.raw('.amdgcn_target "amdgcn-amd-amdhsa--gfx950"\n.text')
k.raw(f".globl {kn}\n.p2align 8\n.type {kn},@function\n{kn}:")
prologue()
st_pro = k.state()
kvgen = phase1_KV()
next(kvgen)
st_kv = k.state()
k.label('Lm'); k.set_state(st_pro)
phase1_M()
k.label('Lp2'); k.set_state(([], []))
phase2()
k.label('Lend'); e("s_endpgm")
k.set_state(st_kv)
for _ in kvgen: pass
e(f"s_cmp_eq_u32 s{sGSEL}, 7\ns_cbranch_scc1 Lred")
e(POLL)
e(f"s_waitcnt lgkmcnt(0)\ns_mov_b32 s{sC0}, 1\ns_branch Lp2")
k.label('Lred')
k.set_state(([], []))
reducer()
e("s_endpgm")
i = 0
while i < len(outline): outline[i](); i += 1
k.label('Lcode_end')
e("s_endpgm")
body, nnop = k.render()
kd = f""".amdhsa_kernel {kn}
  .amdhsa_next_free_vgpr 256
  .amdhsa_next_free_sgpr 102
  .amdhsa_accum_offset 256
  .amdhsa_group_segment_fixed_size 0
  .amdhsa_kernarg_size 88
  .amdhsa_user_sgpr_count 2
  .amdhsa_user_sgpr_kernarg_segment_ptr 1
  .amdhsa_system_sgpr_workgroup_id_x 1
.end_amdhsa_kernel
"""
out = head + body + '.section .rodata,"a"\n.p2align 6\n' + kd
outp = [a for a in sys.argv[1:] if not a.startswith('--')]
open(outp[0] if outp else f'cdna_kernels/{NAME}.s', 'w').write(out)
print("nops inserted:", nnop, "lines:", out.count('\n'))
```

```python
import sys, math, struct
sys.path.insert(0, 'gen')
from dsl import *

NAME = "parallel_sum__linear_attn_block__mixer_channel_mlp__prompt"
STAMPS = '--stamps' in sys.argv
DBG = set(a[6:] for a in sys.argv if a.startswith('--dbg-'))
def opt(name, default):
    for a in sys.argv:
        if a.startswith(f'--{name}='): return int(a.split('=')[1])
    return default
def f32(x): return '0x%08x' % struct.unpack('<I', struct.pack('<f', x))[0]
def lines(s): return [l.strip() for l in s.strip().split('\n') if l.strip()]

EPOCH = 0
ZG = 0x1000
FLM = 0x2000
STATS = 0x10000
CSG = 0x18000
MB = 0x40000
KVP = 0x100000
HQ = 0x200000
FLH = 0xB00000
WS_USED = 0xC00000
DUMP = 0x7000000
STAMP_OFF = 0x8000000
SLOT = 49152
SCR = 3 * SLOT
SCR2 = SCR + 8192
LDS_BYTES = 163840
EPS = 1e-5
LOG2E = math.log2(math.e)
GC0 = -2.0 * math.sqrt(2.0 / math.pi) * LOG2E
GC1 = 0.044715
SPIN_MAX = 20000
TSTR = 140 * 1024 + opt('tpad', 0)

sW = 3
pX, pWQKV, pWO, pBX, pW1, pB1, pW2, pB2, pOUT, pDBG, pWS = 4, 6, 8, 10, 12, 14, 16, 18, 20, 22, 24
sHQO, sFLO = 10, 11
sRHD, sRMB = 22, 23
sPM, sQM = 22, 23
sXCD, sSUB, sGSEL, sRB, sCC = 26, 27, 28, 29, 30
sT0, sT1, sT2, sT3, sT4 = 31, 32, 33, 34, 35
rX, rW0, rW1, rW2, rWS, rW2G, rMISC = 36, 40, 44, 48, 52, 56, 60
sSOX, sSO0, sSO1, sSO2 = 64, 65, 66, 67
sPSTEP0 = 68
sM0X, sM0W = 71, 72
sLO, sHI = 73, 74
sC0 = 75
sMK = 76
sHALF = 78
sTAB = 80
sRCT = 87
sEPS = 88
sMKM = 90
sMG = 92
sPD = 93
sTAG = 94
sCT, sTB = 95, 96
sTILE0 = 97
sM0P = 98
sMEAN = 99
sSTAMP = 100
sHT = 40

k = K()
e = k.e
outline = []
WS = f"s[{rWS}:{rWS+3}]"
HALF = f"s[{sHALF}:{sHALF+1}]"
def srd_s(r, ptr, nbytes):
    return f"s_mov_b32 s{r}, s{ptr}\ns_and_b32 s{r+1}, s{ptr+1}, 0xffff\ns_mov_b32 s{r+2}, {nbytes}\ns_mov_b32 s{r+3}, 0x20000\n"

def stamp(idx, wave=0, chunk=False, p2=False):
    if not STAMPS: return
    if 'span' in DBG and (idx not in (0, 7) or chunk or p2): return
    if 'p2' in DBG:
        if idx > 0 and not p2: return
        if p2: wave = opt('sw', 0)
    elif p2: return
    elif ('chunks' in DBG) != chunk and idx > 1: return
    L = k.newlabel('Lst')
    st = k.state()
    e(f"s_cmp_lg_u32 s{sW}, {wave}\ns_cbranch_scc1 {L}")
    e(f"s_memrealtime s[{sSTAMP}:{sSTAMP+1}]\ns_memtime vcc\ns_waitcnt lgkmcnt(0)")
    e(f"v_mov_b32 v254, s{sSTAMP}\nv_mov_b32 v255, s{sSTAMP+1}")
    e(f"s_lshl_b32 s{sSTAMP}, s2, 8\ns_add_u32 s{sSTAMP}, s{sSTAMP}, {STAMP_OFF + 8*idx}\nv_mov_b32 v253, s{sSTAMP}")
    e(f"global_store_dwordx2 v253, v[254:255], s[{pWS}:{pWS+1}]")
    e(f"s_nop 1\nv_mov_b32 v254, vcc_lo\nv_mov_b32 v255, vcc_hi")
    e(f"global_store_dwordx2 v253, v[254:255], s[{pWS}:{pWS+1}] offset:128")
    k.label(L)
    k.set_state(st)

def emit_item(x): return x() if callable(x) else e(x)

SCC_R = ('s_cselect', 's_cbranch_scc', 's_addc')
SCC_W = ('s_cmp', 's_add', 's_sub', 's_and', 's_or', 's_xor', 's_lshl', 's_lshr', 's_min', 's_max', 's_bfe')
def atoms(text, n=2):
    ls = lines(text); N = len(ls)
    live = [False] * (N + 1); scc = vcc = m0 = False
    for i in range(N - 1, -1, -1):
        ins = Ins(ls[i])
        if ls[i].startswith(SCC_W): scc = False
        if ls[i].startswith(SCC_R): scc = True
        if ('s', 106) in ins.w: vcc = False
        if ('s', 106) in ins.r: vcc = True
        if ('s', 124) in ins.w: m0 = False
        if ('s', 124) in ins.r: m0 = True
        live[i] = scc or vcc or m0
    out = []; cur = []
    for i, l in enumerate(ls):
        cur.append(l)
        if len(cur) >= n and not live[i + 1]: out.append("\n".join(cur)); cur = []
    if cur: out.append("\n".join(cur))
    return out

def distribute(per, first, last, items):
    ns = last - first + 1
    for q in range(ns): per[first + q] += items[len(items) * q // ns: len(items) * (q + 1) // ns]

class Checked:
    def __init__(self): self.log = []
    def load(self, text):
        t = e(text); self.log.append((text, t)); return t
    def check(self, first_tok, last_tok, chk, sleep=1):
        Lc, Ls, Lb = k.newlabel('Lck'), k.newlabel('Lsl'), k.newlabel('Lbk')
        e(f"s_movk_i32 s{sT2}, {SPIN_MAX}")
        k.label(Lc)
        assert last_tok in k.vm
        k.wait(vm=last_tok)
        e(chk); e(f"s_cbranch_scc1 {Ls}")
        k.label(Lb)
        i0 = [t for _, t in self.log].index(first_tok)
        redo = [x for x, _ in self.log[i0:]]
        assert all(t in [tt for _, tt in self.log[i0:]] for t in k.vm), "untracked younger vmem op"
        def slow():
            k.label(Ls)
            e(f"s_sub_u32 s{sT2}, s{sT2}, 1\ns_cbranch_scc1 {Lb}")
            if sleep: e(f"s_sleep {sleep}")
            for x in redo: e(x)
            e(f"s_branch {Lc}")
        outline.append(slow)

def verify(load, test, sleep):
    Lp, Ld, Lc = k.newlabel('Lvs'), k.newlabel('Lvd'), k.newlabel('Lvc')
    e(test); e(f"s_cbranch_scc1 {Lp}")
    k.label(Ld)
    def slow():
        k.label(Lp)
        e(f"s_movk_i32 s{sT2}, {SPIN_MAX}")
        k.label(Lc)
        e(load); e("s_waitcnt vmcnt(0)"); e(test)
        e(f"s_cbranch_scc0 {Ld}\ns_sub_u32 s{sT2}, s{sT2}, 1\ns_cbranch_scc1 {Ld}\ns_sleep {sleep}\ns_branch {Lc}")
    outline.append(slow)

EARLY = sorted([i for i in range(56) if i % 6 < 4], key=lambda i: (i // 6, i & 1, i))
LATE = [i for i in range(56) if i % 6 >= 4]
REST = EARLY[32:] + LATE
def tiles_of_wave(w): return EARLY[4 * w: 4 * w + 4] + REST[3 * w: 3 * w + 3]
def flag_of(i): return (2 * (i // 6) + (i & 1)) + (32 if i % 6 >= 4 else 0)
vL16 = 1
vPD0 = 2
vWA = 6
vPA = 23; vPV_ = 24
vWP = 208
vPF = 251; vDUM = 24
P_SLOT = [1, 2, 0]
def unit_pos(u):
    if u >= 9: u -= 9
    return P_SLOT[u // 3] * SLOT + (u % 3) * 2048

sWX = 87
ROT = opt('rot', 0)
def p2_setup_text():
    t = f"s_and_b32 s{sT0}, s{sCT}, {1 if ROT else 0}\ns_lshl_b32 s{sT0}, s{sT0}, 2\ns_xor_b32 s{sWX}, s{sW}, s{sT0}\n"
    for w in range(8):
        v = sum(x << (8 * j) for j, x in enumerate(tiles_of_wave(w)))
        lo, hi = v & 0xffffffff, v >> 32
        if w == 0: t += f"s_mov_b32 s{sTAB}, {lo:#x}\ns_mov_b32 s{sTAB+1}, {hi:#x}\n"
        else: t += f"s_cmp_eq_u32 s{sWX}, {w}\ns_cselect_b32 s{sTAB}, {lo:#x}, s{sTAB}\ns_cselect_b32 s{sTAB+1}, {hi:#x}, s{sTAB+1}\n"
    if ROT:
        t += f"""s_lshr_b32 s{sT0}, s{sCT}, 1
s_lshl_b32 s{sT0}, s{sT0}, 3
s_mov_b32 s{sTAB+2}, s{sTAB}
s_mov_b32 s{sTAB+3}, s{sTAB}
s_lshr_b64 s[{sTAB+2}:{sTAB+3}], s[{sTAB+2}:{sTAB+3}], s{sT0}
s_mov_b32 s{sTAB}, s{sTAB+2}
s_lshl_b32 s{sTAB+2}, s{sTAB+1}, 24
s_or_b32 s{sTAB+2}, s{sTAB+2}, s{sTAB+1}
s_lshr_b32 s{sTAB+3}, s{sTAB+1}, 8
s_lshr_b64 s[{sTAB+2}:{sTAB+3}], s[{sTAB+2}:{sTAB+3}], s{sT0}
s_mov_b32 s{sTAB+1}, s{sTAB+2}
"""
    for j in (6, 5, 4): t += f"s_bfe_u32 s{sTAB+j}, s{sTAB+1}, {0x80000 | (8*(j-4)):#x}\n"
    for j in (3, 2, 1, 0): t += f"s_bfe_u32 s{sTAB+j}, s{sTAB}, {0x80000 | (8*j):#x}\n"
    t += srd_s(rW2G, pW2, 1792 * 896)
    t += f"""s_cmp_eq_u32 s{sGSEL}, 7
s_cselect_b32 s{rW2G+2}, 0, s{rW2G+2}
v_lshrrev_b32 v4, 3, v0
v_mul_u32_u24 v4, 896, v4
v_bfe_u32 v5, v0, 4, 1
v_lshlrev_b32 v5, 2, v5
v_and_b32 v6, 7, v0
v_xor_b32 v5, v5, v6
v_lshl_add_u32 v4, v5, 4, v4
s_lshl_b32 s{sT0}, s{sCT}, 7
v_add_u32 v{vPD0}, s{sT0}, v4
v_add_u32 v{vPD0+1}, 7168, v{vPD0}
s_mul_i32 s{sM0P}, s{sW}, 6144
"""
    return t

vPA2 = 252
def poll_addr_text():
    t = ""
    for w in range(8):
        tl = tiles_of_wave(w)
        f1 = [flag_of(tl[0]), flag_of(tl[2])]; assert flag_of(tl[1]) == f1[0] and flag_of(tl[3]) == f1[1]
        f2 = [flag_of(x) for x in tl[4:]]
        q0 = 56 + (7 * (w & 3) >> 1)
        fq = [flag_of(x) + 64 * (w >> 2) for x in range(q0, q0 + 4)]
        lo = sum(x << (6 * j) for j, x in enumerate(f1 + f2)); hi = sum(x << (8 * j) for j, x in enumerate(fq))
        if w == 0: t += f"s_mov_b32 s{sPM}, {lo:#x}\ns_mov_b32 s{sQM}, {hi:#x}\n"
        else: t += f"s_cmp_eq_u32 s{sWX}, {w}\ns_cselect_b32 s{sPM}, {lo:#x}, s{sPM}\ns_cmp_eq_u32 s{sW}, {w}\ns_cselect_b32 s{sQM}, {hi:#x}, s{sQM}\n"
    t += f"""v_and_b32 v4, 31, v0
v_mul_u32_u24 v4, 6, v4
v_lshrrev_b32 v5, 5, v0
v_lshlrev_b32 v5, 6, v5
v_bfe_u32 v6, s{sPM}, v4, 6
v_add_u32 v6, v6, v5
v_add_u32 v4, 12, v4
v_bfe_u32 v7, s{sPM}, v4, 6
v_add_u32 v7, v7, v5
v_lshlrev_b32 v4, 3, v0
v_bfe_u32 v4, s{sQM}, v4, 8
s_mov_b32 s{sMK}, 0xf0
s_mov_b32 s{sMK+1}, 0
v_cndmask_b32 v7, v7, v4, s[{sMK}:{sMK+1}]
s_lshl_b32 s{sT0}, s{sTB}, 14
s_add_u32 s{sT0}, s{sT0}, {FLH}
v_lshl_add_u32 v6, v6, 7, s{sT0}
v_lshl_add_u32 v7, v7, 7, s{sT0}
v_mov_b32 v5, {DUMP}
s_mov_b32 s{sMK}, 3
s_mov_b32 s{sMK+1}, 3
v_cndmask_b32 v{vPA}, v5, v6, s[{sMK}:{sMK+1}]
s_mov_b32 s{sMK}, 0xf7
s_mov_b32 s{sMK+1}, 7
v_cndmask_b32 v{vPA2}, v5, v7, s[{sMK}:{sMK+1}]
"""
    return t
POLL = f"buffer_load_dword v{vPV_}, v{vPA}, {WS}, 0 offen sc1"
POLL2 = f"buffer_load_dword v{vPV_}, v{vPA2}, {WS}, 0 offen sc1"
def poll_test(lo, hi):
    return f"v_cmp_ne_u32 vcc, s{sTAG}, v{vPV_}\ns_mov_b32 s{sMK}, {lo:#x}\ns_mov_b32 s{sMK+1}, {hi:#x}\ns_and_b64 vcc, vcc, s[{sMK}:{sMK+1}]"
PFP = opt('pfp', 0); PFN = -(-66 // max(PFP, 1))
def pf_setup_text():
    return f"""s_lshr_b32 s{sT0}, s2, 3
s_lshl_b32 s{sT0}, s{sT0}, 3
s_add_u32 s{sT0}, s{sT0}, s{sW}
s_mul_i32 s{sT0}, s{sT0}, {66*128}
v_lshl_add_u32 v4, v0, 7, s{sT0}
v_mov_b32 v5, {DUMP}
v_cmp_gt_u32 vcc, {PFN}, v0
v_cndmask_b32 v{vPF}, v5, v4, vcc
""" + srd_s(rW2G, pW2, 1792 * 896)
def pf_item(): return f"buffer_load_dword v{vDUM}, v{vPF}, s[{rW2G}:{rW2G+3}], 0 offen\nv_add_u32 v{vPF}, {PFN*128}, v{vPF}"

def unit_dma(u, stage=False):
    j, s = divmod(u, 2)
    out = []
    for jj in range(2):
        g = ""
        if jj == 0:
            g += f"s_mul_i32 s{sPD}, s{sTAB+j}, 28672\n"
            if s: g += f"s_add_u32 s{sPD}, s{sPD}, 14336\n"
        g = (f"s_add_u32 m0, s{sM0X}, {SCR + jj*1024}\n" if stage else f"s_add_u32 m0, s{sM0P}, {unit_pos(u) + jj*1024}\n") + g
        g += f"buffer_load_dwordx4 v{vPD0+jj}, s[{rW2G}:{rW2G+3}], s{sPD} offen lds"
        out.append(g)
    return out
def p2_dma(pc): return [g for u in range(3 * pc, 3 * pc + 3) for g in unit_dma(u)]
def trpat(dst, tmp, hishift, rowshift=7):
    return f"""v_lshrrev_b32 v{dst}, 5, v0
v_lshlrev_b32 v{dst}, {hishift}, v{dst}
v_bfe_u32 v{tmp}, v0, 2, 2
v_add_u32 v{dst}, v{dst}, v{tmp}
v_lshlrev_b32 v{dst}, {rowshift}, v{dst}
v_bfe_u32 v{tmp}, v0, 4, 1
v_lshl_add_u32 v{dst}, v{tmp}, 5, v{dst}
v_and_b32 v{tmp}, 3, v0
v_lshl_add_u32 v{dst}, v{tmp}, 3, v{dst}
v_bfe_u32 v{tmp}, v0, 3, 1
v_lshl_add_u32 v{dst}, v{tmp}, 6, v{dst}
"""
def wa_text():
    return trpat(4, 5, 2) + f"""v_add_u32 v{vWA}, s{sM0P}, v4
v_xor_b32 v{vWA+1}, 64, v{vWA}
v_add_u32 v{vWA+2}, {SLOT}, v{vWA}
v_add_u32 v{vWA+3}, {SLOT}, v{vWA+1}
v_add_u32 v{vWA+4}, {2*SLOT}, v{vWA}
v_add_u32 v{vWA+5}, {2*SLOT}, v{vWA+1}
"""
def wreads(u, dst):
    sl, off = divmod(unit_pos(u), SLOT)
    return [(f"ds_read_b64_tr_b16 {vr(dst+4*c+2*rd,2)}, v{vWA+2*sl+c} offset:{off+rd*1024}", c) for c in range(2) for rd in range(2)]

vDX0, vDX1, vDW0 = 8, 9, 10
vAX = 13
vSEL = 28
vROW = 208; vRU = 212; vGR = 220; vRT = 224
vTG = 248; vZ0 = 249; vGA = 250

def prologue():
    e(f"s_load_dwordx16 s[4:19], s[0:1], 0\ns_load_dwordx4 s[20:23], s[0:1], 64\ns_load_dwordx2 s[24:25], s[0:1], 80")
    e(f"s_cmp_ge_u32 s2, 256\ns_cbranch_scc1 Lend")
    if opt('prio', 1): e("s_setprio 3" if opt('pri2', 0) else "s_setprio 1")
    e(f"v_lshrrev_b32 v1, 6, v0\nv_and_b32 v0, 63, v0\nv_readfirstlane_b32 s{sW}, v1")
    e(f"s_and_b32 s{sXCD}, s2, 7\ns_lshr_b32 s{sT0}, s2, 3\ns_and_b32 s{sSUB}, s{sT0}, 3\ns_lshr_b32 s{sGSEL}, s{sT0}, 2")
    st = k.state()
    e(f"s_cmp_lg_u32 s{sW}, 7\ns_cbranch_scc1 Lnopf")
    e(f"s_getpc_b64 s[{sMK}:{sMK+1}]")
    k.label('Lpc')
    e(f"s_and_b32 s{sT0}, s{sT0}, 7\ns_lshl_b32 s{sT0}, s{sT0}, 13\nv_lshl_add_u32 v4, v0, 7, s{sT0}\nv_min_u32 v4, Lcode_end-Lpc-4, v4")
    e(f"global_load_dword v{vDUM}, v4, s[{sMK}:{sMK+1}]")
    k.label('Lnopf')
    k.set_state(st)
    pre_common()
    e(f"s_cmp_lt_u32 s{sGSEL}, 6\ns_cbranch_scc1 Lm")

def pre_common():
    e(f"s_lshr_b32 s{sT0}, s{sXCD}, 1\ns_lshl_b32 s{sT0}, s{sT0}, 2\ns_add_u32 s{sRB}, s{sT0}, s{sSUB}")
    e(f"s_lshl_b32 s{sT0}, s{sGSEL}, 1\ns_add_u32 s{sT0}, s{sT0}, s{sRB}")
    e(f"s_mul_i32 s{sT1}, s{sT0}, 37\ns_lshr_b32 s{sT1}, s{sT1}, 8\ns_mul_i32 s{sT1}, s{sT1}, 7\ns_sub_u32 s{sCC}, s{sT0}, s{sT1}\ns_mov_b32 s{sC0}, s{sCC}")
    if 'norot1' in DBG: e(f"s_mov_b32 s{sCC}, 0")
    if 'rot2' in DBG: e(f"s_and_b32 s{sCC}, s{sCC}, 1\ns_mul_i32 s{sCC}, s{sCC}, 3")
    e(f"""s_lshl_b32 s{sT0}, s{sRB}, 7
s_lshl_b32 s{sT1}, s{sW}, 4
s_add_u32 s{sT0}, s{sT0}, s{sT1}
v_lshrrev_b32 v4, 3, v0
v_add_u32 v4, s{sT0}, v4
v_mul_u32_u24 v4, 896, v4
v_and_b32 v5, 7, v0
v_lshrrev_b32 v6, 4, v0
v_xor_b32 v6, v5, v6
v_lshl_add_u32 v{vDX0}, v6, 4, v4
v_xor_b32 v6, 4, v6
v_lshl_add_u32 v{vDX1}, v6, 4, v4
v_add_u32 v{vDX1}, 7168, v{vDX1}
s_lshl_b32 s{sM0X}, s{sW}, 11
s_mov_b32 s{rX+2}, {2048*896}
s_mov_b32 s{rX+3}, 0x20000
s_lshl_b32 s{sMEAN}, s2, 3
s_add_u32 s{sMEAN}, s{sMEAN}, s{sW}
s_mul_i32 s{sT1}, s{sMEAN}, 896
v_lshlrev_b32 v{vL16}, 4, v0
v_add_u32 v7, s{sT1}, v{vL16}
v_mov_b32 v5, {DUMP}
v_cmp_gt_u32 vcc, 56, v0
v_cndmask_b32 v7, v5, v7, vcc
v_cndmask_b32 v{vRT+1}, 0, 1.0, vcc""")

def after_kernarg():
    e("s_waitcnt lgkmcnt(0)")
    e(f"s_load_dword s{sTAG}, s[{pWS}:{pWS+1}], {EPOCH}")
    e(f"s_mov_b32 s{rX}, s{pX}\ns_and_b32 s{rX+1}, s{pX+1}, 0xffff")
    return e(f"buffer_load_dwordx4 {vr(vROW,4)}, v7, s[{rX}:{rX+3}], 0 offen")

def loop_setup(xbias):
    e(f"""v_lshrrev_b32 v4, 2, v0
v_lshrrev_b32 v5, 4, v0
v_xor_b32 v4, v4, v5
v_and_b32 v4, 1, v4
v_and_b32 v5, 3, v0
v_or_b32 v4, v4, v5
v_cmp_eq_u32 vcc, 0, v4
v_mov_b32 v5, 0x3f803f80
v_and_b32 v4, 31, v0
v_cndmask_b32 v{vSEL}, 0, v5, vcc
v_cndmask_b32 v{vSEL+1}, 0, v5, vcc
v_cndmask_b32 v{vSEL+2}, 0, v5, vcc
v_cndmask_b32 v{vSEL+3}, 0, v5, vcc
s_add_u32 s{sT3}, s{sT3}, {xbias}
v_lshl_add_u32 v5, v4, 7, s{sT3}
v_bfe_u32 v4, v0, 1, 3
v_lshrrev_b32 v6, 5, v0
v_xor_b32 v4, v4, v6
v_lshl_add_u32 v{vAX}, v4, 4, v5""")
    for j in range(1, 4): e(f"v_xor_b32 v{vAX+j}, {32*j}, v{vAX}")
    e(f"""s_lshl_b32 s{sT0}, s{sMEAN}, 4
s_add_u32 s{sT0}, s{sT0}, {STATS}
v_mov_b32 v5, {DUMP}
v_mov_b32 v6, s{sT0}
v_cmp_eq_u32 vcc, 63, v0
v_cndmask_b32 v{vRT+2}, v5, v6, vcc""")
    e(srd_s(rWS, pWS, WS_USED))

def misc_text():
    return f"""v_mov_b32 v5, {DUMP}
v_lshlrev_b32 v4, 2, v0
v_cmp_gt_u32 vcc, {1 if 'flag1' in DBG else 32}, v0
v_cndmask_b32 v{vZ0}, v5, v4, vcc
s_mov_b32 s{sHALF}, 0
s_mov_b32 s{sHALF+1}, -1
s_mov_b32 s{sEPS}, {f32(1e-6)}
s_mov_b32 s{sEPS+1}, {f32(1e-6)}
s_mov_b32 s{sCT}, s{sGSEL}
s_lshl_b32 s{sTB}, s{sXCD}, 2
s_add_u32 s{sTB}, s{sTB}, s{sSUB}
"""

def wave_sum(r):
    return [f"v_add_f32_dpp v{r}, v{r}, v{r} {m} bank_mask:0xf" for m in
            ("quad_perm:[1,0,3,2] row_mask:0xf", "quad_perm:[2,3,0,1] row_mask:0xf", "row_half_mirror row_mask:0xf", "row_mirror row_mask:0xf",
             "row_bcast:15 row_mask:0xa", "row_bcast:31 row_mask:0xc")]

def mall_prefetch():
    if opt('mpf', 1) == 0: return
    st = k.state()
    L1, L2 = k.newlabel('Lpf'), k.newlabel('Lpf')
    e(f"s_cmp_lg_u32 s{sW}, 6\ns_cbranch_scc1 {L1}")
    e(f"s_mul_i32 s{sT0}, s2, {49*128}\nv_min_u32 v4, 48, v0\nv_lshl_add_u32 v4, v4, 7, s{sT0}\nglobal_load_dword v{vDUM}, v4, s[{pW2}:{pW2+1}]")
    k.label(L1)
    e(f"s_cmp_lg_u32 s{sW}, 5\ns_cbranch_scc1 {L2}")
    e(f"s_mul_i32 s{sT0}, s2, {13*128}\nv_min_u32 v4, 12, v0\nv_lshl_add_u32 v4, v4, 7, s{sT0}\nv_min_u32 v4, {448*896-4}, v4\nglobal_load_dword v{vDUM}, v4, s[{pWO}:{pWO+1}]")
    e(f"v_min_u32 v4, 6, v0\nv_lshlrev_b32 v4, 7, v4\nglobal_load_dword v{vDUM}, v4, s[{pB2}:{pB2+1}]")
    k.label(L2)
    L3 = k.newlabel('Lpf')
    e(f"s_cmp_lg_u32 s{sW}, {4 if opt('c6', 1) else 9}\ns_cbranch_scc1 {L3}")
    e(f"s_lshr_b32 s{sT0}, s2, 3\ns_mul_i32 s{sT0}, s{sT0}, {56*896}\ns_add_u32 s{sT0}, s{sT0}, 768\nv_min_u32 v4, 55, v0\nv_mul_u32_u24 v4, 896, v4\nv_add_u32 v4, s{sT0}, v4\nglobal_load_dword v{vDUM}, v4, s[{pW2}:{pW2+1}]")
    k.label(L3)
    if opt('tlb', 0):
        L4 = k.newlabel('Lpf'); G = opt('tlb', 0)
        n = (WS_USED // 1024 // G + 31) // 32
        e(f"s_cmp_lg_u32 s{sW}, 3\ns_cbranch_scc1 {L4}")
        e(f"s_lshr_b32 s{sT0}, s2, 3\ns_mul_i32 s{sT1}, s{sT0}, {n}\nv_min_u32 v4, {n-1}, v0\nv_add_u32 v4, s{sT1}, v4\nv_mul_u32_u24 v4, {G*1024}, v4\nv_add_u32 v4, 0x800, v4\nglobal_load_dword v{vDUM}, v4, s[{pWS}:{pWS+1}]")
        m = (2048 * 896 // 1024 // G + 31) // 32
        e(f"s_mul_i32 s{sT1}, s{sT0}, {m}\nv_min_u32 v4, {m-1}, v0\nv_add_u32 v4, s{sT1}, v4\nv_mul_u32_u24 v4, {G*1024}, v4\nv_min_u32 v4, {2048*896-4}, v4\nglobal_load_dword v{vDUM}, v4, s[{pOUT}:{pOUT+1}]")
        k.label(L4)
    k.set_state(st)

def rowstat(rtok):
    a = vRT
    k.wait(vm=rtok)
    it = []
    for d in range(4):
        it += [f"v_lshlrev_b32 v{vRU+2*d}, 16, v{vROW+d}", f"v_and_b32 v{vRU+2*d+1}, 0xffff0000, v{vROW+d}"]
    it += [f"v_pk_add_f32 {vr(vROW,2)}, {vr(vRU,2)}, {vr(vRU+2,2)}", f"v_pk_add_f32 {vr(vROW+2,2)}, {vr(vRU+4,2)}, {vr(vRU+6,2)}",
           f"v_pk_add_f32 {vr(vROW,2)}, {vr(vROW,2)}, {vr(vROW+2,2)}", f"v_add_f32 v{a}, v{vROW}, v{vROW+1}"]
    it += wave_sum(a)
    it += [f"v_mul_f32 v{vGR}, {f32(1/448)}, v{a}", f"v_readlane_b32 s{sMEAN}, v{vGR}, 63", f"v_mul_f32 v{a}, s{sMEAN}, v{vRT+1}"]
    for d in range(4): it.append(f"v_pk_add_f32 {vr(vRU+2*d,2)}, {vr(vRU+2*d,2)}, {vr(a,2)} op_sel_hi:[1,0] neg_lo:[0,1] neg_hi:[0,1]")
    it.append(f"v_pk_mul_f32 {vr(vROW,2)}, {vr(vRU,2)}, {vr(vRU,2)}")
    for d in range(1, 4): it.append(f"v_pk_fma_f32 {vr(vROW,2)}, {vr(vRU+2*d,2)}, {vr(vRU+2*d,2)}, {vr(vROW,2)}")
    it.append(f"v_add_f32 v{a}, v{vROW}, v{vROW+1}")
    it += wave_sum(a)
    it.append(f"v_mul_f32 v{vGR+2}, {f32(1/448)}, v{a}")
    for x in it: e(x)
    e(f"s_waitcnt lgkmcnt(0)\ns_mul_i32 s{sTAG}, s{sTAG}, 1664525\ns_add_u32 s{sTAG}, s{sTAG}, 1013904223")
    e(f"v_mov_b32 v{vTG}, s{sTAG}\nv_mov_b32 v{vGR+1}, s{sTAG}\nv_mov_b32 v{vGR+3}, s{sTAG}")
    e(f"buffer_store_dwordx4 {vr(vGR,4)}, v{vRT+2}, {WS}, 0 offen sc1")

def gelu_pk(acc, out, kp, sp, tmp):
    o = []
    for h in range(2):
        a = acc + 8 * h; t = tmp + 8 * h
        for p in range(4): o.append(f"v_pk_mul_f32 {vr(t+2*p,2)}, {vr(a+2*p,2)}, {vr(a+2*p,2)}")
        for p in range(4): o.append(f"v_pk_fma_f32 {vr(t+2*p,2)}, {vr(t+2*p,2)}, {vr(kp+2,2)}, {vr(kp,2)} op_sel_hi:[1,0,0]")
        for p in range(4): o.append(f"v_pk_mul_f32 {vr(t+2*p,2)}, {vr(t+2*p,2)}, {vr(a+2*p,2)}")
        for p in range(8): o.append(f"v_exp_f32 v{t+p}, v{t+p}")
        for p in range(4): o.append(f"v_pk_fma_f32 {vr(t+2*p,2)}, {vr(t+2*p,2)}, {vr(sp,2)}, {vr(sp,2)} op_sel_hi:[1,0,0]")
        for p in range(8): o.append(f"v_rcp_f32 v{t+p}, v{t+p}")
        for p in range(4): o.append(f"v_pk_mul_f32 {vr(t+2*p,2)}, {vr(t+2*p,2)}, {vr(a+2*p,2)}")
        for p in range(4): o.append(f"v_cvt_pk_bf16_f32 v{out+4*h+p}, v{t+2*p}, v{t+2*p+1}")
        o.append(('st', h))
    return o
def phi_pk(acc, out, rfun, rlfun, sel, tmp):
    o = []
    for h in range(2):
        a = acc + 8 * h; t = tmp + 8 * h
        for p in range(4): o.append(f"v_pk_mul_f32 {vr(t+2*p,2)}, {vr(a+2*p,2)}, {rlfun(4*h+p)} op_sel_hi:[1,{sel}]")
        for p in range(4): o.append(f"v_pk_fma_f32 {vr(a+2*p,2)}, {vr(a+2*p,2)}, {rfun(4*h+p)}, {sr(sEPS,2)} op_sel_hi:[1,{sel},0]")
        for p in range(8): o.append(f"v_exp_f32 v{t+p}, v{t+p} clamp")
        for p in range(8): o.append(f"v_max_f32 v{a+p}, s{sEPS}, v{a+p}")
        for p in range(4): o.append(f"v_pk_add_f32 {vr(t+2*p,2)}, {vr(t+2*p,2)}, {vr(a+2*p,2)}")
        for p in range(4): o.append(f"v_cvt_pk_bf16_f32 v{out+4*h+p}, v{t+2*p}, v{t+2*p+1}")
        o.append(('st', h))
    return o
def skew(chains):
    o = []; L = len(chains[0]); n = len(chains)
    for t in range(L + 2 * n):
        for i, c in enumerate(chains):
            s = t - 2 * (i // 2)
            if 0 <= s < len(c) and c[s] is not None: o.append(c[s])
    return o
def gelu_sc(acc, out, kp, sp, tmp, half):
    ch = []
    for p in range(8):
        a = acc + 8 * half + p; t = tmp + p
        c = [f"v_mul_f32 v{t}, v{a}, v{a}", f"v_fma_f32 v{t}, v{t}, v{kp+2}, v{kp}", f"v_mul_f32 v{t}, v{t}, v{a}", f"v_exp_f32 v{t}, v{t}",
             f"v_fma_f32 v{t}, v{t}, v{sp}, v{sp}", f"v_rcp_f32 v{t}, v{t}", f"v_mul_f32 v{t}, v{t}, v{a}",
             f"v_cvt_pk_bf16_f32 v{out+4*half+p//2}, v{t-1}, v{t}" if p & 1 else None]
        ch.append(c)
    return skew(ch)
def phi_sc(acc, out, r, rl, tmp, half):
    ch = []
    for p in range(8):
        a = acc + 8 * half + p; t = tmp + p
        c = [f"v_mul_f32 v{t}, v{a}, v{rl}", f"v_fma_f32 v{a}, v{a}, v{r}, s{sEPS}", f"v_exp_f32 v{t}, v{t} clamp", f"v_max_f32 v{a}, s{sEPS}, v{a}",
             f"v_add_f32 v{t}, v{t}, v{a}", f"v_cvt_pk_bf16_f32 v{out+4*half+p//2}, v{t-1}, v{t}" if p & 1 else None]
        ch.append(c)
    return skew(ch)

vAW = 17
vBIAS = 25
vXB = 32; vWB = 48; vACC = 72; vCS = 136
vAX2 = 120
vSG = 168; vCG = 172; vGA2 = 21; vCP = 22

def p1_dma(kind, i):
    slot = (i % 3) * SLOT
    out = [f"s_add_u32 m0, s{sM0X}, {slot}\ns_lshl_b32 s{sSOX}, s{sCC}, 7\nbuffer_load_dwordx4 v{vDX0}, s[{rX}:{rX+3}], s{sSOX} offen lds"]
    if kind == 'M':
        out.append(f"s_add_u32 m0, s{sM0X}, {slot + 1024}\ns_mul_i32 s{sSO0}, s{sCC}, s{sPSTEP0}\nbuffer_load_dwordx4 v{vDX1}, s[{rX}:{rX+3}], s{sSOX} offen lds")
        for lc in range(3):
            nx = f"s_mul_i32 s{sSO0+lc+1}, s{sCC}, s{sPSTEP0+lc+1}" if lc < 2 else f"s_add_u32 s{sCC}, s{sCC}, 1"
            out.append(f"s_add_u32 m0, s{sM0W}, {slot + lc*8192}\n{nx}\n"
                       f"buffer_load_dwordx4 v{vDW0+lc}, s[{rW0+4*lc}:{rW0+4*lc+3}], s{sSO0+lc} offen lds")
    else:
        out.append(f"s_add_u32 m0, s{sM0X}, {slot + 1024}\ns_mul_i32 s{sSO0}, s{sCC}, {64*2688}\nbuffer_load_dwordx4 v{vDX1}, s[{rX}:{rX+3}], s{sSOX} offen lds")
        nxs = [f"s_add_u32 s{sSO1}, s{sSO0}, 896", "s_nop 0", "s_nop 0", f"s_add_u32 s{sCC}, s{sCC}, 1"]
        for kv in range(2):
            for jj in range(2):
                if 'kvfast' in DBG and 2 * kv + jj in (1, 2): continue
                out.append(f"s_add_u32 m0, s{sM0W}, {slot + kv*16384 + jj*1024}\n{nxs[2*kv+jj]}\n"
                           f"buffer_load_dwordx4 v{vDW0+jj}, s[{rW0}:{rW0+3}], s{sSO0+kv} offen lds")
    out[-1] += f"\ns_cmp_eq_u32 s{sCC}, 7\ns_cselect_b32 s{sCC}, 0, s{sCC}"
    return out

def cs_addr_text(slot_s, pub_s):
    return f"""s_lshl_b32 s{sT0}, s{slot_s}, 12
s_add_u32 s{sT0}, s{sT0}, {CSG}
v_add_u32 v{vGA2}, s{sT0}, v{vL16}
s_lshl_b32 s{sT1}, s{sC0}, 9
v_add_u32 v4, s{sT1}, v{vGA2}
v_mov_b32 v5, {DUMP}
v_cndmask_b32 v4, v4, v5, {HALF}
s_cmp_lt_u32 s{sRB}, 7
s_cselect_b32 s{sT1}, s{pub_s}, 1
s_cmp_eq_u32 s{sT1}, 0
s_cselect_b32 s{sT1}, 0, {DUMP}
v_add_u32 v{vCP}, s{sT1}, v4
"""
def cs_pub(nt, vCS=136, vRU=212):
    return [f"v_mov_b32 v{vRU+t}, v{vCS+4*t}" for t in range(nt)] + [f"v_mov_b32 v{vRU+t}, v{vTG}" for t in range(nt, 4)] + \
           [f"buffer_store_dwordx4 {vr(vRU,4)}, v{vCP}, {WS}, 0 offen sc1"]
def gran_items(vSG=168, vCG=172):
    GL = [f"buffer_load_dwordx4 {vr(vSG,4)}, v{vGA}, {WS}, 0 offen sc1"] + \
         [f"buffer_load_dwordx4 {vr(vCG+4*q,4)}, v{vGA2}, {WS}, 0 offen offset:{1024*q} sc1" for q in range(4)]
    G = {}
    def last_g(): G['g'] = e(GL[-1])
    a_ = vSG + 1
    gtest = f"""v_cndmask_b32 v{vCG+15}, v{vCG+15}, v{vTG}, {HALF}
v_xor_b32 v{a_}, v{vTG}, v{a_}
v_bitop3_b32 v{a_}, v{a_}, v{vSG+3}, v{vTG} bitop3:0xf6
v_bitop3_b32 v{a_}, v{a_}, v{vCG+3}, v{vTG} bitop3:0xf6
v_bitop3_b32 v{a_}, v{a_}, v{vCG+7}, v{vTG} bitop3:0xf6
v_bitop3_b32 v{a_}, v{a_}, v{vCG+11}, v{vTG} bitop3:0xf6
v_bitop3_b32 v{a_}, v{a_}, v{vCG+15}, v{vTG} bitop3:0xf6
v_cmp_ne_u32 vcc, 0, v{a_}
s_cmp_lg_u64 vcc, 0"""
    def gcheck():
        k.wait(vm=G['g']); verify("\n".join(GL), gtest, 4)
    return GL[:-1] + [last_g], gcheck
def cs_sum(nt, dst, vCG=172):
    it = []
    for t in range(nt): it.append(f"v_cndmask_b32 v{vCG+12+t}, v{vCG+12+t}, 0, {HALF}")
    for t in range(nt): it += [f"v_add_f32 v{vCG+t}, v{vCG+t}, v{vCG+4+t}", f"v_add_f32 v{vCG+8+t}, v{vCG+8+t}, v{vCG+12+t}"]
    for t in range(nt): it.append(f"v_add_f32 v{vCG+t}, v{vCG+t}, v{vCG+8+t}")
    for t in range(nt): it.append(f"v_mov_b32 v{vCG+4+t}, v{vCG+t}")
    for t in range(nt): it.append(f"v_permlane32_swap_b32 v{vCG+t}, v{vCG+4+t}")
    for t in range(nt): it.append(f"v_add_f32 v{dst+t}, v{vCG+t}, v{vCG+4+t}")
    return it

def main_loop(kind, D, per, ax2, tail=None, lead=None):
    SETS = [32, 48, 232]
    xbuf = lambda n, u: SETS[n % 3] + 4 * u
    wbuf = lambda n, t: SETS[n % 3] + 8 + 4 * t
    def reads(n):
        i, j = divmod(n, 4); sl = i % 3
        xa = (ax2 if sl == 2 else vAX) + j; xo = SLOT if sl == 1 else 0
        o = [f"ds_read_b128 {vr(xbuf(n,0),4)}, v{xa} offset:{xo}"]
        for kv in range(2):
            for rd in range(2): o.append(f"ds_read_b64_tr_b16 {vr(wbuf(n,kv)+2*rd,2)}, v{vAW+sl} offset:{kv*16384 + j*4096 + rd*1024}")
        o.append(f"ds_read_b128 {vr(xbuf(n,1),4)}, v{xa} offset:{xo+4096}")
        return o
    k.wait(vm=D[0]); e("s_barrier")
    stamp(1)
    RT = {}
    for n in range(2):
        for x in reads(n): RT[n] = e(x)
    pend = p1_dma(kind, 2); pend_i = 2
    for n in range(28):
        i, j = divmod(n, 4)
        mf = []
        for t in range(4):
            if 'kvfast' in DBG and t == 3 and n > 0: continue
            acc = vr(vACC + 16 * t, 16); u, kv = t >> 1, t & 1
            mf.append(f"v_mfma_f32_32x32x16_bf16 {acc}, {vr(xbuf(n,u),4)}, {vr(wbuf(n,kv),4)}, {'0' if n == 0 else acc}")
        if i == 0:
            for t in range(2):
                acc = vr(vCS + 4 * t, 4)
                mf.append(f"v_mfma_f32_16x16x32_bf16 {acc}, {vr(vSEL,4)}, {vr(wbuf(n,t),4)}, {'0' if n == 0 else acc}")
        k.wait(lg=RT[n])
        e(mf[0])
        if j == 2:
            assert not pend
            e(mf[1]); mf = mf[1:]
            e("s_waitcnt lgkmcnt(0)")
            if i < 6: k.wait(vm=D[i + 1])
            e("s_barrier")
            stamp(2 + i, chunk=True)
            pend_i = i + 3
            pend = (lead or {}).get(i, []) + (p1_dma(kind, i + 3) if i + 3 < 7 else tail[i + 3 - 7] if i < 6 else [])
        if n + 2 < 28:
            for x in reads(n + 2): RT[n + 2] = e(x)
        left = {2: 3, 3: 2, 0: 1, 1: 1}[j] if n >= 2 else 2 - n
        nd = -(-len(pend) // left)
        dmm = pend[:nd]; pend = pend[nd:]
        other = spread([('d', x) for x in dmm] or [('n', None)], [('f', x) for x in per[n]])
        other = [f for f in other if f[0] != 'n']
        for kind_, x in spread([('m', x) for x in mf[1:]], other):
            t_ = emit_item(x)
            if kind_ == 'd' and t_ is not None: D[pend_i] = t_

FLAG = f"buffer_store_dword v{vTG}, v{vZ0}, {WS}, s{sFLO} offen sc1\ns_add_u32 s{sFLO}, s{sFLO}, 128"

XP = [65536, 81920, 114688]
WP = [[49152, 57344], [98304, 106496], [131072, 139264]]
L2P = [SCR] + [8192 * i for i in range(6)]
def ring(c): return (c + 2) % 3
def phase1_M():
    mg = sMG
    vX = 96; AC = [64, 80]; mCS = 48; vK = 48; vBA = 56; vAA = [228, 232, 60]; sm = 26
    mSG = 208; mCG = 212; R = 236; vC = 244
    WS3 = [32, 40, 240]
    T = {}
    def tokset(key, text):
        def f(): T[key] = e(text)
        return f
    def dma_c(c):
        p = ring(c)
        return [f"s_add_u32 m0, s{sM0X}, {XP[p]}\ns_lshl_b32 s{sSOX}, s{sCC}, 7\nbuffer_load_dwordx4 v{vDX0}, s[{rX}:{rX+3}], s{sSOX} offen lds",
                f"s_add_u32 m0, s{sM0X}, {XP[p]+1024}\ns_mul_i32 s{sSO0}, s{sCC}, s{sPSTEP0}\nbuffer_load_dwordx4 v{vDX1}, s[{rX}:{rX+3}], s{sSOX} offen lds",
                f"s_add_u32 m0, s{sM0W}, {WP[p][0]}\ns_mul_i32 s{sSO1}, s{sCC}, s{sPSTEP0+1}\nbuffer_load_dwordx4 v{vDW0}, s[{rW0}:{rW0+3}], s{sSO0} offen lds",
                f"s_add_u32 m0, s{sM0W}, {WP[p][1]}\ns_add_u32 s{sCC}, s{sCC}, 1\nbuffer_load_dwordx4 v{vDW0+1}, s[{rW1}:{rW1+3}], s{sSO1} offen lds\n"
                f"s_cmp_eq_u32 s{sCC}, 7\ns_cselect_b32 s{sCC}, 0, s{sCC}"]
    def dma_2(c):
        return (f"s_add_u32 m0, s{sM0W}, {L2P[c]}\ns_nop 0\nbuffer_load_dwordx4 v{vDW0+2}, s[{rW2}:{rW2+3}], s{sSO2} offen lds\n"
                f"s_add_u32 s{sSO2}, s{sSO2}, s{sPSTEP0+2}\ns_cmp_eq_u32 s{sSO2}, s{rW2+2}\ns_cselect_b32 s{sSO2}, 0, s{sSO2}")
    def wf(a, j, dst): return [f"ds_read_b64_tr_b16 {vr(dst+2*rd,2)}, v{vAW + (a >> 16)} offset:{(a & 0xffff) + j*2048 + rd*512}" for rd in range(2)]
    e(f"s_and_b32 s{sT0}, s{sXCD}, 1\ns_mul_i32 s{sT0}, s{sT0}, 6\ns_add_u32 s{mg}, s{sT0}, s{sGSEL}")
    e(f"""v_lshrrev_b32 v4, 3, v0
v_lshl_add_u32 v4, s{sW}, 3, v4
v_bfe_u32 v5, v0, 4, 1
v_lshlrev_b32 v5, 2, v5
v_and_b32 v6, 7, v0
v_xor_b32 v5, v5, v6
v_lshlrev_b32 v5, 4, v5
s_lshl_b32 s{sM0W}, s{sW}, 10
s_mul_i32 s{sT3}, s{mg}, 3""")
    for lc in range(3):
        r = rW0 + 4 * lc
        e(f"""s_add_u32 s{sT0}, s{sT3}, {lc}
s_sub_u32 s{sT1}, s{sT0}, 28
s_cmp_lt_u32 s{sT0}, 35
s_cselect_b32 s{r+2}, {448*2688}, 0
s_cmp_lt_u32 s{sT0}, 28
s_cselect_b32 s{r+2}, {448*3584}, s{r+2}
s_cselect_b32 s{sT0}, s{sT0}, s{sT1}
s_movk_i32 s{sT1}, 2688
s_cselect_b32 s{sT1}, 3584, s{sT1}
s_lshl_b32 s{sT0}, s{sT0}, 7
s_lshl_b32 s{sPSTEP0+lc}, s{sT1}, 6
v_mad_u32_u24 v{vDW0+lc}, v4, s{sT1}, v5
v_add_u32 v{vDW0+lc}, s{sT0}, v{vDW0+lc}
s_mov_b32 s{r+3}, 0x20000""")
    e(f"s_mul_i32 s{sSO2}, s{sCC}, s{sPSTEP0+2}")
    rtok = after_kernarg()
    stamp(0)
    e(f"s_and_b32 s{pW1+1}, s{pW1+1}, 0xffff\ns_and_b32 s{pWQKV+1}, s{pWQKV+1}, 0xffff")
    for lc in range(3):
        r = rW0 + 4 * lc
        e(f"s_cmp_eq_u32 s{sPSTEP0+lc}, {64*3584}\ns_cselect_b32 s{r}, s{pW1}, s{pWQKV}\ns_cselect_b32 s{r+1}, s{pW1+1}, s{pWQKV+1}")
    for g in dma_c(0): T[0] = e(g)
    e(f"s_and_b32 s{sLO}, s{sW}, 3\ns_lshr_b32 s{sHI}, s{sW}, 2\ns_lshl_b32 s{sT3}, s{sLO}, 12")
    loop_setup(65536)
    e(trpat(4, 5, 3) + f"s_lshl_b32 s{sT0}, s{sHI}, 6\nv_xor_b32 v{vAW}, s{sT0}, v4\nv_add_u32 v{vAW+1}, 65536, v{vAW}\nv_add_u32 v{vAW+2}, 131072, v{vAW}")
    e(dma_2(0))
    for g in dma_c(1): T[1] = e(g)
    mall_prefetch()
    rowstat(rtok)
    m, var = mSG, mSG + 2
    r1, w_, rm = R + 5, R + 6, R + 7
    setup1 = misc_text() + f"s_lshl_b32 s{sT4}, s{mg}, 1\ns_add_u32 s{sT4}, s{sT4}, s{sHI}\ns_mul_i32 s{sTILE0}, s{mg}, 6\ns_add_u32 s{sTILE0}, s{sTILE0}, s{sHI}\n" + \
        cs_addr_text(sT4, sLO) + srd_s(rMISC, pB1, 3584) + f"s_lshl_b32 s{sT0}, s{sTILE0}, 6\nv_and_b32 v4, 31, v0\nv_lshl_add_u32 v{vBIAS+2}, v4, 1, s{sT0}\n"
    bias = [f"buffer_load_ushort v{vBIAS+t}, v{vBIAS+2}, s[{rMISC}:{rMISC+3}], 0 offen offset:{128*t}" for t in range(3)]
    setup2 = f"""s_lshl_b32 s{sT0}, s{sRB}, 2
s_add_u32 s{sT0}, s{sT0}, s{sLO}
s_lshl_b32 s{sT1}, s{sT0}, 9
s_add_u32 s{sT1}, s{sT1}, {STATS}
v_and_b32 v4, 31, v0
v_lshl_add_u32 v{vGA}, v4, 4, s{sT1}
s_lshl_b32 s{sFLO}, s{sT0}, 13
s_mul_i32 s{sT0}, s{sT0}, {TSTR}
s_lshl_b32 s{sT1}, s{sTILE0}, 11
s_add_u32 s{sHQO}, s{sT0}, s{sT1}
s_add_u32 s{sHQO}, s{sHQO}, {HQ}
s_lshl_b32 s{sT1}, s{sT4}, 7
s_add_u32 s{sFLO}, s{sFLO}, s{sT1}
s_add_u32 s{sFLO}, s{sFLO}, {FLH}
""" + p2_setup_text()
    early = f"v_mov_b32 v{vBA+3}, 0\n" + "".join(f"v_lshlrev_b32 v{vAA[t]+1}, 16, v{vBIAS+t}\nv_mov_b32 v{vAA[t]+2}, v{vBIAS+t}\nv_mov_b32 v{vAA[t]+3}, 0\n" for t in range(3))
    gl, gcheck = gran_items(mSG, mCG)
    C3 = [mCG + 8, mCG + 9, mCG + 10]
    aug = [gcheck] + lines(f"""v_add_f32 v{vK}, {f32(EPS)}, v{var}
v_mov_b32 v{vK+1}, {f32(EPS)}
v_fma_f32 v{vK+1}, v{vK+1}, v{vK}, v{var}
v_rsq_f32 v{vK+4}, v{vK}
v_rsq_f32 v{vK+3}, v{vK+1}""") + cs_sum(3, mCG + 8, mCG) + lines(f"""v_mul_f32 v{sm}, v{vK+1}, v{vK+3}
v_cvt_pk_bf16_f32 v{R}, -v{m}, v{sm}
v_lshlrev_b32 v{R+1}, 16, v{R}
v_and_b32 v{R+2}, 0xffff0000, v{R}
v_sub_f32 v{R+1}, -v{m}, v{R+1}
v_sub_f32 v{R+2}, v{sm}, v{R+2}
v_cvt_pk_bf16_f32 v{R+3}, -v{m}, v{R+1}
v_cvt_pk_bf16_f32 v{R+2}, v{R+2}, 0
v_cndmask_b32 v{vBA}, v{R+3}, 0, {HALF}
v_cndmask_b32 v{vBA+1}, v{R}, 0, {HALF}
v_cndmask_b32 v{vBA+2}, v{R+2}, 0, {HALF}""")
    for t in range(3):
        c = C3[t]; a = vAA[t]
        aug += lines(f"""v_cvt_pk_bf16_f32 v{a}, v{c}, v{c}
v_and_b32 v{R}, 0xffff0000, v{a}
v_sub_f32 v{R}, v{c}, v{R}
v_cvt_pk_bf16_f32 v{a+1}, v{R}, v{a+1}""")
    post = lines(f"""v_mul_f32 v{vK}, {f32(GC0)}, v{vK+3}
v_mul_f32 v{vK+5}, v{vK+3}, v{vK+3}
v_mul_f32 v{vK+5}, {f32(GC1)}, v{vK+5}
v_mul_f32 v{vK+2}, v{vK+5}, v{vK}
v_mul_f32 v{vK+6}, {f32(LOG2E)}, v{vK+4}""")
    per = {n: [] for n in range(28)}
    dmx = {n: [] for n in range(28)}
    distribute(per, 0, 7, atoms(setup1)); per[9] += cs_pub(3, mCS) + bias
    distribute(per, 10, 17, atoms(setup2)); distribute(per, 19, 20, atoms(early))
    for st_ in [5, 9, 13, 17, 21][:PFP]: per[st_].append(pf_item())
    G0 = opt('gstep', 18)
    distribute(per, G0, G0 + 1, gl)
    distribute(per, 23, 27, aug)
    distribute(dmx, 0, 1, [tokset(2, g) for g in dma_c(2)])
    for c in range(3, 7): distribute(dmx, 4 * (c - 3) + 2, 4 * (c - 3) + 4, [tokset(c, g) for g in dma_c(c)])
    for c, st_ in zip(range(1, 7), (12, 16, 17, 20, 21, 21)): dmx[st_].append(tokset('l2', dma_2(c)))
    distribute(dmx, 22, 27, [tokset('P0', g) for g in p2_dma(0)])
    def reads(n):
        c, j = divmod(n, 4); p = ring(c); ws = WS3[n % 3]
        return [f"ds_read_b128 {vr(vX+4*n,4)}, v{vAX+j} offset:{XP[p]-65536}"] + wf(WP[p][0], j, ws) + wf(WP[p][1], j, ws + 4)
    k.wait(vm=T[0]); e("s_barrier")
    stamp(1)
    RT = {}
    MP = True
    for n in range(2):
        for x in reads(n): RT[n] = e(x)
    CT = {}
    for n in range(28):
        c, j = divmod(n, 4); ws = WS3[n % 3]
        if j == 2:
            e("s_waitcnt lgkmcnt(0)")
            if c < 6: k.wait(vm=T[c + 1])
            e("s_barrier")
            stamp(2 + c, chunk=True)
        mf = [f"v_mfma_f32_32x32x16_bf16 {vr(AC[t],16)}, {vr(ws+4*t,4)}, {vr(vX+4*n,4)}, {'0' if n == 0 else vr(AC[t],16)}" for t in range(2)]
        if c == 0: mf += [f"v_mfma_f32_16x16x32_bf16 {vr(mCS+4*t,4)}, {vr(vSEL,4)}, {vr(ws+4*t,4)}, {'0' if n == 0 else vr(mCS+4*t,4)}" for t in range(2)]
        rd = [tokset(('r', n + 2), x) for x in reads(n + 2)] if n + 2 < 28 else []
        if 2 <= n < 6: rd += [tokset(('c', n - 2), x) for x in wf(L2P[0], n - 2, [60, 228, 232, 236][n - 2])]
        if 4 <= n < 8:
            def csm(q=n - 4):
                k.wait(lg=T[('c', q)])
                e(f"v_mfma_f32_16x16x32_bf16 {vr(mCS+8,4)}, {vr(vSEL,4)}, {vr([60, 228, 232, 236][q],4)}, {'0' if q == 0 else vr(mCS+8,4)}")
            mf.append(csm)
        k.wait(lg=RT[n] if n < 2 else T[('r', n)])
        other = spread(dmx[n], per[n]) if dmx[n] else per[n]
        for x in [mf[0]] + rd + spread(mf[1:], other): emit_item(x)
    for x in spread([f"v_mfma_f32_32x32x16_bf16 {vr(AC[t],16)}, {vr(vAA[t],4)}, {vr(vBA,4)}, {vr(AC[t],16)}" for t in range(2)], post): e(x)
    stamp(2); stamp(9, chunk=True)
    def p1dma(cond, lab):
        st_ = k.state()
        e(f"s_cmp_{cond}_u32 s{sHI}, 0\ns_cbranch_scc1 {lab}")
        for g in p2_dma(1): e(g)
        k.label(lab); k.set_state(st_)
    p1dma('eq', 'Lp1a')
    vT = 32
    def tile(acc, out, kind, last=False):
        ep = gelu_pk(acc, out, vK, sm, vT) if kind == 'G' else phi_pk(acc, out, lambda p: vr(vK + 4, 2), lambda p: vr(vK + 6, 2), 0, vT)
        for x in ep:
            if isinstance(x, tuple):
                h = x[1]
                if last and h == 0: k.wait(vm=T['poll'])
                T['st'] = e(f"buffer_store_dwordx4 {vr(out+4*h,4)}, v{vL16}, {WS}, s{sHQO} offen offset:{1024*h} sc1")
                if h: e(f"s_add_u32 s{sHQO}, s{sHQO}, 4096")
            else: e(x)
    e(f"s_nop 3\ns_cmp_ge_u32 s{mg}, 10\ns_cbranch_scc1 Lphi0")
    st0 = k.state()
    tile(AC[0], 208, 'G')
    e(f"s_cmp_eq_u32 s{mg}, 9\ns_cbranch_scc1 Lphi1")
    tile(AC[1], 216, 'G')
    k.label('Lepi1')
    def phis():
        k.label('Lphi0'); k.set_state(st0); e("s_nop 7")
        tile(AC[0], 208, 'P')
        k.label('Lphi1')
        tile(AC[1], 216, 'P')
        e("s_branch Lepi1")
    T0 = dict(T)
    outline.append(phis)
    stamp(3); stamp(12, 4)
    p1dma('lg', 'Lp1b')
    k.wait(vm=T0['l2'])
    e("s_barrier")
    stamp(10, chunk=True)
    def r2(n): return wf(L2P[n >> 2], n & 3, 32 + 4 * (n & 3))
    W = {}
    for n in range(3):
        for x in r2(n): W[n] = e(x)
    per = {n: [] for n in range(28)}
    FS = opt('fstep', 9)
    distribute(per, 0, FS - 1, atoms(poll_addr_text() + wa_text(), 3))
    per[FS] = ["s_waitcnt vmcnt(0)", f"buffer_store_dword v{vTG}, v{vZ0}, {WS}, s{sFLO} offen sc1\ns_add_u32 s{sFLO}, s{sFLO}, 4096"]
    pre = [tokset('pre', x) for u in range(5) for x, _ in wreads(u, vWP + 8 * u)]
    distribute(per, FS + 1, FS + 4, pre)
    distribute(per, FS + 6, 27, [lambda: k.wait(lg=T['pre'])] + [g for u in range(9, 14) for g in unit_dma(u)])
    for n in range(28):
        k.wait(lg=W[n])
        e(f"v_mfma_f32_32x32x16_bf16 {vr(AC[0],16)}, {vr(32+4*(n&3),4)}, {vr(vX+4*n,4)}, {'0' if n == 0 else vr(AC[0],16)}")
        if n + 3 < 28:
            for x in r2(n + 3): W[n + 3] = e(x)
        for x in per[n]: emit_item(x)
    e(f"v_mfma_f32_32x32x16_bf16 {vr(AC[0],16)}, {vr(vAA[2],4)}, {vr(vBA,4)}, {vr(AC[0],16)}")
    e("s_barrier")
    stamp(11, chunk=True)
    T['poll'] = e(POLL)
    st_ = k.state()
    e(f"s_mov_b32 s{sC0}, s{sHI}\ns_cmp_eq_u32 s{sHI}, 0\ns_cbranch_scc1 Lp2a")
    for g in p2_dma(2): e(g)
    k.label('Lp2a'); k.set_state(st_)
    e(f"s_cmp_eq_u32 s{mg}, 11\ns_cselect_b32 s{sHQO}, {DUMP}, s{sHQO}\ns_nop 7\ns_cmp_ge_u32 s{mg}, 9\ns_cbranch_scc1 Lphi2")
    st1 = k.state()
    tile(AC[0], 80, 'G', True)
    def phi2():
        k.label('Lphi2'); k.set_state(st1)
        tile(AC[0], 80, 'P', True)
        e("s_branch Lp2")
    outline.append(phi2)
    stamp(12, chunk=True)

def phase1_KV():
    g = sMG
    kAX2 = 64; vRA = 68; vZA_ = 25
    e(f"""s_and_b32 s{sT0}, s{sXCD}, 1
s_mul_i32 s{sT1}, s{sT0}, 3
s_add_u32 s{sT3}, s{sT0}, 1
s_cmp_eq_u32 s{sGSEL}, 6
s_cselect_b32 s{g}, s{sT1}, s{sT3}
s_mul_i32 s{sT0}, s{g}, 224
s_cmp_eq_u32 s{g}, 3
s_cselect_b32 s{sT0}, 640, s{sT0}
s_add_u32 s{sT0}, s{sT0}, 896
v_lshrrev_b32 v4, 4, v0
v_lshlrev_b32 v5, 2, v4
v_sub_u32 v5, v0, v5
v_and_b32 v5, 15, v5
v_lshl_add_u32 v5, v5, 4, s{sT0}
v_lshl_add_u32 v4, s{sW}, 3, v4
v_mul_u32_u24 v4, 2688, v4
v_add_u32 v{vDW0}, v4, v5
v_add_u32 v{vDW0+1}, {4*2688}, v{vDW0}
s_lshl_b32 s{sM0W}, s{sW}, 11
s_add_u32 s{sM0W}, s{sM0W}, 16384""")
    rtok = after_kernarg()
    stamp(0)
    e(srd_s(rW0, pWQKV, 448 * 2688))
    D = {}
    for x in p1_dma('KV', 0): D[0] = e(x)
    e('s_branch Lkv2')
    yield
    k.label('Lkv2')
    e(f"s_and_b32 s{sLO}, s{sW}, 3\ns_lshr_b32 s{sHI}, s{sW}, 2\ns_lshl_b32 s{sT3}, s{sHI}, 13")
    loop_setup(0)
    e(f"""s_cmp_eq_u32 s{g}, 3
s_cselect_b32 s{sT1}, 32, 0
s_mul_i32 s{sT0}, s{sLO}, 56
s_add_u32 s{sT1}, s{sT1}, s{sT0}
v_bfe_u32 v4, v0, 2, 2
v_lshl_add_u32 v5, v4, 6, s{sT1}
v_bfe_u32 v6, v0, 4, 1
v_lshl_add_u32 v5, v6, 5, v5
v_and_b32 v6, 3, v0
v_lshl_add_u32 v5, v6, 3, v5
v_and_b32 v5, 255, v5
v_lshrrev_b32 v6, 5, v0
v_lshl_add_u32 v4, v6, 3, v4
v_lshl_add_u32 v5, v4, 8, v5
v_add_u32 v{vAW}, 16384, v5
v_add_u32 v{vAW+1}, {16384+SLOT}, v5
v_add_u32 v{vAW+2}, {16384+2*SLOT}, v5""")
    for x in p1_dma('KV', 1): D[1] = e(x)
    mall_prefetch()
    rowstat(rtok)
    vXA = 136; vWAu = 144; r1 = 152; R = 154; vC = 160; vR = 176
    setup1 = "".join(f"v_add_u32 v{kAX2+j}, {2*SLOT}, v{vAX+j}\n" for j in range(4)) + \
        f"s_lshl_b32 s{sTILE0}, s{g}, 2\ns_add_u32 s{sTILE0}, s{sTILE0}, s{sLO}\ns_add_u32 s{sT4}, s{sTILE0}, 24\n" + cs_addr_text(sT4, sHI)
    setup2 = f"""s_lshl_b32 s{sT0}, s{sRB}, 11
s_lshl_b32 s{sT1}, s{sHI}, 10
s_add_u32 s{sT0}, s{sT0}, s{sT1}
s_add_u32 s{sT0}, s{sT0}, {STATS}
v_add_u32 v{vGA}, s{sT0}, v{vL16}
""" + p2_setup_text() + poll_addr_text() + f"""s_mov_b32 s{sFLO}, {DUMP}
s_add_u32 s{sT0}, s{sM0X}, {SCR}
v_lshl_add_u32 v6, v0, 2, s{sT0}
v_lshrrev_b32 v7, 5, v0
v_lshl_add_u32 v7, v7, 4, s{sT0}
""" + "".join(f"v_mov_b32 v{r}, 0\n" for r in (vXA+2, vXA+3, vXA+6, vXA+7, vWAu+2, vWAu+3, vWAu+6, vWAu+7)) + f"""s_mov_b32 s{sMKM}, 0x10000000
s_mov_b32 s{sMKM+1}, 0x10000000
s_lshl_b32 s{sT0}, s{sLO}, 12
s_add_u32 s{sT0}, s{sT0}, {SCR}
v_add_u32 v26, s{sT0}, v{vL16}
s_lshl_b32 s{sHQO}, s{sTILE0}, 4
s_add_u32 s{sHQO}, s{sHQO}, s{sRB}
s_lshl_b32 s{sHQO}, s{sHQO}, 12
s_add_u32 s{sHQO}, s{sHQO}, {KVP}
v_mov_b32 v27, 0xff
v_mov_b32 v12, 0x3f803f80
s_bfe_u32 s{sPSTEP0}, s{sTAG}, 0x80008
s_bfe_u32 s{sPSTEP0+1}, s{sTAG}, 0x80010
s_lshr_b32 s{sPSTEP0+2}, s{sTAG}, 24
s_and_b32 s{sSO2}, s{sTAG}, 0xff
s_and_b32 s{sT0}, s{sTB}, 1
s_mul_i32 s{sT0}, s{sT0}, 7
s_add_u32 s{sRCT}, s{sT0}, s{sW}
s_lshr_b32 s{sT0}, s{sTB}, 1
s_mul_i32 s{sT0}, s{sT0}, 28
v_lshrrev_b32 v4, 2, v0
v_add_u32 v4, s{sT0}, v4
v_mul_u32_u24 v4, 896, v4
v_and_b32 v5, 3, v0
v_lshl_add_u32 v4, v5, 4, v4
s_lshl_b32 s{sT0}, s{sRCT}, 6
v_add_u32 v68, s{sT0}, v4
v_add_u32 v69, {16*896}, v68
""" + srd_s(rMISC, pWO, 448 * 896) + f"""s_cmp_eq_u32 s{sGSEL}, 7
s_cselect_b32 s{rMISC+2}, s{rMISC+2}, 0
"""
    gl, gcheck = gran_items()
    m, var = vSG, vSG + 2
    aug = [gcheck] + lines(f"""v_add_f32 v{r1}, {f32(EPS)}, v{var}
v_rsq_f32 v{r1}, v{r1}
v_cvt_pk_bf16_f32 v{R}, -v{m}, 0
v_mul_f32 v{r1+1}, {f32(LOG2E)}, v{r1}
ds_write_b32 v6, v{r1+1}""") + cs_sum(2, vC) + lines(f"""v_lshlrev_b32 v{R+1}, 16, v{R}
v_sub_f32 v{R+1}, -v{m}, v{R+1}
v_cvt_pk_bf16_f32 v{R+3}, -v{m}, v{R+1}
v_cndmask_b32 v{vXA}, v{R+3}, 0, {HALF}
v_cndmask_b32 v{vXA+1}, v{R}, 0, {HALF}
v_cndmask_b32 v{vXA+4}, 0, v{R+3}, {HALF}
v_cndmask_b32 v{vXA+5}, 0, v{R}, {HALF}""")
    for kv in range(2):
        c = vC + kv; a = vWAu + 4 * kv
        aug += lines(f"""v_cvt_pk_bf16_f32 v{a}, v{c}, v{c}
v_and_b32 v{R+4}, 0xffff0000, v{a}
v_sub_f32 v{R+4}, v{c}, v{R+4}
v_cvt_pk_bf16_f32 v{a+1}, v{R+4}, 0""")
    rr = []
    for u in range(2):
        for gq in range(4):
            rr.append(f"ds_read_b128 {vr(vR+16*u+4*gq,4)}, v7 offset:{128*u+32*gq}")
    per = {n: [] for n in range(28)}
    distribute(per, 0, 4, atoms(misc_text() + setup1, 3)); per[5] = cs_pub(2, 136, 188) + per[5]
    distribute(per, 6, 17, atoms(setup2))
    G0 = opt('kgstep', 13)
    per[G0] += gl
    distribute(per, 19, 23, aug)
    distribute(per, 24, 25, rr)
    distribute(per, 26, 27, atoms(wa_text(), 3))
    main_loop('KV', D, per, kAX2, [p2_dma(0), p2_dma(1)])
    for t in range(4): e(f"v_mfma_f32_32x32x16_bf16 {vr(vACC+16*t,16)}, {vr(vXA+4*(t>>1),4)}, {vr(vWAu+4*(t&1),4)}, {vr(vACC+16*t,16)}")
    stamp(2); stamp(9, chunk=True)
    vT = vXB; vPK = 48; vPVv = 56; vKV = 160
    e(f"s_mov_b32 s{sMK}, 0x3f317218\ns_mov_b32 s{sMK+1}, 0x3f317218")
    k.wait(vm=D[8])
    for u in range(5):
        for x, _ in wreads(u, vWP + 8 * u): e(x)
    def w2tail(cond):
        L, Lh = k.newlabel('Lkt'), k.newlabel('Lkt'); st_ = k.state()
        e(f"s_cmp_{cond}_u32 s{sHI}, 0\ns_cbranch_scc1 {L}")
        e(f"s_cmp_eq_u32 s{sGSEL}, 7\ns_cbranch_scc1 {Lh}")
        for g in p2_dma(2): e(g)
        e("s_waitcnt lgkmcnt(0)")
        for g in [g for u in range(9, 14) for g in unit_dma(u)]: e(g)
        e(f"s_branch {L}")
        k.label(Lh)
        e(f"s_mov_b32 m0, s{sM0X}\ns_nop 0\nbuffer_load_dwordx4 v68, s[{rMISC}:{rMISC+3}], 0 offen lds")
        e(f"s_add_u32 m0, s{sM0X}, 1024\ns_nop 0\nbuffer_load_dwordx4 v69, s[{rMISC}:{rMISC+3}], 0 offen lds")
        k.label(L); k.set_state(st_)
    w2tail('eq')
    e("s_nop 7")
    for u in range(2):
        ak, av = vACC + 32 * u, vACC + 32 * u + 16
        for h in range(2):
            a_ = ak + 8 * h; t_ = vT + 8 * h; r_ = vR + 16 * u + 8 * h
            for p in range(4): e(f"v_pk_mul_f32 {vr(a_+2*p,2)}, {vr(a_+2*p,2)}, {vr(r_+2*p,2)}")
            for p in range(8): e(f"v_exp_f32 v{t_+p}, v{a_+p} clamp")
            for p in range(8): e(f"v_max_f32 v{a_+p}, 0, v{a_+p}")
            for p in range(4): e(f"v_pk_add_f32 {vr(t_+2*p,2)}, {vr(t_+2*p,2)}, {sr(sEPS,2)}")
            for p in range(4): e(f"v_pk_fma_f32 {vr(t_+2*p,2)}, {vr(a_+2*p,2)}, {sr(sMK,2)}, {vr(t_+2*p,2)}")
            for p in range(4): e(f"v_cvt_pk_bf16_f32 v{vPK+4*h+p}, v{t_+2*p}, v{t_+2*p+1}")
        for p in range(8): e(f"v_pk_mul_f32 {vr(av+2*p,2)}, {vr(av+2*p,2)}, {vr(vR+16*u+2*p,2)}")
        for p in range(8): e(f"v_cvt_pk_bf16_f32 v{vPVv+p}, v{av+2*p}, v{av+2*p+1}")
        for p in range(8): e(f"v_cndmask_b32 v{vPVv+p}, v{vPVv+p}, v12, s[{sMKM}:{sMKM+1}]")
        for h in range(2):
            cin = '0' if (u == 0 and h == 0) else vr(vKV, 16)
            e(f"v_mfma_f32_32x32x16_bf16 {vr(vKV,16)}, {vr(vPVv+4*h,4)}, {vr(vPK+4*h,4)}, {cin}")
    L1, L2 = k.newlabel('Lc'), k.newlabel('Lc')
    e(f"s_cmp_lg_u32 s{sHI}, 0\ns_cbranch_scc1 {L1}")
    for gq in range(4): e(f"ds_write_b128 v26, {vr(vKV+4*gq,4)} offset:{1024*gq}")
    e("s_waitcnt lgkmcnt(0)")
    k.label(L1)
    if opt('ktail', 0): w2tail('lg')
    e("s_barrier")
    st = k.state()
    e(f"s_cmp_eq_u32 s{sHI}, 0\ns_cbranch_scc1 {L2}")
    tk = [e(f"ds_read_b128 {vr(vT+4*gq,4)}, v26 offset:{1024*gq}") for gq in range(4)]
    e("s_nop 3")
    tb = [sTAG, sPSTEP0, sPSTEP0 + 1, sPSTEP0 + 2]
    for gq in range(4):
        k.wait(lg=tk[gq])
        for p in range(2): e(f"v_pk_add_f32 {vr(vKV+4*gq+2*p,2)}, {vr(vKV+4*gq+2*p,2)}, {vr(vT+4*gq+2*p,2)}")
        for d in range(4): e(f"v_bfi_b32 v{vKV+4*gq+d}, v27, s{tb[d]}, v{vKV+4*gq+d}")
        e(f"buffer_store_dwordx4 {vr(vKV+4*gq,4)}, v{vL16}, {WS}, s{sHQO} offen offset:{1024*gq} sc1")
    k.label(L2)
    k.set_state(st)
    e("s_barrier")
    if not opt('ktail', 0): w2tail('lg')
    stamp(3); stamp(12, 4)

def reducer():
    hd = sRHD
    WOB = 0; AF = SLOT + 16384
    vWF = 16; vP = 72; vXc = 56; vS = 60
    L1 = k.newlabel('Lr')
    e(f"""s_lshr_b32 s{hd}, s{sTB}, 1
s_lshl_b32 s{sT0}, s{hd}, 16
s_lshl_b32 s{sT1}, s{sLO}, 10
s_add_u32 s{sT0}, s{sT0}, s{sT1}
s_add_u32 s{sT0}, s{sT0}, {KVP}
v_add_u32 v12, s{sT0}, v{vL16}
s_lshl_b32 s{sT1}, s{sW}, 11""")
    tb = [sTAG, sPSTEP0, sPSTEP0 + 1, sPSTEP0 + 2]
    st = k.state()
    e(f"s_cmp_ge_u32 s{sW}, 4\ns_cbranch_scc1 Lr_a")
    ck = Checked()
    toks = []
    for rb in range(16):
        toks.append(ck.load(f"s_mov_b32 s{sT0}, {rb*4096}\nbuffer_load_dwordx4 {vr(vP+4*rb,4)}, v12, {WS}, s{sT0} offen sc1"))
    k.label('Lr_a')
    e(f"""v_lshrrev_b32 v6, 5, v0
v_lshlrev_b32 v6, 2, v6
v_bfe_u32 v7, v0, 2, 2
v_add_u32 v6, v6, v7
v_lshlrev_b32 v6, 6, v6
v_bfe_u32 v7, v0, 4, 1
v_lshl_add_u32 v6, v7, 5, v6
v_and_b32 v7, 3, v0
v_lshl_add_u32 v6, v7, 3, v6
s_add_u32 s{sT1}, s{sT1}, {WOB}
v_add_u32 v14, s{sT1}, v6
s_mov_b32 s{sMKM}, 0
s_cmp_eq_u32 s{sW}, 3
s_cselect_b32 s{sMKM+1}, -1, 0
s_lshl_b32 s{sFLO}, s{sRCT}, 11
s_lshl_b32 s{sT1}, s{hd}, 7
s_add_u32 s{sFLO}, s{sFLO}, s{sT1}
s_add_u32 s{sFLO}, s{sFLO}, {FLM + (4 if 'flag1' in DBG else 0)}
s_mul_i32 s{sRMB}, s{sRCT}, {28*1024}
s_mul_i32 s{sT3}, s{hd}, {7*256}
s_add_u32 s{sRMB}, s{sRMB}, s{sT3}
s_add_u32 s{sRMB}, s{sRMB}, {MB}
s_cmp_eq_u32 s{sW}, 7
s_cselect_b32 s{sFLO}, {DUMP}, s{sFLO}
s_cselect_b32 s{sRMB}, {DUMP}, s{sRMB}
v_add_u32 v15, {AF}, v{vL16}
v_lshlrev_b32 v8, 3, v0
v_mov_b32 v6, {DUMP}
v_cndmask_b32 v9, v8, v6, {HALF}
s_add_u32 s{sT1}, s{sT1}, {ZG}
v_and_b32 v4, 31, v0
v_lshl_add_u32 v4, v4, 2, s{sT1}
s_cmp_eq_u32 s{sRCT}, 3
s_mov_b32 vcc_lo, 0
s_cselect_b32 vcc_hi, 0x55555555, 0
v_cndmask_b32 v10, v6, v4, vcc
s_lshr_b32 s{sT3}, s{sW}, 1
s_lshl_b32 s{sT3}, s{sT3}, 10
s_and_b32 s{sT1}, s{sW}, 1
s_lshl_b32 s{sT1}, s{sT1}, 3
s_add_u32 s{sT3}, s{sT3}, s{sT1}
v_add_u32 v5, s{sT3}, v15
v_mov_b32 v7, s{sTAG}""")
    st_b = k.state()
    e(f"s_cmp_lt_u32 s{sW}, 4\ns_cbranch_scc1 Lr_b\ns_waitcnt vmcnt(4)")
    k.label('Lr_b'); k.set_state(st_b)
    e("s_waitcnt vmcnt(16)")
    for s in range(2):
        for rd in range(2): e(f"ds_read_b64_tr_b16 {vr(vWF+4*s+2*rd,2)}, v14 offset:{s*1024+rd*512}")
    e(f"s_cmp_ge_u32 s{sW}, 4\ns_cbranch_scc1 Lr_join")
    for gidx in range(4):
        c = []
        b0 = vP + 16 * gidx
        for i in range(16): c.append(f"v_xor_b32 v{b0+i}, s{[sSO2, sPSTEP0, sPSTEP0 + 1, sPSTEP0 + 2][i & 3]}, v{b0+i}")
        c += [f"v_or3_b32 v{vXc}, v{b0}, v{b0+1}, v{b0+2}", f"v_or3_b32 v{vXc+1}, v{b0+3}, v{b0+4}, v{b0+5}"]
        for i in range(6, 16, 2): c.append(f"v_or3_b32 v{vXc+((i>>1)&1)}, v{vXc+((i>>1)&1)}, v{b0+i}, v{b0+i+1}")
        c += [f"v_or_b32 v{vXc}, v{vXc}, v{vXc+1}", f"v_and_b32 v{vXc}, 0xff, v{vXc}", f"v_cmp_ne_u32 vcc, 0, v{vXc}", "s_cmp_lg_u64 vcc, 0"]
        ck.check(toks[4 * gidx], toks[4 * gidx + 3], "\n".join(c), sleep=opt('rsleep', 2))
        b = vP + 16 * gidx
        for p in range(2):
            e(f"v_pk_add_f32 {vr(b+2*p,2)}, {vr(b+2*p,2)}, {vr(b+4+2*p,2)}\nv_pk_add_f32 {vr(b+8+2*p,2)}, {vr(b+8+2*p,2)}, {vr(b+12+2*p,2)}")
        for p in range(2):
            if gidx == 0: e(f"v_pk_add_f32 {vr(vS+2*p,2)}, {vr(b+2*p,2)}, {vr(b+8+2*p,2)}")
            else: e(f"v_pk_add_f32 {vr(b+2*p,2)}, {vr(b+2*p,2)}, {vr(b+8+2*p,2)}")
        if gidx:
            for p in range(2): e(f"v_pk_add_f32 {vr(vS+2*p,2)}, {vr(vS+2*p,2)}, {vr(b+2*p,2)}")
    stamp(4)
    e(f"""v_pk_mul_f32 {vr(vXc,2)}, {vr(vS,2)}, {sr(sMK,2)}
v_pk_mul_f32 {vr(vXc+2,2)}, {vr(vS+2,2)}, {sr(sMK,2)}
v_mov_b32_dpp v6, v{vS} quad_perm:[1,1,3,3] row_mask:0xf bank_mask:0xf
v_cvt_pk_bf16_f32 v12, v{vXc}, v{vXc+1}
v_cvt_pk_bf16_f32 v13, v{vXc+2}, v{vXc+3}
v_cndmask_b32 v12, v12, 0, s[{sMKM}:{sMKM+1}]
v_cndmask_b32 v13, v13, 0, s[{sMKM}:{sMKM+1}]
ds_write_b64 v5, v[12:13]
v_cvt_pk_bf16_f32 v6, v{vS}, v6
buffer_store_dwordx2 v[6:7], v10, {WS}, 0 offen sc1""")
    k.label('Lr_join')
    e(f"s_waitcnt lgkmcnt(0)\ns_barrier")
    vAF = 32; vD = 96
    e(f"ds_read_b128 {vr(vAF,4)}, v15\nds_read_b128 {vr(vAF+4,4)}, v15 offset:1024")
    e("s_waitcnt lgkmcnt(1)")
    e(f"v_mfma_f32_32x32x16_bf16 {vr(vD,16)}, {vr(vAF,4)}, {vr(vWF,4)}, 0")
    e("s_waitcnt lgkmcnt(0)")
    e(f"v_mfma_f32_32x32x16_bf16 {vr(vD,16)}, {vr(vAF+4,4)}, {vr(vWF+4,4)}, {vr(vD,16)}")
    for gq in range(4):
        for p in range(2): e(f"v_cvt_pk_bf16_f32 v{112+2*gq+p}, v{vD+4*gq+2*p}, v{vD+4*gq+2*p+1}")
        e(f"buffer_store_dwordx2 {vr(112+2*gq,2)}, v{9 if gq == 3 else 8}, {WS}, s{sRMB} offen offset:{512*gq} sc1")
    stamp(5)
    e(f"s_waitcnt vmcnt(0)\nbuffer_store_dword v{vTG}, v{vZ0}, {WS}, s{sFLO} offen sc1")
    stamp(6)

def phase2():
    vHO = 4; vXR = 12; vWB2 = 16
    vA2 = 32; vH = 96
    vB2 = 248; vOUT = 3
    PRI2 = opt('pri2', 0)
    PSCHED = {1: {0: 2, 3: 1, 6: 0}, 2: {0: 2, 4: 1, 8: 0}, 3: {2: 2, 5: 1, 8: 0}, 4: {0: 2, 2: 1, 4: 0}}.get(PRI2, {})
    if opt('prio', 1) and not PRI2:
        e(f"s_cmp_lg_u32 s{sHI}, 0\ns_cbranch_scc1 Lprio\ns_setprio 0")
        k.label('Lprio')
    e(f"""s_mul_i32 s{sT1}, s{sTB}, {2*TSTR}
s_add_u32 s{sT1}, s{sT1}, {HQ}
s_mul_i32 s{sT0}, s{sHI}, {TSTR}
s_add_u32 s{sT3}, s{sT1}, s{sT0}
v_add_u32 v{vHO}, s{sT3}, v{vL16}
s_sub_u32 s{sT1}, s{sT1}, s{sT0}
s_add_u32 s{sT1}, s{sT1}, {TSTR}
v_add_u32 v{vHO+1}, s{sT1}, v{vL16}""")
    htok = {}
    def hl(j):
        o = []
        for s in range(2):
            for tt in range(2):
                def f(j=j, s=s, tt=tt): htok[(2*j+s, tt)] = e(f"buffer_load_dwordx4 {vr(vH+16*j+8*s+4*tt,4)}, v{vHO+tt}, {WS}, s{sHT+j} offen offset:{1024*s} sc1")
                o.append(f)
        return o
    PS = opt('psleep', 3)
    t0, t1 = vXR, vXR + 1
    e(srd_s(rMISC, pB2, 896))
    e(f"""v_lshrrev_b32 v{t0}, 3, v0
s_lshl_b32 s{sT0}, s{sTB}, 6
s_lshl_b32 s{sT1}, s{sW}, 3
s_add_u32 s{sT0}, s{sT0}, s{sT1}
v_add_u32 v{t0}, s{sT0}, v{t0}
v_mul_u32_u24 v{t0}, 896, v{t0}
v_and_b32 v{t1}, 7, v0
v_lshlrev_b32 v{t1}, 4, v{t1}
s_lshl_b32 s{sT0}, s{sCT}, 7
v_add_u32 v{t1}, s{sT0}, v{t1}
v_add_u32 v{t0}, v{t0}, v{t1}""")
    k.nt += 1; own = k.nt; k.vm.append(own)
    for j in range(7): e(f"s_lshl_b32 s{sHT+j}, s{sTAB+j}, 11")
    FF = opt('flagfirst', 1)
    def ownflag():
        k.wait(vm=own)
        e(f"buffer_store_dword v{vTG}, v{vZ0}, {WS}, s{sFLO} offen sc1")
        stamp(8); stamp(13, 4)
    if FF: ownflag()
    if 'delay' in DBG:
        e('s_barrier')
        for _ in range(2): e('s_sleep 127')
        e('s_barrier')
    if 0 in PSCHED: e(f"s_setprio {PSCHED[0]}")
    verify(POLL, poll_test(3, 3), PS)
    stamp(9); stamp(15, 4)
    LA = 3
    for j in range(2):
        for f in hl(j): f()
    if not FF: ownflag()
    PACE = opt('pace', 0)
    if not PACE:
        for f in hl(2): f()
    st_ = k.state()
    e(f"s_cmp_lg_u32 s{sC0}, 0\ns_cbranch_scc1 Lnolate2")
    for g in p2_dma(2): e(g)
    k.label('Lnolate2')
    k.set_state(st_)
    e(f"""s_mul_i32 s{sSO0}, s{sLO}, {7*1024}
s_add_u32 s{sSO1}, s{sSO0}, {112*1024}
s_add_u32 s{sSO2}, s{sSO1}, 4096
v_mov_b32 v{vOUT}, v{t0}
v_lshrrev_b32 v2, 5, v0
v_lshlrev_b32 v2, 4, v2""")
    vZ = vWP
    vZA = vWP + 28; vZD = vWP + 38
    PITCH = 272
    w1, w0, ro, rs, m0_, m1_, x0 = [vWP + 31 + i for i in range(7)]
    x1 = vZ + 3
    addr = f"""v_mul_u32_u24 v{vZ}, 37, v0
v_lshrrev_b32 v{vZ}, 9, v{vZ}
v_lshlrev_b32 v{vZ+1}, 3, v0
v_lshl_add_u32 v{vZ+1}, v{vZ}, 4, v{vZ+1}
s_lshl_b32 s{sT3}, s{sLO}, 9
s_add_u32 s{sPD}, s{sT3}, {ZG}
v_add_u32 v{vZ+1}, s{sPD}, v{vZ+1}
s_lshl_b32 s{sPD}, s{sCT}, 12
s_add_u32 s{sPD}, s{sPD}, s{sT3}
s_lshl_b32 s{sT3}, s{sHI}, 11
s_add_u32 s{sPD}, s{sPD}, s{sT3}
s_add_u32 s{sPD}, s{sPD}, {FLM}
v_and_b32 v{vZ+2}, 3, v0
v_lshl_add_u32 v{vZ+2}, v{vZ+2}, 7, s{sPD}
v_cmp_gt_u32 vcc, 56, v0
v_cndmask_b32 v{vZA}, v{vZ+2}, v{vZ+1}, vcc
v_lshrrev_b32 v{vZ}, 3, v0
v_lshlrev_b32 v{vZ}, 5, v{vZ}
v_bfe_u32 v{vZ+1}, v0, 1, 1
v_lshl_add_u32 v{vZ}, v{vZ+1}, 4, v{vZ}
v_bfe_u32 v{vZ+1}, v0, 2, 1
v_lshl_add_u32 v{vZ}, v{vZ+1}, 3, v{vZ}
v_and_b32 v{vZ+1}, 1, v0
v_lshl_add_u32 v{vZ}, v{vZ+1}, 2, v{vZ}
s_lshl_b32 s{sPD}, s{sW}, 8
s_add_u32 s{sPD}, s{sPD}, {SCR2 + 2048}
v_add_u32 v{vZA+1}, s{sPD}, v{vZ}
v_add_u32 v{vZA+2}, s{sPD}, v2
s_mul_i32 s{sT4}, s{sW}, {7*1024}
s_mul_i32 s{sT0}, s{sCT}, {56*1024}
s_add_u32 s{sT0}, s{sT0}, s{sT4}
s_add_u32 s{sT0}, s{sT0}, {MB}
s_lshl_b32 s{sT4}, s{sW}, 10
s_add_u32 s{sT4}, s{sT4}, {SCR}
v_and_b32 v{x0}, 15, v0
v_mul_u32_u24 v{w1}, {PITCH}, v{x0}
v_bfe_u32 v{x0}, v0, 4, 1
v_mul_u32_u24 v{x0}, {SLOT}, v{x0}
v_add3_u32 v{w1}, v{w1}, v{x0}, v2
s_add_u32 s{sPD}, s{sM0P}, {SLOT}
v_add_u32 v{w1}, s{sPD}, v{w1}
v_lshrrev_b32 v{x0}, 3, v0
s_and_b32 s{sPD}, s{sLO}, 1
v_lshl_add_u32 v{x0}, s{sPD}, 3, v{x0}
v_mul_u32_u24 v{ro}, {PITCH}, v{x0}
v_and_b32 v{x1}, 7, v0
v_lshl_add_u32 v{ro}, v{x1}, 5, v{ro}
s_lshr_b32 s{sPD}, s{sLO}, 1
s_add_u32 s{sPD}, s{sPD}, 1
s_mul_i32 s{sPD}, s{sPD}, {SLOT}
s_xor_b32 s{sT3}, s{sHI}, 1
s_mul_i32 s{sT3}, s{sT3}, {4*6144}
s_add_u32 s{sPD}, s{sPD}, s{sT3}
v_add_u32 v{ro}, s{sPD}, v{ro}
s_lshl_b32 s{sPD}, s{sW}, 13
s_add_u32 s{sT3}, s{sPD}, {SCR - 6*8192}
s_cmp_ge_u32 s{sW}, 6
s_cselect_b32 s{sPD}, s{sT3}, s{sPD}
v_and_b32 v{x0}, 31, v0
v_lshl_add_u32 v{w0}, v{x0}, 8, s{sPD}
v_and_b32 v{x0}, 7, v0
v_lshlrev_b32 v{x0}, 4, v{x0}
v_xor_b32 v{x0}, v{x0}, v2
v_add_u32 v{w0}, v{w0}, v{x0}
v_lshrrev_b32 v{x0}, 3, v0
v_lshlrev_b32 v{x1}, 1, v{x1}
v_xor_b32 v{x1}, v{x1}, v{x0}
v_lshlrev_b32 v{x1}, 4, v{x1}
v_lshl_add_u32 v{rs}, v{x0}, 8, v{x1}
s_lshl_b32 s{sPD}, s{sLO}, 11
s_lshl_b32 s{sT3}, s{sHI}, 15
s_add_u32 s{sPD}, s{sPD}, s{sT3}
v_add_u32 v{rs}, s{sPD}, v{rs}
s_mul_i32 s{sPD}, s{sLO}, 6144
v_lshlrev_b32 v{x0}, 3, v0
v_add_u32 v{m0_}, s{sPD}, v{x0}
s_lshl_b32 s{sPD}, s{sLO}, 10
s_add_u32 s{sPD}, s{sPD}, {SCR}
v_add_u32 v{m1_}, s{sPD}, v{x0}
""" + srd_s(rMISC, pOUT, 2048 * 896)
    per = {u: [] for u in range(14)}
    Z = {}
    vQ = vH
    ZL = f"buffer_load_dwordx2 {vr(vZD,2)}, v{vZA}, {WS}, 0 offen sc1"
    ql = [f"buffer_load_dwordx4 {vr(vQ+4*q,4)}, v{vHO}, {WS}, s{sSO1 if q < 4 else sSO2} offen offset:{1024*(q&3)} sc1" for q in range(7)]
    XB = [f"buffer_load_dwordx4 {vr(vB2,4)}, v{t1}, s[{rMISC}:{rMISC+3}], 0 offen", f"buffer_load_dwordx4 {vr(vXR,4)}, v{vOUT}, s[{rX}:{rX+3}], 0 offen"]
    if PACE:
        seq = hl(2) + hl(3) + hl(4) + hl(5) + hl(6)
        for i in range(10): per[i] += seq[2 * i: 2 * i + 2]
        per[2] = [lambda: Z.__setitem__('p', e(POLL2))] + per[2]
        q0 = opt('pq', 6)
        for i, x in enumerate(ql): per[q0 + i * 4 // 7] += [x]
        per[10] = XB + per[10]
    else:
        per[0] += hl(3)
        per[1] += [lambda: Z.__setitem__('p', e(POLL2)), f"buffer_load_dwordx4 {vr(vB2,4)}, v{t1}, s[{rMISC}:{rMISC+3}], 0 offen", f"buffer_load_dwordx4 {vr(vXR,4)}, v{vOUT}, s[{rX}:{rX+3}], 0 offen"]
        if 'stream' in DBG: per[1] += hl(4); per[2] += hl(5); per[3] += hl(6); per[4] += ql[:4]; per[5] += ql[4:]
        elif opt('qfirst', 1): per[4] += hl(4); per[5] += ql[:4]; per[6] += ql[4:] + hl(5)[:1]; per[7] += hl(5)[1:]; per[8] += hl(6)
        else: per[4] += hl(4); per[5] += hl(5); per[6] += hl(6); per[7] += ql[:4]; per[8] += ql[4:]
    distribute(per, 5, 11, atoms(addr, 3))
    per[opt('zu', 10)] += [ZL]
    tok = {}
    for u in range(14):
        j, s = divmod(u, 2); base = vH + 16 * j
        cur = tok; tok = {}
        stamp(1 + u, p2=True)
        if u in PSCHED and u: e(f"s_setprio {PSCHED[u]}")
        rd = wreads(u + 1, vWB2 + 8 * ((u + 1) & 1)) if 5 <= u + 1 < 14 else []
        wsrc = vWP + 8 * u if u < 5 else vWB2 + 8 * (u & 1)
        mf = []
        for tt in ((1, 0) if u == 13 else (0, 1)):
            for c in range(2):
                acc = vr(vA2 + 32 * tt + 16 * c, 16)
                mf.append(('m', (f"v_mfma_f32_32x32x16_bf16 {acc}, {vr(wsrc+4*c,4)}, {vr(base+8*s+4*tt,4)}, {'0' if u == 0 else acc}", c, tt)))
        if u == 4 and 'stream' in DBG: k.wait(vm=Z['p'])
        elif u == 4:
            k.wait(vm=Z['p'])
            if 'nopoll2' not in DBG: verify(POLL2, poll_test(0xf7, 7), PS)
            stamp(10)
        for kind_, x in spread(mf, [('r', x) for x in rd] + [('f', x) for x in per[u]]):
            if kind_ == 'm':
                k.wait(vm=htok[(u, x[2])], lg=cur.get(x[1])); e(x[0])
            elif kind_ == 'r': tok[x[1]] = e(x[0])
            else: emit_item(x)
    stamp(4); stamp(14, 4); stamp(15, p2=True)
    vF = vWB2; vG = vWB2 + 8
    if PACE: e('s_waitcnt vmcnt(0)')
    for d in range(4):
        e(f"""v_lshlrev_b32 v{vF+2*d}, 16, v{vXR+d}
v_and_b32 v{vF+2*d+1}, 0xffff0000, v{vXR+d}
v_lshlrev_b32 v{vG+2*d}, 16, v{vB2+d}
v_and_b32 v{vG+2*d+1}, 0xffff0000, v{vB2+d}""")
    def mdma():
        for q in range(7):
            m = f"s_add_u32 m0, s{sM0P}, {1024*q}" if q < 6 else f"s_mov_b32 m0, s{sT4}"
            e(f"{m}\ns_add_u32 s{sT1}, s{sT0}, {1024*q}\nbuffer_load_dwordx4 v{vL16}, {WS}, s{sT1} offen sc1 lds")
    ZM = 0 if 'nozm' in DBG else 0xffffffff
    ztest = lambda lo, hi: ztest_(lo & ZM, hi & ZM)
    ztest_ = lambda lo, hi: f"v_cmp_ne_u32 vcc, s{sTAG}, v{vZD+1}\ns_mov_b32 s{sMK}, {lo:#x}\ns_mov_b32 s{sMK+1}, {hi:#x}\ns_and_b64 vcc, vcc, s[{sMK}:{sMK+1}]"
    e("s_waitcnt vmcnt(0)")
    e(f"s_mov_b32 s{sC0}, 0"); e(ztest(0, 0xff000000)); e("s_cbranch_scc1 Lnom")
    e(f"s_mov_b32 s{sC0}, 1"); mdma()
    k.label('Lnom')
    for c in range(2):
        for gq in range(4): e(f"ds_write_b128 v{w1}, {vr(vA2+32+16*c+4*gq,4)} offset:{c*128+gq*32}")
    for d in range(8): e(f"v_add_f32 v{vF+d}, v{vF+d}, v{vG+d}")
    tgt = {}
    for hi in range(2):
        for r in range(4): tgt[r + 4 * hi] = r
        tgt[8 + 4 * hi] = hi; tgt[9 + 4 * hi] = 2 + hi
    def rowmask(h): return sum(1 << i for i, t in tgt.items() if t == h)
    slot = {0: 0, 1: 0, 2: 0, 3: 4, 4: 1, 5: 1, 6: 1, 7: 2, 8: 2, 9: 2, 10: 5, 11: 3, 12: 3, 13: 3}
    vU = vG; vDN = vH + 32; R = 4
    def den_scale():
        e(f"ds_write_b32 v{vZA+1}, v{vZD}")
        for s in range(7): e(f"ds_read_b128 {vr(vZ+4*s,4)}, v{vZA+2} offset:{32*s}")
        e("s_waitcnt lgkmcnt(0)")
        prev = None
        for s in range(7):
            for q in (2 * s, 2 * s + 1):
                mk = (rowmask(2 * q // 7), rowmask((2 * q + 1) // 7))
                if mk != prev: e(f"s_mov_b32 s{sMK}, {mk[0]:#x}\ns_mov_b32 s{sMK+1}, {mk[1]:#x}"); prev = mk
                for d in range(2): e(f"v_cndmask_b32 v{vZ+2*q+d}, 0, v{vZ+2*q+d}, s[{sMK}:{sMK+1}]")
            if s: e(f"v_mfma_f32_32x32x16_bf16 {vr(vDN,16)}, {vr(vZ+4*s-4,4)}, {vr(vQ+4*s-4,4)}, {'0' if s == 1 else vr(vDN,16)}")
        e(f"v_mfma_f32_32x32x16_bf16 {vr(vDN,16)}, {vr(vZ+24,4)}, {vr(vQ+24,4)}, {vr(vDN,16)}")
        UP = vH + 48
        for x in range(28): e(f"v_lshlrev_b32 v{UP+2*x}, 16, v{vQ+x}\nv_and_b32 v{UP+2*x+1}, 0xffff0000, v{vQ+x}")
        for i in range(6): e(f"v_add_f32 v{R+2*i}, s{sEPS}, v{vDN+i}")
        for i in range(6): e(f"v_rcp_f32 v{R+2*i}, v{R+2*i}")
        for x in range(28): e(f"v_pk_mul_f32 {vr(UP+2*x,2)}, {vr(UP+2*x,2)}, {vr(R+2*slot[x>>1],2)} op_sel_hi:[1,0]")
        for x in range(28): e(f"v_cvt_pk_bf16_f32 v{vQ+x}, v{UP+2*x}, v{UP+2*x+1}")
    verify(ZL, ztest(0xffffffff, 0x00ffffff), opt('zsleep', 3))
    stamp(11)
    den_scale()
    e(f"s_cmp_lg_u32 s{sC0}, 0\ns_cbranch_scc1 Lhavem")
    e(ZL); e("s_waitcnt vmcnt(0)")
    verify(ZL, ztest(0, 0xff000000), opt('zsleep', 3))
    mdma()
    k.label('Lhavem')
    stamp(5)
    for i in range(1, 4): e(f"v_xor_b32 v{vZ+i}, {32*i}, v{w0}")
    e(f"v_mov_b32 v{vZ}, v{w0}\nv_xor_b32 v{vZ+4}, 16, v{rs}\ns_mul_i32 s{sT1}, s{sHI}, {SCR - 6*8192}\nv_add_u32 v{vZ+5}, s{sT1}, v{rs}\nv_add_u32 v{vZ+6}, s{sT1}, v{vZ+4}")
    e("s_waitcnt vmcnt(0)\ns_barrier")
    vM = vH + 32
    mt = {}
    for s in range(7):
        for c in range(2):
            pass
    def mread(i):
        c, s = divmod(i, 7)
        for jj in range(2):
            if s < 6: mt[i] = e(f"ds_read_b64 {vr(vM+4*i+2*jj,2)}, v{m0_} offset:{24576*c+1024*s+512*jj}")
            else: mt[i] = e(f"ds_read_b64 {vr(vM+4*i+2*jj,2)}, v{m1_} offset:{4096*c+512*jj}")
    for i in range(6): mread(i)
    ot = []
    for i in range(14):
        c, s = divmod(i, 7)
        k.wait(lg=mt[i])
        acc = vr(vA2 + 16 * c, 16)
        e(f"v_mfma_f32_32x32x16_bf16 {acc}, {vr(vM+4*i,4)}, {vr(vQ+4*s,4)}, {acc}")
        if i < 4: mread(6 + 2 * i); mread(7 + 2 * i)
        if i == 4:
            for q in range(4):
                for hh in range(2): ot.append(e(f"ds_read_b128 {vr(vA2+32+8*q+4*hh,4)}, v{ro} offset:{q*6144+16*hh}"))
        if i == 6:
            k.wait(lg=mt[13]); e("s_barrier")
        if i == 10:
            for gq in range(4): e(f"ds_write_b128 v{vZ+gq}, {vr(vA2+4*gq,4)}")
        if 7 <= i < 11:
            q = i - 7
            k.wait(lg=ot[2 * q + 1])
            for d in range(8): e(f"v_add_f32 v{vF+d}, v{vF+d}, v{vA2+32+8*q+d}")
    stamp(6)
    for gq in range(4): e(f"ds_write_b128 v{vZ+gq}, {vr(vA2+16+4*gq,4)} offset:128")
    e("s_waitcnt lgkmcnt(0)\ns_barrier")
    rt = []
    for q in range(4):
        for hh in range(2):
            a_ = [[rs, vZ + 4], [vZ + 5, vZ + 6]][q >> 1][hh]
            rt.append(e(f"ds_read_b128 {vr(vH+8*q+4*hh,4)}, v{a_} offset:{q*8192}"))
    for q in range(4):
        k.wait(lg=rt[2 * q + 1])
        for d in range(4): e(f"v_pk_add_f32 {vr(vF+2*d,2)}, {vr(vF+2*d,2)}, {vr(vH+8*q+2*d,2)}")
    for d in range(4): e(f"v_cvt_pk_bf16_f32 v{vG+d}, v{vF+2*d}, v{vF+2*d+1}")
    e(f"buffer_store_dwordx4 {vr(vG,4)}, v{vOUT}, s[{rMISC}:{rMISC+3}], 0 offen")
    stamp(7)
    e(f"s_or_b32 s{sT0}, s2, s{sW}\ns_cmp_lg_u32 s{sT0}, 0\ns_cbranch_scc1 Lend")
    e(f"v_mov_b32 v4, s{sTAG}\nv_mov_b32 v5, {EPOCH}\ns_mov_b64 exec, 1\nbuffer_store_dword v4, v5, {WS}, 0 offen")

kn = NAME + '_kernel'
hdr = open(f'cdna_kernels/{NAME}.s.ref').read().split('; Override launch')[0]
head = hdr + f"; @launch grid=(256,1,1) block=(512,1,1) lds={LDS_BYTES}\n"
k.raw('.amdgcn_target "amdgcn-amd-amdhsa--gfx950"\n.text')
k.raw(f".globl {kn}\n.p2align 8\n.type {kn},@function\n{kn}:")
prologue()
st_pro = k.state()
kvgen = phase1_KV()
next(kvgen)
st_kv = k.state()
k.label('Lm'); k.set_state(st_pro)
phase1_M()
k.label('Lp2'); k.set_state(([], []))
phase2()
k.label('Lend'); e("s_endpgm")
k.set_state(st_kv)
for _ in kvgen: pass
e(f"s_cmp_eq_u32 s{sGSEL}, 7\ns_cbranch_scc1 Lred")
e(POLL)
e(f"s_waitcnt lgkmcnt(0)\ns_mov_b32 s{sC0}, 1\ns_branch Lp2")
k.label('Lred')
k.set_state(([], []))
reducer()
e("s_endpgm")
i = 0
while i < len(outline): outline[i](); i += 1
k.label('Lcode_end')
e("s_endpgm")
body, nnop = k.render()
kd = f""".amdhsa_kernel {kn}
  .amdhsa_next_free_vgpr 256
  .amdhsa_next_free_sgpr 102
  .amdhsa_accum_offset 256
  .amdhsa_group_segment_fixed_size 0
  .amdhsa_kernarg_size 88
  .amdhsa_user_sgpr_count 2
  .amdhsa_user_sgpr_kernarg_segment_ptr 1
  .amdhsa_system_sgpr_workgroup_id_x 1
.end_amdhsa_kernel
"""
out = head + body + '.section .rodata,"a"\n.p2align 6\n' + kd
outp = [a for a in sys.argv[1:] if not a.startswith('--')]
open(outp[0] if outp else f'cdna_kernels/{NAME}.s', 'w').write(out)
print("nops inserted:", nnop, "lines:", out.count('\n'))
```

```python
import sys, math, struct
sys.path.insert(0, 'gen')
from dsl import *

NAME = "parallel_sum__linear_attn_block__mixer_channel_mlp__prompt"
STAMPS = '--stamps' in sys.argv
DBG = set(a[6:] for a in sys.argv if a.startswith('--dbg-'))
def opt(name, default):
    for a in sys.argv:
        if a.startswith(f'--{name}='): return int(a.split('=')[1])
    return default
def f32(x): return '0x%08x' % struct.unpack('<I', struct.pack('<f', x))[0]
def lines(s): return [l.strip() for l in s.strip().split('\n') if l.strip()]

EPOCH = 0
ZG = 0x1000
FLM = 0x2000
STATS = 0x10000
CSG = 0x18000
MB = 0x40000
KVP = 0x100000
HQ = 0x200000
FLH = 0xB00000
WS_USED = 0xC00000
DUMP = 0x7000000
STAMP_OFF = 0x8000000
SLOT = 49152
SCR = 3 * SLOT
SCR2 = SCR + 8192
LDS_BYTES = 163840
EPS = 1e-5
LOG2E = math.log2(math.e)
GC0 = -2.0 * math.sqrt(2.0 / math.pi) * LOG2E
GC1 = 0.044715
SPIN_MAX = 20000
TSTR = 140 * 1024 + opt('tpad', 0)

sW = 3
pX, pWQKV, pWO, pBX, pW1, pB1, pW2, pB2, pOUT, pDBG, pWS = 4, 6, 8, 10, 12, 14, 16, 18, 20, 22, 24
sHQO, sFLO = 10, 11
sRHD, sRMB = 22, 23
sPM, sQM = 22, 23
sXCD, sSUB, sGSEL, sRB, sCC = 26, 27, 28, 29, 30
sT0, sT1, sT2, sT3, sT4 = 31, 32, 33, 34, 35
rX, rW0, rW1, rW2, rWS, rW2G, rMISC = 36, 40, 44, 48, 52, 56, 60
sSOX, sSO0, sSO1, sSO2 = 64, 65, 66, 67
sPSTEP0 = 68
sM0X, sM0W = 71, 72
sLO, sHI = 73, 74
sC0 = 75
sMK = 76
sHALF = 78
sTAB = 80
sRCT = 87
sEPS = 88
sMKM = 90
sMG = 92
sPD = 93
sTAG = 94
sCT, sTB = 95, 96
sTILE0 = 97
sM0P = 98
sMEAN = 99
sSTAMP = 100
sHT = 40

k = K()
e = k.e
outline = []
WS = f"s[{rWS}:{rWS+3}]"
HALF = f"s[{sHALF}:{sHALF+1}]"
def srd_s(r, ptr, nbytes):
    return f"s_mov_b32 s{r}, s{ptr}\ns_and_b32 s{r+1}, s{ptr+1}, 0xffff\ns_mov_b32 s{r+2}, {nbytes}\ns_mov_b32 s{r+3}, 0x20000\n"

def stamp(idx, wave=0, chunk=False, p2=False):
    if 'pad' in DBG:
        if idx == opt('padx', -1) and not chunk and not p2 and wave == 0:
            e(f"s_memrealtime vcc\ns_waitcnt lgkmcnt(0)\ns_mov_b32 s100, vcc_lo")
        return
    if not STAMPS: return
    if 'span' in DBG and (idx not in (0, 7) or chunk or p2): return
    if 'p2' in DBG:
        if idx > 0 and not p2: return
        if p2: wave = opt('sw', 0)
    elif p2: return
    elif ('chunks' in DBG) != chunk and idx > 1: return
    L = k.newlabel('Lst')
    st = k.state()
    e(f"s_cmp_lg_u32 s{sW}, {wave}\ns_cbranch_scc1 {L}")
    e(f"s_memrealtime s[{sSTAMP}:{sSTAMP+1}]\ns_memtime vcc\ns_waitcnt lgkmcnt(0)")
    e(f"v_mov_b32 v254, s{sSTAMP}\nv_mov_b32 v255, s{sSTAMP+1}")
    e(f"s_lshl_b32 s{sSTAMP}, s2, 8\ns_add_u32 s{sSTAMP}, s{sSTAMP}, {STAMP_OFF + 8*idx}\nv_mov_b32 v253, s{sSTAMP}")
    e(f"global_store_dwordx2 v253, v[254:255], s[{pWS}:{pWS+1}]")
    e(f"s_nop 1\nv_mov_b32 v254, vcc_lo\nv_mov_b32 v255, vcc_hi")
    e(f"global_store_dwordx2 v253, v[254:255], s[{pWS}:{pWS+1}] offset:128")
    k.label(L)
    k.set_state(st)

def emit_item(x): return x() if callable(x) else e(x)

SCC_R = ('s_cselect', 's_cbranch_scc', 's_addc')
SCC_W = ('s_cmp', 's_add', 's_sub', 's_and', 's_or', 's_xor', 's_lshl', 's_lshr', 's_min', 's_max', 's_bfe')
def atoms(text, n=2):
    ls = lines(text); N = len(ls)
    live = [False] * (N + 1); scc = vcc = m0 = False
    for i in range(N - 1, -1, -1):
        ins = Ins(ls[i])
        if ls[i].startswith(SCC_W): scc = False
        if ls[i].startswith(SCC_R): scc = True
        if ('s', 106) in ins.w: vcc = False
        if ('s', 106) in ins.r: vcc = True
        if ('s', 124) in ins.w: m0 = False
        if ('s', 124) in ins.r: m0 = True
        live[i] = scc or vcc or m0
    out = []; cur = []
    for i, l in enumerate(ls):
        cur.append(l)
        if len(cur) >= n and not live[i + 1]: out.append("\n".join(cur)); cur = []
    if cur: out.append("\n".join(cur))
    return out

def distribute(per, first, last, items):
    ns = last - first + 1
    for q in range(ns): per[first + q] += items[len(items) * q // ns: len(items) * (q + 1) // ns]

class Checked:
    def __init__(self): self.log = []
    def load(self, text):
        t = e(text); self.log.append((text, t)); return t
    def check(self, first_tok, last_tok, chk, sleep=1):
        Lc, Ls, Lb = k.newlabel('Lck'), k.newlabel('Lsl'), k.newlabel('Lbk')
        e(f"s_movk_i32 s{sT2}, {SPIN_MAX}")
        k.label(Lc)
        assert last_tok in k.vm
        k.wait(vm=last_tok)
        e(chk); e(f"s_cbranch_scc1 {Ls}")
        k.label(Lb)
        i0 = [t for _, t in self.log].index(first_tok)
        redo = [x for x, _ in self.log[i0:]]
        assert all(t in [tt for _, tt in self.log[i0:]] for t in k.vm), "untracked younger vmem op"
        def slow():
            k.label(Ls)
            e(f"s_sub_u32 s{sT2}, s{sT2}, 1\ns_cbranch_scc1 {Lb}")
            if sleep: e(f"s_sleep {sleep}")
            for x in redo: e(x)
            e(f"s_branch {Lc}")
        outline.append(slow)

def verify(load, test, sleep):
    Lp, Ld, Lc = k.newlabel('Lvs'), k.newlabel('Lvd'), k.newlabel('Lvc')
    e(test); e(f"s_cbranch_scc1 {Lp}")
    k.label(Ld)
    def slow():
        k.label(Lp)
        e(f"s_movk_i32 s{sT2}, {SPIN_MAX}")
        k.label(Lc)
        e(load); e("s_waitcnt vmcnt(0)"); e(test)
        e(f"s_cbranch_scc0 {Ld}\ns_sub_u32 s{sT2}, s{sT2}, 1\ns_cbranch_scc1 {Ld}\ns_sleep {sleep}\ns_branch {Lc}")
    outline.append(slow)

EARLY = sorted([i for i in range(56) if i % 6 < 4], key=lambda i: (i // 6, i & 1, i))
LATE = [i for i in range(56) if i % 6 >= 4]
REST = EARLY[32:] + LATE
def tiles_of_wave(w): return EARLY[4 * w: 4 * w + 4] + REST[3 * w: 3 * w + 3]
def flag_of(i): return (2 * (i // 6) + (i & 1)) + (32 if i % 6 >= 4 else 0)
vL16 = 1
vPD0 = 2
vWA = 6
vPA = 23; vPV_ = 24
vWP = 208
vPF = 251; vDUM = 24
P_SLOT = [1, 2, 0]
def unit_pos(u):
    if u >= 9: u -= 9
    return P_SLOT[u // 3] * SLOT + (u % 3) * 2048

sWX = 87
ROT = opt('rot', 0)
def p2_setup_text():
    t = f"s_and_b32 s{sT0}, s{sCT}, {1 if ROT else 0}\ns_lshl_b32 s{sT0}, s{sT0}, 2\ns_xor_b32 s{sWX}, s{sW}, s{sT0}\n"
    for w in range(8):
        v = sum(x << (8 * j) for j, x in enumerate(tiles_of_wave(w)))
        lo, hi = v & 0xffffffff, v >> 32
        if w == 0: t += f"s_mov_b32 s{sTAB}, {lo:#x}\ns_mov_b32 s{sTAB+1}, {hi:#x}\n"
        else: t += f"s_cmp_eq_u32 s{sWX}, {w}\ns_cselect_b32 s{sTAB}, {lo:#x}, s{sTAB}\ns_cselect_b32 s{sTAB+1}, {hi:#x}, s{sTAB+1}\n"
    if ROT:
        t += f"""s_lshr_b32 s{sT0}, s{sCT}, 1
s_lshl_b32 s{sT0}, s{sT0}, 3
s_mov_b32 s{sTAB+2}, s{sTAB}
s_mov_b32 s{sTAB+3}, s{sTAB}
s_lshr_b64 s[{sTAB+2}:{sTAB+3}], s[{sTAB+2}:{sTAB+3}], s{sT0}
s_mov_b32 s{sTAB}, s{sTAB+2}
s_lshl_b32 s{sTAB+2}, s{sTAB+1}, 24
s_or_b32 s{sTAB+2}, s{sTAB+2}, s{sTAB+1}
s_lshr_b32 s{sTAB+3}, s{sTAB+1}, 8
s_lshr_b64 s[{sTAB+2}:{sTAB+3}], s[{sTAB+2}:{sTAB+3}], s{sT0}
s_mov_b32 s{sTAB+1}, s{sTAB+2}
"""
    for j in (6, 5, 4): t += f"s_bfe_u32 s{sTAB+j}, s{sTAB+1}, {0x80000 | (8*(j-4)):#x}\n"
    for j in (3, 2, 1, 0): t += f"s_bfe_u32 s{sTAB+j}, s{sTAB}, {0x80000 | (8*j):#x}\n"
    t += srd_s(rW2G, pW2, 1792 * 896)
    t += f"""s_cmp_eq_u32 s{sGSEL}, 7
s_cselect_b32 s{rW2G+2}, 0, s{rW2G+2}
v_lshrrev_b32 v4, 3, v0
v_mul_u32_u24 v4, 896, v4
v_bfe_u32 v5, v0, 4, 1
v_lshlrev_b32 v5, 2, v5
v_and_b32 v6, 7, v0
v_xor_b32 v5, v5, v6
v_lshl_add_u32 v4, v5, 4, v4
s_lshl_b32 s{sT0}, s{sCT}, 7
v_add_u32 v{vPD0}, s{sT0}, v4
v_add_u32 v{vPD0+1}, 7168, v{vPD0}
s_mul_i32 s{sM0P}, s{sW}, 6144
"""
    return t

vPA2 = 252
def poll_addr_text():
    t = ""
    for w in range(8):
        tl = tiles_of_wave(w)
        f1 = [flag_of(tl[0]), flag_of(tl[2])]; assert flag_of(tl[1]) == f1[0] and flag_of(tl[3]) == f1[1]
        f2 = [flag_of(x) for x in tl[4:]]
        q0 = 56 + (7 * (w & 3) >> 1)
        fq = [flag_of(x) + 64 * (w >> 2) for x in range(q0, q0 + 4)]
        lo = sum(x << (6 * j) for j, x in enumerate(f1 + f2)); hi = sum(x << (8 * j) for j, x in enumerate(fq))
        if w == 0: t += f"s_mov_b32 s{sPM}, {lo:#x}\ns_mov_b32 s{sQM}, {hi:#x}\n"
        else: t += f"s_cmp_eq_u32 s{sWX}, {w}\ns_cselect_b32 s{sPM}, {lo:#x}, s{sPM}\ns_cmp_eq_u32 s{sW}, {w}\ns_cselect_b32 s{sQM}, {hi:#x}, s{sQM}\n"
    t += f"""v_and_b32 v4, 31, v0
v_mul_u32_u24 v4, 6, v4
v_lshrrev_b32 v5, 5, v0
v_lshlrev_b32 v5, 6, v5
v_bfe_u32 v6, s{sPM}, v4, 6
v_add_u32 v6, v6, v5
v_add_u32 v4, 12, v4
v_bfe_u32 v7, s{sPM}, v4, 6
v_add_u32 v7, v7, v5
v_lshlrev_b32 v4, 3, v0
v_bfe_u32 v4, s{sQM}, v4, 8
s_mov_b32 s{sMK}, 0xf0
s_mov_b32 s{sMK+1}, 0
v_cndmask_b32 v7, v7, v4, s[{sMK}:{sMK+1}]
s_lshl_b32 s{sT0}, s{sTB}, 14
s_add_u32 s{sT0}, s{sT0}, {FLH}
v_lshl_add_u32 v6, v6, 7, s{sT0}
v_lshl_add_u32 v7, v7, 7, s{sT0}
v_mov_b32 v5, {DUMP}
s_mov_b32 s{sMK}, 3
s_mov_b32 s{sMK+1}, 3
v_cndmask_b32 v{vPA}, v5, v6, s[{sMK}:{sMK+1}]
s_mov_b32 s{sMK}, 0xf7
s_mov_b32 s{sMK+1}, 7
v_cndmask_b32 v{vPA2}, v5, v7, s[{sMK}:{sMK+1}]
"""
    return t
POLL = f"buffer_load_dword v{vPV_}, v{vPA}, {WS}, 0 offen sc1"
POLL2 = f"buffer_load_dword v{vPV_}, v{vPA2}, {WS}, 0 offen sc1"
def poll_test(lo, hi):
    return f"v_cmp_ne_u32 vcc, s{sTAG}, v{vPV_}\ns_mov_b32 s{sMK}, {lo:#x}\ns_mov_b32 s{sMK+1}, {hi:#x}\ns_and_b64 vcc, vcc, s[{sMK}:{sMK+1}]"
PFP = opt('pfp', 0); PFN = -(-66 // max(PFP, 1))
def pf_setup_text():
    return f"""s_lshr_b32 s{sT0}, s2, 3
s_lshl_b32 s{sT0}, s{sT0}, 3
s_add_u32 s{sT0}, s{sT0}, s{sW}
s_mul_i32 s{sT0}, s{sT0}, {66*128}
v_lshl_add_u32 v4, v0, 7, s{sT0}
v_mov_b32 v5, {DUMP}
v_cmp_gt_u32 vcc, {PFN}, v0
v_cndmask_b32 v{vPF}, v5, v4, vcc
""" + srd_s(rW2G, pW2, 1792 * 896)
def pf_item(): return f"buffer_load_dword v{vDUM}, v{vPF}, s[{rW2G}:{rW2G+3}], 0 offen\nv_add_u32 v{vPF}, {PFN*128}, v{vPF}"

def unit_dma(u, stage=False):
    j, s = divmod(u, 2)
    out = []
    for jj in range(2):
        g = ""
        if jj == 0:
            g += f"s_mul_i32 s{sPD}, s{sTAB+j}, 28672\n"
            if s: g += f"s_add_u32 s{sPD}, s{sPD}, 14336\n"
        g = (f"s_add_u32 m0, s{sM0X}, {SCR + jj*1024}\n" if stage else f"s_add_u32 m0, s{sM0P}, {unit_pos(u) + jj*1024}\n") + g
        g += f"buffer_load_dwordx4 v{vPD0+jj}, s[{rW2G}:{rW2G+3}], s{sPD} offen lds"
        out.append(g)
    return out
def p2_dma(pc): return [g for u in range(3 * pc, 3 * pc + 3) for g in unit_dma(u)]
def trpat(dst, tmp, hishift, rowshift=7):
    return f"""v_lshrrev_b32 v{dst}, 5, v0
v_lshlrev_b32 v{dst}, {hishift}, v{dst}
v_bfe_u32 v{tmp}, v0, 2, 2
v_add_u32 v{dst}, v{dst}, v{tmp}
v_lshlrev_b32 v{dst}, {rowshift}, v{dst}
v_bfe_u32 v{tmp}, v0, 4, 1
v_lshl_add_u32 v{dst}, v{tmp}, 5, v{dst}
v_and_b32 v{tmp}, 3, v0
v_lshl_add_u32 v{dst}, v{tmp}, 3, v{dst}
v_bfe_u32 v{tmp}, v0, 3, 1
v_lshl_add_u32 v{dst}, v{tmp}, 6, v{dst}
"""
def wa_text():
    return trpat(4, 5, 2) + f"""v_add_u32 v{vWA}, s{sM0P}, v4
v_xor_b32 v{vWA+1}, 64, v{vWA}
v_add_u32 v{vWA+2}, {SLOT}, v{vWA}
v_add_u32 v{vWA+3}, {SLOT}, v{vWA+1}
v_add_u32 v{vWA+4}, {2*SLOT}, v{vWA}
v_add_u32 v{vWA+5}, {2*SLOT}, v{vWA+1}
"""
def wreads(u, dst):
    sl, off = divmod(unit_pos(u), SLOT)
    return [(f"ds_read_b64_tr_b16 {vr(dst+4*c+2*rd,2)}, v{vWA+2*sl+c} offset:{off+rd*1024}", c) for c in range(2) for rd in range(2)]

vDX0, vDX1, vDW0 = 8, 9, 10
vAX = 13
vSEL = 28
vROW = 208; vRU = 212; vGR = 220; vRT = 224
vTG = 248; vZ0 = 249; vGA = 250

def prologue():
    if 'pad' in DBG: e('s_memrealtime s[100:101]')
    e(f"s_load_dwordx16 s[4:19], s[0:1], 0\ns_load_dwordx4 s[20:23], s[0:1], 64\ns_load_dwordx2 s[24:25], s[0:1], 80")
    e(f"s_cmp_ge_u32 s2, 256\ns_cbranch_scc1 Lend")
    if opt('prio', 1): e("s_setprio 3" if opt('pri2', 0) else "s_setprio 1")
    e(f"v_lshrrev_b32 v1, 6, v0\nv_and_b32 v0, 63, v0\nv_readfirstlane_b32 s{sW}, v1")
    e(f"s_and_b32 s{sXCD}, s2, 7\ns_lshr_b32 s{sT0}, s2, 3\ns_and_b32 s{sSUB}, s{sT0}, 3\ns_lshr_b32 s{sGSEL}, s{sT0}, 2")
    st = k.state()
    e(f"s_cmp_lg_u32 s{sW}, 7\ns_cbranch_scc1 Lnopf")
    e(f"s_getpc_b64 s[{sMK}:{sMK+1}]")
    k.label('Lpc')
    e(f"s_and_b32 s{sT0}, s{sT0}, 7\ns_lshl_b32 s{sT0}, s{sT0}, 13\nv_lshl_add_u32 v4, v0, 7, s{sT0}\nv_min_u32 v4, Lcode_end-Lpc-4, v4")
    e(f"global_load_dword v{vDUM}, v4, s[{sMK}:{sMK+1}]")
    k.label('Lnopf')
    k.set_state(st)
    pre_common()
    e(f"s_cmp_lt_u32 s{sGSEL}, 6\ns_cbranch_scc1 Lm")

def pre_common():
    e(f"s_lshr_b32 s{sT0}, s{sXCD}, 1\ns_lshl_b32 s{sT0}, s{sT0}, 2\ns_add_u32 s{sRB}, s{sT0}, s{sSUB}")
    e(f"s_lshl_b32 s{sT0}, s{sGSEL}, 1\ns_add_u32 s{sT0}, s{sT0}, s{sRB}")
    e(f"s_mul_i32 s{sT1}, s{sT0}, 37\ns_lshr_b32 s{sT1}, s{sT1}, 8\ns_mul_i32 s{sT1}, s{sT1}, 7\ns_sub_u32 s{sCC}, s{sT0}, s{sT1}\ns_mov_b32 s{sC0}, s{sCC}")
    if 'norot1' in DBG: e(f"s_mov_b32 s{sCC}, 0")
    if 'rot2' in DBG: e(f"s_and_b32 s{sCC}, s{sCC}, 1\ns_mul_i32 s{sCC}, s{sCC}, 3")
    e(f"""s_lshl_b32 s{sT0}, s{sRB}, 7
s_lshl_b32 s{sT1}, s{sW}, 4
s_add_u32 s{sT0}, s{sT0}, s{sT1}
v_lshrrev_b32 v4, 3, v0
v_add_u32 v4, s{sT0}, v4
v_mul_u32_u24 v4, 896, v4
v_and_b32 v5, 7, v0
v_lshrrev_b32 v6, 4, v0
v_xor_b32 v6, v5, v6
v_lshl_add_u32 v{vDX0}, v6, 4, v4
v_xor_b32 v6, 4, v6
v_lshl_add_u32 v{vDX1}, v6, 4, v4
v_add_u32 v{vDX1}, 7168, v{vDX1}
s_lshl_b32 s{sM0X}, s{sW}, 11
s_mov_b32 s{rX+2}, {2048*896}
s_mov_b32 s{rX+3}, 0x20000
s_lshl_b32 s{sMEAN}, s2, 3
s_add_u32 s{sMEAN}, s{sMEAN}, s{sW}
s_mul_i32 s{sT1}, s{sMEAN}, 896
v_lshlrev_b32 v{vL16}, 4, v0
v_add_u32 v7, s{sT1}, v{vL16}
v_mov_b32 v5, {DUMP}
v_cmp_gt_u32 vcc, 56, v0
v_cndmask_b32 v7, v5, v7, vcc
v_cndmask_b32 v{vRT+1}, 0, 1.0, vcc""")

def after_kernarg():
    e("s_waitcnt lgkmcnt(0)")
    if 'pad' in DBG: e("s_mov_b32 s101, s100")
    e(f"s_load_dword s{sTAG}, s[{pWS}:{pWS+1}], {EPOCH}")
    e(f"s_mov_b32 s{rX}, s{pX}\ns_and_b32 s{rX+1}, s{pX+1}, 0xffff")
    return e(f"buffer_load_dwordx4 {vr(vROW,4)}, v7, s[{rX}:{rX+3}], 0 offen")

def loop_setup(xbias):
    e(f"""v_lshrrev_b32 v4, 2, v0
v_lshrrev_b32 v5, 4, v0
v_xor_b32 v4, v4, v5
v_and_b32 v4, 1, v4
v_and_b32 v5, 3, v0
v_or_b32 v4, v4, v5
v_cmp_eq_u32 vcc, 0, v4
v_mov_b32 v5, 0x3f803f80
v_and_b32 v4, 31, v0
v_cndmask_b32 v{vSEL}, 0, v5, vcc
v_cndmask_b32 v{vSEL+1}, 0, v5, vcc
v_cndmask_b32 v{vSEL+2}, 0, v5, vcc
v_cndmask_b32 v{vSEL+3}, 0, v5, vcc
s_add_u32 s{sT3}, s{sT3}, {xbias}
v_lshl_add_u32 v5, v4, 7, s{sT3}
v_bfe_u32 v4, v0, 1, 3
v_lshrrev_b32 v6, 5, v0
v_xor_b32 v4, v4, v6
v_lshl_add_u32 v{vAX}, v4, 4, v5""")
    for j in range(1, 4): e(f"v_xor_b32 v{vAX+j}, {32*j}, v{vAX}")
    e(f"""s_lshl_b32 s{sT0}, s{sMEAN}, 4
s_add_u32 s{sT0}, s{sT0}, {STATS}
v_mov_b32 v5, {DUMP}
v_mov_b32 v6, s{sT0}
v_cmp_eq_u32 vcc, 63, v0
v_cndmask_b32 v{vRT+2}, v5, v6, vcc""")
    e(srd_s(rWS, pWS, WS_USED))

def misc_text():
    return f"""v_mov_b32 v5, {DUMP}
v_lshlrev_b32 v4, 2, v0
v_cmp_gt_u32 vcc, {1 if 'flag1' in DBG else 32}, v0
v_cndmask_b32 v{vZ0}, v5, v4, vcc
s_mov_b32 s{sHALF}, 0
s_mov_b32 s{sHALF+1}, -1
s_mov_b32 s{sEPS}, {f32(1e-6)}
s_mov_b32 s{sEPS+1}, {f32(1e-6)}
s_mov_b32 s{sCT}, s{sGSEL}
s_lshl_b32 s{sTB}, s{sXCD}, 2
s_add_u32 s{sTB}, s{sTB}, s{sSUB}
"""

def wave_sum(r):
    return [f"v_add_f32_dpp v{r}, v{r}, v{r} {m} bank_mask:0xf" for m in
            ("quad_perm:[1,0,3,2] row_mask:0xf", "quad_perm:[2,3,0,1] row_mask:0xf", "row_half_mirror row_mask:0xf", "row_mirror row_mask:0xf",
             "row_bcast:15 row_mask:0xa", "row_bcast:31 row_mask:0xc")]

def mall_prefetch():
    if opt('mpf', 1) == 0: return
    st = k.state()
    L1, L2 = k.newlabel('Lpf'), k.newlabel('Lpf')
    e(f"s_cmp_lg_u32 s{sW}, 6\ns_cbranch_scc1 {L1}")
    e(f"s_mul_i32 s{sT0}, s2, {49*128}\nv_min_u32 v4, 48, v0\nv_lshl_add_u32 v4, v4, 7, s{sT0}\nglobal_load_dword v{vDUM}, v4, s[{pW2}:{pW2+1}]")
    k.label(L1)
    e(f"s_cmp_lg_u32 s{sW}, 5\ns_cbranch_scc1 {L2}")
    e(f"s_mul_i32 s{sT0}, s2, {13*128}\nv_min_u32 v4, 12, v0\nv_lshl_add_u32 v4, v4, 7, s{sT0}\nv_min_u32 v4, {448*896-4}, v4\nglobal_load_dword v{vDUM}, v4, s[{pWO}:{pWO+1}]")
    e(f"v_min_u32 v4, 6, v0\nv_lshlrev_b32 v4, 7, v4\nglobal_load_dword v{vDUM}, v4, s[{pB2}:{pB2+1}]")
    k.label(L2)
    L3 = k.newlabel('Lpf')
    e(f"s_cmp_lg_u32 s{sW}, {4 if opt('c6', 1) else 9}\ns_cbranch_scc1 {L3}")
    e(f"s_lshr_b32 s{sT0}, s2, 3\ns_mul_i32 s{sT0}, s{sT0}, {56*896}\ns_add_u32 s{sT0}, s{sT0}, 768\nv_min_u32 v4, 55, v0\nv_mul_u32_u24 v4, 896, v4\nv_add_u32 v4, s{sT0}, v4\nglobal_load_dword v{vDUM}, v4, s[{pW2}:{pW2+1}]")
    k.label(L3)
    if opt('tlb', 0):
        L4 = k.newlabel('Lpf'); G = opt('tlb', 0)
        n = (WS_USED // 1024 // G + 31) // 32
        e(f"s_cmp_lg_u32 s{sW}, 3\ns_cbranch_scc1 {L4}")
        e(f"s_lshr_b32 s{sT0}, s2, 3\ns_mul_i32 s{sT1}, s{sT0}, {n}\nv_min_u32 v4, {n-1}, v0\nv_add_u32 v4, s{sT1}, v4\nv_mul_u32_u24 v4, {G*1024}, v4\nv_add_u32 v4, 0x800, v4\nglobal_load_dword v{vDUM}, v4, s[{pWS}:{pWS+1}]")
        m = (2048 * 896 // 1024 // G + 31) // 32
        e(f"s_mul_i32 s{sT1}, s{sT0}, {m}\nv_min_u32 v4, {m-1}, v0\nv_add_u32 v4, s{sT1}, v4\nv_mul_u32_u24 v4, {G*1024}, v4\nv_min_u32 v4, {2048*896-4}, v4\nglobal_load_dword v{vDUM}, v4, s[{pOUT}:{pOUT+1}]")
        k.label(L4)
    k.set_state(st)

def rowstat(rtok):
    a = vRT
    k.wait(vm=rtok)
    it = []
    for d in range(4):
        it += [f"v_lshlrev_b32 v{vRU+2*d}, 16, v{vROW+d}", f"v_and_b32 v{vRU+2*d+1}, 0xffff0000, v{vROW+d}"]
    it += [f"v_pk_add_f32 {vr(vROW,2)}, {vr(vRU,2)}, {vr(vRU+2,2)}", f"v_pk_add_f32 {vr(vROW+2,2)}, {vr(vRU+4,2)}, {vr(vRU+6,2)}",
           f"v_pk_add_f32 {vr(vROW,2)}, {vr(vROW,2)}, {vr(vROW+2,2)}", f"v_add_f32 v{a}, v{vROW}, v{vROW+1}"]
    it += wave_sum(a)
    it += [f"v_mul_f32 v{vGR}, {f32(1/448)}, v{a}", f"v_readlane_b32 s{sMEAN}, v{vGR}, 63", f"v_mul_f32 v{a}, s{sMEAN}, v{vRT+1}"]
    for d in range(4): it.append(f"v_pk_add_f32 {vr(vRU+2*d,2)}, {vr(vRU+2*d,2)}, {vr(a,2)} op_sel_hi:[1,0] neg_lo:[0,1] neg_hi:[0,1]")
    it.append(f"v_pk_mul_f32 {vr(vROW,2)}, {vr(vRU,2)}, {vr(vRU,2)}")
    for d in range(1, 4): it.append(f"v_pk_fma_f32 {vr(vROW,2)}, {vr(vRU+2*d,2)}, {vr(vRU+2*d,2)}, {vr(vROW,2)}")
    it.append(f"v_add_f32 v{a}, v{vROW}, v{vROW+1}")
    it += wave_sum(a)
    it.append(f"v_mul_f32 v{vGR+2}, {f32(1/448)}, v{a}")
    for x in it: e(x)
    e(f"s_waitcnt lgkmcnt(0)\ns_mul_i32 s{sTAG}, s{sTAG}, 1664525\ns_add_u32 s{sTAG}, s{sTAG}, 1013904223")
    e(f"v_mov_b32 v{vTG}, s{sTAG}\nv_mov_b32 v{vGR+1}, s{sTAG}\nv_mov_b32 v{vGR+3}, s{sTAG}")
    e(f"buffer_store_dwordx4 {vr(vGR,4)}, v{vRT+2}, {WS}, 0 offen sc1")

def gelu_pk(acc, out, kp, sp, tmp):
    o = []
    for h in range(2):
        a = acc + 8 * h; t = tmp + 8 * h
        for p in range(4): o.append(f"v_pk_mul_f32 {vr(t+2*p,2)}, {vr(a+2*p,2)}, {vr(a+2*p,2)}")
        for p in range(4): o.append(f"v_pk_fma_f32 {vr(t+2*p,2)}, {vr(t+2*p,2)}, {vr(kp+2,2)}, {vr(kp,2)} op_sel_hi:[1,0,0]")
        for p in range(4): o.append(f"v_pk_mul_f32 {vr(t+2*p,2)}, {vr(t+2*p,2)}, {vr(a+2*p,2)}")
        for p in range(8): o.append(f"v_exp_f32 v{t+p}, v{t+p}")
        for p in range(4): o.append(f"v_pk_fma_f32 {vr(t+2*p,2)}, {vr(t+2*p,2)}, {vr(sp,2)}, {vr(sp,2)} op_sel_hi:[1,0,0]")
        for p in range(8): o.append(f"v_rcp_f32 v{t+p}, v{t+p}")
        for p in range(4): o.append(f"v_pk_mul_f32 {vr(t+2*p,2)}, {vr(t+2*p,2)}, {vr(a+2*p,2)}")
        for p in range(4): o.append(f"v_cvt_pk_bf16_f32 v{out+4*h+p}, v{t+2*p}, v{t+2*p+1}")
        o.append(('st', h))
    return o
def phi_pk(acc, out, rfun, rlfun, sel, tmp):
    o = []
    for h in range(2):
        a = acc + 8 * h; t = tmp + 8 * h
        for p in range(4): o.append(f"v_pk_mul_f32 {vr(t+2*p,2)}, {vr(a+2*p,2)}, {rlfun(4*h+p)} op_sel_hi:[1,{sel}]")
        for p in range(4): o.append(f"v_pk_fma_f32 {vr(a+2*p,2)}, {vr(a+2*p,2)}, {rfun(4*h+p)}, {sr(sEPS,2)} op_sel_hi:[1,{sel},0]")
        for p in range(8): o.append(f"v_exp_f32 v{t+p}, v{t+p} clamp")
        for p in range(8): o.append(f"v_max_f32 v{a+p}, s{sEPS}, v{a+p}")
        for p in range(4): o.append(f"v_pk_add_f32 {vr(t+2*p,2)}, {vr(t+2*p,2)}, {vr(a+2*p,2)}")
        for p in range(4): o.append(f"v_cvt_pk_bf16_f32 v{out+4*h+p}, v{t+2*p}, v{t+2*p+1}")
        o.append(('st', h))
    return o
def skew(chains):
    o = []; L = len(chains[0]); n = len(chains)
    for t in range(L + 2 * n):
        for i, c in enumerate(chains):
            s = t - 2 * (i // 2)
            if 0 <= s < len(c) and c[s] is not None: o.append(c[s])
    return o
def gelu_sc(acc, out, kp, sp, tmp, half):
    ch = []
    for p in range(8):
        a = acc + 8 * half + p; t = tmp + p
        c = [f"v_mul_f32 v{t}, v{a}, v{a}", f"v_fma_f32 v{t}, v{t}, v{kp+2}, v{kp}", f"v_mul_f32 v{t}, v{t}, v{a}", f"v_exp_f32 v{t}, v{t}",
             f"v_fma_f32 v{t}, v{t}, v{sp}, v{sp}", f"v_rcp_f32 v{t}, v{t}", f"v_mul_f32 v{t}, v{t}, v{a}",
             f"v_cvt_pk_bf16_f32 v{out+4*half+p//2}, v{t-1}, v{t}" if p & 1 else None]
        ch.append(c)
    return skew(ch)
def phi_sc(acc, out, r, rl, tmp, half):
    ch = []
    for p in range(8):
        a = acc + 8 * half + p; t = tmp + p
        c = [f"v_mul_f32 v{t}, v{a}, v{rl}", f"v_fma_f32 v{a}, v{a}, v{r}, s{sEPS}", f"v_exp_f32 v{t}, v{t} clamp", f"v_max_f32 v{a}, s{sEPS}, v{a}",
             f"v_add_f32 v{t}, v{t}, v{a}", f"v_cvt_pk_bf16_f32 v{out+4*half+p//2}, v{t-1}, v{t}" if p & 1 else None]
        ch.append(c)
    return skew(ch)

vAW = 17
vBIAS = 25
vXB = 32; vWB = 48; vACC = 72; vCS = 136
vAX2 = 120
vSG = 168; vCG = 172; vGA2 = 21; vCP = 22

def p1_dma(kind, i):
    slot = (i % 3) * SLOT
    out = [f"s_add_u32 m0, s{sM0X}, {slot}\ns_lshl_b32 s{sSOX}, s{sCC}, 7\nbuffer_load_dwordx4 v{vDX0}, s[{rX}:{rX+3}], s{sSOX} offen lds"]
    if kind == 'M':
        out.append(f"s_add_u32 m0, s{sM0X}, {slot + 1024}\ns_mul_i32 s{sSO0}, s{sCC}, s{sPSTEP0}\nbuffer_load_dwordx4 v{vDX1}, s[{rX}:{rX+3}], s{sSOX} offen lds")
        for lc in range(3):
            nx = f"s_mul_i32 s{sSO0+lc+1}, s{sCC}, s{sPSTEP0+lc+1}" if lc < 2 else f"s_add_u32 s{sCC}, s{sCC}, 1"
            out.append(f"s_add_u32 m0, s{sM0W}, {slot + lc*8192}\n{nx}\n"
                       f"buffer_load_dwordx4 v{vDW0+lc}, s[{rW0+4*lc}:{rW0+4*lc+3}], s{sSO0+lc} offen lds")
    else:
        out.append(f"s_add_u32 m0, s{sM0X}, {slot + 1024}\ns_mul_i32 s{sSO0}, s{sCC}, {64*2688}\nbuffer_load_dwordx4 v{vDX1}, s[{rX}:{rX+3}], s{sSOX} offen lds")
        nxs = [f"s_add_u32 s{sSO1}, s{sSO0}, 896", "s_nop 0", "s_nop 0", f"s_add_u32 s{sCC}, s{sCC}, 1"]
        for kv in range(2):
            for jj in range(2):
                if 'kvfast' in DBG and 2 * kv + jj in (1, 2): continue
                out.append(f"s_add_u32 m0, s{sM0W}, {slot + kv*16384 + jj*1024}\n{nxs[2*kv+jj]}\n"
                           f"buffer_load_dwordx4 v{vDW0+jj}, s[{rW0}:{rW0+3}], s{sSO0+kv} offen lds")
    out[-1] += f"\ns_cmp_eq_u32 s{sCC}, 7\ns_cselect_b32 s{sCC}, 0, s{sCC}"
    return out

def cs_addr_text(slot_s, pub_s):
    return f"""s_lshl_b32 s{sT0}, s{slot_s}, 12
s_add_u32 s{sT0}, s{sT0}, {CSG}
v_add_u32 v{vGA2}, s{sT0}, v{vL16}
s_lshl_b32 s{sT1}, s{sC0}, 9
v_add_u32 v4, s{sT1}, v{vGA2}
v_mov_b32 v5, {DUMP}
v_cndmask_b32 v4, v4, v5, {HALF}
s_cmp_lt_u32 s{sRB}, 7
s_cselect_b32 s{sT1}, s{pub_s}, 1
s_cmp_eq_u32 s{sT1}, 0
s_cselect_b32 s{sT1}, 0, {DUMP}
v_add_u32 v{vCP}, s{sT1}, v4
"""
def cs_pub(nt, vCS=136, vRU=212):
    return [f"v_mov_b32 v{vRU+t}, v{vCS+4*t}" for t in range(nt)] + [f"v_mov_b32 v{vRU+t}, v{vTG}" for t in range(nt, 4)] + \
           [f"buffer_store_dwordx4 {vr(vRU,4)}, v{vCP}, {WS}, 0 offen sc1"]
def gran_items(vSG=168, vCG=172):
    GL = [f"buffer_load_dwordx4 {vr(vSG,4)}, v{vGA}, {WS}, 0 offen sc1"] + \
         [f"buffer_load_dwordx4 {vr(vCG+4*q,4)}, v{vGA2}, {WS}, 0 offen offset:{1024*q} sc1" for q in range(4)]
    G = {}
    def last_g(): G['g'] = e(GL[-1])
    a_ = vSG + 1
    gtest = f"""v_cndmask_b32 v{vCG+15}, v{vCG+15}, v{vTG}, {HALF}
v_xor_b32 v{a_}, v{vTG}, v{a_}
v_bitop3_b32 v{a_}, v{a_}, v{vSG+3}, v{vTG} bitop3:0xf6
v_bitop3_b32 v{a_}, v{a_}, v{vCG+3}, v{vTG} bitop3:0xf6
v_bitop3_b32 v{a_}, v{a_}, v{vCG+7}, v{vTG} bitop3:0xf6
v_bitop3_b32 v{a_}, v{a_}, v{vCG+11}, v{vTG} bitop3:0xf6
v_bitop3_b32 v{a_}, v{a_}, v{vCG+15}, v{vTG} bitop3:0xf6
v_cmp_ne_u32 vcc, 0, v{a_}
s_cmp_lg_u64 vcc, 0"""
    def gcheck():
        k.wait(vm=G['g']); verify("\n".join(GL), gtest, 4)
    return GL[:-1] + [last_g], gcheck
def cs_sum(nt, dst, vCG=172):
    it = []
    for t in range(nt): it.append(f"v_cndmask_b32 v{vCG+12+t}, v{vCG+12+t}, 0, {HALF}")
    for t in range(nt): it += [f"v_add_f32 v{vCG+t}, v{vCG+t}, v{vCG+4+t}", f"v_add_f32 v{vCG+8+t}, v{vCG+8+t}, v{vCG+12+t}"]
    for t in range(nt): it.append(f"v_add_f32 v{vCG+t}, v{vCG+t}, v{vCG+8+t}")
    for t in range(nt): it.append(f"v_mov_b32 v{vCG+4+t}, v{vCG+t}")
    for t in range(nt): it.append(f"v_permlane32_swap_b32 v{vCG+t}, v{vCG+4+t}")
    for t in range(nt): it.append(f"v_add_f32 v{dst+t}, v{vCG+t}, v{vCG+4+t}")
    return it

def main_loop(kind, D, per, ax2, tail=None, lead=None):
    SETS = [32, 48, 232]
    xbuf = lambda n, u: SETS[n % 3] + 4 * u
    wbuf = lambda n, t: SETS[n % 3] + 8 + 4 * t
    def reads(n):
        i, j = divmod(n, 4); sl = i % 3
        xa = (ax2 if sl == 2 else vAX) + j; xo = SLOT if sl == 1 else 0
        o = [f"ds_read_b128 {vr(xbuf(n,0),4)}, v{xa} offset:{xo}"]
        for kv in range(2):
            for rd in range(2): o.append(f"ds_read_b64_tr_b16 {vr(wbuf(n,kv)+2*rd,2)}, v{vAW+sl} offset:{kv*16384 + j*4096 + rd*1024}")
        o.append(f"ds_read_b128 {vr(xbuf(n,1),4)}, v{xa} offset:{xo+4096}")
        return o
    k.wait(vm=D[0]); e("s_barrier")
    stamp(1)
    RT = {}
    for n in range(2):
        for x in reads(n): RT[n] = e(x)
    pend = p1_dma(kind, 2); pend_i = 2
    for n in range(28):
        i, j = divmod(n, 4)
        mf = []
        for t in range(4):
            if 'kvfast' in DBG and t == 3 and n > 0: continue
            acc = vr(vACC + 16 * t, 16); u, kv = t >> 1, t & 1
            mf.append(f"v_mfma_f32_32x32x16_bf16 {acc}, {vr(xbuf(n,u),4)}, {vr(wbuf(n,kv),4)}, {'0' if n == 0 else acc}")
        if i == 0:
            for t in range(2):
                acc = vr(vCS + 4 * t, 4)
                mf.append(f"v_mfma_f32_16x16x32_bf16 {acc}, {vr(vSEL,4)}, {vr(wbuf(n,t),4)}, {'0' if n == 0 else acc}")
        k.wait(lg=RT[n])
        e(mf[0])
        if j == 2:
            assert not pend
            e(mf[1]); mf = mf[1:]
            e("s_waitcnt lgkmcnt(0)")
            if i < 6: k.wait(vm=D[i + 1])
            e("s_barrier")
            stamp(2 + i, chunk=True)
            pend_i = i + 3
            pend = (lead or {}).get(i, []) + (p1_dma(kind, i + 3) if i + 3 < 7 else tail[i + 3 - 7] if i < 6 else [])
        if n + 2 < 28:
            for x in reads(n + 2): RT[n + 2] = e(x)
        left = {2: 3, 3: 2, 0: 1, 1: 1}[j] if n >= 2 else 2 - n
        nd = -(-len(pend) // left)
        dmm = pend[:nd]; pend = pend[nd:]
        other = spread([('d', x) for x in dmm] or [('n', None)], [('f', x) for x in per[n]])
        other = [f for f in other if f[0] != 'n']
        for kind_, x in spread([('m', x) for x in mf[1:]], other):
            t_ = emit_item(x)
            if kind_ == 'd' and t_ is not None: D[pend_i] = t_

FLAG = f"buffer_store_dword v{vTG}, v{vZ0}, {WS}, s{sFLO} offen sc1\ns_add_u32 s{sFLO}, s{sFLO}, 128"

XP = [65536, 81920, 114688]
WP = [[49152, 57344], [98304, 106496], [131072, 139264]]
L2P = [SCR] + [8192 * i for i in range(6)]
def ring(c): return (c + 2) % 3
def phase1_M():
    mg = sMG
    vX = 96; AC = [64, 80]; mCS = 48; vK = 48; vBA = 56; vAA = [228, 232, 60]; sm = 26
    mSG = 208; mCG = 212; R = 236; vC = 244
    WS3 = [32, 40, 240]
    T = {}
    def tokset(key, text):
        def f(): T[key] = e(text)
        return f
    def dma_c(c):
        p = ring(c)
        return [f"s_add_u32 m0, s{sM0X}, {XP[p]}\ns_lshl_b32 s{sSOX}, s{sCC}, 7\nbuffer_load_dwordx4 v{vDX0}, s[{rX}:{rX+3}], s{sSOX} offen lds",
                f"s_add_u32 m0, s{sM0X}, {XP[p]+1024}\ns_mul_i32 s{sSO0}, s{sCC}, s{sPSTEP0}\nbuffer_load_dwordx4 v{vDX1}, s[{rX}:{rX+3}], s{sSOX} offen lds",
                f"s_add_u32 m0, s{sM0W}, {WP[p][0]}\ns_mul_i32 s{sSO1}, s{sCC}, s{sPSTEP0+1}\nbuffer_load_dwordx4 v{vDW0}, s[{rW0}:{rW0+3}], s{sSO0} offen lds",
                f"s_add_u32 m0, s{sM0W}, {WP[p][1]}\ns_add_u32 s{sCC}, s{sCC}, 1\nbuffer_load_dwordx4 v{vDW0+1}, s[{rW1}:{rW1+3}], s{sSO1} offen lds\n"
                f"s_cmp_eq_u32 s{sCC}, 7\ns_cselect_b32 s{sCC}, 0, s{sCC}"]
    def dma_2(c):
        return (f"s_add_u32 m0, s{sM0W}, {L2P[c]}\ns_nop 0\nbuffer_load_dwordx4 v{vDW0+2}, s[{rW2}:{rW2+3}], s{sSO2} offen lds\n"
                f"s_add_u32 s{sSO2}, s{sSO2}, s{sPSTEP0+2}\ns_cmp_eq_u32 s{sSO2}, s{rW2+2}\ns_cselect_b32 s{sSO2}, 0, s{sSO2}")
    def wf(a, j, dst): return [f"ds_read_b64_tr_b16 {vr(dst+2*rd,2)}, v{vAW + (a >> 16)} offset:{(a & 0xffff) + j*2048 + rd*512}" for rd in range(2)]
    e(f"s_and_b32 s{sT0}, s{sXCD}, 1\ns_mul_i32 s{sT0}, s{sT0}, 6\ns_add_u32 s{mg}, s{sT0}, s{sGSEL}")
    e(f"""v_lshrrev_b32 v4, 3, v0
v_lshl_add_u32 v4, s{sW}, 3, v4
v_bfe_u32 v5, v0, 4, 1
v_lshlrev_b32 v5, 2, v5
v_and_b32 v6, 7, v0
v_xor_b32 v5, v5, v6
v_lshlrev_b32 v5, 4, v5
s_lshl_b32 s{sM0W}, s{sW}, 10
s_mul_i32 s{sT3}, s{mg}, 3""")
    for lc in range(3):
        r = rW0 + 4 * lc
        e(f"""s_add_u32 s{sT0}, s{sT3}, {lc}
s_sub_u32 s{sT1}, s{sT0}, 28
s_cmp_lt_u32 s{sT0}, 35
s_cselect_b32 s{r+2}, {448*2688}, 0
s_cmp_lt_u32 s{sT0}, 28
s_cselect_b32 s{r+2}, {448*3584}, s{r+2}
s_cselect_b32 s{sT0}, s{sT0}, s{sT1}
s_movk_i32 s{sT1}, 2688
s_cselect_b32 s{sT1}, 3584, s{sT1}
s_lshl_b32 s{sT0}, s{sT0}, 7
s_lshl_b32 s{sPSTEP0+lc}, s{sT1}, 6
v_mad_u32_u24 v{vDW0+lc}, v4, s{sT1}, v5
v_add_u32 v{vDW0+lc}, s{sT0}, v{vDW0+lc}
s_mov_b32 s{r+3}, 0x20000""")
    e(f"s_mul_i32 s{sSO2}, s{sCC}, s{sPSTEP0+2}")
    rtok = after_kernarg()
    stamp(0)
    e(f"s_and_b32 s{pW1+1}, s{pW1+1}, 0xffff\ns_and_b32 s{pWQKV+1}, s{pWQKV+1}, 0xffff")
    for lc in range(3):
        r = rW0 + 4 * lc
        e(f"s_cmp_eq_u32 s{sPSTEP0+lc}, {64*3584}\ns_cselect_b32 s{r}, s{pW1}, s{pWQKV}\ns_cselect_b32 s{r+1}, s{pW1+1}, s{pWQKV+1}")
    for g in dma_c(0): T[0] = e(g)
    e(f"s_and_b32 s{sLO}, s{sW}, 3\ns_lshr_b32 s{sHI}, s{sW}, 2\ns_lshl_b32 s{sT3}, s{sLO}, 12")
    loop_setup(65536)
    e(trpat(4, 5, 3) + f"s_lshl_b32 s{sT0}, s{sHI}, 6\nv_xor_b32 v{vAW}, s{sT0}, v4\nv_add_u32 v{vAW+1}, 65536, v{vAW}\nv_add_u32 v{vAW+2}, 131072, v{vAW}")
    e(dma_2(0))
    for g in dma_c(1): T[1] = e(g)
    mall_prefetch()
    rowstat(rtok)
    m, var = mSG, mSG + 2
    r1, w_, rm = R + 5, R + 6, R + 7
    setup1 = misc_text() + f"s_lshl_b32 s{sT4}, s{mg}, 1\ns_add_u32 s{sT4}, s{sT4}, s{sHI}\ns_mul_i32 s{sTILE0}, s{mg}, 6\ns_add_u32 s{sTILE0}, s{sTILE0}, s{sHI}\n" + \
        cs_addr_text(sT4, sLO) + srd_s(rMISC, pB1, 3584) + f"s_lshl_b32 s{sT0}, s{sTILE0}, 6\nv_and_b32 v4, 31, v0\nv_lshl_add_u32 v{vBIAS+2}, v4, 1, s{sT0}\n"
    bias = [f"buffer_load_ushort v{vBIAS+t}, v{vBIAS+2}, s[{rMISC}:{rMISC+3}], 0 offen offset:{128*t}" for t in range(3)]
    setup2 = f"""s_lshl_b32 s{sT0}, s{sRB}, 2
s_add_u32 s{sT0}, s{sT0}, s{sLO}
s_lshl_b32 s{sT1}, s{sT0}, 9
s_add_u32 s{sT1}, s{sT1}, {STATS}
v_and_b32 v4, 31, v0
v_lshl_add_u32 v{vGA}, v4, 4, s{sT1}
s_lshl_b32 s{sFLO}, s{sT0}, 13
s_mul_i32 s{sT0}, s{sT0}, {TSTR}
s_lshl_b32 s{sT1}, s{sTILE0}, 11
s_add_u32 s{sHQO}, s{sT0}, s{sT1}
s_add_u32 s{sHQO}, s{sHQO}, {HQ}
s_lshl_b32 s{sT1}, s{sT4}, 7
s_add_u32 s{sFLO}, s{sFLO}, s{sT1}
s_add_u32 s{sFLO}, s{sFLO}, {FLH}
""" + p2_setup_text()
    early = f"v_mov_b32 v{vBA+3}, 0\n" + "".join(f"v_lshlrev_b32 v{vAA[t]+1}, 16, v{vBIAS+t}\nv_mov_b32 v{vAA[t]+2}, v{vBIAS+t}\nv_mov_b32 v{vAA[t]+3}, 0\n" for t in range(3))
    gl, gcheck = gran_items(mSG, mCG)
    C3 = [mCG + 8, mCG + 9, mCG + 10]
    aug = [gcheck] + lines(f"""v_add_f32 v{vK}, {f32(EPS)}, v{var}
v_mov_b32 v{vK+1}, {f32(EPS)}
v_fma_f32 v{vK+1}, v{vK+1}, v{vK}, v{var}
v_rsq_f32 v{vK+4}, v{vK}
v_rsq_f32 v{vK+3}, v{vK+1}""") + cs_sum(3, mCG + 8, mCG) + lines(f"""v_mul_f32 v{sm}, v{vK+1}, v{vK+3}
v_cvt_pk_bf16_f32 v{R}, -v{m}, v{sm}
v_lshlrev_b32 v{R+1}, 16, v{R}
v_and_b32 v{R+2}, 0xffff0000, v{R}
v_sub_f32 v{R+1}, -v{m}, v{R+1}
v_sub_f32 v{R+2}, v{sm}, v{R+2}
v_cvt_pk_bf16_f32 v{R+3}, -v{m}, v{R+1}
v_cvt_pk_bf16_f32 v{R+2}, v{R+2}, 0
v_cndmask_b32 v{vBA}, v{R+3}, 0, {HALF}
v_cndmask_b32 v{vBA+1}, v{R}, 0, {HALF}
v_cndmask_b32 v{vBA+2}, v{R+2}, 0, {HALF}""")
    for t in range(3):
        c = C3[t]; a = vAA[t]
        aug += lines(f"""v_cvt_pk_bf16_f32 v{a}, v{c}, v{c}
v_and_b32 v{R}, 0xffff0000, v{a}
v_sub_f32 v{R}, v{c}, v{R}
v_cvt_pk_bf16_f32 v{a+1}, v{R}, v{a+1}""")
    post = lines(f"""v_mul_f32 v{vK}, {f32(GC0)}, v{vK+3}
v_mul_f32 v{vK+5}, v{vK+3}, v{vK+3}
v_mul_f32 v{vK+5}, {f32(GC1)}, v{vK+5}
v_mul_f32 v{vK+2}, v{vK+5}, v{vK}
v_mul_f32 v{vK+6}, {f32(LOG2E)}, v{vK+4}""")
    per = {n: [] for n in range(28)}
    dmx = {n: [] for n in range(28)}
    distribute(per, 0, 7, atoms(setup1)); per[9] += cs_pub(3, mCS) + bias
    distribute(per, 10, 17, atoms(setup2)); distribute(per, 19, 20, atoms(early))
    for st_ in [5, 9, 13, 17, 21][:PFP]: per[st_].append(pf_item())
    G0 = opt('gstep', 18)
    distribute(per, G0, G0 + 1, gl)
    distribute(per, 23, 27, aug)
    distribute(dmx, 0, 1, [tokset(2, g) for g in dma_c(2)])
    for c in range(3, 7): distribute(dmx, 4 * (c - 3) + 2, 4 * (c - 3) + 4, [tokset(c, g) for g in dma_c(c)])
    for c, st_ in zip(range(1, 7), (12, 16, 17, 20, 21, 21)): dmx[st_].append(tokset('l2', dma_2(c)))
    distribute(dmx, 22, 27, [tokset('P0', g) for g in p2_dma(0)])
    def reads(n):
        c, j = divmod(n, 4); p = ring(c); ws = WS3[n % 3]
        return [f"ds_read_b128 {vr(vX+4*n,4)}, v{vAX+j} offset:{XP[p]-65536}"] + wf(WP[p][0], j, ws) + wf(WP[p][1], j, ws + 4)
    k.wait(vm=T[0]); e("s_barrier")
    stamp(1)
    RT = {}
    MP = True
    for n in range(2):
        for x in reads(n): RT[n] = e(x)
    CT = {}
    for n in range(28):
        c, j = divmod(n, 4); ws = WS3[n % 3]
        if j == 2:
            e("s_waitcnt lgkmcnt(0)")
            if c < 6: k.wait(vm=T[c + 1])
            e("s_barrier")
            stamp(2 + c, chunk=True)
        mf = [f"v_mfma_f32_32x32x16_bf16 {vr(AC[t],16)}, {vr(ws+4*t,4)}, {vr(vX+4*n,4)}, {'0' if n == 0 else vr(AC[t],16)}" for t in range(2)]
        if c == 0: mf += [f"v_mfma_f32_16x16x32_bf16 {vr(mCS+4*t,4)}, {vr(vSEL,4)}, {vr(ws+4*t,4)}, {'0' if n == 0 else vr(mCS+4*t,4)}" for t in range(2)]
        rd = [tokset(('r', n + 2), x) for x in reads(n + 2)] if n + 2 < 28 else []
        if 2 <= n < 6: rd += [tokset(('c', n - 2), x) for x in wf(L2P[0], n - 2, [60, 228, 232, 236][n - 2])]
        if 4 <= n < 8:
            def csm(q=n - 4):
                k.wait(lg=T[('c', q)])
                e(f"v_mfma_f32_16x16x32_bf16 {vr(mCS+8,4)}, {vr(vSEL,4)}, {vr([60, 228, 232, 236][q],4)}, {'0' if q == 0 else vr(mCS+8,4)}")
            mf.append(csm)
        k.wait(lg=RT[n] if n < 2 else T[('r', n)])
        other = spread(dmx[n], per[n]) if dmx[n] else per[n]
        for x in [mf[0]] + rd + spread(mf[1:], other): emit_item(x)
    for x in spread([f"v_mfma_f32_32x32x16_bf16 {vr(AC[t],16)}, {vr(vAA[t],4)}, {vr(vBA,4)}, {vr(AC[t],16)}" for t in range(2)], post): e(x)
    stamp(2); stamp(9, chunk=True)
    def p1dma(cond, lab):
        st_ = k.state()
        e(f"s_cmp_{cond}_u32 s{sHI}, 0\ns_cbranch_scc1 {lab}")
        for g in p2_dma(1): e(g)
        k.label(lab); k.set_state(st_)
    p1dma('eq', 'Lp1a')
    vT = 32
    def tile(acc, out, kind, last=False):
        ep = gelu_pk(acc, out, vK, sm, vT) if kind == 'G' else phi_pk(acc, out, lambda p: vr(vK + 4, 2), lambda p: vr(vK + 6, 2), 0, vT)
        for x in ep:
            if isinstance(x, tuple):
                h = x[1]
                if last and h == 0: k.wait(vm=T['poll'])
                T['st'] = e(f"buffer_store_dwordx4 {vr(out+4*h,4)}, v{vL16}, {WS}, s{sHQO} offen offset:{1024*h} sc1")
                if h: e(f"s_add_u32 s{sHQO}, s{sHQO}, 4096")
            else: e(x)
    e(f"s_nop 3\ns_cmp_ge_u32 s{mg}, 10\ns_cbranch_scc1 Lphi0")
    st0 = k.state()
    tile(AC[0], 208, 'G')
    e(f"s_cmp_eq_u32 s{mg}, 9\ns_cbranch_scc1 Lphi1")
    tile(AC[1], 216, 'G')
    k.label('Lepi1')
    def phis():
        k.label('Lphi0'); k.set_state(st0); e("s_nop 7")
        tile(AC[0], 208, 'P')
        k.label('Lphi1')
        tile(AC[1], 216, 'P')
        e("s_branch Lepi1")
    T0 = dict(T)
    outline.append(phis)
    stamp(3); stamp(12, 4)
    p1dma('lg', 'Lp1b')
    k.wait(vm=T0['l2'])
    e("s_barrier")
    stamp(10, chunk=True)
    def r2(n): return wf(L2P[n >> 2], n & 3, 32 + 4 * (n & 3))
    W = {}
    for n in range(3):
        for x in r2(n): W[n] = e(x)
    per = {n: [] for n in range(28)}
    FS = opt('fstep', 9)
    distribute(per, 0, FS - 1, atoms(poll_addr_text() + wa_text(), 3))
    per[FS] = ["s_waitcnt vmcnt(0)", f"buffer_store_dword v{vTG}, v{vZ0}, {WS}, s{sFLO} offen sc1\ns_add_u32 s{sFLO}, s{sFLO}, 4096"]
    pre = [tokset('pre', x) for u in range(5) for x, _ in wreads(u, vWP + 8 * u)]
    distribute(per, FS + 1, FS + 4, pre)
    distribute(per, FS + 6, 27, [lambda: k.wait(lg=T['pre'])] + [g for u in range(9, 14) for g in unit_dma(u)])
    for n in range(28):
        k.wait(lg=W[n])
        e(f"v_mfma_f32_32x32x16_bf16 {vr(AC[0],16)}, {vr(32+4*(n&3),4)}, {vr(vX+4*n,4)}, {'0' if n == 0 else vr(AC[0],16)}")
        if n + 3 < 28:
            for x in r2(n + 3): W[n + 3] = e(x)
        for x in per[n]: emit_item(x)
    e(f"v_mfma_f32_32x32x16_bf16 {vr(AC[0],16)}, {vr(vAA[2],4)}, {vr(vBA,4)}, {vr(AC[0],16)}")
    e("s_barrier")
    stamp(11, chunk=True)
    T['poll'] = e(POLL)
    st_ = k.state()
    e(f"s_mov_b32 s{sC0}, s{sHI}\ns_cmp_eq_u32 s{sHI}, 0\ns_cbranch_scc1 Lp2a")
    for g in p2_dma(2): e(g)
    k.label('Lp2a'); k.set_state(st_)
    e(f"s_cmp_eq_u32 s{mg}, 11\ns_cselect_b32 s{sHQO}, {DUMP}, s{sHQO}\ns_nop 7\ns_cmp_ge_u32 s{mg}, 9\ns_cbranch_scc1 Lphi2")
    st1 = k.state()
    tile(AC[0], 80, 'G', True)
    def phi2():
        k.label('Lphi2'); k.set_state(st1)
        tile(AC[0], 80, 'P', True)
        e("s_branch Lp2")
    outline.append(phi2)
    stamp(12, chunk=True)

def phase1_KV():
    g = sMG
    kAX2 = 64; vRA = 68; vZA_ = 25
    e(f"""s_and_b32 s{sT0}, s{sXCD}, 1
s_mul_i32 s{sT1}, s{sT0}, 3
s_add_u32 s{sT3}, s{sT0}, 1
s_cmp_eq_u32 s{sGSEL}, 6
s_cselect_b32 s{g}, s{sT1}, s{sT3}
s_mul_i32 s{sT0}, s{g}, 224
s_cmp_eq_u32 s{g}, 3
s_cselect_b32 s{sT0}, 640, s{sT0}
s_add_u32 s{sT0}, s{sT0}, 896
v_lshrrev_b32 v4, 4, v0
v_lshlrev_b32 v5, 2, v4
v_sub_u32 v5, v0, v5
v_and_b32 v5, 15, v5
v_lshl_add_u32 v5, v5, 4, s{sT0}
v_lshl_add_u32 v4, s{sW}, 3, v4
v_mul_u32_u24 v4, 2688, v4
v_add_u32 v{vDW0}, v4, v5
v_add_u32 v{vDW0+1}, {4*2688}, v{vDW0}
s_lshl_b32 s{sM0W}, s{sW}, 11
s_add_u32 s{sM0W}, s{sM0W}, 16384""")
    rtok = after_kernarg()
    stamp(0)
    e(srd_s(rW0, pWQKV, 448 * 2688))
    D = {}
    for x in p1_dma('KV', 0): D[0] = e(x)
    e('s_branch Lkv2')
    yield
    k.label('Lkv2')
    e(f"s_and_b32 s{sLO}, s{sW}, 3\ns_lshr_b32 s{sHI}, s{sW}, 2\ns_lshl_b32 s{sT3}, s{sHI}, 13")
    loop_setup(0)
    e(f"""s_cmp_eq_u32 s{g}, 3
s_cselect_b32 s{sT1}, 32, 0
s_mul_i32 s{sT0}, s{sLO}, 56
s_add_u32 s{sT1}, s{sT1}, s{sT0}
v_bfe_u32 v4, v0, 2, 2
v_lshl_add_u32 v5, v4, 6, s{sT1}
v_bfe_u32 v6, v0, 4, 1
v_lshl_add_u32 v5, v6, 5, v5
v_and_b32 v6, 3, v0
v_lshl_add_u32 v5, v6, 3, v5
v_and_b32 v5, 255, v5
v_lshrrev_b32 v6, 5, v0
v_lshl_add_u32 v4, v6, 3, v4
v_lshl_add_u32 v5, v4, 8, v5
v_add_u32 v{vAW}, 16384, v5
v_add_u32 v{vAW+1}, {16384+SLOT}, v5
v_add_u32 v{vAW+2}, {16384+2*SLOT}, v5""")
    for x in p1_dma('KV', 1): D[1] = e(x)
    mall_prefetch()
    rowstat(rtok)
    vXA = 136; vWAu = 144; r1 = 152; R = 154; vC = 160; vR = 176
    setup1 = "".join(f"v_add_u32 v{kAX2+j}, {2*SLOT}, v{vAX+j}\n" for j in range(4)) + \
        f"s_lshl_b32 s{sTILE0}, s{g}, 2\ns_add_u32 s{sTILE0}, s{sTILE0}, s{sLO}\ns_add_u32 s{sT4}, s{sTILE0}, 24\n" + cs_addr_text(sT4, sHI)
    setup2 = f"""s_lshl_b32 s{sT0}, s{sRB}, 11
s_lshl_b32 s{sT1}, s{sHI}, 10
s_add_u32 s{sT0}, s{sT0}, s{sT1}
s_add_u32 s{sT0}, s{sT0}, {STATS}
v_add_u32 v{vGA}, s{sT0}, v{vL16}
""" + p2_setup_text() + poll_addr_text() + f"""s_mov_b32 s{sFLO}, {DUMP}
s_add_u32 s{sT0}, s{sM0X}, {SCR}
v_lshl_add_u32 v6, v0, 2, s{sT0}
v_lshrrev_b32 v7, 5, v0
v_lshl_add_u32 v7, v7, 4, s{sT0}
""" + "".join(f"v_mov_b32 v{r}, 0\n" for r in (vXA+2, vXA+3, vXA+6, vXA+7, vWAu+2, vWAu+3, vWAu+6, vWAu+7)) + f"""s_mov_b32 s{sMKM}, 0x10000000
s_mov_b32 s{sMKM+1}, 0x10000000
s_lshl_b32 s{sT0}, s{sLO}, 12
s_add_u32 s{sT0}, s{sT0}, {SCR}
v_add_u32 v26, s{sT0}, v{vL16}
s_lshl_b32 s{sHQO}, s{sTILE0}, 4
s_add_u32 s{sHQO}, s{sHQO}, s{sRB}
s_lshl_b32 s{sHQO}, s{sHQO}, 12
s_add_u32 s{sHQO}, s{sHQO}, {KVP}
v_mov_b32 v27, 0xff
v_mov_b32 v12, 0x3f803f80
s_bfe_u32 s{sPSTEP0}, s{sTAG}, 0x80008
s_bfe_u32 s{sPSTEP0+1}, s{sTAG}, 0x80010
s_lshr_b32 s{sPSTEP0+2}, s{sTAG}, 24
s_and_b32 s{sSO2}, s{sTAG}, 0xff
s_and_b32 s{sT0}, s{sTB}, 1
s_mul_i32 s{sT0}, s{sT0}, 7
s_add_u32 s{sRCT}, s{sT0}, s{sW}
s_lshr_b32 s{sT0}, s{sTB}, 1
s_mul_i32 s{sT0}, s{sT0}, 28
v_lshrrev_b32 v4, 2, v0
v_add_u32 v4, s{sT0}, v4
v_mul_u32_u24 v4, 896, v4
v_and_b32 v5, 3, v0
v_lshl_add_u32 v4, v5, 4, v4
s_lshl_b32 s{sT0}, s{sRCT}, 6
v_add_u32 v68, s{sT0}, v4
v_add_u32 v69, {16*896}, v68
""" + srd_s(rMISC, pWO, 448 * 896) + f"""s_cmp_eq_u32 s{sGSEL}, 7
s_cselect_b32 s{rMISC+2}, s{rMISC+2}, 0
"""
    gl, gcheck = gran_items()
    m, var = vSG, vSG + 2
    aug = [gcheck] + lines(f"""v_add_f32 v{r1}, {f32(EPS)}, v{var}
v_rsq_f32 v{r1}, v{r1}
v_cvt_pk_bf16_f32 v{R}, -v{m}, 0
v_mul_f32 v{r1+1}, {f32(LOG2E)}, v{r1}
ds_write_b32 v6, v{r1+1}""") + cs_sum(2, vC) + lines(f"""v_lshlrev_b32 v{R+1}, 16, v{R}
v_sub_f32 v{R+1}, -v{m}, v{R+1}
v_cvt_pk_bf16_f32 v{R+3}, -v{m}, v{R+1}
v_cndmask_b32 v{vXA}, v{R+3}, 0, {HALF}
v_cndmask_b32 v{vXA+1}, v{R}, 0, {HALF}
v_cndmask_b32 v{vXA+4}, 0, v{R+3}, {HALF}
v_cndmask_b32 v{vXA+5}, 0, v{R}, {HALF}""")
    for kv in range(2):
        c = vC + kv; a = vWAu + 4 * kv
        aug += lines(f"""v_cvt_pk_bf16_f32 v{a}, v{c}, v{c}
v_and_b32 v{R+4}, 0xffff0000, v{a}
v_sub_f32 v{R+4}, v{c}, v{R+4}
v_cvt_pk_bf16_f32 v{a+1}, v{R+4}, 0""")
    rr = []
    for u in range(2):
        for gq in range(4):
            rr.append(f"ds_read_b128 {vr(vR+16*u+4*gq,4)}, v7 offset:{128*u+32*gq}")
    per = {n: [] for n in range(28)}
    distribute(per, 0, 4, atoms(misc_text() + setup1, 3)); per[5] = cs_pub(2, 136, 188) + per[5]
    distribute(per, 6, 17, atoms(setup2))
    G0 = opt('kgstep', 13)
    per[G0] += gl
    distribute(per, 19, 23, aug)
    distribute(per, 24, 25, rr)
    distribute(per, 26, 27, atoms(wa_text(), 3))
    main_loop('KV', D, per, kAX2, [p2_dma(0), p2_dma(1)])
    for t in range(4): e(f"v_mfma_f32_32x32x16_bf16 {vr(vACC+16*t,16)}, {vr(vXA+4*(t>>1),4)}, {vr(vWAu+4*(t&1),4)}, {vr(vACC+16*t,16)}")
    stamp(2); stamp(9, chunk=True)
    vT = vXB; vPK = 48; vPVv = 56; vKV = 160
    e(f"s_mov_b32 s{sMK}, 0x3f317218\ns_mov_b32 s{sMK+1}, 0x3f317218")
    k.wait(vm=D[8])
    for u in range(5):
        for x, _ in wreads(u, vWP + 8 * u): e(x)
    def w2tail(cond):
        L, Lh = k.newlabel('Lkt'), k.newlabel('Lkt'); st_ = k.state()
        e(f"s_cmp_{cond}_u32 s{sHI}, 0\ns_cbranch_scc1 {L}")
        e(f"s_cmp_eq_u32 s{sGSEL}, 7\ns_cbranch_scc1 {Lh}")
        for g in p2_dma(2): e(g)
        e("s_waitcnt lgkmcnt(0)")
        for g in [g for u in range(9, 14) for g in unit_dma(u)]: e(g)
        e(f"s_branch {L}")
        k.label(Lh)
        e(f"s_mov_b32 m0, s{sM0X}\ns_nop 0\nbuffer_load_dwordx4 v68, s[{rMISC}:{rMISC+3}], 0 offen lds")
        e(f"s_add_u32 m0, s{sM0X}, 1024\ns_nop 0\nbuffer_load_dwordx4 v69, s[{rMISC}:{rMISC+3}], 0 offen lds")
        k.label(L); k.set_state(st_)
    w2tail('eq')
    e("s_nop 7")
    for u in range(2):
        ak, av = vACC + 32 * u, vACC + 32 * u + 16
        for h in range(2):
            a_ = ak + 8 * h; t_ = vT + 8 * h; r_ = vR + 16 * u + 8 * h
            for p in range(4): e(f"v_pk_mul_f32 {vr(a_+2*p,2)}, {vr(a_+2*p,2)}, {vr(r_+2*p,2)}")
            for p in range(8): e(f"v_exp_f32 v{t_+p}, v{a_+p} clamp")
            for p in range(8): e(f"v_max_f32 v{a_+p}, 0, v{a_+p}")
            for p in range(4): e(f"v_pk_add_f32 {vr(t_+2*p,2)}, {vr(t_+2*p,2)}, {sr(sEPS,2)}")
            for p in range(4): e(f"v_pk_fma_f32 {vr(t_+2*p,2)}, {vr(a_+2*p,2)}, {sr(sMK,2)}, {vr(t_+2*p,2)}")
            for p in range(4): e(f"v_cvt_pk_bf16_f32 v{vPK+4*h+p}, v{t_+2*p}, v{t_+2*p+1}")
        for p in range(8): e(f"v_pk_mul_f32 {vr(av+2*p,2)}, {vr(av+2*p,2)}, {vr(vR+16*u+2*p,2)}")
        for p in range(8): e(f"v_cvt_pk_bf16_f32 v{vPVv+p}, v{av+2*p}, v{av+2*p+1}")
        for p in range(8): e(f"v_cndmask_b32 v{vPVv+p}, v{vPVv+p}, v12, s[{sMKM}:{sMKM+1}]")
        for h in range(2):
            cin = '0' if (u == 0 and h == 0) else vr(vKV, 16)
            e(f"v_mfma_f32_32x32x16_bf16 {vr(vKV,16)}, {vr(vPVv+4*h,4)}, {vr(vPK+4*h,4)}, {cin}")
    L1, L2 = k.newlabel('Lc'), k.newlabel('Lc')
    e(f"s_cmp_lg_u32 s{sHI}, 0\ns_cbranch_scc1 {L1}")
    for gq in range(4): e(f"ds_write_b128 v26, {vr(vKV+4*gq,4)} offset:{1024*gq}")
    e("s_waitcnt lgkmcnt(0)")
    k.label(L1)
    if opt('ktail', 0): w2tail('lg')
    e("s_barrier")
    st = k.state()
    e(f"s_cmp_eq_u32 s{sHI}, 0\ns_cbranch_scc1 {L2}")
    tk = [e(f"ds_read_b128 {vr(vT+4*gq,4)}, v26 offset:{1024*gq}") for gq in range(4)]
    e("s_nop 3")
    tb = [sTAG, sPSTEP0, sPSTEP0 + 1, sPSTEP0 + 2]
    for gq in range(4):
        k.wait(lg=tk[gq])
        for p in range(2): e(f"v_pk_add_f32 {vr(vKV+4*gq+2*p,2)}, {vr(vKV+4*gq+2*p,2)}, {vr(vT+4*gq+2*p,2)}")
        for d in range(4): e(f"v_bfi_b32 v{vKV+4*gq+d}, v27, s{tb[d]}, v{vKV+4*gq+d}")
        e(f"buffer_store_dwordx4 {vr(vKV+4*gq,4)}, v{vL16}, {WS}, s{sHQO} offen offset:{1024*gq} sc1")
    k.label(L2)
    k.set_state(st)
    e("s_barrier")
    if not opt('ktail', 0): w2tail('lg')
    stamp(3); stamp(12, 4)

def reducer():
    hd = sRHD
    WOB = 0; AF = SLOT + 16384
    vWF = 16; vP = 72; vXc = 56; vS = 60
    L1 = k.newlabel('Lr')
    e(f"""s_lshr_b32 s{hd}, s{sTB}, 1
s_lshl_b32 s{sT0}, s{hd}, 16
s_lshl_b32 s{sT1}, s{sLO}, 10
s_add_u32 s{sT0}, s{sT0}, s{sT1}
s_add_u32 s{sT0}, s{sT0}, {KVP}
v_add_u32 v12, s{sT0}, v{vL16}
s_lshl_b32 s{sT1}, s{sW}, 11""")
    tb = [sTAG, sPSTEP0, sPSTEP0 + 1, sPSTEP0 + 2]
    st = k.state()
    e(f"s_cmp_ge_u32 s{sW}, 4\ns_cbranch_scc1 Lr_a")
    ck = Checked()
    toks = []
    for rb in range(16):
        toks.append(ck.load(f"s_mov_b32 s{sT0}, {rb*4096}\nbuffer_load_dwordx4 {vr(vP+4*rb,4)}, v12, {WS}, s{sT0} offen sc1"))
    k.label('Lr_a')
    e(f"""v_lshrrev_b32 v6, 5, v0
v_lshlrev_b32 v6, 2, v6
v_bfe_u32 v7, v0, 2, 2
v_add_u32 v6, v6, v7
v_lshlrev_b32 v6, 6, v6
v_bfe_u32 v7, v0, 4, 1
v_lshl_add_u32 v6, v7, 5, v6
v_and_b32 v7, 3, v0
v_lshl_add_u32 v6, v7, 3, v6
s_add_u32 s{sT1}, s{sT1}, {WOB}
v_add_u32 v14, s{sT1}, v6
s_mov_b32 s{sMKM}, 0
s_cmp_eq_u32 s{sW}, 3
s_cselect_b32 s{sMKM+1}, -1, 0
s_lshl_b32 s{sFLO}, s{sRCT}, 11
s_lshl_b32 s{sT1}, s{hd}, 7
s_add_u32 s{sFLO}, s{sFLO}, s{sT1}
s_add_u32 s{sFLO}, s{sFLO}, {FLM + (4 if 'flag1' in DBG else 0)}
s_mul_i32 s{sRMB}, s{sRCT}, {28*1024}
s_mul_i32 s{sT3}, s{hd}, {7*256}
s_add_u32 s{sRMB}, s{sRMB}, s{sT3}
s_add_u32 s{sRMB}, s{sRMB}, {MB}
s_cmp_eq_u32 s{sW}, 7
s_cselect_b32 s{sFLO}, {DUMP}, s{sFLO}
s_cselect_b32 s{sRMB}, {DUMP}, s{sRMB}
v_add_u32 v15, {AF}, v{vL16}
v_lshlrev_b32 v8, 3, v0
v_mov_b32 v6, {DUMP}
v_cndmask_b32 v9, v8, v6, {HALF}
s_add_u32 s{sT1}, s{sT1}, {ZG}
v_and_b32 v4, 31, v0
v_lshl_add_u32 v4, v4, 2, s{sT1}
s_cmp_eq_u32 s{sRCT}, 3
s_mov_b32 vcc_lo, 0
s_cselect_b32 vcc_hi, 0x55555555, 0
v_cndmask_b32 v10, v6, v4, vcc
s_lshr_b32 s{sT3}, s{sW}, 1
s_lshl_b32 s{sT3}, s{sT3}, 10
s_and_b32 s{sT1}, s{sW}, 1
s_lshl_b32 s{sT1}, s{sT1}, 3
s_add_u32 s{sT3}, s{sT3}, s{sT1}
v_add_u32 v5, s{sT3}, v15
v_mov_b32 v7, s{sTAG}""")
    st_b = k.state()
    e(f"s_cmp_lt_u32 s{sW}, 4\ns_cbranch_scc1 Lr_b\ns_waitcnt vmcnt(4)")
    k.label('Lr_b'); k.set_state(st_b)
    e("s_waitcnt vmcnt(16)")
    for s in range(2):
        for rd in range(2): e(f"ds_read_b64_tr_b16 {vr(vWF+4*s+2*rd,2)}, v14 offset:{s*1024+rd*512}")
    e(f"s_cmp_ge_u32 s{sW}, 4\ns_cbranch_scc1 Lr_join")
    for gidx in range(4):
        c = []
        b0 = vP + 16 * gidx
        for i in range(16): c.append(f"v_xor_b32 v{b0+i}, s{[sSO2, sPSTEP0, sPSTEP0 + 1, sPSTEP0 + 2][i & 3]}, v{b0+i}")
        c += [f"v_or3_b32 v{vXc}, v{b0}, v{b0+1}, v{b0+2}", f"v_or3_b32 v{vXc+1}, v{b0+3}, v{b0+4}, v{b0+5}"]
        for i in range(6, 16, 2): c.append(f"v_or3_b32 v{vXc+((i>>1)&1)}, v{vXc+((i>>1)&1)}, v{b0+i}, v{b0+i+1}")
        c += [f"v_or_b32 v{vXc}, v{vXc}, v{vXc+1}", f"v_and_b32 v{vXc}, 0xff, v{vXc}", f"v_cmp_ne_u32 vcc, 0, v{vXc}", "s_cmp_lg_u64 vcc, 0"]
        ck.check(toks[4 * gidx], toks[4 * gidx + 3], "\n".join(c), sleep=opt('rsleep', 2))
        b = vP + 16 * gidx
        for p in range(2):
            e(f"v_pk_add_f32 {vr(b+2*p,2)}, {vr(b+2*p,2)}, {vr(b+4+2*p,2)}\nv_pk_add_f32 {vr(b+8+2*p,2)}, {vr(b+8+2*p,2)}, {vr(b+12+2*p,2)}")
        for p in range(2):
            if gidx == 0: e(f"v_pk_add_f32 {vr(vS+2*p,2)}, {vr(b+2*p,2)}, {vr(b+8+2*p,2)}")
            else: e(f"v_pk_add_f32 {vr(b+2*p,2)}, {vr(b+2*p,2)}, {vr(b+8+2*p,2)}")
        if gidx:
            for p in range(2): e(f"v_pk_add_f32 {vr(vS+2*p,2)}, {vr(vS+2*p,2)}, {vr(b+2*p,2)}")
    stamp(4)
    e(f"""v_pk_mul_f32 {vr(vXc,2)}, {vr(vS,2)}, {sr(sMK,2)}
v_pk_mul_f32 {vr(vXc+2,2)}, {vr(vS+2,2)}, {sr(sMK,2)}
v_mov_b32_dpp v6, v{vS} quad_perm:[1,1,3,3] row_mask:0xf bank_mask:0xf
v_cvt_pk_bf16_f32 v12, v{vXc}, v{vXc+1}
v_cvt_pk_bf16_f32 v13, v{vXc+2}, v{vXc+3}
v_cndmask_b32 v12, v12, 0, s[{sMKM}:{sMKM+1}]
v_cndmask_b32 v13, v13, 0, s[{sMKM}:{sMKM+1}]
ds_write_b64 v5, v[12:13]
v_cvt_pk_bf16_f32 v6, v{vS}, v6
buffer_store_dwordx2 v[6:7], v10, {WS}, 0 offen sc1""")
    k.label('Lr_join')
    e(f"s_waitcnt lgkmcnt(0)\ns_barrier")
    vAF = 32; vD = 96
    e(f"ds_read_b128 {vr(vAF,4)}, v15\nds_read_b128 {vr(vAF+4,4)}, v15 offset:1024")
    e("s_waitcnt lgkmcnt(1)")
    e(f"v_mfma_f32_32x32x16_bf16 {vr(vD,16)}, {vr(vAF,4)}, {vr(vWF,4)}, 0")
    e("s_waitcnt lgkmcnt(0)")
    e(f"v_mfma_f32_32x32x16_bf16 {vr(vD,16)}, {vr(vAF+4,4)}, {vr(vWF+4,4)}, {vr(vD,16)}")
    for gq in range(4):
        for p in range(2): e(f"v_cvt_pk_bf16_f32 v{112+2*gq+p}, v{vD+4*gq+2*p}, v{vD+4*gq+2*p+1}")
        e(f"buffer_store_dwordx2 {vr(112+2*gq,2)}, v{9 if gq == 3 else 8}, {WS}, s{sRMB} offen offset:{512*gq} sc1")
    stamp(5)
    e(f"s_waitcnt vmcnt(0)\nbuffer_store_dword v{vTG}, v{vZ0}, {WS}, s{sFLO} offen sc1")
    stamp(6)

def phase2():
    vHO = 4; vXR = 12; vWB2 = 16
    vA2 = 32; vH = 96
    vB2 = 248; vOUT = 3
    PRI2 = opt('pri2', 0)
    PSCHED = {1: {0: 2, 3: 1, 6: 0}, 2: {0: 2, 4: 1, 8: 0}, 3: {2: 2, 5: 1, 8: 0}, 4: {0: 2, 2: 1, 4: 0}}.get(PRI2, {})
    if opt('prio', 1) and not PRI2:
        e(f"s_cmp_lg_u32 s{sHI}, 0\ns_cbranch_scc1 Lprio\ns_setprio 0")
        k.label('Lprio')
    e(f"""s_mul_i32 s{sT1}, s{sTB}, {2*TSTR}
s_add_u32 s{sT1}, s{sT1}, {HQ}
s_mul_i32 s{sT0}, s{sHI}, {TSTR}
s_add_u32 s{sT3}, s{sT1}, s{sT0}
v_add_u32 v{vHO}, s{sT3}, v{vL16}
s_sub_u32 s{sT1}, s{sT1}, s{sT0}
s_add_u32 s{sT1}, s{sT1}, {TSTR}
v_add_u32 v{vHO+1}, s{sT1}, v{vL16}""")
    htok = {}
    def hl(j):
        o = []
        for s in range(2):
            for tt in range(2):
                def f(j=j, s=s, tt=tt): htok[(2*j+s, tt)] = e(f"buffer_load_dwordx4 {vr(vH+16*j+8*s+4*tt,4)}, v{vHO+tt}, {WS}, s{sHT+j} offen offset:{1024*s} sc1")
                o.append(f)
        return o
    PS = opt('psleep', 3)
    t0, t1 = vXR, vXR + 1
    e(srd_s(rMISC, pB2, 896))
    e(f"""v_lshrrev_b32 v{t0}, 3, v0
s_lshl_b32 s{sT0}, s{sTB}, 6
s_lshl_b32 s{sT1}, s{sW}, 3
s_add_u32 s{sT0}, s{sT0}, s{sT1}
v_add_u32 v{t0}, s{sT0}, v{t0}
v_mul_u32_u24 v{t0}, 896, v{t0}
v_and_b32 v{t1}, 7, v0
v_lshlrev_b32 v{t1}, 4, v{t1}
s_lshl_b32 s{sT0}, s{sCT}, 7
v_add_u32 v{t1}, s{sT0}, v{t1}
v_add_u32 v{t0}, v{t0}, v{t1}""")
    k.nt += 1; own = k.nt; k.vm.append(own)
    for j in range(7): e(f"s_lshl_b32 s{sHT+j}, s{sTAB+j}, 11")
    FF = opt('flagfirst', 1)
    def ownflag():
        k.wait(vm=own)
        e(f"buffer_store_dword v{vTG}, v{vZ0}, {WS}, s{sFLO} offen sc1")
        stamp(8); stamp(13, 4)
    if FF: ownflag()
    if 'delay' in DBG:
        e('s_barrier')
        for _ in range(2): e('s_sleep 127')
        e('s_barrier')
    if 0 in PSCHED: e(f"s_setprio {PSCHED[0]}")
    verify(POLL, poll_test(3, 3), PS)
    stamp(9); stamp(15, 4)
    LA = 3
    for j in range(2):
        for f in hl(j): f()
    if not FF: ownflag()
    PACE = opt('pace', 0)
    if not PACE:
        for f in hl(2): f()
    st_ = k.state()
    e(f"s_cmp_lg_u32 s{sC0}, 0\ns_cbranch_scc1 Lnolate2")
    for g in p2_dma(2): e(g)
    k.label('Lnolate2')
    k.set_state(st_)
    e(f"""s_mul_i32 s{sSO0}, s{sLO}, {7*1024}
s_add_u32 s{sSO1}, s{sSO0}, {112*1024}
s_add_u32 s{sSO2}, s{sSO1}, 4096
v_mov_b32 v{vOUT}, v{t0}
v_lshrrev_b32 v2, 5, v0
v_lshlrev_b32 v2, 4, v2""")
    vZ = vWP
    vZA = vWP + 28; vZD = vWP + 38
    PITCH = 272
    w1, w0, ro, rs, m0_, m1_, x0 = [vWP + 31 + i for i in range(7)]
    x1 = vZ + 3
    addr = f"""v_mul_u32_u24 v{vZ}, 37, v0
v_lshrrev_b32 v{vZ}, 9, v{vZ}
v_lshlrev_b32 v{vZ+1}, 3, v0
v_lshl_add_u32 v{vZ+1}, v{vZ}, 4, v{vZ+1}
s_lshl_b32 s{sT3}, s{sLO}, 9
s_add_u32 s{sPD}, s{sT3}, {ZG}
v_add_u32 v{vZ+1}, s{sPD}, v{vZ+1}
s_lshl_b32 s{sPD}, s{sCT}, 12
s_add_u32 s{sPD}, s{sPD}, s{sT3}
s_lshl_b32 s{sT3}, s{sHI}, 11
s_add_u32 s{sPD}, s{sPD}, s{sT3}
s_add_u32 s{sPD}, s{sPD}, {FLM}
v_and_b32 v{vZ+2}, 3, v0
v_lshl_add_u32 v{vZ+2}, v{vZ+2}, 7, s{sPD}
v_cmp_gt_u32 vcc, 56, v0
v_cndmask_b32 v{vZA}, v{vZ+2}, v{vZ+1}, vcc
v_lshrrev_b32 v{vZ}, 3, v0
v_lshlrev_b32 v{vZ}, 5, v{vZ}
v_bfe_u32 v{vZ+1}, v0, 1, 1
v_lshl_add_u32 v{vZ}, v{vZ+1}, 4, v{vZ}
v_bfe_u32 v{vZ+1}, v0, 2, 1
v_lshl_add_u32 v{vZ}, v{vZ+1}, 3, v{vZ}
v_and_b32 v{vZ+1}, 1, v0
v_lshl_add_u32 v{vZ}, v{vZ+1}, 2, v{vZ}
s_lshl_b32 s{sPD}, s{sW}, 8
s_add_u32 s{sPD}, s{sPD}, {SCR2 + 2048}
v_add_u32 v{vZA+1}, s{sPD}, v{vZ}
v_add_u32 v{vZA+2}, s{sPD}, v2
s_mul_i32 s{sT4}, s{sW}, {7*1024}
s_mul_i32 s{sT0}, s{sCT}, {56*1024}
s_add_u32 s{sT0}, s{sT0}, s{sT4}
s_add_u32 s{sT0}, s{sT0}, {MB}
s_lshl_b32 s{sT4}, s{sW}, 10
s_add_u32 s{sT4}, s{sT4}, {SCR}
v_and_b32 v{x0}, 15, v0
v_mul_u32_u24 v{w1}, {PITCH}, v{x0}
v_bfe_u32 v{x0}, v0, 4, 1
v_mul_u32_u24 v{x0}, {SLOT}, v{x0}
v_add3_u32 v{w1}, v{w1}, v{x0}, v2
s_add_u32 s{sPD}, s{sM0P}, {SLOT}
v_add_u32 v{w1}, s{sPD}, v{w1}
v_lshrrev_b32 v{x0}, 3, v0
s_and_b32 s{sPD}, s{sLO}, 1
v_lshl_add_u32 v{x0}, s{sPD}, 3, v{x0}
v_mul_u32_u24 v{ro}, {PITCH}, v{x0}
v_and_b32 v{x1}, 7, v0
v_lshl_add_u32 v{ro}, v{x1}, 5, v{ro}
s_lshr_b32 s{sPD}, s{sLO}, 1
s_add_u32 s{sPD}, s{sPD}, 1
s_mul_i32 s{sPD}, s{sPD}, {SLOT}
s_xor_b32 s{sT3}, s{sHI}, 1
s_mul_i32 s{sT3}, s{sT3}, {4*6144}
s_add_u32 s{sPD}, s{sPD}, s{sT3}
v_add_u32 v{ro}, s{sPD}, v{ro}
s_lshl_b32 s{sPD}, s{sW}, 13
s_add_u32 s{sT3}, s{sPD}, {SCR - 6*8192}
s_cmp_ge_u32 s{sW}, 6
s_cselect_b32 s{sPD}, s{sT3}, s{sPD}
v_and_b32 v{x0}, 31, v0
v_lshl_add_u32 v{w0}, v{x0}, 8, s{sPD}
v_and_b32 v{x0}, 7, v0
v_lshlrev_b32 v{x0}, 4, v{x0}
v_xor_b32 v{x0}, v{x0}, v2
v_add_u32 v{w0}, v{w0}, v{x0}
v_lshrrev_b32 v{x0}, 3, v0
v_lshlrev_b32 v{x1}, 1, v{x1}
v_xor_b32 v{x1}, v{x1}, v{x0}
v_lshlrev_b32 v{x1}, 4, v{x1}
v_lshl_add_u32 v{rs}, v{x0}, 8, v{x1}
s_lshl_b32 s{sPD}, s{sLO}, 11
s_lshl_b32 s{sT3}, s{sHI}, 15
s_add_u32 s{sPD}, s{sPD}, s{sT3}
v_add_u32 v{rs}, s{sPD}, v{rs}
s_mul_i32 s{sPD}, s{sLO}, 6144
v_lshlrev_b32 v{x0}, 3, v0
v_add_u32 v{m0_}, s{sPD}, v{x0}
s_lshl_b32 s{sPD}, s{sLO}, 10
s_add_u32 s{sPD}, s{sPD}, {SCR}
v_add_u32 v{m1_}, s{sPD}, v{x0}
""" + srd_s(rMISC, pOUT, 2048 * 896)
    per = {u: [] for u in range(14)}
    Z = {}
    vQ = vH
    ZL = f"buffer_load_dwordx2 {vr(vZD,2)}, v{vZA}, {WS}, 0 offen sc1"
    ql = [f"buffer_load_dwordx4 {vr(vQ+4*q,4)}, v{vHO}, {WS}, s{sSO1 if q < 4 else sSO2} offen offset:{1024*(q&3)} sc1" for q in range(7)]
    XB = [f"buffer_load_dwordx4 {vr(vB2,4)}, v{t1}, s[{rMISC}:{rMISC+3}], 0 offen", f"buffer_load_dwordx4 {vr(vXR,4)}, v{vOUT}, s[{rX}:{rX+3}], 0 offen"]
    if PACE:
        seq = hl(2) + hl(3) + hl(4) + hl(5) + hl(6)
        for i in range(10): per[i] += seq[2 * i: 2 * i + 2]
        per[2] = [lambda: Z.__setitem__('p', e(POLL2))] + per[2]
        q0 = opt('pq', 6)
        for i, x in enumerate(ql): per[q0 + i * 4 // 7] += [x]
        per[10] = XB + per[10]
    else:
        per[0] += hl(3)
        per[1] += [lambda: Z.__setitem__('p', e(POLL2)), f"buffer_load_dwordx4 {vr(vB2,4)}, v{t1}, s[{rMISC}:{rMISC+3}], 0 offen", f"buffer_load_dwordx4 {vr(vXR,4)}, v{vOUT}, s[{rX}:{rX+3}], 0 offen"]
        if 'stream' in DBG: per[1] += hl(4); per[2] += hl(5); per[3] += hl(6); per[4] += ql[:4]; per[5] += ql[4:]
        elif opt('qfirst', 1): per[4] += hl(4); per[5] += ql[:4]; per[6] += ql[4:] + hl(5)[:1]; per[7] += hl(5)[1:]; per[8] += hl(6)
        else: per[4] += hl(4); per[5] += hl(5); per[6] += hl(6); per[7] += ql[:4]; per[8] += ql[4:]
    distribute(per, 5, 11, atoms(addr, 3))
    per[opt('zu', 10)] += [ZL]
    tok = {}
    for u in range(14):
        j, s = divmod(u, 2); base = vH + 16 * j
        cur = tok; tok = {}
        stamp(1 + u, p2=True)
        if u in PSCHED and u: e(f"s_setprio {PSCHED[u]}")
        rd = wreads(u + 1, vWB2 + 8 * ((u + 1) & 1)) if 5 <= u + 1 < 14 else []
        wsrc = vWP + 8 * u if u < 5 else vWB2 + 8 * (u & 1)
        mf = []
        for tt in ((1, 0) if u == 13 else (0, 1)):
            for c in range(2):
                acc = vr(vA2 + 32 * tt + 16 * c, 16)
                mf.append(('m', (f"v_mfma_f32_32x32x16_bf16 {acc}, {vr(wsrc+4*c,4)}, {vr(base+8*s+4*tt,4)}, {'0' if u == 0 else acc}", c, tt)))
        if u == 4 and 'stream' in DBG: k.wait(vm=Z['p'])
        elif u == 4:
            k.wait(vm=Z['p'])
            if 'nopoll2' not in DBG: verify(POLL2, poll_test(0xf7, 7), PS)
            stamp(10)
        for kind_, x in spread(mf, [('r', x) for x in rd] + [('f', x) for x in per[u]]):
            if kind_ == 'm':
                k.wait(vm=htok[(u, x[2])], lg=cur.get(x[1])); e(x[0])
            elif kind_ == 'r': tok[x[1]] = e(x[0])
            else: emit_item(x)
    stamp(4); stamp(14, 4); stamp(15, p2=True)
    vF = vWB2; vG = vWB2 + 8
    if PACE: e('s_waitcnt vmcnt(0)')
    for d in range(4):
        e(f"""v_lshlrev_b32 v{vF+2*d}, 16, v{vXR+d}
v_and_b32 v{vF+2*d+1}, 0xffff0000, v{vXR+d}
v_lshlrev_b32 v{vG+2*d}, 16, v{vB2+d}
v_and_b32 v{vG+2*d+1}, 0xffff0000, v{vB2+d}""")
    def mdma():
        for q in range(7):
            m = f"s_add_u32 m0, s{sM0P}, {1024*q}" if q < 6 else f"s_mov_b32 m0, s{sT4}"
            e(f"{m}\ns_add_u32 s{sT1}, s{sT0}, {1024*q}\nbuffer_load_dwordx4 v{vL16}, {WS}, s{sT1} offen sc1 lds")
    ZM = 0 if 'nozm' in DBG else 0xffffffff
    ztest = lambda lo, hi: ztest_(lo & ZM, hi & ZM)
    ztest_ = lambda lo, hi: f"v_cmp_ne_u32 vcc, s{sTAG}, v{vZD+1}\ns_mov_b32 s{sMK}, {lo:#x}\ns_mov_b32 s{sMK+1}, {hi:#x}\ns_and_b64 vcc, vcc, s[{sMK}:{sMK+1}]"
    e("s_waitcnt vmcnt(0)")
    e(f"s_mov_b32 s{sC0}, 0"); e(ztest(0, 0xff000000)); e("s_cbranch_scc1 Lnom")
    e(f"s_mov_b32 s{sC0}, 1"); mdma()
    k.label('Lnom')
    for c in range(2):
        for gq in range(4): e(f"ds_write_b128 v{w1}, {vr(vA2+32+16*c+4*gq,4)} offset:{c*128+gq*32}")
    for d in range(8): e(f"v_add_f32 v{vF+d}, v{vF+d}, v{vG+d}")
    tgt = {}
    for hi in range(2):
        for r in range(4): tgt[r + 4 * hi] = r
        tgt[8 + 4 * hi] = hi; tgt[9 + 4 * hi] = 2 + hi
    def rowmask(h): return sum(1 << i for i, t in tgt.items() if t == h)
    slot = {0: 0, 1: 0, 2: 0, 3: 4, 4: 1, 5: 1, 6: 1, 7: 2, 8: 2, 9: 2, 10: 5, 11: 3, 12: 3, 13: 3}
    vU = vG; vDN = vH + 32; R = 4
    def den_scale():
        e(f"ds_write_b32 v{vZA+1}, v{vZD}")
        for s in range(7): e(f"ds_read_b128 {vr(vZ+4*s,4)}, v{vZA+2} offset:{32*s}")
        e("s_waitcnt lgkmcnt(0)")
        prev = None
        for s in range(7):
            for q in (2 * s, 2 * s + 1):
                mk = (rowmask(2 * q // 7), rowmask((2 * q + 1) // 7))
                if mk != prev: e(f"s_mov_b32 s{sMK}, {mk[0]:#x}\ns_mov_b32 s{sMK+1}, {mk[1]:#x}"); prev = mk
                for d in range(2): e(f"v_cndmask_b32 v{vZ+2*q+d}, 0, v{vZ+2*q+d}, s[{sMK}:{sMK+1}]")
            if s: e(f"v_mfma_f32_32x32x16_bf16 {vr(vDN,16)}, {vr(vZ+4*s-4,4)}, {vr(vQ+4*s-4,4)}, {'0' if s == 1 else vr(vDN,16)}")
        e(f"v_mfma_f32_32x32x16_bf16 {vr(vDN,16)}, {vr(vZ+24,4)}, {vr(vQ+24,4)}, {vr(vDN,16)}")
        UP = vH + 48
        for x in range(28): e(f"v_lshlrev_b32 v{UP+2*x}, 16, v{vQ+x}\nv_and_b32 v{UP+2*x+1}, 0xffff0000, v{vQ+x}")
        for i in range(6): e(f"v_add_f32 v{R+2*i}, s{sEPS}, v{vDN+i}")
        for i in range(6): e(f"v_rcp_f32 v{R+2*i}, v{R+2*i}")
        for x in range(28): e(f"v_pk_mul_f32 {vr(UP+2*x,2)}, {vr(UP+2*x,2)}, {vr(R+2*slot[x>>1],2)} op_sel_hi:[1,0]")
        for x in range(28): e(f"v_cvt_pk_bf16_f32 v{vQ+x}, v{UP+2*x}, v{UP+2*x+1}")
    verify(ZL, ztest(0xffffffff, 0x00ffffff), opt('zsleep', 3))
    stamp(11)
    den_scale()
    e(f"s_cmp_lg_u32 s{sC0}, 0\ns_cbranch_scc1 Lhavem")
    e(ZL); e("s_waitcnt vmcnt(0)")
    verify(ZL, ztest(0, 0xff000000), opt('zsleep', 3))
    mdma()
    k.label('Lhavem')
    stamp(5)
    for i in range(1, 4): e(f"v_xor_b32 v{vZ+i}, {32*i}, v{w0}")
    e(f"v_mov_b32 v{vZ}, v{w0}\nv_xor_b32 v{vZ+4}, 16, v{rs}\ns_mul_i32 s{sT1}, s{sHI}, {SCR - 6*8192}\nv_add_u32 v{vZ+5}, s{sT1}, v{rs}\nv_add_u32 v{vZ+6}, s{sT1}, v{vZ+4}")
    e("s_waitcnt vmcnt(0)\ns_barrier")
    vM = vH + 32
    mt = {}
    for s in range(7):
        for c in range(2):
            pass
    def mread(i):
        c, s = divmod(i, 7)
        for jj in range(2):
            if s < 6: mt[i] = e(f"ds_read_b64 {vr(vM+4*i+2*jj,2)}, v{m0_} offset:{24576*c+1024*s+512*jj}")
            else: mt[i] = e(f"ds_read_b64 {vr(vM+4*i+2*jj,2)}, v{m1_} offset:{4096*c+512*jj}")
    for i in range(6): mread(i)
    ot = []
    for i in range(14):
        c, s = divmod(i, 7)
        k.wait(lg=mt[i])
        acc = vr(vA2 + 16 * c, 16)
        e(f"v_mfma_f32_32x32x16_bf16 {acc}, {vr(vM+4*i,4)}, {vr(vQ+4*s,4)}, {acc}")
        if i < 4: mread(6 + 2 * i); mread(7 + 2 * i)
        if i == 4:
            for q in range(4):
                for hh in range(2): ot.append(e(f"ds_read_b128 {vr(vA2+32+8*q+4*hh,4)}, v{ro} offset:{q*6144+16*hh}"))
        if i == 6:
            k.wait(lg=mt[13]); e("s_barrier")
        if i == 10:
            for gq in range(4): e(f"ds_write_b128 v{vZ+gq}, {vr(vA2+4*gq,4)}")
        if 7 <= i < 11:
            q = i - 7
            k.wait(lg=ot[2 * q + 1])
            for d in range(8): e(f"v_add_f32 v{vF+d}, v{vF+d}, v{vA2+32+8*q+d}")
    stamp(6)
    for gq in range(4): e(f"ds_write_b128 v{vZ+gq}, {vr(vA2+16+4*gq,4)} offset:128")
    e("s_waitcnt lgkmcnt(0)\ns_barrier")
    rt = []
    for q in range(4):
        for hh in range(2):
            a_ = [[rs, vZ + 4], [vZ + 5, vZ + 6]][q >> 1][hh]
            rt.append(e(f"ds_read_b128 {vr(vH+8*q+4*hh,4)}, v{a_} offset:{q*8192}"))
    for q in range(4):
        k.wait(lg=rt[2 * q + 1])
        for d in range(4): e(f"v_pk_add_f32 {vr(vF+2*d,2)}, {vr(vF+2*d,2)}, {vr(vH+8*q+2*d,2)}")
    for d in range(4): e(f"v_cvt_pk_bf16_f32 v{vG+d}, v{vF+2*d}, v{vF+2*d+1}")
    e(f"buffer_store_dwordx4 {vr(vG,4)}, v{vOUT}, s[{rMISC}:{rMISC+3}], 0 offen")
    stamp(7)
    e(f"s_or_b32 s{sT0}, s2, s{sW}\ns_cmp_lg_u32 s{sT0}, 0\ns_cbranch_scc1 Lend")
    e(f"v_mov_b32 v4, s{sTAG}\nv_mov_b32 v5, {EPOCH}\ns_mov_b64 exec, 1\nbuffer_store_dword v4, v5, {WS}, 0 offen")
    if 'pad' in DBG:
        k.label('Lpad')
        e(f"s_memrealtime vcc\ns_waitcnt lgkmcnt(0)\ns_sub_u32 s{sT0}, vcc_lo, s100\ns_cmp_lt_u32 s{sT0}, 4000\ns_cbranch_scc1 Lpad")

kn = NAME + '_kernel'
hdr = open(f'cdna_kernels/{NAME}.s.ref').read().split('; Override launch')[0]
head = hdr + f"; @launch grid=(256,1,1) block=(512,1,1) lds={LDS_BYTES}\n"
k.raw('.amdgcn_target "amdgcn-amd-amdhsa--gfx950"\n.text')
k.raw(f".globl {kn}\n.p2align 8\n.type {kn},@function\n{kn}:")
prologue()
st_pro = k.state()
kvgen = phase1_KV()
next(kvgen)
st_kv = k.state()
k.label('Lm'); k.set_state(st_pro)
phase1_M()
k.label('Lp2'); k.set_state(([], []))
phase2()
k.label('Lend'); e("s_endpgm")
k.set_state(st_kv)
for _ in kvgen: pass
e(f"s_cmp_eq_u32 s{sGSEL}, 7\ns_cbranch_scc1 Lred")
e(POLL)
e(f"s_waitcnt lgkmcnt(0)\ns_mov_b32 s{sC0}, 1\ns_branch Lp2")
k.label('Lred')
k.set_state(([], []))
reducer()
e("s_endpgm")
i = 0
while i < len(outline): outline[i](); i += 1
k.label('Lcode_end')
e("s_endpgm")
body, nnop = k.render()
kd = f""".amdhsa_kernel {kn}
  .amdhsa_next_free_vgpr 256
  .amdhsa_next_free_sgpr 102
  .amdhsa_accum_offset 256
  .amdhsa_group_segment_fixed_size 0
  .amdhsa_kernarg_size 88
  .amdhsa_user_sgpr_count 2
  .amdhsa_user_sgpr_kernarg_segment_ptr 1
  .amdhsa_system_sgpr_workgroup_id_x 1
.end_amdhsa_kernel
"""
out = head + body + '.section .rodata,"a"\n.p2align 6\n' + kd
outp = [a for a in sys.argv[1:] if not a.startswith('--')]
open(outp[0] if outp else f'cdna_kernels/{NAME}.s', 'w').write(out)
print("nops inserted:", nnop, "lines:", out.count('\n'))
```

```python
import sys, math, struct
sys.path.insert(0, 'gen')
from dsl import *

NAME = "parallel_sum__linear_attn_block__mixer_channel_mlp__prompt"
STAMPS = '--stamps' in sys.argv
DBG = set(a[6:] for a in sys.argv if a.startswith('--dbg-'))
def opt(name, default):
    for a in sys.argv:
        if a.startswith(f'--{name}='): return int(a.split('=')[1])
    return default
def f32(x): return '0x%08x' % struct.unpack('<I', struct.pack('<f', x))[0]
def lines(s): return [l.strip() for l in s.strip().split('\n') if l.strip()]

EPOCH = 0
ZG = 0x1000
FLM = 0x2000
STATS = 0x10000
CSG = 0x18000
MB = 0x40000
KVP = 0x100000
HQ = 0x200000
FLH = 0xB00000
WS_USED = 0xC00000
DUMP = 0x7000000
STAMP_OFF = 0x8000000
SLOT = 49152
SCR = 3 * SLOT
SCR2 = SCR + 8192
LDS_BYTES = 163840
EPS = 1e-5
LOG2E = math.log2(math.e)
GC0 = -2.0 * math.sqrt(2.0 / math.pi) * LOG2E
GC1 = 0.044715
SPIN_MAX = 20000
TSTR = 140 * 1024 + opt('tpad', 0)

sW = 3
pX, pWQKV, pWO, pBX, pW1, pB1, pW2, pB2, pOUT, pDBG, pWS = 4, 6, 8, 10, 12, 14, 16, 18, 20, 22, 24
sHQO, sFLO = 10, 11
sRHD, sRMB = 22, 23
sPM, sQM = 22, 23
sXCD, sSUB, sGSEL, sRB, sCC = 26, 27, 28, 29, 30
sT0, sT1, sT2, sT3, sT4 = 31, 32, 33, 34, 35
rX, rW0, rW1, rW2, rWS, rW2G, rMISC = 36, 40, 44, 48, 52, 56, 60
sSOX, sSO0, sSO1, sSO2 = 64, 65, 66, 67
sPSTEP0 = 68
sM0X, sM0W = 71, 72
sLO, sHI = 73, 74
sC0 = 75
sMK = 76
sHALF = 78
sTAB = 80
sRCT = 87
sEPS = 88
sMKM = 90
sMG = 92
sPD = 93
sTAG = 94
sCT, sTB = 95, 96
sTILE0 = 97
sM0P = 98
sMEAN = 99
sSTAMP = 100
sHT = 40

k = K()
e = k.e
outline = []
WS = f"s[{rWS}:{rWS+3}]"
HALF = f"s[{sHALF}:{sHALF+1}]"
def srd_s(r, ptr, nbytes):
    return f"s_mov_b32 s{r}, s{ptr}\ns_and_b32 s{r+1}, s{ptr+1}, 0xffff\ns_mov_b32 s{r+2}, {nbytes}\ns_mov_b32 s{r+3}, 0x20000\n"

def stamp(idx, wave=0, chunk=False, p2=False):
    if 'pad' in DBG:
        if idx == opt('padx', -1) and not chunk and not p2 and wave == 0:
            e(f"s_memrealtime vcc\ns_waitcnt lgkmcnt(0)\ns_mov_b32 s100, vcc_lo")
        return
    if not STAMPS: return
    if 'span' in DBG and (idx not in (0, 7) or chunk or p2): return
    if 'p2' in DBG:
        if idx > 0 and not p2: return
        if p2: wave = opt('sw', 0)
    elif p2: return
    elif ('chunks' in DBG) != chunk and idx > 1: return
    L = k.newlabel('Lst')
    st = k.state()
    e(f"s_cmp_lg_u32 s{sW}, {wave}\ns_cbranch_scc1 {L}")
    e(f"s_memrealtime s[{sSTAMP}:{sSTAMP+1}]\ns_memtime vcc\ns_waitcnt lgkmcnt(0)")
    e(f"v_mov_b32 v254, s{sSTAMP}\nv_mov_b32 v255, s{sSTAMP+1}")
    e(f"s_lshl_b32 s{sSTAMP}, s2, 8\ns_add_u32 s{sSTAMP}, s{sSTAMP}, {STAMP_OFF + 8*idx}\nv_mov_b32 v253, s{sSTAMP}")
    e(f"global_store_dwordx2 v253, v[254:255], s[{pWS}:{pWS+1}]")
    e(f"s_nop 1\nv_mov_b32 v254, vcc_lo\nv_mov_b32 v255, vcc_hi")
    e(f"global_store_dwordx2 v253, v[254:255], s[{pWS}:{pWS+1}] offset:128")
    k.label(L)
    k.set_state(st)

def emit_item(x): return x() if callable(x) else e(x)

SCC_R = ('s_cselect', 's_cbranch_scc', 's_addc')
SCC_W = ('s_cmp', 's_add', 's_sub', 's_and', 's_or', 's_xor', 's_lshl', 's_lshr', 's_min', 's_max', 's_bfe')
def atoms(text, n=2):
    ls = lines(text); N = len(ls)
    live = [False] * (N + 1); scc = vcc = m0 = False
    for i in range(N - 1, -1, -1):
        ins = Ins(ls[i])
        if ls[i].startswith(SCC_W): scc = False
        if ls[i].startswith(SCC_R): scc = True
        if ('s', 106) in ins.w: vcc = False
        if ('s', 106) in ins.r: vcc = True
        if ('s', 124) in ins.w: m0 = False
        if ('s', 124) in ins.r: m0 = True
        live[i] = scc or vcc or m0
    out = []; cur = []
    for i, l in enumerate(ls):
        cur.append(l)
        if len(cur) >= n and not live[i + 1]: out.append("\n".join(cur)); cur = []
    if cur: out.append("\n".join(cur))
    return out

def distribute(per, first, last, items):
    ns = last - first + 1
    for q in range(ns): per[first + q] += items[len(items) * q // ns: len(items) * (q + 1) // ns]

class Checked:
    def __init__(self): self.log = []
    def load(self, text):
        t = e(text); self.log.append((text, t)); return t
    def check(self, first_tok, last_tok, chk, sleep=1):
        Lc, Ls, Lb = k.newlabel('Lck'), k.newlabel('Lsl'), k.newlabel('Lbk')
        e(f"s_movk_i32 s{sT2}, {SPIN_MAX}")
        k.label(Lc)
        assert last_tok in k.vm
        k.wait(vm=last_tok)
        e(chk); e(f"s_cbranch_scc1 {Ls}")
        k.label(Lb)
        i0 = [t for _, t in self.log].index(first_tok)
        redo = [x for x, _ in self.log[i0:]]
        assert all(t in [tt for _, tt in self.log[i0:]] for t in k.vm), "untracked younger vmem op"
        def slow():
            k.label(Ls)
            e(f"s_sub_u32 s{sT2}, s{sT2}, 1\ns_cbranch_scc1 {Lb}")
            if sleep: e(f"s_sleep {sleep}")
            for x in redo: e(x)
            e(f"s_branch {Lc}")
        outline.append(slow)

def verify(load, test, sleep):
    Lp, Ld, Lc = k.newlabel('Lvs'), k.newlabel('Lvd'), k.newlabel('Lvc')
    e(test); e(f"s_cbranch_scc1 {Lp}")
    k.label(Ld)
    def slow():
        k.label(Lp)
        e(f"s_movk_i32 s{sT2}, {SPIN_MAX}")
        k.label(Lc)
        e(load); e("s_waitcnt vmcnt(0)"); e(test)
        e(f"s_cbranch_scc0 {Ld}\ns_sub_u32 s{sT2}, s{sT2}, 1\ns_cbranch_scc1 {Ld}\ns_sleep {sleep}\ns_branch {Lc}")
    outline.append(slow)

EARLY = sorted([i for i in range(56) if i % 6 < 4], key=lambda i: (i // 6, i & 1, i))
LATE = [i for i in range(56) if i % 6 >= 4]
REST = EARLY[32:] + LATE
def tiles_of_wave(w): return EARLY[4 * w: 4 * w + 4] + REST[3 * w: 3 * w + 3]
def flag_of(i): return (2 * (i // 6) + (i & 1)) + (32 if i % 6 >= 4 else 0)
vL16 = 1
vPD0 = 2
vWA = 6
vPA = 23; vPV_ = 24
vWP = 208
vPF = 251; vDUM = 24
P_SLOT = [1, 2, 0]
def unit_pos(u):
    if u >= 9: u -= 9
    return P_SLOT[u // 3] * SLOT + (u % 3) * 2048

sWX = 87
ROT = opt('rot', 0)
def p2_setup_text():
    t = f"s_and_b32 s{sT0}, s{sCT}, {1 if ROT else 0}\ns_lshl_b32 s{sT0}, s{sT0}, 2\ns_xor_b32 s{sWX}, s{sW}, s{sT0}\n"
    for w in range(8):
        v = sum(x << (8 * j) for j, x in enumerate(tiles_of_wave(w)))
        lo, hi = v & 0xffffffff, v >> 32
        if w == 0: t += f"s_mov_b32 s{sTAB}, {lo:#x}\ns_mov_b32 s{sTAB+1}, {hi:#x}\n"
        else: t += f"s_cmp_eq_u32 s{sWX}, {w}\ns_cselect_b32 s{sTAB}, {lo:#x}, s{sTAB}\ns_cselect_b32 s{sTAB+1}, {hi:#x}, s{sTAB+1}\n"
    if ROT:
        t += f"""s_lshr_b32 s{sT0}, s{sCT}, 1
s_lshl_b32 s{sT0}, s{sT0}, 3
s_mov_b32 s{sTAB+2}, s{sTAB}
s_mov_b32 s{sTAB+3}, s{sTAB}
s_lshr_b64 s[{sTAB+2}:{sTAB+3}], s[{sTAB+2}:{sTAB+3}], s{sT0}
s_mov_b32 s{sTAB}, s{sTAB+2}
s_lshl_b32 s{sTAB+2}, s{sTAB+1}, 24
s_or_b32 s{sTAB+2}, s{sTAB+2}, s{sTAB+1}
s_lshr_b32 s{sTAB+3}, s{sTAB+1}, 8
s_lshr_b64 s[{sTAB+2}:{sTAB+3}], s[{sTAB+2}:{sTAB+3}], s{sT0}
s_mov_b32 s{sTAB+1}, s{sTAB+2}
"""
    for j in (6, 5, 4): t += f"s_bfe_u32 s{sTAB+j}, s{sTAB+1}, {0x80000 | (8*(j-4)):#x}\n"
    for j in (3, 2, 1, 0): t += f"s_bfe_u32 s{sTAB+j}, s{sTAB}, {0x80000 | (8*j):#x}\n"
    t += srd_s(rW2G, pW2, 1792 * 896)
    t += f"""s_cmp_eq_u32 s{sGSEL}, 7
s_cselect_b32 s{rW2G+2}, 0, s{rW2G+2}
v_lshrrev_b32 v4, 3, v0
v_mul_u32_u24 v4, 896, v4
v_bfe_u32 v5, v0, 4, 1
v_lshlrev_b32 v5, 2, v5
v_and_b32 v6, 7, v0
v_xor_b32 v5, v5, v6
v_lshl_add_u32 v4, v5, 4, v4
s_lshl_b32 s{sT0}, s{sCT}, 7
v_add_u32 v{vPD0}, s{sT0}, v4
v_add_u32 v{vPD0+1}, 7168, v{vPD0}
s_mul_i32 s{sM0P}, s{sW}, 6144
"""
    return t

vPA2 = 252
def poll_addr_text():
    t = ""
    for w in range(8):
        tl = tiles_of_wave(w)
        f1 = [flag_of(tl[0]), flag_of(tl[2])]; assert flag_of(tl[1]) == f1[0] and flag_of(tl[3]) == f1[1]
        f2 = [flag_of(x) for x in tl[4:]]
        q0 = 56 + (7 * (w & 3) >> 1)
        fq = [flag_of(x) + 64 * (w >> 2) for x in range(q0, q0 + 4)]
        lo = sum(x << (6 * j) for j, x in enumerate(f1 + f2)); hi = sum(x << (8 * j) for j, x in enumerate(fq))
        if w == 0: t += f"s_mov_b32 s{sPM}, {lo:#x}\ns_mov_b32 s{sQM}, {hi:#x}\n"
        else: t += f"s_cmp_eq_u32 s{sWX}, {w}\ns_cselect_b32 s{sPM}, {lo:#x}, s{sPM}\ns_cmp_eq_u32 s{sW}, {w}\ns_cselect_b32 s{sQM}, {hi:#x}, s{sQM}\n"
    t += f"""v_and_b32 v4, 31, v0
v_mul_u32_u24 v4, 6, v4
v_lshrrev_b32 v5, 5, v0
v_lshlrev_b32 v5, 6, v5
v_bfe_u32 v6, s{sPM}, v4, 6
v_add_u32 v6, v6, v5
v_add_u32 v4, 12, v4
v_bfe_u32 v7, s{sPM}, v4, 6
v_add_u32 v7, v7, v5
v_lshlrev_b32 v4, 3, v0
v_bfe_u32 v4, s{sQM}, v4, 8
s_mov_b32 s{sMK}, 0xf0
s_mov_b32 s{sMK+1}, 0
v_cndmask_b32 v7, v7, v4, s[{sMK}:{sMK+1}]
s_lshl_b32 s{sT0}, s{sTB}, 14
s_add_u32 s{sT0}, s{sT0}, {FLH}
v_lshl_add_u32 v6, v6, 7, s{sT0}
v_lshl_add_u32 v7, v7, 7, s{sT0}
v_mov_b32 v5, {DUMP}
s_mov_b32 s{sMK}, 3
s_mov_b32 s{sMK+1}, 3
v_cndmask_b32 v{vPA}, v5, v6, s[{sMK}:{sMK+1}]
s_mov_b32 s{sMK}, 0xf7
s_mov_b32 s{sMK+1}, 7
v_cndmask_b32 v{vPA2}, v5, v7, s[{sMK}:{sMK+1}]
"""
    return t
POLL = f"buffer_load_dword v{vPV_}, v{vPA}, {WS}, 0 offen sc1"
POLL2 = f"buffer_load_dword v{vPV_}, v{vPA2}, {WS}, 0 offen sc1"
def poll_test(lo, hi):
    return f"v_cmp_ne_u32 vcc, s{sTAG}, v{vPV_}\ns_mov_b32 s{sMK}, {lo:#x}\ns_mov_b32 s{sMK+1}, {hi:#x}\ns_and_b64 vcc, vcc, s[{sMK}:{sMK+1}]"
PFP = opt('pfp', 0); PFN = -(-66 // max(PFP, 1))
def pf_setup_text():
    return f"""s_lshr_b32 s{sT0}, s2, 3
s_lshl_b32 s{sT0}, s{sT0}, 3
s_add_u32 s{sT0}, s{sT0}, s{sW}
s_mul_i32 s{sT0}, s{sT0}, {66*128}
v_lshl_add_u32 v4, v0, 7, s{sT0}
v_mov_b32 v5, {DUMP}
v_cmp_gt_u32 vcc, {PFN}, v0
v_cndmask_b32 v{vPF}, v5, v4, vcc
""" + srd_s(rW2G, pW2, 1792 * 896)
def pf_item(): return f"buffer_load_dword v{vDUM}, v{vPF}, s[{rW2G}:{rW2G+3}], 0 offen\nv_add_u32 v{vPF}, {PFN*128}, v{vPF}"

def unit_dma(u, stage=False):
    j, s = divmod(u, 2)
    out = []
    for jj in range(2):
        g = ""
        if jj == 0:
            g += f"s_mul_i32 s{sPD}, s{sTAB+j}, 28672\n"
            if s: g += f"s_add_u32 s{sPD}, s{sPD}, 14336\n"
        g = (f"s_add_u32 m0, s{sM0X}, {SCR + jj*1024}\n" if stage else f"s_add_u32 m0, s{sM0P}, {unit_pos(u) + jj*1024}\n") + g
        g += f"buffer_load_dwordx4 v{vPD0+jj}, s[{rW2G}:{rW2G+3}], s{sPD} offen lds"
        out.append(g)
    return out
def p2_dma(pc): return [g for u in range(3 * pc, 3 * pc + 3) for g in unit_dma(u)]
def trpat(dst, tmp, hishift, rowshift=7):
    return f"""v_lshrrev_b32 v{dst}, 5, v0
v_lshlrev_b32 v{dst}, {hishift}, v{dst}
v_bfe_u32 v{tmp}, v0, 2, 2
v_add_u32 v{dst}, v{dst}, v{tmp}
v_lshlrev_b32 v{dst}, {rowshift}, v{dst}
v_bfe_u32 v{tmp}, v0, 4, 1
v_lshl_add_u32 v{dst}, v{tmp}, 5, v{dst}
v_and_b32 v{tmp}, 3, v0
v_lshl_add_u32 v{dst}, v{tmp}, 3, v{dst}
v_bfe_u32 v{tmp}, v0, 3, 1
v_lshl_add_u32 v{dst}, v{tmp}, 6, v{dst}
"""
def wa_text():
    return trpat(4, 5, 2) + f"""v_add_u32 v{vWA}, s{sM0P}, v4
v_xor_b32 v{vWA+1}, 64, v{vWA}
v_add_u32 v{vWA+2}, {SLOT}, v{vWA}
v_add_u32 v{vWA+3}, {SLOT}, v{vWA+1}
v_add_u32 v{vWA+4}, {2*SLOT}, v{vWA}
v_add_u32 v{vWA+5}, {2*SLOT}, v{vWA+1}
"""
def wreads(u, dst):
    sl, off = divmod(unit_pos(u), SLOT)
    return [(f"ds_read_b64_tr_b16 {vr(dst+4*c+2*rd,2)}, v{vWA+2*sl+c} offset:{off+rd*1024}", c) for c in range(2) for rd in range(2)]

vDX0, vDX1, vDW0 = 8, 9, 10
vAX = 13
vSEL = 28
vROW = 208; vRU = 212; vGR = 220; vRT = 224
vTG = 248; vZ0 = 249; vGA = 250

def prologue():
    if 'pad' in DBG: e('s_memrealtime s[100:101]')
    e(f"s_load_dwordx16 s[4:19], s[0:1], 0\ns_load_dwordx4 s[20:23], s[0:1], 64\ns_load_dwordx2 s[24:25], s[0:1], 80")
    e(f"s_cmp_ge_u32 s2, 256\ns_cbranch_scc1 Lend")
    if opt('prio', 1): e("s_setprio 3" if opt('pri2', 0) else "s_setprio 1")
    e(f"v_lshrrev_b32 v1, 6, v0\nv_and_b32 v0, 63, v0\nv_readfirstlane_b32 s{sW}, v1")
    e(f"s_and_b32 s{sXCD}, s2, 7\ns_lshr_b32 s{sT0}, s2, 3\ns_and_b32 s{sSUB}, s{sT0}, 3\ns_lshr_b32 s{sGSEL}, s{sT0}, 2")
    st = k.state()
    e(f"s_cmp_lg_u32 s{sW}, 7\ns_cbranch_scc1 Lnopf")
    e(f"s_getpc_b64 s[{sMK}:{sMK+1}]")
    k.label('Lpc')
    e(f"s_and_b32 s{sT0}, s{sT0}, 7\ns_lshl_b32 s{sT0}, s{sT0}, 13\nv_lshl_add_u32 v4, v0, 7, s{sT0}\nv_min_u32 v4, Lcode_end-Lpc-4, v4")
    e(f"global_load_dword v{vDUM}, v4, s[{sMK}:{sMK+1}]")
    k.label('Lnopf')
    k.set_state(st)
    pre_common()
    e(f"s_cmp_lt_u32 s{sGSEL}, 6\ns_cbranch_scc1 Lm")

def pre_common():
    e(f"s_lshr_b32 s{sT0}, s{sXCD}, 1\ns_lshl_b32 s{sT0}, s{sT0}, 2\ns_add_u32 s{sRB}, s{sT0}, s{sSUB}")
    e(f"s_lshl_b32 s{sT0}, s{sGSEL}, 1\ns_add_u32 s{sT0}, s{sT0}, s{sRB}")
    e(f"s_mul_i32 s{sT1}, s{sT0}, 37\ns_lshr_b32 s{sT1}, s{sT1}, 8\ns_mul_i32 s{sT1}, s{sT1}, 7\ns_sub_u32 s{sCC}, s{sT0}, s{sT1}\ns_mov_b32 s{sC0}, s{sCC}")
    if 'norot1' in DBG: e(f"s_mov_b32 s{sCC}, 0")
    if 'rot2' in DBG: e(f"s_and_b32 s{sCC}, s{sCC}, 1\ns_mul_i32 s{sCC}, s{sCC}, 3")
    e(f"""s_lshl_b32 s{sT0}, s{sRB}, 7
s_lshl_b32 s{sT1}, s{sW}, 4
s_add_u32 s{sT0}, s{sT0}, s{sT1}
v_lshrrev_b32 v4, 3, v0
v_add_u32 v4, s{sT0}, v4
v_mul_u32_u24 v4, 896, v4
v_and_b32 v5, 7, v0
v_lshrrev_b32 v6, 4, v0
v_xor_b32 v6, v5, v6
v_lshl_add_u32 v{vDX0}, v6, 4, v4
v_xor_b32 v6, 4, v6
v_lshl_add_u32 v{vDX1}, v6, 4, v4
v_add_u32 v{vDX1}, 7168, v{vDX1}
s_lshl_b32 s{sM0X}, s{sW}, 11
s_mov_b32 s{rX+2}, {2048*896}
s_mov_b32 s{rX+3}, 0x20000
s_lshl_b32 s{sMEAN}, s2, 3
s_add_u32 s{sMEAN}, s{sMEAN}, s{sW}
s_mul_i32 s{sT1}, s{sMEAN}, 896
v_lshlrev_b32 v{vL16}, 4, v0
v_add_u32 v7, s{sT1}, v{vL16}
v_mov_b32 v5, {DUMP}
v_cmp_gt_u32 vcc, 56, v0
v_cndmask_b32 v7, v5, v7, vcc
v_cndmask_b32 v{vRT+1}, 0, 1.0, vcc""")

def after_kernarg():
    e("s_waitcnt lgkmcnt(0)")
    if 'pad' in DBG: e("s_mov_b32 s101, s100")
    e(f"s_load_dword s{sTAG}, s[{pWS}:{pWS+1}], {EPOCH}")
    e(f"s_mov_b32 s{rX}, s{pX}\ns_and_b32 s{rX+1}, s{pX+1}, 0xffff")
    return e(f"buffer_load_dwordx4 {vr(vROW,4)}, v7, s[{rX}:{rX+3}], 0 offen")

def loop_setup(xbias):
    e(f"""v_lshrrev_b32 v4, 2, v0
v_lshrrev_b32 v5, 4, v0
v_xor_b32 v4, v4, v5
v_and_b32 v4, 1, v4
v_and_b32 v5, 3, v0
v_or_b32 v4, v4, v5
v_cmp_eq_u32 vcc, 0, v4
v_mov_b32 v5, 0x3f803f80
v_and_b32 v4, 31, v0
v_cndmask_b32 v{vSEL}, 0, v5, vcc
v_cndmask_b32 v{vSEL+1}, 0, v5, vcc
v_cndmask_b32 v{vSEL+2}, 0, v5, vcc
v_cndmask_b32 v{vSEL+3}, 0, v5, vcc
s_add_u32 s{sT3}, s{sT3}, {xbias}
v_lshl_add_u32 v5, v4, 7, s{sT3}
v_bfe_u32 v4, v0, 1, 3
v_lshrrev_b32 v6, 5, v0
v_xor_b32 v4, v4, v6
v_lshl_add_u32 v{vAX}, v4, 4, v5""")
    for j in range(1, 4): e(f"v_xor_b32 v{vAX+j}, {32*j}, v{vAX}")
    e(f"""s_lshl_b32 s{sT0}, s{sMEAN}, 4
s_add_u32 s{sT0}, s{sT0}, {STATS}
v_mov_b32 v5, {DUMP}
v_mov_b32 v6, s{sT0}
v_cmp_eq_u32 vcc, 63, v0
v_cndmask_b32 v{vRT+2}, v5, v6, vcc""")
    e(srd_s(rWS, pWS, WS_USED))

def misc_text():
    return f"""v_mov_b32 v5, {DUMP}
v_lshlrev_b32 v4, 2, v0
v_cmp_gt_u32 vcc, {1 if 'flag1' in DBG else 32}, v0
v_cndmask_b32 v{vZ0}, v5, v4, vcc
s_mov_b32 s{sHALF}, 0
s_mov_b32 s{sHALF+1}, -1
s_mov_b32 s{sEPS}, {f32(1e-6)}
s_mov_b32 s{sEPS+1}, {f32(1e-6)}
s_mov_b32 s{sCT}, s{sGSEL}
s_lshl_b32 s{sTB}, s{sXCD}, 2
s_add_u32 s{sTB}, s{sTB}, s{sSUB}
"""

def wave_sum(r):
    return [f"v_add_f32_dpp v{r}, v{r}, v{r} {m} bank_mask:0xf" for m in
            ("quad_perm:[1,0,3,2] row_mask:0xf", "quad_perm:[2,3,0,1] row_mask:0xf", "row_half_mirror row_mask:0xf", "row_mirror row_mask:0xf",
             "row_bcast:15 row_mask:0xa", "row_bcast:31 row_mask:0xc")]

def mall_prefetch():
    if opt('mpf', 1) == 0: return
    st = k.state()
    L1, L2 = k.newlabel('Lpf'), k.newlabel('Lpf')
    e(f"s_cmp_lg_u32 s{sW}, 6\ns_cbranch_scc1 {L1}")
    e(f"s_mul_i32 s{sT0}, s2, {49*128}\nv_min_u32 v4, 48, v0\nv_lshl_add_u32 v4, v4, 7, s{sT0}\nglobal_load_dword v{vDUM}, v4, s[{pW2}:{pW2+1}]")
    k.label(L1)
    e(f"s_cmp_lg_u32 s{sW}, 5\ns_cbranch_scc1 {L2}")
    e(f"s_mul_i32 s{sT0}, s2, {13*128}\nv_min_u32 v4, 12, v0\nv_lshl_add_u32 v4, v4, 7, s{sT0}\nv_min_u32 v4, {448*896-4}, v4\nglobal_load_dword v{vDUM}, v4, s[{pWO}:{pWO+1}]")
    e(f"v_min_u32 v4, 6, v0\nv_lshlrev_b32 v4, 7, v4\nglobal_load_dword v{vDUM}, v4, s[{pB2}:{pB2+1}]")
    k.label(L2)
    L3 = k.newlabel('Lpf')
    e(f"s_cmp_lg_u32 s{sW}, {4 if opt('c6', 1) else 9}\ns_cbranch_scc1 {L3}")
    e(f"s_lshr_b32 s{sT0}, s2, 3\ns_mul_i32 s{sT0}, s{sT0}, {56*896}\ns_add_u32 s{sT0}, s{sT0}, 768\nv_min_u32 v4, 55, v0\nv_mul_u32_u24 v4, 896, v4\nv_add_u32 v4, s{sT0}, v4\nglobal_load_dword v{vDUM}, v4, s[{pW2}:{pW2+1}]")
    k.label(L3)
    if opt('tlb', 0):
        L4 = k.newlabel('Lpf'); G = opt('tlb', 0)
        n = (WS_USED // 1024 // G + 31) // 32
        e(f"s_cmp_lg_u32 s{sW}, 3\ns_cbranch_scc1 {L4}")
        e(f"s_lshr_b32 s{sT0}, s2, 3\ns_mul_i32 s{sT1}, s{sT0}, {n}\nv_min_u32 v4, {n-1}, v0\nv_add_u32 v4, s{sT1}, v4\nv_mul_u32_u24 v4, {G*1024}, v4\nv_add_u32 v4, 0x800, v4\nglobal_load_dword v{vDUM}, v4, s[{pWS}:{pWS+1}]")
        m = (2048 * 896 // 1024 // G + 31) // 32
        e(f"s_mul_i32 s{sT1}, s{sT0}, {m}\nv_min_u32 v4, {m-1}, v0\nv_add_u32 v4, s{sT1}, v4\nv_mul_u32_u24 v4, {G*1024}, v4\nv_min_u32 v4, {2048*896-4}, v4\nglobal_load_dword v{vDUM}, v4, s[{pOUT}:{pOUT+1}]")
        k.label(L4)
    k.set_state(st)

def rowstat(rtok):
    a = vRT
    k.wait(vm=rtok)
    it = []
    for d in range(4):
        it += [f"v_lshlrev_b32 v{vRU+2*d}, 16, v{vROW+d}", f"v_and_b32 v{vRU+2*d+1}, 0xffff0000, v{vROW+d}"]
    it += [f"v_pk_add_f32 {vr(vROW,2)}, {vr(vRU,2)}, {vr(vRU+2,2)}", f"v_pk_add_f32 {vr(vROW+2,2)}, {vr(vRU+4,2)}, {vr(vRU+6,2)}",
           f"v_pk_add_f32 {vr(vROW,2)}, {vr(vROW,2)}, {vr(vROW+2,2)}", f"v_add_f32 v{a}, v{vROW}, v{vROW+1}"]
    it += wave_sum(a)
    it += [f"v_mul_f32 v{vGR}, {f32(1/448)}, v{a}", f"v_readlane_b32 s{sMEAN}, v{vGR}, 63", f"v_mul_f32 v{a}, s{sMEAN}, v{vRT+1}"]
    for d in range(4): it.append(f"v_pk_add_f32 {vr(vRU+2*d,2)}, {vr(vRU+2*d,2)}, {vr(a,2)} op_sel_hi:[1,0] neg_lo:[0,1] neg_hi:[0,1]")
    it.append(f"v_pk_mul_f32 {vr(vROW,2)}, {vr(vRU,2)}, {vr(vRU,2)}")
    for d in range(1, 4): it.append(f"v_pk_fma_f32 {vr(vROW,2)}, {vr(vRU+2*d,2)}, {vr(vRU+2*d,2)}, {vr(vROW,2)}")
    it.append(f"v_add_f32 v{a}, v{vROW}, v{vROW+1}")
    it += wave_sum(a)
    it.append(f"v_mul_f32 v{vGR+2}, {f32(1/448)}, v{a}")
    for x in it: e(x)
    e(f"s_waitcnt lgkmcnt(0)\ns_mul_i32 s{sTAG}, s{sTAG}, 1664525\ns_add_u32 s{sTAG}, s{sTAG}, 1013904223")
    e(f"v_mov_b32 v{vTG}, s{sTAG}\nv_mov_b32 v{vGR+1}, s{sTAG}\nv_mov_b32 v{vGR+3}, s{sTAG}")
    e(f"buffer_store_dwordx4 {vr(vGR,4)}, v{vRT+2}, {WS}, 0 offen sc1")

def gelu_pk(acc, out, kp, sp, tmp):
    o = []
    for h in range(2):
        a = acc + 8 * h; t = tmp + 8 * h
        for p in range(4): o.append(f"v_pk_mul_f32 {vr(t+2*p,2)}, {vr(a+2*p,2)}, {vr(a+2*p,2)}")
        for p in range(4): o.append(f"v_pk_fma_f32 {vr(t+2*p,2)}, {vr(t+2*p,2)}, {vr(kp+2,2)}, {vr(kp,2)} op_sel_hi:[1,0,0]")
        for p in range(4): o.append(f"v_pk_mul_f32 {vr(t+2*p,2)}, {vr(t+2*p,2)}, {vr(a+2*p,2)}")
        for p in range(8): o.append(f"v_exp_f32 v{t+p}, v{t+p}")
        for p in range(4): o.append(f"v_pk_fma_f32 {vr(t+2*p,2)}, {vr(t+2*p,2)}, {vr(sp,2)}, {vr(sp,2)} op_sel_hi:[1,0,0]")
        for p in range(8): o.append(f"v_rcp_f32 v{t+p}, v{t+p}")
        for p in range(4): o.append(f"v_pk_mul_f32 {vr(t+2*p,2)}, {vr(t+2*p,2)}, {vr(a+2*p,2)}")
        for p in range(4): o.append(f"v_cvt_pk_bf16_f32 v{out+4*h+p}, v{t+2*p}, v{t+2*p+1}")
        o.append(('st', h))
    return o
def phi_pk(acc, out, rfun, rlfun, sel, tmp):
    o = []
    for h in range(2):
        a = acc + 8 * h; t = tmp + 8 * h
        for p in range(4): o.append(f"v_pk_mul_f32 {vr(t+2*p,2)}, {vr(a+2*p,2)}, {rlfun(4*h+p)} op_sel_hi:[1,{sel}]")
        for p in range(4): o.append(f"v_pk_fma_f32 {vr(a+2*p,2)}, {vr(a+2*p,2)}, {rfun(4*h+p)}, {sr(sEPS,2)} op_sel_hi:[1,{sel},0]")
        for p in range(8): o.append(f"v_exp_f32 v{t+p}, v{t+p} clamp")
        for p in range(8): o.append(f"v_max_f32 v{a+p}, s{sEPS}, v{a+p}")
        for p in range(4): o.append(f"v_pk_add_f32 {vr(t+2*p,2)}, {vr(t+2*p,2)}, {vr(a+2*p,2)}")
        for p in range(4): o.append(f"v_cvt_pk_bf16_f32 v{out+4*h+p}, v{t+2*p}, v{t+2*p+1}")
        o.append(('st', h))
    return o
def skew(chains):
    o = []; L = len(chains[0]); n = len(chains)
    for t in range(L + 2 * n):
        for i, c in enumerate(chains):
            s = t - 2 * (i // 2)
            if 0 <= s < len(c) and c[s] is not None: o.append(c[s])
    return o
def gelu_sc(acc, out, kp, sp, tmp, half):
    ch = []
    for p in range(8):
        a = acc + 8 * half + p; t = tmp + p
        c = [f"v_mul_f32 v{t}, v{a}, v{a}", f"v_fma_f32 v{t}, v{t}, v{kp+2}, v{kp}", f"v_mul_f32 v{t}, v{t}, v{a}", f"v_exp_f32 v{t}, v{t}",
             f"v_fma_f32 v{t}, v{t}, v{sp}, v{sp}", f"v_rcp_f32 v{t}, v{t}", f"v_mul_f32 v{t}, v{t}, v{a}",
             f"v_cvt_pk_bf16_f32 v{out+4*half+p//2}, v{t-1}, v{t}" if p & 1 else None]
        ch.append(c)
    return skew(ch)
def phi_sc(acc, out, r, rl, tmp, half):
    ch = []
    for p in range(8):
        a = acc + 8 * half + p; t = tmp + p
        c = [f"v_mul_f32 v{t}, v{a}, v{rl}", f"v_fma_f32 v{a}, v{a}, v{r}, s{sEPS}", f"v_exp_f32 v{t}, v{t} clamp", f"v_max_f32 v{a}, s{sEPS}, v{a}",
             f"v_add_f32 v{t}, v{t}, v{a}", f"v_cvt_pk_bf16_f32 v{out+4*half+p//2}, v{t-1}, v{t}" if p & 1 else None]
        ch.append(c)
    return skew(ch)

vAW = 17
vBIAS = 25
vXB = 32; vWB = 48; vACC = 72; vCS = 136
vAX2 = 120
vSG = 168; vCG = 172; vGA2 = 21; vCP = 22

def p1_dma(kind, i):
    slot = (i % 3) * SLOT
    out = [f"s_add_u32 m0, s{sM0X}, {slot}\ns_lshl_b32 s{sSOX}, s{sCC}, 7\nbuffer_load_dwordx4 v{vDX0}, s[{rX}:{rX+3}], s{sSOX} offen lds"]
    if kind == 'M':
        out.append(f"s_add_u32 m0, s{sM0X}, {slot + 1024}\ns_mul_i32 s{sSO0}, s{sCC}, s{sPSTEP0}\nbuffer_load_dwordx4 v{vDX1}, s[{rX}:{rX+3}], s{sSOX} offen lds")
        for lc in range(3):
            nx = f"s_mul_i32 s{sSO0+lc+1}, s{sCC}, s{sPSTEP0+lc+1}" if lc < 2 else f"s_add_u32 s{sCC}, s{sCC}, 1"
            out.append(f"s_add_u32 m0, s{sM0W}, {slot + lc*8192}\n{nx}\n"
                       f"buffer_load_dwordx4 v{vDW0+lc}, s[{rW0+4*lc}:{rW0+4*lc+3}], s{sSO0+lc} offen lds")
    else:
        out.append(f"s_add_u32 m0, s{sM0X}, {slot + 1024}\ns_mul_i32 s{sSO0}, s{sCC}, {64*2688}\nbuffer_load_dwordx4 v{vDX1}, s[{rX}:{rX+3}], s{sSOX} offen lds")
        nxs = [f"s_add_u32 s{sSO1}, s{sSO0}, 896", "s_nop 0", "s_nop 0", f"s_add_u32 s{sCC}, s{sCC}, 1"]
        for kv in range(2):
            for jj in range(2):
                if 'kvfast' in DBG and 2 * kv + jj in (1, 2): continue
                out.append(f"s_add_u32 m0, s{sM0W}, {slot + kv*16384 + jj*1024}\n{nxs[2*kv+jj]}\n"
                           f"buffer_load_dwordx4 v{vDW0+jj}, s[{rW0}:{rW0+3}], s{sSO0+kv} offen lds")
    out[-1] += f"\ns_cmp_eq_u32 s{sCC}, 7\ns_cselect_b32 s{sCC}, 0, s{sCC}"
    return out

def cs_addr_text(slot_s, pub_s):
    return f"""s_lshl_b32 s{sT0}, s{slot_s}, 12
s_add_u32 s{sT0}, s{sT0}, {CSG}
v_add_u32 v{vGA2}, s{sT0}, v{vL16}
s_lshl_b32 s{sT1}, s{sC0}, 9
v_add_u32 v4, s{sT1}, v{vGA2}
v_mov_b32 v5, {DUMP}
v_cndmask_b32 v4, v4, v5, {HALF}
s_cmp_lt_u32 s{sRB}, 7
s_cselect_b32 s{sT1}, s{pub_s}, 1
s_cmp_eq_u32 s{sT1}, 0
s_cselect_b32 s{sT1}, 0, {DUMP}
v_add_u32 v{vCP}, s{sT1}, v4
"""
def cs_pub(nt, vCS=136, vRU=212):
    return [f"v_mov_b32 v{vRU+t}, v{vCS+4*t}" for t in range(nt)] + [f"v_mov_b32 v{vRU+t}, v{vTG}" for t in range(nt, 4)] + \
           [f"buffer_store_dwordx4 {vr(vRU,4)}, v{vCP}, {WS}, 0 offen sc1"]
def gran_items(vSG=168, vCG=172):
    GL = [f"buffer_load_dwordx4 {vr(vSG,4)}, v{vGA}, {WS}, 0 offen sc1"] + \
         [f"buffer_load_dwordx4 {vr(vCG+4*q,4)}, v{vGA2}, {WS}, 0 offen offset:{1024*q} sc1" for q in range(4)]
    G = {}
    def last_g(): G['g'] = e(GL[-1])
    a_ = vSG + 1
    gtest = f"""v_cndmask_b32 v{vCG+15}, v{vCG+15}, v{vTG}, {HALF}
v_xor_b32 v{a_}, v{vTG}, v{a_}
v_bitop3_b32 v{a_}, v{a_}, v{vSG+3}, v{vTG} bitop3:0xf6
v_bitop3_b32 v{a_}, v{a_}, v{vCG+3}, v{vTG} bitop3:0xf6
v_bitop3_b32 v{a_}, v{a_}, v{vCG+7}, v{vTG} bitop3:0xf6
v_bitop3_b32 v{a_}, v{a_}, v{vCG+11}, v{vTG} bitop3:0xf6
v_bitop3_b32 v{a_}, v{a_}, v{vCG+15}, v{vTG} bitop3:0xf6
v_cmp_ne_u32 vcc, 0, v{a_}
s_cmp_lg_u64 vcc, 0"""
    def gcheck():
        k.wait(vm=G['g']); verify("\n".join(GL), gtest, 4)
    return GL[:-1] + [last_g], gcheck
def cs_sum(nt, dst, vCG=172):
    it = []
    for t in range(nt): it.append(f"v_cndmask_b32 v{vCG+12+t}, v{vCG+12+t}, 0, {HALF}")
    for t in range(nt): it += [f"v_add_f32 v{vCG+t}, v{vCG+t}, v{vCG+4+t}", f"v_add_f32 v{vCG+8+t}, v{vCG+8+t}, v{vCG+12+t}"]
    for t in range(nt): it.append(f"v_add_f32 v{vCG+t}, v{vCG+t}, v{vCG+8+t}")
    for t in range(nt): it.append(f"v_mov_b32 v{vCG+4+t}, v{vCG+t}")
    for t in range(nt): it.append(f"v_permlane32_swap_b32 v{vCG+t}, v{vCG+4+t}")
    for t in range(nt): it.append(f"v_add_f32 v{dst+t}, v{vCG+t}, v{vCG+4+t}")
    return it

def main_loop(kind, D, per, ax2, tail=None, lead=None):
    SETS = [32, 48, 232]
    xbuf = lambda n, u: SETS[n % 3] + 4 * u
    wbuf = lambda n, t: SETS[n % 3] + 8 + 4 * t
    def reads(n):
        i, j = divmod(n, 4); sl = i % 3
        xa = (ax2 if sl == 2 else vAX) + j; xo = SLOT if sl == 1 else 0
        o = [f"ds_read_b128 {vr(xbuf(n,0),4)}, v{xa} offset:{xo}"]
        for kv in range(2):
            for rd in range(2): o.append(f"ds_read_b64_tr_b16 {vr(wbuf(n,kv)+2*rd,2)}, v{vAW+sl} offset:{kv*16384 + j*4096 + rd*1024}")
        o.append(f"ds_read_b128 {vr(xbuf(n,1),4)}, v{xa} offset:{xo+4096}")
        return o
    k.wait(vm=D[0]); e("s_barrier")
    stamp(1)
    RT = {}
    for n in range(2):
        for x in reads(n): RT[n] = e(x)
    pend = p1_dma(kind, 2); pend_i = 2
    for n in range(28):
        i, j = divmod(n, 4)
        mf = []
        for t in range(4):
            if 'kvfast' in DBG and t == 3 and n > 0: continue
            acc = vr(vACC + 16 * t, 16); u, kv = t >> 1, t & 1
            mf.append(f"v_mfma_f32_32x32x16_bf16 {acc}, {vr(xbuf(n,u),4)}, {vr(wbuf(n,kv),4)}, {'0' if n == 0 else acc}")
        if i == 0:
            for t in range(2):
                acc = vr(vCS + 4 * t, 4)
                mf.append(f"v_mfma_f32_16x16x32_bf16 {acc}, {vr(vSEL,4)}, {vr(wbuf(n,t),4)}, {'0' if n == 0 else acc}")
        k.wait(lg=RT[n])
        e(mf[0])
        if j == 2:
            assert not pend
            e(mf[1]); mf = mf[1:]
            e("s_waitcnt lgkmcnt(0)")
            if i < 6: k.wait(vm=D[i + 1])
            e("s_barrier")
            stamp(2 + i, chunk=True)
            pend_i = i + 3
            pend = (lead or {}).get(i, []) + (p1_dma(kind, i + 3) if i + 3 < 7 else tail[i + 3 - 7] if i < 6 else [])
        if n + 2 < 28:
            for x in reads(n + 2): RT[n + 2] = e(x)
        left = {2: 3, 3: 2, 0: 1, 1: 1}[j] if n >= 2 else 2 - n
        nd = -(-len(pend) // left)
        dmm = pend[:nd]; pend = pend[nd:]
        other = spread([('d', x) for x in dmm] or [('n', None)], [('f', x) for x in per[n]])
        other = [f for f in other if f[0] != 'n']
        for kind_, x in spread([('m', x) for x in mf[1:]], other):
            t_ = emit_item(x)
            if kind_ == 'd' and t_ is not None: D[pend_i] = t_

FLAG = f"buffer_store_dword v{vTG}, v{vZ0}, {WS}, s{sFLO} offen sc1\ns_add_u32 s{sFLO}, s{sFLO}, 128"

XP = [65536, 81920, 114688]
WP = [[49152, 57344], [98304, 106496], [131072, 139264]]
L2P = [SCR] + [8192 * i for i in range(6)]
def ring(c): return (c + 2) % 3
def phase1_M():
    mg = sMG
    vX = 96; AC = [64, 80]; mCS = 48; vK = 48; vBA = 56; vAA = [228, 232, 60]; sm = 26
    mSG = 208; mCG = 212; R = 236; vC = 244
    WS3 = [32, 40, 240]
    T = {}
    def tokset(key, text):
        def f(): T[key] = e(text)
        return f
    def dma_c(c):
        p = ring(c)
        return [f"s_add_u32 m0, s{sM0X}, {XP[p]}\ns_lshl_b32 s{sSOX}, s{sCC}, 7\nbuffer_load_dwordx4 v{vDX0}, s[{rX}:{rX+3}], s{sSOX} offen lds",
                f"s_add_u32 m0, s{sM0X}, {XP[p]+1024}\ns_mul_i32 s{sSO0}, s{sCC}, s{sPSTEP0}\nbuffer_load_dwordx4 v{vDX1}, s[{rX}:{rX+3}], s{sSOX} offen lds",
                f"s_add_u32 m0, s{sM0W}, {WP[p][0]}\ns_mul_i32 s{sSO1}, s{sCC}, s{sPSTEP0+1}\nbuffer_load_dwordx4 v{vDW0}, s[{rW0}:{rW0+3}], s{sSO0} offen lds",
                f"s_add_u32 m0, s{sM0W}, {WP[p][1]}\ns_add_u32 s{sCC}, s{sCC}, 1\nbuffer_load_dwordx4 v{vDW0+1}, s[{rW1}:{rW1+3}], s{sSO1} offen lds\n"
                f"s_cmp_eq_u32 s{sCC}, 7\ns_cselect_b32 s{sCC}, 0, s{sCC}"]
    def dma_2(c):
        return (f"s_add_u32 m0, s{sM0W}, {L2P[c]}\ns_nop 0\nbuffer_load_dwordx4 v{vDW0+2}, s[{rW2}:{rW2+3}], s{sSO2} offen lds\n"
                f"s_add_u32 s{sSO2}, s{sSO2}, s{sPSTEP0+2}\ns_cmp_eq_u32 s{sSO2}, s{rW2+2}\ns_cselect_b32 s{sSO2}, 0, s{sSO2}")
    def wf(a, j, dst): return [f"ds_read_b64_tr_b16 {vr(dst+2*rd,2)}, v{vAW + (a >> 16)} offset:{(a & 0xffff) + j*2048 + rd*512}" for rd in range(2)]
    e(f"s_and_b32 s{sT0}, s{sXCD}, 1\ns_mul_i32 s{sT0}, s{sT0}, 6\ns_add_u32 s{mg}, s{sT0}, s{sGSEL}")
    e(f"""v_lshrrev_b32 v4, 3, v0
v_lshl_add_u32 v4, s{sW}, 3, v4
v_bfe_u32 v5, v0, 4, 1
v_lshlrev_b32 v5, 2, v5
v_and_b32 v6, 7, v0
v_xor_b32 v5, v5, v6
v_lshlrev_b32 v5, 4, v5
s_lshl_b32 s{sM0W}, s{sW}, 10
s_mul_i32 s{sT3}, s{mg}, 3""")
    for lc in range(3):
        r = rW0 + 4 * lc
        e(f"""s_add_u32 s{sT0}, s{sT3}, {lc}
s_sub_u32 s{sT1}, s{sT0}, 28
s_cmp_lt_u32 s{sT0}, 35
s_cselect_b32 s{r+2}, {448*2688}, 0
s_cmp_lt_u32 s{sT0}, 28
s_cselect_b32 s{r+2}, {448*3584}, s{r+2}
s_cselect_b32 s{sT0}, s{sT0}, s{sT1}
s_movk_i32 s{sT1}, 2688
s_cselect_b32 s{sT1}, 3584, s{sT1}
s_lshl_b32 s{sT0}, s{sT0}, 7
s_lshl_b32 s{sPSTEP0+lc}, s{sT1}, 6
v_mad_u32_u24 v{vDW0+lc}, v4, s{sT1}, v5
v_add_u32 v{vDW0+lc}, s{sT0}, v{vDW0+lc}
s_mov_b32 s{r+3}, 0x20000""")
    e(f"s_mul_i32 s{sSO2}, s{sCC}, s{sPSTEP0+2}")
    rtok = after_kernarg()
    stamp(0)
    e(f"s_and_b32 s{pW1+1}, s{pW1+1}, 0xffff\ns_and_b32 s{pWQKV+1}, s{pWQKV+1}, 0xffff")
    for lc in range(3):
        r = rW0 + 4 * lc
        e(f"s_cmp_eq_u32 s{sPSTEP0+lc}, {64*3584}\ns_cselect_b32 s{r}, s{pW1}, s{pWQKV}\ns_cselect_b32 s{r+1}, s{pW1+1}, s{pWQKV+1}")
    for g in dma_c(0): T[0] = e(g)
    e(f"s_and_b32 s{sLO}, s{sW}, 3\ns_lshr_b32 s{sHI}, s{sW}, 2\ns_lshl_b32 s{sT3}, s{sLO}, 12")
    loop_setup(65536)
    e(trpat(4, 5, 3) + f"s_lshl_b32 s{sT0}, s{sHI}, 6\nv_xor_b32 v{vAW}, s{sT0}, v4\nv_add_u32 v{vAW+1}, 65536, v{vAW}\nv_add_u32 v{vAW+2}, 131072, v{vAW}")
    e(dma_2(0))
    for g in dma_c(1): T[1] = e(g)
    mall_prefetch()
    rowstat(rtok)
    m, var = mSG, mSG + 2
    r1, w_, rm = R + 5, R + 6, R + 7
    setup1 = misc_text() + f"s_lshl_b32 s{sT4}, s{mg}, 1\ns_add_u32 s{sT4}, s{sT4}, s{sHI}\ns_mul_i32 s{sTILE0}, s{mg}, 6\ns_add_u32 s{sTILE0}, s{sTILE0}, s{sHI}\n" + \
        cs_addr_text(sT4, sLO) + srd_s(rMISC, pB1, 3584) + f"s_lshl_b32 s{sT0}, s{sTILE0}, 6\nv_and_b32 v4, 31, v0\nv_lshl_add_u32 v{vBIAS+2}, v4, 1, s{sT0}\n"
    bias = [f"buffer_load_ushort v{vBIAS+t}, v{vBIAS+2}, s[{rMISC}:{rMISC+3}], 0 offen offset:{128*t}" for t in range(3)]
    setup2 = f"""s_lshl_b32 s{sT0}, s{sRB}, 2
s_add_u32 s{sT0}, s{sT0}, s{sLO}
s_lshl_b32 s{sT1}, s{sT0}, 9
s_add_u32 s{sT1}, s{sT1}, {STATS}
v_and_b32 v4, 31, v0
v_lshl_add_u32 v{vGA}, v4, 4, s{sT1}
s_lshl_b32 s{sFLO}, s{sT0}, 13
s_mul_i32 s{sT0}, s{sT0}, {TSTR}
s_lshl_b32 s{sT1}, s{sTILE0}, 11
s_add_u32 s{sHQO}, s{sT0}, s{sT1}
s_add_u32 s{sHQO}, s{sHQO}, {HQ}
s_lshl_b32 s{sT1}, s{sT4}, 7
s_add_u32 s{sFLO}, s{sFLO}, s{sT1}
s_add_u32 s{sFLO}, s{sFLO}, {FLH}
""" + p2_setup_text()
    early = f"v_mov_b32 v{vBA+3}, 0\n" + "".join(f"v_lshlrev_b32 v{vAA[t]+1}, 16, v{vBIAS+t}\nv_mov_b32 v{vAA[t]+2}, v{vBIAS+t}\nv_mov_b32 v{vAA[t]+3}, 0\n" for t in range(3))
    gl, gcheck = gran_items(mSG, mCG)
    C3 = [mCG + 8, mCG + 9, mCG + 10]
    aug = [gcheck] + lines(f"""v_add_f32 v{vK}, {f32(EPS)}, v{var}
v_mov_b32 v{vK+1}, {f32(EPS)}
v_fma_f32 v{vK+1}, v{vK+1}, v{vK}, v{var}
v_rsq_f32 v{vK+4}, v{vK}
v_rsq_f32 v{vK+3}, v{vK+1}""") + cs_sum(3, mCG + 8, mCG) + lines(f"""v_mul_f32 v{sm}, v{vK+1}, v{vK+3}
v_cvt_pk_bf16_f32 v{R}, -v{m}, v{sm}
v_lshlrev_b32 v{R+1}, 16, v{R}
v_and_b32 v{R+2}, 0xffff0000, v{R}
v_sub_f32 v{R+1}, -v{m}, v{R+1}
v_sub_f32 v{R+2}, v{sm}, v{R+2}
v_cvt_pk_bf16_f32 v{R+3}, -v{m}, v{R+1}
v_cvt_pk_bf16_f32 v{R+2}, v{R+2}, 0
v_cndmask_b32 v{vBA}, v{R+3}, 0, {HALF}
v_cndmask_b32 v{vBA+1}, v{R}, 0, {HALF}
v_cndmask_b32 v{vBA+2}, v{R+2}, 0, {HALF}""")
    for t in range(3):
        c = C3[t]; a = vAA[t]
        aug += lines(f"""v_cvt_pk_bf16_f32 v{a}, v{c}, v{c}
v_and_b32 v{R}, 0xffff0000, v{a}
v_sub_f32 v{R}, v{c}, v{R}
v_cvt_pk_bf16_f32 v{a+1}, v{R}, v{a+1}""")
    post = lines(f"""v_mul_f32 v{vK}, {f32(GC0)}, v{vK+3}
v_mul_f32 v{vK+5}, v{vK+3}, v{vK+3}
v_mul_f32 v{vK+5}, {f32(GC1)}, v{vK+5}
v_mul_f32 v{vK+2}, v{vK+5}, v{vK}
v_mul_f32 v{vK+6}, {f32(LOG2E)}, v{vK+4}""")
    per = {n: [] for n in range(28)}
    dmx = {n: [] for n in range(28)}
    distribute(per, 0, 7, atoms(setup1)); per[9] += cs_pub(3, mCS) + bias
    distribute(per, 10, 17, atoms(setup2)); distribute(per, 19, 20, atoms(early))
    for st_ in [5, 9, 13, 17, 21][:PFP]: per[st_].append(pf_item())
    G0 = opt('gstep', 18)
    distribute(per, G0, G0 + 1, gl)
    distribute(per, 23, 27, aug)
    for n in range(28): per[n] += ['s_mov_b32 s99, 0'] * opt('fat1', 0)
    distribute(dmx, 0, 1, [tokset(2, g) for g in dma_c(2)])
    for c in range(3, 7): distribute(dmx, 4 * (c - 3) + 2, 4 * (c - 3) + 4, [tokset(c, g) for g in dma_c(c)])
    for c, st_ in zip(range(1, 7), (12, 16, 17, 20, 21, 21)): dmx[st_].append(tokset('l2', dma_2(c)))
    distribute(dmx, 22, 27, [tokset('P0', g) for g in p2_dma(0)])
    def reads(n):
        c, j = divmod(n, 4); p = ring(c); ws = WS3[n % 3]
        return [f"ds_read_b128 {vr(vX+4*n,4)}, v{vAX+j} offset:{XP[p]-65536}"] + wf(WP[p][0], j, ws) + wf(WP[p][1], j, ws + 4)
    k.wait(vm=T[0]); e("s_barrier")
    stamp(1)
    RT = {}
    MP = True
    for n in range(2):
        for x in reads(n): RT[n] = e(x)
    CT = {}
    for n in range(28):
        c, j = divmod(n, 4); ws = WS3[n % 3]
        if j == 2:
            e("s_waitcnt lgkmcnt(0)")
            if c < 6: k.wait(vm=T[c + 1])
            e("s_barrier")
            stamp(2 + c, chunk=True)
        mf = [f"v_mfma_f32_32x32x16_bf16 {vr(AC[t],16)}, {vr(ws+4*t,4)}, {vr(vX+4*n,4)}, {'0' if n == 0 else vr(AC[t],16)}" for t in range(2)]
        if c == 0: mf += [f"v_mfma_f32_16x16x32_bf16 {vr(mCS+4*t,4)}, {vr(vSEL,4)}, {vr(ws+4*t,4)}, {'0' if n == 0 else vr(mCS+4*t,4)}" for t in range(2)]
        rd = [tokset(('r', n + 2), x) for x in reads(n + 2)] if n + 2 < 28 else []
        if 2 <= n < 6: rd += [tokset(('c', n - 2), x) for x in wf(L2P[0], n - 2, [60, 228, 232, 236][n - 2])]
        if 4 <= n < 8:
            def csm(q=n - 4):
                k.wait(lg=T[('c', q)])
                e(f"v_mfma_f32_16x16x32_bf16 {vr(mCS+8,4)}, {vr(vSEL,4)}, {vr([60, 228, 232, 236][q],4)}, {'0' if q == 0 else vr(mCS+8,4)}")
            mf.append(csm)
        k.wait(lg=RT[n] if n < 2 else T[('r', n)])
        other = spread(dmx[n], per[n]) if dmx[n] else per[n]
        for x in [mf[0]] + rd + spread(mf[1:], other): emit_item(x)
    for x in spread([f"v_mfma_f32_32x32x16_bf16 {vr(AC[t],16)}, {vr(vAA[t],4)}, {vr(vBA,4)}, {vr(AC[t],16)}" for t in range(2)], post): e(x)
    stamp(2); stamp(9, chunk=True)
    def p1dma(cond, lab):
        st_ = k.state()
        e(f"s_cmp_{cond}_u32 s{sHI}, 0\ns_cbranch_scc1 {lab}")
        for g in p2_dma(1): e(g)
        k.label(lab); k.set_state(st_)
    p1dma('eq', 'Lp1a')
    vT = 32
    def tile(acc, out, kind, last=False):
        ep = gelu_pk(acc, out, vK, sm, vT) if kind == 'G' else phi_pk(acc, out, lambda p: vr(vK + 4, 2), lambda p: vr(vK + 6, 2), 0, vT)
        for x in ep:
            if isinstance(x, tuple):
                h = x[1]
                if last and h == 0: k.wait(vm=T['poll'])
                T['st'] = e(f"buffer_store_dwordx4 {vr(out+4*h,4)}, v{vL16}, {WS}, s{sHQO} offen offset:{1024*h} sc1")
                if h: e(f"s_add_u32 s{sHQO}, s{sHQO}, 4096")
            else: e(x)
    e(f"s_nop 3\ns_cmp_ge_u32 s{mg}, 10\ns_cbranch_scc1 Lphi0")
    st0 = k.state()
    tile(AC[0], 208, 'G')
    e(f"s_cmp_eq_u32 s{mg}, 9\ns_cbranch_scc1 Lphi1")
    tile(AC[1], 216, 'G')
    k.label('Lepi1')
    def phis():
        k.label('Lphi0'); k.set_state(st0); e("s_nop 7")
        tile(AC[0], 208, 'P')
        k.label('Lphi1')
        tile(AC[1], 216, 'P')
        e("s_branch Lepi1")
    T0 = dict(T)
    outline.append(phis)
    stamp(3); stamp(12, 4)
    p1dma('lg', 'Lp1b')
    k.wait(vm=T0['l2'])
    e("s_barrier")
    stamp(10, chunk=True)
    def r2(n): return wf(L2P[n >> 2], n & 3, 32 + 4 * (n & 3))
    W = {}
    for n in range(3):
        for x in r2(n): W[n] = e(x)
    per = {n: [] for n in range(28)}
    FS = opt('fstep', 9)
    distribute(per, 0, FS - 1, atoms(poll_addr_text() + wa_text(), 3))
    per[FS] = ["s_waitcnt vmcnt(0)", f"buffer_store_dword v{vTG}, v{vZ0}, {WS}, s{sFLO} offen sc1\ns_add_u32 s{sFLO}, s{sFLO}, 4096"]
    pre = [tokset('pre', x) for u in range(5) for x, _ in wreads(u, vWP + 8 * u)]
    distribute(per, FS + 1, FS + 4, pre)
    distribute(per, FS + 6, 27, [lambda: k.wait(lg=T['pre'])] + [g for u in range(9, 14) for g in unit_dma(u)])
    for n in range(28):
        k.wait(lg=W[n])
        e(f"v_mfma_f32_32x32x16_bf16 {vr(AC[0],16)}, {vr(32+4*(n&3),4)}, {vr(vX+4*n,4)}, {'0' if n == 0 else vr(AC[0],16)}")
        if n + 3 < 28:
            for x in r2(n + 3): W[n + 3] = e(x)
        for x in per[n]: emit_item(x)
    e(f"v_mfma_f32_32x32x16_bf16 {vr(AC[0],16)}, {vr(vAA[2],4)}, {vr(vBA,4)}, {vr(AC[0],16)}")
    e("s_barrier")
    stamp(11, chunk=True)
    T['poll'] = e(POLL)
    st_ = k.state()
    e(f"s_mov_b32 s{sC0}, s{sHI}\ns_cmp_eq_u32 s{sHI}, 0\ns_cbranch_scc1 Lp2a")
    for g in p2_dma(2): e(g)
    k.label('Lp2a'); k.set_state(st_)
    e(f"s_cmp_eq_u32 s{mg}, 11\ns_cselect_b32 s{sHQO}, {DUMP}, s{sHQO}\ns_nop 7\ns_cmp_ge_u32 s{mg}, 9\ns_cbranch_scc1 Lphi2")
    st1 = k.state()
    tile(AC[0], 80, 'G', True)
    def phi2():
        k.label('Lphi2'); k.set_state(st1)
        tile(AC[0], 80, 'P', True)
        e("s_branch Lp2")
    outline.append(phi2)
    stamp(12, chunk=True)

def phase1_KV():
    g = sMG
    kAX2 = 64; vRA = 68; vZA_ = 25
    e(f"""s_and_b32 s{sT0}, s{sXCD}, 1
s_mul_i32 s{sT1}, s{sT0}, 3
s_add_u32 s{sT3}, s{sT0}, 1
s_cmp_eq_u32 s{sGSEL}, 6
s_cselect_b32 s{g}, s{sT1}, s{sT3}
s_mul_i32 s{sT0}, s{g}, 224
s_cmp_eq_u32 s{g}, 3
s_cselect_b32 s{sT0}, 640, s{sT0}
s_add_u32 s{sT0}, s{sT0}, 896
v_lshrrev_b32 v4, 4, v0
v_lshlrev_b32 v5, 2, v4
v_sub_u32 v5, v0, v5
v_and_b32 v5, 15, v5
v_lshl_add_u32 v5, v5, 4, s{sT0}
v_lshl_add_u32 v4, s{sW}, 3, v4
v_mul_u32_u24 v4, 2688, v4
v_add_u32 v{vDW0}, v4, v5
v_add_u32 v{vDW0+1}, {4*2688}, v{vDW0}
s_lshl_b32 s{sM0W}, s{sW}, 11
s_add_u32 s{sM0W}, s{sM0W}, 16384""")
    rtok = after_kernarg()
    stamp(0)
    e(srd_s(rW0, pWQKV, 448 * 2688))
    D = {}
    for x in p1_dma('KV', 0): D[0] = e(x)
    e('s_branch Lkv2')
    yield
    k.label('Lkv2')
    e(f"s_and_b32 s{sLO}, s{sW}, 3\ns_lshr_b32 s{sHI}, s{sW}, 2\ns_lshl_b32 s{sT3}, s{sHI}, 13")
    loop_setup(0)
    e(f"""s_cmp_eq_u32 s{g}, 3
s_cselect_b32 s{sT1}, 32, 0
s_mul_i32 s{sT0}, s{sLO}, 56
s_add_u32 s{sT1}, s{sT1}, s{sT0}
v_bfe_u32 v4, v0, 2, 2
v_lshl_add_u32 v5, v4, 6, s{sT1}
v_bfe_u32 v6, v0, 4, 1
v_lshl_add_u32 v5, v6, 5, v5
v_and_b32 v6, 3, v0
v_lshl_add_u32 v5, v6, 3, v5
v_and_b32 v5, 255, v5
v_lshrrev_b32 v6, 5, v0
v_lshl_add_u32 v4, v6, 3, v4
v_lshl_add_u32 v5, v4, 8, v5
v_add_u32 v{vAW}, 16384, v5
v_add_u32 v{vAW+1}, {16384+SLOT}, v5
v_add_u32 v{vAW+2}, {16384+2*SLOT}, v5""")
    for x in p1_dma('KV', 1): D[1] = e(x)
    mall_prefetch()
    rowstat(rtok)
    vXA = 136; vWAu = 144; r1 = 152; R = 154; vC = 160; vR = 176
    setup1 = "".join(f"v_add_u32 v{kAX2+j}, {2*SLOT}, v{vAX+j}\n" for j in range(4)) + \
        f"s_lshl_b32 s{sTILE0}, s{g}, 2\ns_add_u32 s{sTILE0}, s{sTILE0}, s{sLO}\ns_add_u32 s{sT4}, s{sTILE0}, 24\n" + cs_addr_text(sT4, sHI)
    setup2 = f"""s_lshl_b32 s{sT0}, s{sRB}, 11
s_lshl_b32 s{sT1}, s{sHI}, 10
s_add_u32 s{sT0}, s{sT0}, s{sT1}
s_add_u32 s{sT0}, s{sT0}, {STATS}
v_add_u32 v{vGA}, s{sT0}, v{vL16}
""" + p2_setup_text() + poll_addr_text() + f"""s_mov_b32 s{sFLO}, {DUMP}
s_add_u32 s{sT0}, s{sM0X}, {SCR}
v_lshl_add_u32 v6, v0, 2, s{sT0}
v_lshrrev_b32 v7, 5, v0
v_lshl_add_u32 v7, v7, 4, s{sT0}
""" + "".join(f"v_mov_b32 v{r}, 0\n" for r in (vXA+2, vXA+3, vXA+6, vXA+7, vWAu+2, vWAu+3, vWAu+6, vWAu+7)) + f"""s_mov_b32 s{sMKM}, 0x10000000
s_mov_b32 s{sMKM+1}, 0x10000000
s_lshl_b32 s{sT0}, s{sLO}, 12
s_add_u32 s{sT0}, s{sT0}, {SCR}
v_add_u32 v26, s{sT0}, v{vL16}
s_lshl_b32 s{sHQO}, s{sTILE0}, 4
s_add_u32 s{sHQO}, s{sHQO}, s{sRB}
s_lshl_b32 s{sHQO}, s{sHQO}, 12
s_add_u32 s{sHQO}, s{sHQO}, {KVP}
v_mov_b32 v27, 0xff
v_mov_b32 v12, 0x3f803f80
s_bfe_u32 s{sPSTEP0}, s{sTAG}, 0x80008
s_bfe_u32 s{sPSTEP0+1}, s{sTAG}, 0x80010
s_lshr_b32 s{sPSTEP0+2}, s{sTAG}, 24
s_and_b32 s{sSO2}, s{sTAG}, 0xff
s_and_b32 s{sT0}, s{sTB}, 1
s_mul_i32 s{sT0}, s{sT0}, 7
s_add_u32 s{sRCT}, s{sT0}, s{sW}
s_lshr_b32 s{sT0}, s{sTB}, 1
s_mul_i32 s{sT0}, s{sT0}, 28
v_lshrrev_b32 v4, 2, v0
v_add_u32 v4, s{sT0}, v4
v_mul_u32_u24 v4, 896, v4
v_and_b32 v5, 3, v0
v_lshl_add_u32 v4, v5, 4, v4
s_lshl_b32 s{sT0}, s{sRCT}, 6
v_add_u32 v68, s{sT0}, v4
v_add_u32 v69, {16*896}, v68
""" + srd_s(rMISC, pWO, 448 * 896) + f"""s_cmp_eq_u32 s{sGSEL}, 7
s_cselect_b32 s{rMISC+2}, s{rMISC+2}, 0
"""
    gl, gcheck = gran_items()
    m, var = vSG, vSG + 2
    aug = [gcheck] + lines(f"""v_add_f32 v{r1}, {f32(EPS)}, v{var}
v_rsq_f32 v{r1}, v{r1}
v_cvt_pk_bf16_f32 v{R}, -v{m}, 0
v_mul_f32 v{r1+1}, {f32(LOG2E)}, v{r1}
ds_write_b32 v6, v{r1+1}""") + cs_sum(2, vC) + lines(f"""v_lshlrev_b32 v{R+1}, 16, v{R}
v_sub_f32 v{R+1}, -v{m}, v{R+1}
v_cvt_pk_bf16_f32 v{R+3}, -v{m}, v{R+1}
v_cndmask_b32 v{vXA}, v{R+3}, 0, {HALF}
v_cndmask_b32 v{vXA+1}, v{R}, 0, {HALF}
v_cndmask_b32 v{vXA+4}, 0, v{R+3}, {HALF}
v_cndmask_b32 v{vXA+5}, 0, v{R}, {HALF}""")
    for kv in range(2):
        c = vC + kv; a = vWAu + 4 * kv
        aug += lines(f"""v_cvt_pk_bf16_f32 v{a}, v{c}, v{c}
v_and_b32 v{R+4}, 0xffff0000, v{a}
v_sub_f32 v{R+4}, v{c}, v{R+4}
v_cvt_pk_bf16_f32 v{a+1}, v{R+4}, 0""")
    rr = []
    for u in range(2):
        for gq in range(4):
            rr.append(f"ds_read_b128 {vr(vR+16*u+4*gq,4)}, v7 offset:{128*u+32*gq}")
    per = {n: [] for n in range(28)}
    distribute(per, 0, 4, atoms(misc_text() + setup1, 3)); per[5] = cs_pub(2, 136, 188) + per[5]
    distribute(per, 6, 17, atoms(setup2))
    G0 = opt('kgstep', 13)
    per[G0] += gl
    distribute(per, 19, 23, aug)
    distribute(per, 24, 25, rr)
    distribute(per, 26, 27, atoms(wa_text(), 3))
    main_loop('KV', D, per, kAX2, [p2_dma(0), p2_dma(1)])
    for t in range(4): e(f"v_mfma_f32_32x32x16_bf16 {vr(vACC+16*t,16)}, {vr(vXA+4*(t>>1),4)}, {vr(vWAu+4*(t&1),4)}, {vr(vACC+16*t,16)}")
    stamp(2); stamp(9, chunk=True)
    vT = vXB; vPK = 48; vPVv = 56; vKV = 160
    e(f"s_mov_b32 s{sMK}, 0x3f317218\ns_mov_b32 s{sMK+1}, 0x3f317218")
    k.wait(vm=D[8])
    for u in range(5):
        for x, _ in wreads(u, vWP + 8 * u): e(x)
    def w2tail(cond):
        L, Lh = k.newlabel('Lkt'), k.newlabel('Lkt'); st_ = k.state()
        e(f"s_cmp_{cond}_u32 s{sHI}, 0\ns_cbranch_scc1 {L}")
        e(f"s_cmp_eq_u32 s{sGSEL}, 7\ns_cbranch_scc1 {Lh}")
        for g in p2_dma(2): e(g)
        e("s_waitcnt lgkmcnt(0)")
        for g in [g for u in range(9, 14) for g in unit_dma(u)]: e(g)
        e(f"s_branch {L}")
        k.label(Lh)
        e(f"s_mov_b32 m0, s{sM0X}\ns_nop 0\nbuffer_load_dwordx4 v68, s[{rMISC}:{rMISC+3}], 0 offen lds")
        e(f"s_add_u32 m0, s{sM0X}, 1024\ns_nop 0\nbuffer_load_dwordx4 v69, s[{rMISC}:{rMISC+3}], 0 offen lds")
        k.label(L); k.set_state(st_)
    w2tail('eq')
    e("s_nop 7")
    for u in range(2):
        ak, av = vACC + 32 * u, vACC + 32 * u + 16
        for h in range(2):
            a_ = ak + 8 * h; t_ = vT + 8 * h; r_ = vR + 16 * u + 8 * h
            for p in range(4): e(f"v_pk_mul_f32 {vr(a_+2*p,2)}, {vr(a_+2*p,2)}, {vr(r_+2*p,2)}")
            for p in range(8): e(f"v_exp_f32 v{t_+p}, v{a_+p} clamp")
            for p in range(8): e(f"v_max_f32 v{a_+p}, 0, v{a_+p}")
            for p in range(4): e(f"v_pk_add_f32 {vr(t_+2*p,2)}, {vr(t_+2*p,2)}, {sr(sEPS,2)}")
            for p in range(4): e(f"v_pk_fma_f32 {vr(t_+2*p,2)}, {vr(a_+2*p,2)}, {sr(sMK,2)}, {vr(t_+2*p,2)}")
            for p in range(4): e(f"v_cvt_pk_bf16_f32 v{vPK+4*h+p}, v{t_+2*p}, v{t_+2*p+1}")
        for p in range(8): e(f"v_pk_mul_f32 {vr(av+2*p,2)}, {vr(av+2*p,2)}, {vr(vR+16*u+2*p,2)}")
        for p in range(8): e(f"v_cvt_pk_bf16_f32 v{vPVv+p}, v{av+2*p}, v{av+2*p+1}")
        for p in range(8): e(f"v_cndmask_b32 v{vPVv+p}, v{vPVv+p}, v12, s[{sMKM}:{sMKM+1}]")
        for h in range(2):
            cin = '0' if (u == 0 and h == 0) else vr(vKV, 16)
            e(f"v_mfma_f32_32x32x16_bf16 {vr(vKV,16)}, {vr(vPVv+4*h,4)}, {vr(vPK+4*h,4)}, {cin}")
    L1, L2 = k.newlabel('Lc'), k.newlabel('Lc')
    e(f"s_cmp_lg_u32 s{sHI}, 0\ns_cbranch_scc1 {L1}")
    for gq in range(4): e(f"ds_write_b128 v26, {vr(vKV+4*gq,4)} offset:{1024*gq}")
    e("s_waitcnt lgkmcnt(0)")
    k.label(L1)
    if opt('ktail', 0): w2tail('lg')
    e("s_barrier")
    st = k.state()
    e(f"s_cmp_eq_u32 s{sHI}, 0\ns_cbranch_scc1 {L2}")
    tk = [e(f"ds_read_b128 {vr(vT+4*gq,4)}, v26 offset:{1024*gq}") for gq in range(4)]
    e("s_nop 3")
    tb = [sTAG, sPSTEP0, sPSTEP0 + 1, sPSTEP0 + 2]
    for gq in range(4):
        k.wait(lg=tk[gq])
        for p in range(2): e(f"v_pk_add_f32 {vr(vKV+4*gq+2*p,2)}, {vr(vKV+4*gq+2*p,2)}, {vr(vT+4*gq+2*p,2)}")
        for d in range(4): e(f"v_bfi_b32 v{vKV+4*gq+d}, v27, s{tb[d]}, v{vKV+4*gq+d}")
        e(f"buffer_store_dwordx4 {vr(vKV+4*gq,4)}, v{vL16}, {WS}, s{sHQO} offen offset:{1024*gq} sc1")
    k.label(L2)
    k.set_state(st)
    e("s_barrier")
    if not opt('ktail', 0): w2tail('lg')
    stamp(3); stamp(12, 4)

def reducer():
    hd = sRHD
    WOB = 0; AF = SLOT + 16384
    vWF = 16; vP = 72; vXc = 56; vS = 60
    L1 = k.newlabel('Lr')
    e(f"""s_lshr_b32 s{hd}, s{sTB}, 1
s_lshl_b32 s{sT0}, s{hd}, 16
s_lshl_b32 s{sT1}, s{sLO}, 10
s_add_u32 s{sT0}, s{sT0}, s{sT1}
s_add_u32 s{sT0}, s{sT0}, {KVP}
v_add_u32 v12, s{sT0}, v{vL16}
s_lshl_b32 s{sT1}, s{sW}, 11""")
    tb = [sTAG, sPSTEP0, sPSTEP0 + 1, sPSTEP0 + 2]
    st = k.state()
    e(f"s_cmp_ge_u32 s{sW}, 4\ns_cbranch_scc1 Lr_a")
    ck = Checked()
    toks = []
    for rb in range(16):
        toks.append(ck.load(f"s_mov_b32 s{sT0}, {rb*4096}\nbuffer_load_dwordx4 {vr(vP+4*rb,4)}, v12, {WS}, s{sT0} offen sc1"))
    k.label('Lr_a')
    e(f"""v_lshrrev_b32 v6, 5, v0
v_lshlrev_b32 v6, 2, v6
v_bfe_u32 v7, v0, 2, 2
v_add_u32 v6, v6, v7
v_lshlrev_b32 v6, 6, v6
v_bfe_u32 v7, v0, 4, 1
v_lshl_add_u32 v6, v7, 5, v6
v_and_b32 v7, 3, v0
v_lshl_add_u32 v6, v7, 3, v6
s_add_u32 s{sT1}, s{sT1}, {WOB}
v_add_u32 v14, s{sT1}, v6
s_mov_b32 s{sMKM}, 0
s_cmp_eq_u32 s{sW}, 3
s_cselect_b32 s{sMKM+1}, -1, 0
s_lshl_b32 s{sFLO}, s{sRCT}, 11
s_lshl_b32 s{sT1}, s{hd}, 7
s_add_u32 s{sFLO}, s{sFLO}, s{sT1}
s_add_u32 s{sFLO}, s{sFLO}, {FLM + (4 if 'flag1' in DBG else 0)}
s_mul_i32 s{sRMB}, s{sRCT}, {28*1024}
s_mul_i32 s{sT3}, s{hd}, {7*256}
s_add_u32 s{sRMB}, s{sRMB}, s{sT3}
s_add_u32 s{sRMB}, s{sRMB}, {MB}
s_cmp_eq_u32 s{sW}, 7
s_cselect_b32 s{sFLO}, {DUMP}, s{sFLO}
s_cselect_b32 s{sRMB}, {DUMP}, s{sRMB}
v_add_u32 v15, {AF}, v{vL16}
v_lshlrev_b32 v8, 3, v0
v_mov_b32 v6, {DUMP}
v_cndmask_b32 v9, v8, v6, {HALF}
s_add_u32 s{sT1}, s{sT1}, {ZG}
v_and_b32 v4, 31, v0
v_lshl_add_u32 v4, v4, 2, s{sT1}
s_cmp_eq_u32 s{sRCT}, 3
s_mov_b32 vcc_lo, 0
s_cselect_b32 vcc_hi, 0x55555555, 0
v_cndmask_b32 v10, v6, v4, vcc
s_lshr_b32 s{sT3}, s{sW}, 1
s_lshl_b32 s{sT3}, s{sT3}, 10
s_and_b32 s{sT1}, s{sW}, 1
s_lshl_b32 s{sT1}, s{sT1}, 3
s_add_u32 s{sT3}, s{sT3}, s{sT1}
v_add_u32 v5, s{sT3}, v15
v_mov_b32 v7, s{sTAG}""")
    st_b = k.state()
    e(f"s_cmp_lt_u32 s{sW}, 4\ns_cbranch_scc1 Lr_b\ns_waitcnt vmcnt(4)")
    k.label('Lr_b'); k.set_state(st_b)
    e("s_waitcnt vmcnt(16)")
    for s in range(2):
        for rd in range(2): e(f"ds_read_b64_tr_b16 {vr(vWF+4*s+2*rd,2)}, v14 offset:{s*1024+rd*512}")
    e(f"s_cmp_ge_u32 s{sW}, 4\ns_cbranch_scc1 Lr_join")
    for gidx in range(4):
        c = []
        b0 = vP + 16 * gidx
        for i in range(16): c.append(f"v_xor_b32 v{b0+i}, s{[sSO2, sPSTEP0, sPSTEP0 + 1, sPSTEP0 + 2][i & 3]}, v{b0+i}")
        c += [f"v_or3_b32 v{vXc}, v{b0}, v{b0+1}, v{b0+2}", f"v_or3_b32 v{vXc+1}, v{b0+3}, v{b0+4}, v{b0+5}"]
        for i in range(6, 16, 2): c.append(f"v_or3_b32 v{vXc+((i>>1)&1)}, v{vXc+((i>>1)&1)}, v{b0+i}, v{b0+i+1}")
        c += [f"v_or_b32 v{vXc}, v{vXc}, v{vXc+1}", f"v_and_b32 v{vXc}, 0xff, v{vXc}", f"v_cmp_ne_u32 vcc, 0, v{vXc}", "s_cmp_lg_u64 vcc, 0"]
        ck.check(toks[4 * gidx], toks[4 * gidx + 3], "\n".join(c), sleep=opt('rsleep', 2))
        b = vP + 16 * gidx
        for p in range(2):
            e(f"v_pk_add_f32 {vr(b+2*p,2)}, {vr(b+2*p,2)}, {vr(b+4+2*p,2)}\nv_pk_add_f32 {vr(b+8+2*p,2)}, {vr(b+8+2*p,2)}, {vr(b+12+2*p,2)}")
        for p in range(2):
            if gidx == 0: e(f"v_pk_add_f32 {vr(vS+2*p,2)}, {vr(b+2*p,2)}, {vr(b+8+2*p,2)}")
            else: e(f"v_pk_add_f32 {vr(b+2*p,2)}, {vr(b+2*p,2)}, {vr(b+8+2*p,2)}")
        if gidx:
            for p in range(2): e(f"v_pk_add_f32 {vr(vS+2*p,2)}, {vr(vS+2*p,2)}, {vr(b+2*p,2)}")
    stamp(4)
    e(f"""v_pk_mul_f32 {vr(vXc,2)}, {vr(vS,2)}, {sr(sMK,2)}
v_pk_mul_f32 {vr(vXc+2,2)}, {vr(vS+2,2)}, {sr(sMK,2)}
v_mov_b32_dpp v6, v{vS} quad_perm:[1,1,3,3] row_mask:0xf bank_mask:0xf
v_cvt_pk_bf16_f32 v12, v{vXc}, v{vXc+1}
v_cvt_pk_bf16_f32 v13, v{vXc+2}, v{vXc+3}
v_cndmask_b32 v12, v12, 0, s[{sMKM}:{sMKM+1}]
v_cndmask_b32 v13, v13, 0, s[{sMKM}:{sMKM+1}]
ds_write_b64 v5, v[12:13]
v_cvt_pk_bf16_f32 v6, v{vS}, v6
buffer_store_dwordx2 v[6:7], v10, {WS}, 0 offen sc1""")
    k.label('Lr_join')
    e(f"s_waitcnt lgkmcnt(0)\ns_barrier")
    vAF = 32; vD = 96
    e(f"ds_read_b128 {vr(vAF,4)}, v15\nds_read_b128 {vr(vAF+4,4)}, v15 offset:1024")
    e("s_waitcnt lgkmcnt(1)")
    e(f"v_mfma_f32_32x32x16_bf16 {vr(vD,16)}, {vr(vAF,4)}, {vr(vWF,4)}, 0")
    e("s_waitcnt lgkmcnt(0)")
    e(f"v_mfma_f32_32x32x16_bf16 {vr(vD,16)}, {vr(vAF+4,4)}, {vr(vWF+4,4)}, {vr(vD,16)}")
    for gq in range(4):
        for p in range(2): e(f"v_cvt_pk_bf16_f32 v{112+2*gq+p}, v{vD+4*gq+2*p}, v{vD+4*gq+2*p+1}")
        e(f"buffer_store_dwordx2 {vr(112+2*gq,2)}, v{9 if gq == 3 else 8}, {WS}, s{sRMB} offen offset:{512*gq} sc1")
    stamp(5)
    e(f"s_waitcnt vmcnt(0)\nbuffer_store_dword v{vTG}, v{vZ0}, {WS}, s{sFLO} offen sc1")
    stamp(6)

def phase2():
    vHO = 4; vXR = 12; vWB2 = 16
    vA2 = 32; vH = 96
    vB2 = 248; vOUT = 3
    PRI2 = opt('pri2', 0)
    PSCHED = {1: {0: 2, 3: 1, 6: 0}, 2: {0: 2, 4: 1, 8: 0}, 3: {2: 2, 5: 1, 8: 0}, 4: {0: 2, 2: 1, 4: 0}}.get(PRI2, {})
    if opt('prio', 1) and not PRI2:
        e(f"s_cmp_lg_u32 s{sHI}, 0\ns_cbranch_scc1 Lprio\ns_setprio 0")
        k.label('Lprio')
    e(f"""s_mul_i32 s{sT1}, s{sTB}, {2*TSTR}
s_add_u32 s{sT1}, s{sT1}, {HQ}
s_mul_i32 s{sT0}, s{sHI}, {TSTR}
s_add_u32 s{sT3}, s{sT1}, s{sT0}
v_add_u32 v{vHO}, s{sT3}, v{vL16}
s_sub_u32 s{sT1}, s{sT1}, s{sT0}
s_add_u32 s{sT1}, s{sT1}, {TSTR}
v_add_u32 v{vHO+1}, s{sT1}, v{vL16}""")
    htok = {}
    def hl(j):
        o = []
        for s in range(2):
            for tt in range(2):
                def f(j=j, s=s, tt=tt): htok[(2*j+s, tt)] = e(f"buffer_load_dwordx4 {vr(vH+16*j+8*s+4*tt,4)}, v{vHO+tt}, {WS}, s{sHT+j} offen offset:{1024*s} sc1")
                o.append(f)
        return o
    PS = opt('psleep', 3)
    t0, t1 = vXR, vXR + 1
    e(srd_s(rMISC, pB2, 896))
    e(f"""v_lshrrev_b32 v{t0}, 3, v0
s_lshl_b32 s{sT0}, s{sTB}, 6
s_lshl_b32 s{sT1}, s{sW}, 3
s_add_u32 s{sT0}, s{sT0}, s{sT1}
v_add_u32 v{t0}, s{sT0}, v{t0}
v_mul_u32_u24 v{t0}, 896, v{t0}
v_and_b32 v{t1}, 7, v0
v_lshlrev_b32 v{t1}, 4, v{t1}
s_lshl_b32 s{sT0}, s{sCT}, 7
v_add_u32 v{t1}, s{sT0}, v{t1}
v_add_u32 v{t0}, v{t0}, v{t1}""")
    k.nt += 1; own = k.nt; k.vm.append(own)
    for j in range(7): e(f"s_lshl_b32 s{sHT+j}, s{sTAB+j}, 11")
    FF = opt('flagfirst', 1)
    def ownflag():
        k.wait(vm=own)
        e(f"buffer_store_dword v{vTG}, v{vZ0}, {WS}, s{sFLO} offen sc1")
        stamp(8); stamp(13, 4)
    if FF: ownflag()
    if 'delay' in DBG:
        e('s_barrier')
        for _ in range(2): e('s_sleep 127')
        e('s_barrier')
    if 0 in PSCHED: e(f"s_setprio {PSCHED[0]}")
    verify(POLL, poll_test(3, 3), PS)
    stamp(9); stamp(15, 4)
    LA = 3
    for j in range(2):
        for f in hl(j): f()
    if not FF: ownflag()
    PACE = opt('pace', 0)
    if not PACE:
        for f in hl(2): f()
    st_ = k.state()
    e(f"s_cmp_lg_u32 s{sC0}, 0\ns_cbranch_scc1 Lnolate2")
    for g in p2_dma(2): e(g)
    k.label('Lnolate2')
    k.set_state(st_)
    e(f"""s_mul_i32 s{sSO0}, s{sLO}, {7*1024}
s_add_u32 s{sSO1}, s{sSO0}, {112*1024}
s_add_u32 s{sSO2}, s{sSO1}, 4096
v_mov_b32 v{vOUT}, v{t0}
v_lshrrev_b32 v2, 5, v0
v_lshlrev_b32 v2, 4, v2""")
    vZ = vWP
    vZA = vWP + 28; vZD = vWP + 38
    PITCH = 272
    w1, w0, ro, rs, m0_, m1_, x0 = [vWP + 31 + i for i in range(7)]
    x1 = vZ + 3
    addr = f"""v_mul_u32_u24 v{vZ}, 37, v0
v_lshrrev_b32 v{vZ}, 9, v{vZ}
v_lshlrev_b32 v{vZ+1}, 3, v0
v_lshl_add_u32 v{vZ+1}, v{vZ}, 4, v{vZ+1}
s_lshl_b32 s{sT3}, s{sLO}, 9
s_add_u32 s{sPD}, s{sT3}, {ZG}
v_add_u32 v{vZ+1}, s{sPD}, v{vZ+1}
s_lshl_b32 s{sPD}, s{sCT}, 12
s_add_u32 s{sPD}, s{sPD}, s{sT3}
s_lshl_b32 s{sT3}, s{sHI}, 11
s_add_u32 s{sPD}, s{sPD}, s{sT3}
s_add_u32 s{sPD}, s{sPD}, {FLM}
v_and_b32 v{vZ+2}, 3, v0
v_lshl_add_u32 v{vZ+2}, v{vZ+2}, 7, s{sPD}
v_cmp_gt_u32 vcc, 56, v0
v_cndmask_b32 v{vZA}, v{vZ+2}, v{vZ+1}, vcc
v_lshrrev_b32 v{vZ}, 3, v0
v_lshlrev_b32 v{vZ}, 5, v{vZ}
v_bfe_u32 v{vZ+1}, v0, 1, 1
v_lshl_add_u32 v{vZ}, v{vZ+1}, 4, v{vZ}
v_bfe_u32 v{vZ+1}, v0, 2, 1
v_lshl_add_u32 v{vZ}, v{vZ+1}, 3, v{vZ}
v_and_b32 v{vZ+1}, 1, v0
v_lshl_add_u32 v{vZ}, v{vZ+1}, 2, v{vZ}
s_lshl_b32 s{sPD}, s{sW}, 8
s_add_u32 s{sPD}, s{sPD}, {SCR2 + 2048}
v_add_u32 v{vZA+1}, s{sPD}, v{vZ}
v_add_u32 v{vZA+2}, s{sPD}, v2
s_mul_i32 s{sT4}, s{sW}, {7*1024}
s_mul_i32 s{sT0}, s{sCT}, {56*1024}
s_add_u32 s{sT0}, s{sT0}, s{sT4}
s_add_u32 s{sT0}, s{sT0}, {MB}
s_lshl_b32 s{sT4}, s{sW}, 10
s_add_u32 s{sT4}, s{sT4}, {SCR}
v_and_b32 v{x0}, 15, v0
v_mul_u32_u24 v{w1}, {PITCH}, v{x0}
v_bfe_u32 v{x0}, v0, 4, 1
v_mul_u32_u24 v{x0}, {SLOT}, v{x0}
v_add3_u32 v{w1}, v{w1}, v{x0}, v2
s_add_u32 s{sPD}, s{sM0P}, {SLOT}
v_add_u32 v{w1}, s{sPD}, v{w1}
v_lshrrev_b32 v{x0}, 3, v0
s_and_b32 s{sPD}, s{sLO}, 1
v_lshl_add_u32 v{x0}, s{sPD}, 3, v{x0}
v_mul_u32_u24 v{ro}, {PITCH}, v{x0}
v_and_b32 v{x1}, 7, v0
v_lshl_add_u32 v{ro}, v{x1}, 5, v{ro}
s_lshr_b32 s{sPD}, s{sLO}, 1
s_add_u32 s{sPD}, s{sPD}, 1
s_mul_i32 s{sPD}, s{sPD}, {SLOT}
s_xor_b32 s{sT3}, s{sHI}, 1
s_mul_i32 s{sT3}, s{sT3}, {4*6144}
s_add_u32 s{sPD}, s{sPD}, s{sT3}
v_add_u32 v{ro}, s{sPD}, v{ro}
s_lshl_b32 s{sPD}, s{sW}, 13
s_add_u32 s{sT3}, s{sPD}, {SCR - 6*8192}
s_cmp_ge_u32 s{sW}, 6
s_cselect_b32 s{sPD}, s{sT3}, s{sPD}
v_and_b32 v{x0}, 31, v0
v_lshl_add_u32 v{w0}, v{x0}, 8, s{sPD}
v_and_b32 v{x0}, 7, v0
v_lshlrev_b32 v{x0}, 4, v{x0}
v_xor_b32 v{x0}, v{x0}, v2
v_add_u32 v{w0}, v{w0}, v{x0}
v_lshrrev_b32 v{x0}, 3, v0
v_lshlrev_b32 v{x1}, 1, v{x1}
v_xor_b32 v{x1}, v{x1}, v{x0}
v_lshlrev_b32 v{x1}, 4, v{x1}
v_lshl_add_u32 v{rs}, v{x0}, 8, v{x1}
s_lshl_b32 s{sPD}, s{sLO}, 11
s_lshl_b32 s{sT3}, s{sHI}, 15
s_add_u32 s{sPD}, s{sPD}, s{sT3}
v_add_u32 v{rs}, s{sPD}, v{rs}
s_mul_i32 s{sPD}, s{sLO}, 6144
v_lshlrev_b32 v{x0}, 3, v0
v_add_u32 v{m0_}, s{sPD}, v{x0}
s_lshl_b32 s{sPD}, s{sLO}, 10
s_add_u32 s{sPD}, s{sPD}, {SCR}
v_add_u32 v{m1_}, s{sPD}, v{x0}
""" + srd_s(rMISC, pOUT, 2048 * 896)
    per = {u: [] for u in range(14)}
    Z = {}
    vQ = vH
    ZL = f"buffer_load_dwordx2 {vr(vZD,2)}, v{vZA}, {WS}, 0 offen sc1"
    ql = [f"buffer_load_dwordx4 {vr(vQ+4*q,4)}, v{vHO}, {WS}, s{sSO1 if q < 4 else sSO2} offen offset:{1024*(q&3)} sc1" for q in range(7)]
    XB = [f"buffer_load_dwordx4 {vr(vB2,4)}, v{t1}, s[{rMISC}:{rMISC+3}], 0 offen", f"buffer_load_dwordx4 {vr(vXR,4)}, v{vOUT}, s[{rX}:{rX+3}], 0 offen"]
    if PACE:
        seq = hl(2) + hl(3) + hl(4) + hl(5) + hl(6)
        for i in range(10): per[i] += seq[2 * i: 2 * i + 2]
        per[2] = [lambda: Z.__setitem__('p', e(POLL2))] + per[2]
        q0 = opt('pq', 6)
        for i, x in enumerate(ql): per[q0 + i * 4 // 7] += [x]
        per[10] = XB + per[10]
    else:
        per[0] += hl(3)
        per[1] += [lambda: Z.__setitem__('p', e(POLL2)), f"buffer_load_dwordx4 {vr(vB2,4)}, v{t1}, s[{rMISC}:{rMISC+3}], 0 offen", f"buffer_load_dwordx4 {vr(vXR,4)}, v{vOUT}, s[{rX}:{rX+3}], 0 offen"]
        if 'stream' in DBG: per[1] += hl(4); per[2] += hl(5); per[3] += hl(6); per[4] += ql[:4]; per[5] += ql[4:]
        elif opt('qfirst', 1): per[4] += hl(4); per[5] += ql[:4]; per[6] += ql[4:] + hl(5)[:1]; per[7] += hl(5)[1:]; per[8] += hl(6)
        else: per[4] += hl(4); per[5] += hl(5); per[6] += hl(6); per[7] += ql[:4]; per[8] += ql[4:]
    distribute(per, 5, 11, atoms(addr, 3))
    for u in range(14): per[u] += ['s_mov_b32 s47, 0'] * opt('fat2', 0)
    per[opt('zu', 10)] += [ZL]
    tok = {}
    for u in range(14):
        j, s = divmod(u, 2); base = vH + 16 * j
        cur = tok; tok = {}
        stamp(1 + u, p2=True)
        if u in PSCHED and u: e(f"s_setprio {PSCHED[u]}")
        rd = wreads(u + 1, vWB2 + 8 * ((u + 1) & 1)) if 5 <= u + 1 < 14 else []
        wsrc = vWP + 8 * u if u < 5 else vWB2 + 8 * (u & 1)
        mf = []
        for tt in ((1, 0) if u == 13 else (0, 1)):
            for c in range(2):
                acc = vr(vA2 + 32 * tt + 16 * c, 16)
                mf.append(('m', (f"v_mfma_f32_32x32x16_bf16 {acc}, {vr(wsrc+4*c,4)}, {vr(base+8*s+4*tt,4)}, {'0' if u == 0 else acc}", c, tt)))
        if u == 4 and 'stream' in DBG: k.wait(vm=Z['p'])
        elif u == 4:
            k.wait(vm=Z['p'])
            if 'nopoll2' not in DBG: verify(POLL2, poll_test(0xf7, 7), PS)
            stamp(10)
        for kind_, x in spread(mf, [('r', x) for x in rd] + [('f', x) for x in per[u]]):
            if kind_ == 'm':
                k.wait(vm=htok[(u, x[2])], lg=cur.get(x[1])); e(x[0])
            elif kind_ == 'r': tok[x[1]] = e(x[0])
            else: emit_item(x)
    stamp(4); stamp(14, 4); stamp(15, p2=True)
    vF = vWB2; vG = vWB2 + 8
    if PACE: e('s_waitcnt vmcnt(0)')
    for d in range(4):
        e(f"""v_lshlrev_b32 v{vF+2*d}, 16, v{vXR+d}
v_and_b32 v{vF+2*d+1}, 0xffff0000, v{vXR+d}
v_lshlrev_b32 v{vG+2*d}, 16, v{vB2+d}
v_and_b32 v{vG+2*d+1}, 0xffff0000, v{vB2+d}""")
    def mdma():
        for q in range(7):
            m = f"s_add_u32 m0, s{sM0P}, {1024*q}" if q < 6 else f"s_mov_b32 m0, s{sT4}"
            e(f"{m}\ns_add_u32 s{sT1}, s{sT0}, {1024*q}\nbuffer_load_dwordx4 v{vL16}, {WS}, s{sT1} offen sc1 lds")
    ZM = 0 if 'nozm' in DBG else 0xffffffff
    ztest = lambda lo, hi: ztest_(lo & ZM, hi & ZM)
    ztest_ = lambda lo, hi: f"v_cmp_ne_u32 vcc, s{sTAG}, v{vZD+1}\ns_mov_b32 s{sMK}, {lo:#x}\ns_mov_b32 s{sMK+1}, {hi:#x}\ns_and_b64 vcc, vcc, s[{sMK}:{sMK+1}]"
    e("s_waitcnt vmcnt(0)")
    e(f"s_mov_b32 s{sC0}, 0"); e(ztest(0, 0xff000000)); e("s_cbranch_scc1 Lnom")
    e(f"s_mov_b32 s{sC0}, 1"); mdma()
    k.label('Lnom')
    for c in range(2):
        for gq in range(4): e(f"ds_write_b128 v{w1}, {vr(vA2+32+16*c+4*gq,4)} offset:{c*128+gq*32}")
    for d in range(8): e(f"v_add_f32 v{vF+d}, v{vF+d}, v{vG+d}")
    tgt = {}
    for hi in range(2):
        for r in range(4): tgt[r + 4 * hi] = r
        tgt[8 + 4 * hi] = hi; tgt[9 + 4 * hi] = 2 + hi
    def rowmask(h): return sum(1 << i for i, t in tgt.items() if t == h)
    slot = {0: 0, 1: 0, 2: 0, 3: 4, 4: 1, 5: 1, 6: 1, 7: 2, 8: 2, 9: 2, 10: 5, 11: 3, 12: 3, 13: 3}
    vU = vG; vDN = vH + 32; R = 4
    def den_scale():
        e(f"ds_write_b32 v{vZA+1}, v{vZD}")
        for s in range(7): e(f"ds_read_b128 {vr(vZ+4*s,4)}, v{vZA+2} offset:{32*s}")
        e("s_waitcnt lgkmcnt(0)")
        prev = None
        for s in range(7):
            for q in (2 * s, 2 * s + 1):
                mk = (rowmask(2 * q // 7), rowmask((2 * q + 1) // 7))
                if mk != prev: e(f"s_mov_b32 s{sMK}, {mk[0]:#x}\ns_mov_b32 s{sMK+1}, {mk[1]:#x}"); prev = mk
                for d in range(2): e(f"v_cndmask_b32 v{vZ+2*q+d}, 0, v{vZ+2*q+d}, s[{sMK}:{sMK+1}]")
            if s: e(f"v_mfma_f32_32x32x16_bf16 {vr(vDN,16)}, {vr(vZ+4*s-4,4)}, {vr(vQ+4*s-4,4)}, {'0' if s == 1 else vr(vDN,16)}")
        e(f"v_mfma_f32_32x32x16_bf16 {vr(vDN,16)}, {vr(vZ+24,4)}, {vr(vQ+24,4)}, {vr(vDN,16)}")
        UP = vH + 48
        for x in range(28): e(f"v_lshlrev_b32 v{UP+2*x}, 16, v{vQ+x}\nv_and_b32 v{UP+2*x+1}, 0xffff0000, v{vQ+x}")
        for i in range(6): e(f"v_add_f32 v{R+2*i}, s{sEPS}, v{vDN+i}")
        for i in range(6): e(f"v_rcp_f32 v{R+2*i}, v{R+2*i}")
        for x in range(28): e(f"v_pk_mul_f32 {vr(UP+2*x,2)}, {vr(UP+2*x,2)}, {vr(R+2*slot[x>>1],2)} op_sel_hi:[1,0]")
        for x in range(28): e(f"v_cvt_pk_bf16_f32 v{vQ+x}, v{UP+2*x}, v{UP+2*x+1}")
    verify(ZL, ztest(0xffffffff, 0x00ffffff), opt('zsleep', 3))
    stamp(11)
    den_scale()
    e(f"s_cmp_lg_u32 s{sC0}, 0\ns_cbranch_scc1 Lhavem")
    e(ZL); e("s_waitcnt vmcnt(0)")
    verify(ZL, ztest(0, 0xff000000), opt('zsleep', 3))
    mdma()
    k.label('Lhavem')
    stamp(5)
    for i in range(1, 4): e(f"v_xor_b32 v{vZ+i}, {32*i}, v{w0}")
    e(f"v_mov_b32 v{vZ}, v{w0}\nv_xor_b32 v{vZ+4}, 16, v{rs}\ns_mul_i32 s{sT1}, s{sHI}, {SCR - 6*8192}\nv_add_u32 v{vZ+5}, s{sT1}, v{rs}\nv_add_u32 v{vZ+6}, s{sT1}, v{vZ+4}")
    e("s_waitcnt vmcnt(0)\ns_barrier")
    vM = vH + 32
    mt = {}
    for s in range(7):
        for c in range(2):
            pass
    def mread(i):
        c, s = divmod(i, 7)
        for jj in range(2):
            if s < 6: mt[i] = e(f"ds_read_b64 {vr(vM+4*i+2*jj,2)}, v{m0_} offset:{24576*c+1024*s+512*jj}")
            else: mt[i] = e(f"ds_read_b64 {vr(vM+4*i+2*jj,2)}, v{m1_} offset:{4096*c+512*jj}")
    for i in range(6): mread(i)
    ot = []
    for i in range(14):
        c, s = divmod(i, 7)
        k.wait(lg=mt[i])
        acc = vr(vA2 + 16 * c, 16)
        e(f"v_mfma_f32_32x32x16_bf16 {acc}, {vr(vM+4*i,4)}, {vr(vQ+4*s,4)}, {acc}")
        if i < 4: mread(6 + 2 * i); mread(7 + 2 * i)
        if i == 4:
            for q in range(4):
                for hh in range(2): ot.append(e(f"ds_read_b128 {vr(vA2+32+8*q+4*hh,4)}, v{ro} offset:{q*6144+16*hh}"))
        if i == 6:
            k.wait(lg=mt[13]); e("s_barrier")
        if i == 10:
            for gq in range(4): e(f"ds_write_b128 v{vZ+gq}, {vr(vA2+4*gq,4)}")
        if 7 <= i < 11:
            q = i - 7
            k.wait(lg=ot[2 * q + 1])
            for d in range(8): e(f"v_add_f32 v{vF+d}, v{vF+d}, v{vA2+32+8*q+d}")
    stamp(6)
    for gq in range(4): e(f"ds_write_b128 v{vZ+gq}, {vr(vA2+16+4*gq,4)} offset:128")
    e("s_waitcnt lgkmcnt(0)\ns_barrier")
    rt = []
    for q in range(4):
        for hh in range(2):
            a_ = [[rs, vZ + 4], [vZ + 5, vZ + 6]][q >> 1][hh]
            rt.append(e(f"ds_read_b128 {vr(vH+8*q+4*hh,4)}, v{a_} offset:{q*8192}"))
    for q in range(4):
        k.wait(lg=rt[2 * q + 1])
        for d in range(4): e(f"v_pk_add_f32 {vr(vF+2*d,2)}, {vr(vF+2*d,2)}, {vr(vH+8*q+2*d,2)}")
    for d in range(4): e(f"v_cvt_pk_bf16_f32 v{vG+d}, v{vF+2*d}, v{vF+2*d+1}")
    e(f"buffer_store_dwordx4 {vr(vG,4)}, v{vOUT}, s[{rMISC}:{rMISC+3}], 0 offen")
    stamp(7)
    e(f"s_or_b32 s{sT0}, s2, s{sW}\ns_cmp_lg_u32 s{sT0}, 0\ns_cbranch_scc1 Lend")
    e(f"v_mov_b32 v4, s{sTAG}\nv_mov_b32 v5, {EPOCH}\ns_mov_b64 exec, 1\nbuffer_store_dword v4, v5, {WS}, 0 offen")
    if 'pad' in DBG:
        k.label('Lpad')
        e(f"s_memrealtime vcc\ns_waitcnt lgkmcnt(0)\ns_sub_u32 s{sT0}, vcc_lo, s100\ns_cmp_lt_u32 s{sT0}, 4000\ns_cbranch_scc1 Lpad")

DOC = """; Generated by gen/gen23.py (own generator script). One persistent launch, 256 workgroups x 8 waves, one per CU.
"""
kn = NAME + '_kernel'
hdr = open(f'cdna_kernels/{NAME}.s.ref').read().split('; Override launch')[0]
head = hdr + DOC + f"; @launch grid=(256,1,1) block=(512,1,1) lds={LDS_BYTES}\n"
k.raw('.amdgcn_target "amdgcn-amd-amdhsa--gfx950"\n.text')
k.raw(f".globl {kn}\n.p2align 8\n.type {kn},@function\n{kn}:")
prologue()
st_pro = k.state()
kvgen = phase1_KV()
next(kvgen)
st_kv = k.state()
k.label('Lm'); k.set_state(st_pro)
phase1_M()
k.label('Lp2'); k.set_state(([], []))
phase2()
k.label('Lend'); e("s_endpgm")
k.set_state(st_kv)
for _ in kvgen: pass
e(f"s_cmp_eq_u32 s{sGSEL}, 7\ns_cbranch_scc1 Lred")
e(POLL)
e(f"s_waitcnt lgkmcnt(0)\ns_mov_b32 s{sC0}, 1\ns_branch Lp2")
k.label('Lred')
k.set_state(([], []))
reducer()
e("s_endpgm")
i = 0
while i < len(outline): outline[i](); i += 1
k.label('Lcode_end')
e("s_endpgm")
body, nnop = k.render()
kd = f""".amdhsa_kernel {kn}
  .amdhsa_next_free_vgpr 256
  .amdhsa_next_free_sgpr 102
  .amdhsa_accum_offset 256
  .amdhsa_group_segment_fixed_size 0
  .amdhsa_kernarg_size 88
  .amdhsa_user_sgpr_count 2
  .amdhsa_user_sgpr_kernarg_segment_ptr 1
  .amdhsa_system_sgpr_workgroup_id_x 1
.end_amdhsa_kernel
"""
out = head + body + '.section .rodata,"a"\n.p2align 6\n' + kd
outp = [a for a in sys.argv[1:] if not a.startswith('--')]
open(outp[0] if outp else f'cdna_kernels/{NAME}.s', 'w').write(out)
print("nops inserted:", nnop, "lines:", out.count('\n'))
```

```python
import sys, math, struct
sys.path.insert(0, 'gen')
from dsl import *

NAME = "parallel_sum__linear_attn_block__mixer_channel_mlp__prompt"
STAMPS = '--stamps' in sys.argv
DBG = set(a[6:] for a in sys.argv if a.startswith('--dbg-'))
def opt(name, default):
    for a in sys.argv:
        if a.startswith(f'--{name}='): return int(a.split('=')[1])
    return default
def f32(x): return '0x%08x' % struct.unpack('<I', struct.pack('<f', x))[0]
def lines(s): return [l.strip() for l in s.strip().split('\n') if l.strip()]

EPOCH = 0
ZG = 0x1000
FLM = 0x2000
STATS = 0x10000
CSG = 0x18000
MB = 0x40000
KVP = 0x100000
HQ = 0x200000
FLH = 0xB00000
WS_USED = 0xC00000
DUMP = 0x7000000
STAMP_OFF = 0x8000000
SLOT = 49152
SCR = 3 * SLOT
SCR2 = SCR + 8192
LDS_BYTES = 163840
EPS = 1e-5
LOG2E = math.log2(math.e)
GC0 = -2.0 * math.sqrt(2.0 / math.pi) * LOG2E
GC1 = 0.044715
SPIN_MAX = 20000
TSTR = 140 * 1024 + opt('tpad', 0)

sW = 3
pX, pWQKV, pWO, pBX, pW1, pB1, pW2, pB2, pOUT, pDBG, pWS = 4, 6, 8, 10, 12, 14, 16, 18, 20, 22, 24
sHQO, sFLO = 10, 11
sRHD, sRMB = 22, 23
sPM, sQM = 22, 23
sXCD, sSUB, sGSEL, sRB, sCC = 26, 27, 28, 29, 30
sT0, sT1, sT2, sT3, sT4 = 31, 32, 33, 34, 35
rX, rW0, rW1, rW2, rWS, rW2G, rMISC = 36, 40, 44, 48, 52, 56, 60
sSOX, sSO0, sSO1, sSO2 = 64, 65, 66, 67
sPSTEP0 = 68
sM0X, sM0W = 71, 72
sLO, sHI = 73, 74
sC0 = 75
sMK = 76
sHALF = 78
sTAB = 80
sRCT = 87
sEPS = 88
sMKM = 90
sMG = 92
sPD = 93
sTAG = 94
sCT, sTB = 95, 96
sTILE0 = 97
sM0P = 98
sMEAN = 99
sSTAMP = 100
sHT = 40

k = K()
e = k.e
outline = []
WS = f"s[{rWS}:{rWS+3}]"
HALF = f"s[{sHALF}:{sHALF+1}]"
def srd_s(r, ptr, nbytes):
    return f"s_mov_b32 s{r}, s{ptr}\ns_and_b32 s{r+1}, s{ptr+1}, 0xffff\ns_mov_b32 s{r+2}, {nbytes}\ns_mov_b32 s{r+3}, 0x20000\n"

def stamp(idx, wave=0, chunk=False, p2=False):
    if 'pad' in DBG:
        if idx == opt('padx', -1) and not chunk and not p2 and wave == 0:
            e(f"s_memrealtime vcc\ns_waitcnt lgkmcnt(0)\ns_mov_b32 s100, vcc_lo")
        return
    if not STAMPS: return
    if 'span' in DBG and (idx not in (0, 7) or chunk or p2): return
    if 'p2' in DBG:
        if idx > 0 and not p2: return
        if p2: wave = opt('sw', 0)
    elif p2: return
    elif ('chunks' in DBG) != chunk and idx > 1: return
    L = k.newlabel('Lst')
    st = k.state()
    e(f"s_cmp_lg_u32 s{sW}, {wave}\ns_cbranch_scc1 {L}")
    e(f"s_memrealtime s[{sSTAMP}:{sSTAMP+1}]\ns_memtime vcc\ns_waitcnt lgkmcnt(0)")
    e(f"v_mov_b32 v254, s{sSTAMP}\nv_mov_b32 v255, s{sSTAMP+1}")
    e(f"s_lshl_b32 s{sSTAMP}, s2, 8\ns_add_u32 s{sSTAMP}, s{sSTAMP}, {STAMP_OFF + 8*idx}\nv_mov_b32 v253, s{sSTAMP}")
    e(f"global_store_dwordx2 v253, v[254:255], s[{pWS}:{pWS+1}]")
    e(f"s_nop 1\nv_mov_b32 v254, vcc_lo\nv_mov_b32 v255, vcc_hi")
    e(f"global_store_dwordx2 v253, v[254:255], s[{pWS}:{pWS+1}] offset:128")
    k.label(L)
    k.set_state(st)

def emit_item(x): return x() if callable(x) else e(x)

SCC_R = ('s_cselect', 's_cbranch_scc', 's_addc')
SCC_W = ('s_cmp', 's_add', 's_sub', 's_and', 's_or', 's_xor', 's_lshl', 's_lshr', 's_min', 's_max', 's_bfe')
def atoms(text, n=2):
    ls = lines(text); N = len(ls)
    live = [False] * (N + 1); scc = vcc = m0 = False
    for i in range(N - 1, -1, -1):
        ins = Ins(ls[i])
        if ls[i].startswith(SCC_W): scc = False
        if ls[i].startswith(SCC_R): scc = True
        if ('s', 106) in ins.w: vcc = False
        if ('s', 106) in ins.r: vcc = True
        if ('s', 124) in ins.w: m0 = False
        if ('s', 124) in ins.r: m0 = True
        live[i] = scc or vcc or m0
    out = []; cur = []
    for i, l in enumerate(ls):
        cur.append(l)
        if len(cur) >= n and not live[i + 1]: out.append("\n".join(cur)); cur = []
    if cur: out.append("\n".join(cur))
    return out

def distribute(per, first, last, items):
    ns = last - first + 1
    for q in range(ns): per[first + q] += items[len(items) * q // ns: len(items) * (q + 1) // ns]

class Checked:
    def __init__(self): self.log = []
    def load(self, text):
        t = e(text); self.log.append((text, t)); return t
    def check(self, first_tok, last_tok, chk, sleep=1):
        Lc, Ls, Lb = k.newlabel('Lck'), k.newlabel('Lsl'), k.newlabel('Lbk')
        e(f"s_movk_i32 s{sT2}, {SPIN_MAX}")
        k.label(Lc)
        assert last_tok in k.vm
        k.wait(vm=last_tok)
        e(chk); e(f"s_cbranch_scc1 {Ls}")
        k.label(Lb)
        i0 = [t for _, t in self.log].index(first_tok)
        redo = [x for x, _ in self.log[i0:]]
        assert all(t in [tt for _, tt in self.log[i0:]] for t in k.vm), "untracked younger vmem op"
        def slow():
            k.label(Ls)
            e(f"s_sub_u32 s{sT2}, s{sT2}, 1\ns_cbranch_scc1 {Lb}")
            if sleep: e(f"s_sleep {sleep}")
            for x in redo: e(x)
            e(f"s_branch {Lc}")
        outline.append(slow)

def verify(load, test, sleep):
    Lp, Ld, Lc = k.newlabel('Lvs'), k.newlabel('Lvd'), k.newlabel('Lvc')
    e(test); e(f"s_cbranch_scc1 {Lp}")
    k.label(Ld)
    def slow():
        k.label(Lp)
        e(f"s_movk_i32 s{sT2}, {SPIN_MAX}")
        k.label(Lc)
        e(load); e("s_waitcnt vmcnt(0)"); e(test)
        e(f"s_cbranch_scc0 {Ld}\ns_sub_u32 s{sT2}, s{sT2}, 1\ns_cbranch_scc1 {Ld}\ns_sleep {sleep}\ns_branch {Lc}")
    outline.append(slow)

EARLY = sorted(range(48), key=lambda i: (i >> 2, i & 1, i))
def tiles_of_wave(w): return EARLY[6 * w: 6 * w + 6] + [48 + w]
def flag_of(i): return 2 * (i >> 2) + (i & 1) if i < 48 else 32 + (i - 48)
vL16 = 1
vPD0 = 2
vWA = 6
vPA = 23; vPV_ = 24
vWP = 208
vPF = 251; vDUM = 24
P_SLOT = [1, 2, 0]
def unit_pos(u):
    if u >= 9: u -= 9
    return P_SLOT[u // 3] * SLOT + (u % 3) * 2048

sWX = 87
ROT = opt('rot', 0)
def p2_setup_text():
    t = f"s_and_b32 s{sT0}, s{sCT}, {1 if ROT else 0}\ns_lshl_b32 s{sT0}, s{sT0}, 2\ns_xor_b32 s{sWX}, s{sW}, s{sT0}\n"
    for w in range(8):
        v = sum(x << (8 * j) for j, x in enumerate(tiles_of_wave(w)))
        lo, hi = v & 0xffffffff, v >> 32
        if w == 0: t += f"s_mov_b32 s{sTAB}, {lo:#x}\ns_mov_b32 s{sTAB+1}, {hi:#x}\n"
        else: t += f"s_cmp_eq_u32 s{sWX}, {w}\ns_cselect_b32 s{sTAB}, {lo:#x}, s{sTAB}\ns_cselect_b32 s{sTAB+1}, {hi:#x}, s{sTAB+1}\n"
    if ROT:
        t += f"""s_lshr_b32 s{sT0}, s{sCT}, 1
s_lshl_b32 s{sT0}, s{sT0}, 3
s_mov_b32 s{sTAB+2}, s{sTAB}
s_mov_b32 s{sTAB+3}, s{sTAB}
s_lshr_b64 s[{sTAB+2}:{sTAB+3}], s[{sTAB+2}:{sTAB+3}], s{sT0}
s_mov_b32 s{sTAB}, s{sTAB+2}
s_lshl_b32 s{sTAB+2}, s{sTAB+1}, 24
s_or_b32 s{sTAB+2}, s{sTAB+2}, s{sTAB+1}
s_lshr_b32 s{sTAB+3}, s{sTAB+1}, 8
s_lshr_b64 s[{sTAB+2}:{sTAB+3}], s[{sTAB+2}:{sTAB+3}], s{sT0}
s_mov_b32 s{sTAB+1}, s{sTAB+2}
"""
    for j in (6, 5, 4): t += f"s_bfe_u32 s{sTAB+j}, s{sTAB+1}, {0x80000 | (8*(j-4)):#x}\n"
    for j in (3, 2, 1, 0): t += f"s_bfe_u32 s{sTAB+j}, s{sTAB}, {0x80000 | (8*j):#x}\n"
    t += srd_s(rW2G, pW2, 1792 * 896)
    t += f"""s_cmp_eq_u32 s{sGSEL}, 7
s_cselect_b32 s{rW2G+2}, 0, s{rW2G+2}
v_lshrrev_b32 v4, 3, v0
v_mul_u32_u24 v4, 896, v4
v_bfe_u32 v5, v0, 4, 1
v_lshlrev_b32 v5, 2, v5
v_and_b32 v6, 7, v0
v_xor_b32 v5, v5, v6
v_lshl_add_u32 v4, v5, 4, v4
s_lshl_b32 s{sT0}, s{sCT}, 7
v_add_u32 v{vPD0}, s{sT0}, v4
v_add_u32 v{vPD0+1}, 7168, v{vPD0}
s_mul_i32 s{sM0P}, s{sW}, 6144
"""
    return t

vPA2 = 252
def poll_addr_text():
    for w in range(8): assert [flag_of(x) for x in tiles_of_wave(w)] == [3*w, 3*w, 3*w+1, 3*w+1, 3*w+2, 3*w+2, 32+w]
    return f"""v_and_b32 v4, 31, v0
v_lshrrev_b32 v5, 5, v0
v_lshl_add_u32 v4, v5, 6, v4
s_lshl_b32 s{sT0}, s{sTB}, 14
s_add_u32 s{sT0}, s{sT0}, {FLH}
v_lshl_add_u32 v4, v4, 7, s{sT0}
s_mul_i32 s{sT0}, s{sW}, {3*128}
v_add_u32 v6, s{sT0}, v4
v_mov_b32 v5, {DUMP}
s_mov_b32 s{sMK}, 7
s_mov_b32 s{sMK+1}, 7
v_cndmask_b32 v{vPA}, v5, v6, s[{sMK}:{sMK+1}]
s_lshl_b32 s{sT0}, s{sW}, 7
s_add_u32 s{sT0}, s{sT0}, {32*128}
v_add_u32 v6, s{sT0}, v4
s_mov_b32 s{sMK}, 1
s_mov_b32 s{sMK+1}, 1
v_cndmask_b32 v5, v5, v6, s[{sMK}:{sMK+1}]
s_mul_i32 s{sT0}, s{sLO}, 7
s_lshr_b32 s{sT0}, s{sT0}, 1
s_lshl_b32 s{sT1}, s{sHI}, 6
s_add_u32 s{sT0}, s{sT0}, s{sT1}
s_add_u32 s{sT0}, s{sT0}, {40 - 4}
s_lshl_b32 s{sT0}, s{sT0}, 7
v_add_u32 v6, s{sT0}, v4
s_mov_b32 s{sMK}, 0xf0
s_mov_b32 s{sMK+1}, 0
v_cndmask_b32 v{vPA2}, v5, v6, s[{sMK}:{sMK+1}]
"""
POLL = f"buffer_load_dword v{vPV_}, v{vPA}, {WS}, 0 offen sc1"
POLL2 = f"buffer_load_dword v{vPV_}, v{vPA2}, {WS}, 0 offen sc1"
def poll_test(lo, hi):
    return f"v_cmp_ne_u32 vcc, s{sTAG}, v{vPV_}\ns_mov_b32 s{sMK}, {lo:#x}\ns_mov_b32 s{sMK+1}, {hi:#x}\ns_and_b64 vcc, vcc, s[{sMK}:{sMK+1}]"
PFP = opt('pfp', 0); PFN = -(-66 // max(PFP, 1))
def pf_setup_text():
    return f"""s_lshr_b32 s{sT0}, s2, 3
s_lshl_b32 s{sT0}, s{sT0}, 3
s_add_u32 s{sT0}, s{sT0}, s{sW}
s_mul_i32 s{sT0}, s{sT0}, {66*128}
v_lshl_add_u32 v4, v0, 7, s{sT0}
v_mov_b32 v5, {DUMP}
v_cmp_gt_u32 vcc, {PFN}, v0
v_cndmask_b32 v{vPF}, v5, v4, vcc
""" + srd_s(rW2G, pW2, 1792 * 896)
def pf_item(): return f"buffer_load_dword v{vDUM}, v{vPF}, s[{rW2G}:{rW2G+3}], 0 offen\nv_add_u32 v{vPF}, {PFN*128}, v{vPF}"

def unit_dma(u, stage=False):
    j, s = divmod(u, 2)
    out = []
    for jj in range(2):
        g = ""
        if jj == 0:
            g += f"s_mul_i32 s{sPD}, s{sTAB+j}, 28672\n"
            if s: g += f"s_add_u32 s{sPD}, s{sPD}, 14336\n"
        g = (f"s_add_u32 m0, s{sM0X}, {SCR + jj*1024}\n" if stage else f"s_add_u32 m0, s{sM0P}, {unit_pos(u) + jj*1024}\n") + g
        g += f"buffer_load_dwordx4 v{vPD0+jj}, s[{rW2G}:{rW2G+3}], s{sPD} offen lds"
        out.append(g)
    return out
def p2_dma(pc): return [g for u in range(3 * pc, 3 * pc + 3) for g in unit_dma(u)]
def trpat(dst, tmp, hishift, rowshift=7):
    return f"""v_lshrrev_b32 v{dst}, 5, v0
v_lshlrev_b32 v{dst}, {hishift}, v{dst}
v_bfe_u32 v{tmp}, v0, 2, 2
v_add_u32 v{dst}, v{dst}, v{tmp}
v_lshlrev_b32 v{dst}, {rowshift}, v{dst}
v_bfe_u32 v{tmp}, v0, 4, 1
v_lshl_add_u32 v{dst}, v{tmp}, 5, v{dst}
v_and_b32 v{tmp}, 3, v0
v_lshl_add_u32 v{dst}, v{tmp}, 3, v{dst}
v_bfe_u32 v{tmp}, v0, 3, 1
v_lshl_add_u32 v{dst}, v{tmp}, 6, v{dst}
"""
def wa_text():
    return trpat(4, 5, 2) + f"""v_add_u32 v{vWA}, s{sM0P}, v4
v_xor_b32 v{vWA+1}, 64, v{vWA}
v_add_u32 v{vWA+2}, {SLOT}, v{vWA}
v_add_u32 v{vWA+3}, {SLOT}, v{vWA+1}
v_add_u32 v{vWA+4}, {2*SLOT}, v{vWA}
v_add_u32 v{vWA+5}, {2*SLOT}, v{vWA+1}
"""
sLD = 99
def ho_text():
    return f"""s_mul_i32 s{sT1}, s{sTB}, {2*TSTR}
s_add_u32 s{sT1}, s{sT1}, {HQ}
s_mul_i32 s{sT0}, s{sHI}, {TSTR}
s_add_u32 s{sT3}, s{sT1}, s{sT0}
v_add_u32 v4, s{sT3}, v{vL16}
s_sub_u32 s{sT1}, s{sT1}, s{sT0}
s_add_u32 s{sT1}, s{sT1}, {TSTR}
v_add_u32 v5, s{sT1}, v{vL16}
""" + "".join(f"s_lshl_b32 s{sHT+j}, s{sTAB+j}, 11\n" for j in range(7))
def hload(j, s, tt): return f"buffer_load_dwordx4 {vr(96+16*j+8*s+4*tt,4)}, v{4+tt}, {WS}, s{sHT+j} offen offset:{1024*s} sc1"
def wreads(u, dst):
    sl, off = divmod(unit_pos(u), SLOT)
    return [(f"ds_read_b64_tr_b16 {vr(dst+4*c+2*rd,2)}, v{vWA+2*sl+c} offset:{off+rd*1024}", c) for c in range(2) for rd in range(2)]

vDX0, vDX1, vDW0 = 8, 9, 10
vAX = 13
vSEL = 28
vROW = 208; vRU = 212; vGR = 220; vRT = 224
vTG = 248; vZ0 = 249; vGA = 250

def prologue():
    if 'pad' in DBG: e('s_memrealtime s[100:101]')
    e(f"s_load_dwordx16 s[4:19], s[0:1], 0\ns_load_dwordx4 s[20:23], s[0:1], 64\ns_load_dwordx2 s[24:25], s[0:1], 80")
    e(f"s_cmp_ge_u32 s2, 256\ns_cbranch_scc1 Lend")
    if opt('prio', 1): e("s_setprio 3" if opt('pri2', 0) else "s_setprio 1")
    e(f"v_lshrrev_b32 v1, 6, v0\nv_and_b32 v0, 63, v0\nv_readfirstlane_b32 s{sW}, v1")
    e(f"s_and_b32 s{sXCD}, s2, 7\ns_lshr_b32 s{sT0}, s2, 3\ns_and_b32 s{sSUB}, s{sT0}, 3\ns_lshr_b32 s{sGSEL}, s{sT0}, 2")
    st = k.state()
    e(f"s_cmp_lg_u32 s{sW}, 7\ns_cbranch_scc1 Lnopf")
    e(f"s_getpc_b64 s[{sMK}:{sMK+1}]")
    k.label('Lpc')
    e(f"s_and_b32 s{sT0}, s{sT0}, 7\ns_lshl_b32 s{sT0}, s{sT0}, 13\nv_lshl_add_u32 v4, v0, 7, s{sT0}\nv_min_u32 v4, Lcode_end-Lpc-4, v4")
    e(f"global_load_dword v{vDUM}, v4, s[{sMK}:{sMK+1}]")
    k.label('Lnopf')
    k.set_state(st)
    pre_common()
    e(f"s_cmp_lt_u32 s{sGSEL}, 6\ns_cbranch_scc1 Lm")

def pre_common():
    e(f"s_lshr_b32 s{sT0}, s{sXCD}, 1\ns_lshl_b32 s{sT0}, s{sT0}, 2\ns_add_u32 s{sRB}, s{sT0}, s{sSUB}")
    e(f"s_lshl_b32 s{sT0}, s{sGSEL}, 1\ns_add_u32 s{sT0}, s{sT0}, s{sRB}")
    e(f"s_mul_i32 s{sT1}, s{sT0}, 37\ns_lshr_b32 s{sT1}, s{sT1}, 8\ns_mul_i32 s{sT1}, s{sT1}, 7\ns_sub_u32 s{sCC}, s{sT0}, s{sT1}\ns_mov_b32 s{sC0}, s{sCC}")
    if 'norot1' in DBG: e(f"s_mov_b32 s{sCC}, 0")
    if 'rot2' in DBG: e(f"s_and_b32 s{sCC}, s{sCC}, 1\ns_mul_i32 s{sCC}, s{sCC}, 3")
    e(f"""s_lshl_b32 s{sT0}, s{sRB}, 7
s_lshl_b32 s{sT1}, s{sW}, 4
s_add_u32 s{sT0}, s{sT0}, s{sT1}
v_lshrrev_b32 v4, 3, v0
v_add_u32 v4, s{sT0}, v4
v_mul_u32_u24 v4, 896, v4
v_and_b32 v5, 7, v0
v_lshrrev_b32 v6, 4, v0
v_xor_b32 v6, v5, v6
v_lshl_add_u32 v{vDX0}, v6, 4, v4
v_xor_b32 v6, 4, v6
v_lshl_add_u32 v{vDX1}, v6, 4, v4
v_add_u32 v{vDX1}, 7168, v{vDX1}
s_lshl_b32 s{sM0X}, s{sW}, 11
s_mov_b32 s{rX+2}, {2048*896}
s_mov_b32 s{rX+3}, 0x20000
s_lshl_b32 s{sMEAN}, s2, 3
s_add_u32 s{sMEAN}, s{sMEAN}, s{sW}
s_mul_i32 s{sT1}, s{sMEAN}, 896
v_lshlrev_b32 v{vL16}, 4, v0
v_add_u32 v7, s{sT1}, v{vL16}
v_mov_b32 v5, {DUMP}
v_cmp_gt_u32 vcc, 56, v0
v_cndmask_b32 v7, v5, v7, vcc
v_cndmask_b32 v{vRT+1}, 0, 1.0, vcc""")

def after_kernarg():
    e("s_waitcnt lgkmcnt(0)")
    if 'pad' in DBG: e("s_mov_b32 s101, s100")
    e(f"s_load_dword s{sTAG}, s[{pWS}:{pWS+1}], {EPOCH}")
    e(f"s_mov_b32 s{rX}, s{pX}\ns_and_b32 s{rX+1}, s{pX+1}, 0xffff")
    return e(f"buffer_load_dwordx4 {vr(vROW,4)}, v7, s[{rX}:{rX+3}], 0 offen")

def loop_setup(xbias):
    e(f"""v_lshrrev_b32 v4, 2, v0
v_lshrrev_b32 v5, 4, v0
v_xor_b32 v4, v4, v5
v_and_b32 v4, 1, v4
v_and_b32 v5, 3, v0
v_or_b32 v4, v4, v5
v_cmp_eq_u32 vcc, 0, v4
v_mov_b32 v5, 0x3f803f80
v_and_b32 v4, 31, v0
v_cndmask_b32 v{vSEL}, 0, v5, vcc
v_cndmask_b32 v{vSEL+1}, 0, v5, vcc
v_cndmask_b32 v{vSEL+2}, 0, v5, vcc
v_cndmask_b32 v{vSEL+3}, 0, v5, vcc
s_add_u32 s{sT3}, s{sT3}, {xbias}
v_lshl_add_u32 v5, v4, 7, s{sT3}
v_bfe_u32 v4, v0, 1, 3
v_lshrrev_b32 v6, 5, v0
v_xor_b32 v4, v4, v6
v_lshl_add_u32 v{vAX}, v4, 4, v5""")
    for j in range(1, 4): e(f"v_xor_b32 v{vAX+j}, {32*j}, v{vAX}")
    e(f"""s_lshl_b32 s{sT0}, s{sMEAN}, 4
s_add_u32 s{sT0}, s{sT0}, {STATS}
v_mov_b32 v5, {DUMP}
v_mov_b32 v6, s{sT0}
v_cmp_eq_u32 vcc, 63, v0
v_cndmask_b32 v{vRT+2}, v5, v6, vcc""")
    e(srd_s(rWS, pWS, WS_USED))

def misc_text():
    return f"""v_mov_b32 v5, {DUMP}
v_lshlrev_b32 v4, 2, v0
v_cmp_gt_u32 vcc, {1 if 'flag1' in DBG else 32}, v0
v_cndmask_b32 v{vZ0}, v5, v4, vcc
s_mov_b32 s{sHALF}, 0
s_mov_b32 s{sHALF+1}, -1
s_mov_b32 s{sEPS}, {f32(1e-6)}
s_mov_b32 s{sEPS+1}, {f32(1e-6)}
s_mov_b32 s{sCT}, s{sGSEL}
s_lshl_b32 s{sTB}, s{sXCD}, 2
s_add_u32 s{sTB}, s{sTB}, s{sSUB}
"""

def wave_sum(r):
    return [f"v_add_f32_dpp v{r}, v{r}, v{r} {m} bank_mask:0xf" for m in
            ("quad_perm:[1,0,3,2] row_mask:0xf", "quad_perm:[2,3,0,1] row_mask:0xf", "row_half_mirror row_mask:0xf", "row_mirror row_mask:0xf",
             "row_bcast:15 row_mask:0xa", "row_bcast:31 row_mask:0xc")]

def mall_prefetch():
    if opt('mpf', 1) == 0: return
    st = k.state()
    L1, L2 = k.newlabel('Lpf'), k.newlabel('Lpf')
    e(f"s_cmp_lg_u32 s{sW}, 6\ns_cbranch_scc1 {L1}")
    e(f"s_mul_i32 s{sT0}, s2, {49*128}\nv_min_u32 v4, 48, v0\nv_lshl_add_u32 v4, v4, 7, s{sT0}\nglobal_load_dword v{vDUM}, v4, s[{pW2}:{pW2+1}]")
    k.label(L1)
    e(f"s_cmp_lg_u32 s{sW}, 5\ns_cbranch_scc1 {L2}")
    e(f"s_mul_i32 s{sT0}, s2, {13*128}\nv_min_u32 v4, 12, v0\nv_lshl_add_u32 v4, v4, 7, s{sT0}\nv_min_u32 v4, {448*896-4}, v4\nglobal_load_dword v{vDUM}, v4, s[{pWO}:{pWO+1}]")
    e(f"v_min_u32 v4, 6, v0\nv_lshlrev_b32 v4, 7, v4\nglobal_load_dword v{vDUM}, v4, s[{pB2}:{pB2+1}]")
    k.label(L2)
    L3 = k.newlabel('Lpf')
    e(f"s_cmp_lg_u32 s{sW}, {4 if opt('c6', 1) else 9}\ns_cbranch_scc1 {L3}")
    e(f"s_lshr_b32 s{sT0}, s2, 3\ns_mul_i32 s{sT0}, s{sT0}, {56*896}\ns_add_u32 s{sT0}, s{sT0}, 768\nv_min_u32 v4, 55, v0\nv_mul_u32_u24 v4, 896, v4\nv_add_u32 v4, s{sT0}, v4\nglobal_load_dword v{vDUM}, v4, s[{pW2}:{pW2+1}]")
    k.label(L3)
    if opt('tlb', 0):
        L4 = k.newlabel('Lpf'); G = opt('tlb', 0)
        n = (WS_USED // 1024 // G + 31) // 32
        e(f"s_cmp_lg_u32 s{sW}, 3\ns_cbranch_scc1 {L4}")
        e(f"s_lshr_b32 s{sT0}, s2, 3\ns_mul_i32 s{sT1}, s{sT0}, {n}\nv_min_u32 v4, {n-1}, v0\nv_add_u32 v4, s{sT1}, v4\nv_mul_u32_u24 v4, {G*1024}, v4\nv_add_u32 v4, 0x800, v4\nglobal_load_dword v{vDUM}, v4, s[{pWS}:{pWS+1}]")
        m = (2048 * 896 // 1024 // G + 31) // 32
        e(f"s_mul_i32 s{sT1}, s{sT0}, {m}\nv_min_u32 v4, {m-1}, v0\nv_add_u32 v4, s{sT1}, v4\nv_mul_u32_u24 v4, {G*1024}, v4\nv_min_u32 v4, {2048*896-4}, v4\nglobal_load_dword v{vDUM}, v4, s[{pOUT}:{pOUT+1}]")
        k.label(L4)
    k.set_state(st)

def rowstat(rtok):
    a = vRT
    k.wait(vm=rtok)
    it = []
    for d in range(4):
        it += [f"v_lshlrev_b32 v{vRU+2*d}, 16, v{vROW+d}", f"v_and_b32 v{vRU+2*d+1}, 0xffff0000, v{vROW+d}"]
    it += [f"v_pk_add_f32 {vr(vROW,2)}, {vr(vRU,2)}, {vr(vRU+2,2)}", f"v_pk_add_f32 {vr(vROW+2,2)}, {vr(vRU+4,2)}, {vr(vRU+6,2)}",
           f"v_pk_add_f32 {vr(vROW,2)}, {vr(vROW,2)}, {vr(vROW+2,2)}", f"v_add_f32 v{a}, v{vROW}, v{vROW+1}"]
    it += wave_sum(a)
    it += [f"v_mul_f32 v{vGR}, {f32(1/448)}, v{a}", f"v_readlane_b32 s{sMEAN}, v{vGR}, 63", f"v_mul_f32 v{a}, s{sMEAN}, v{vRT+1}"]
    for d in range(4): it.append(f"v_pk_add_f32 {vr(vRU+2*d,2)}, {vr(vRU+2*d,2)}, {vr(a,2)} op_sel_hi:[1,0] neg_lo:[0,1] neg_hi:[0,1]")
    it.append(f"v_pk_mul_f32 {vr(vROW,2)}, {vr(vRU,2)}, {vr(vRU,2)}")
    for d in range(1, 4): it.append(f"v_pk_fma_f32 {vr(vROW,2)}, {vr(vRU+2*d,2)}, {vr(vRU+2*d,2)}, {vr(vROW,2)}")
    it.append(f"v_add_f32 v{a}, v{vROW}, v{vROW+1}")
    it += wave_sum(a)
    it.append(f"v_mul_f32 v{vGR+2}, {f32(1/448)}, v{a}")
    for x in it: e(x)
    e(f"s_waitcnt lgkmcnt(0)\ns_mul_i32 s{sTAG}, s{sTAG}, 1664525\ns_add_u32 s{sTAG}, s{sTAG}, 1013904223")
    e(f"v_mov_b32 v{vTG}, s{sTAG}\nv_mov_b32 v{vGR+1}, s{sTAG}\nv_mov_b32 v{vGR+3}, s{sTAG}")
    e(f"buffer_store_dwordx4 {vr(vGR,4)}, v{vRT+2}, {WS}, 0 offen sc1")

def gelu_pk(acc, out, kp, sp, tmp):
    o = []
    for h in range(2):
        a = acc + 8 * h; t = tmp + 8 * h
        for p in range(4): o.append(f"v_pk_mul_f32 {vr(t+2*p,2)}, {vr(a+2*p,2)}, {vr(a+2*p,2)}")
        for p in range(4): o.append(f"v_pk_fma_f32 {vr(t+2*p,2)}, {vr(t+2*p,2)}, {vr(kp+2,2)}, {vr(kp,2)} op_sel_hi:[1,0,0]")
        for p in range(4): o.append(f"v_pk_mul_f32 {vr(t+2*p,2)}, {vr(t+2*p,2)}, {vr(a+2*p,2)}")
        for p in range(8): o.append(f"v_exp_f32 v{t+p}, v{t+p}")
        for p in range(4): o.append(f"v_pk_fma_f32 {vr(t+2*p,2)}, {vr(t+2*p,2)}, {vr(sp,2)}, {vr(sp,2)} op_sel_hi:[1,0,0]")
        for p in range(8): o.append(f"v_rcp_f32 v{t+p}, v{t+p}")
        for p in range(4): o.append(f"v_pk_mul_f32 {vr(t+2*p,2)}, {vr(t+2*p,2)}, {vr(a+2*p,2)}")
        for p in range(4): o.append(f"v_cvt_pk_bf16_f32 v{out+4*h+p}, v{t+2*p}, v{t+2*p+1}")
        o.append(('st', h))
    return o
def phi_pk(acc, out, rfun, rlfun, sel, tmp):
    o = []
    for h in range(2):
        a = acc + 8 * h; t = tmp + 8 * h
        for p in range(4): o.append(f"v_pk_mul_f32 {vr(t+2*p,2)}, {vr(a+2*p,2)}, {rlfun(4*h+p)} op_sel_hi:[1,{sel}]")
        for p in range(4): o.append(f"v_pk_fma_f32 {vr(a+2*p,2)}, {vr(a+2*p,2)}, {rfun(4*h+p)}, {sr(sEPS,2)} op_sel_hi:[1,{sel},0]")
        for p in range(8): o.append(f"v_exp_f32 v{t+p}, v{t+p} clamp")
        for p in range(8): o.append(f"v_max_f32 v{a+p}, s{sEPS}, v{a+p}")
        for p in range(4): o.append(f"v_pk_add_f32 {vr(t+2*p,2)}, {vr(t+2*p,2)}, {vr(a+2*p,2)}")
        for p in range(4): o.append(f"v_cvt_pk_bf16_f32 v{out+4*h+p}, v{t+2*p}, v{t+2*p+1}")
        o.append(('st', h))
    return o
def skew(chains):
    o = []; L = len(chains[0]); n = len(chains)
    for t in range(L + 2 * n):
        for i, c in enumerate(chains):
            s = t - 2 * (i // 2)
            if 0 <= s < len(c) and c[s] is not None: o.append(c[s])
    return o
def gelu_sc(acc, out, kp, sp, tmp, half):
    ch = []
    for p in range(8):
        a = acc + 8 * half + p; t = tmp + p
        c = [f"v_mul_f32 v{t}, v{a}, v{a}", f"v_fma_f32 v{t}, v{t}, v{kp+2}, v{kp}", f"v_mul_f32 v{t}, v{t}, v{a}", f"v_exp_f32 v{t}, v{t}",
             f"v_fma_f32 v{t}, v{t}, v{sp}, v{sp}", f"v_rcp_f32 v{t}, v{t}", f"v_mul_f32 v{t}, v{t}, v{a}",
             f"v_cvt_pk_bf16_f32 v{out+4*half+p//2}, v{t-1}, v{t}" if p & 1 else None]
        ch.append(c)
    return skew(ch)
def phi_sc(acc, out, r, rl, tmp, half):
    ch = []
    for p in range(8):
        a = acc + 8 * half + p; t = tmp + p
        c = [f"v_mul_f32 v{t}, v{a}, v{rl}", f"v_fma_f32 v{a}, v{a}, v{r}, s{sEPS}", f"v_exp_f32 v{t}, v{t} clamp", f"v_max_f32 v{a}, s{sEPS}, v{a}",
             f"v_add_f32 v{t}, v{t}, v{a}", f"v_cvt_pk_bf16_f32 v{out+4*half+p//2}, v{t-1}, v{t}" if p & 1 else None]
        ch.append(c)
    return skew(ch)

vAW = 17
vBIAS = 25
vXB = 32; vWB = 48; vACC = 72; vCS = 136
vAX2 = 120
vSG = 168; vCG = 172; vGA2 = 21; vCP = 22

def p1_dma(kind, i):
    slot = (i % 3) * SLOT
    out = [f"s_add_u32 m0, s{sM0X}, {slot}\ns_lshl_b32 s{sSOX}, s{sCC}, 7\nbuffer_load_dwordx4 v{vDX0}, s[{rX}:{rX+3}], s{sSOX} offen lds"]
    if kind == 'M':
        out.append(f"s_add_u32 m0, s{sM0X}, {slot + 1024}\ns_mul_i32 s{sSO0}, s{sCC}, s{sPSTEP0}\nbuffer_load_dwordx4 v{vDX1}, s[{rX}:{rX+3}], s{sSOX} offen lds")
        for lc in range(3):
            nx = f"s_mul_i32 s{sSO0+lc+1}, s{sCC}, s{sPSTEP0+lc+1}" if lc < 2 else f"s_add_u32 s{sCC}, s{sCC}, 1"
            out.append(f"s_add_u32 m0, s{sM0W}, {slot + lc*8192}\n{nx}\n"
                       f"buffer_load_dwordx4 v{vDW0+lc}, s[{rW0+4*lc}:{rW0+4*lc+3}], s{sSO0+lc} offen lds")
    else:
        out.append(f"s_add_u32 m0, s{sM0X}, {slot + 1024}\ns_mul_i32 s{sSO0}, s{sCC}, {64*2688}\nbuffer_load_dwordx4 v{vDX1}, s[{rX}:{rX+3}], s{sSOX} offen lds")
        nxs = [f"s_add_u32 s{sSO1}, s{sSO0}, 896", "s_nop 0", "s_nop 0", f"s_add_u32 s{sCC}, s{sCC}, 1"]
        for kv in range(2):
            for jj in range(2):
                if 'kvfast' in DBG and 2 * kv + jj in (1, 2): continue
                out.append(f"s_add_u32 m0, s{sM0W}, {slot + kv*16384 + jj*1024}\n{nxs[2*kv+jj]}\n"
                           f"buffer_load_dwordx4 v{vDW0+jj}, s[{rW0}:{rW0+3}], s{sSO0+kv} offen lds")
    out[-1] += f"\ns_cmp_eq_u32 s{sCC}, 7\ns_cselect_b32 s{sCC}, 0, s{sCC}"
    return out

def cs_addr_text(slot_s, pub_s):
    return f"""s_lshl_b32 s{sT0}, s{slot_s}, 12
s_add_u32 s{sT0}, s{sT0}, {CSG}
v_add_u32 v{vGA2}, s{sT0}, v{vL16}
s_lshl_b32 s{sT1}, s{sC0}, 9
v_add_u32 v4, s{sT1}, v{vGA2}
v_mov_b32 v5, {DUMP}
v_cndmask_b32 v4, v4, v5, {HALF}
s_cmp_lt_u32 s{sRB}, 7
s_cselect_b32 s{sT1}, s{pub_s}, 1
s_cmp_eq_u32 s{sT1}, 0
s_cselect_b32 s{sT1}, 0, {DUMP}
v_add_u32 v{vCP}, s{sT1}, v4
"""
def cs_pub(nt, vCS=136, vRU=212):
    return [f"v_mov_b32 v{vRU+t}, v{vCS+4*t}" for t in range(nt)] + [f"v_mov_b32 v{vRU+t}, v{vTG}" for t in range(nt, 4)] + \
           [f"buffer_store_dwordx4 {vr(vRU,4)}, v{vCP}, {WS}, 0 offen sc1"]
def gran_items(vSG=168, vCG=172):
    GL = [f"buffer_load_dwordx4 {vr(vSG,4)}, v{vGA}, {WS}, 0 offen sc1"] + \
         [f"buffer_load_dwordx4 {vr(vCG+4*q,4)}, v{vGA2}, {WS}, 0 offen offset:{1024*q} sc1" for q in range(4)]
    G = {}
    def last_g(): G['g'] = e(GL[-1])
    a_ = vSG + 1
    gtest = f"""v_cndmask_b32 v{vCG+15}, v{vCG+15}, v{vTG}, {HALF}
v_xor_b32 v{a_}, v{vTG}, v{a_}
v_bitop3_b32 v{a_}, v{a_}, v{vSG+3}, v{vTG} bitop3:0xf6
v_bitop3_b32 v{a_}, v{a_}, v{vCG+3}, v{vTG} bitop3:0xf6
v_bitop3_b32 v{a_}, v{a_}, v{vCG+7}, v{vTG} bitop3:0xf6
v_bitop3_b32 v{a_}, v{a_}, v{vCG+11}, v{vTG} bitop3:0xf6
v_bitop3_b32 v{a_}, v{a_}, v{vCG+15}, v{vTG} bitop3:0xf6
v_cmp_ne_u32 vcc, 0, v{a_}
s_cmp_lg_u64 vcc, 0"""
    def gcheck():
        k.wait(vm=G['g']); verify("\n".join(GL), gtest, 4)
    return GL[:-1] + [last_g], gcheck
def cs_sum(nt, dst, vCG=172):
    it = []
    for t in range(nt): it.append(f"v_cndmask_b32 v{vCG+12+t}, v{vCG+12+t}, 0, {HALF}")
    for t in range(nt): it += [f"v_add_f32 v{vCG+t}, v{vCG+t}, v{vCG+4+t}", f"v_add_f32 v{vCG+8+t}, v{vCG+8+t}, v{vCG+12+t}"]
    for t in range(nt): it.append(f"v_add_f32 v{vCG+t}, v{vCG+t}, v{vCG+8+t}")
    for t in range(nt): it.append(f"v_mov_b32 v{vCG+4+t}, v{vCG+t}")
    for t in range(nt): it.append(f"v_permlane32_swap_b32 v{vCG+t}, v{vCG+4+t}")
    for t in range(nt): it.append(f"v_add_f32 v{dst+t}, v{vCG+t}, v{vCG+4+t}")
    return it

def main_loop(kind, D, per, ax2, tail=None, lead=None):
    SETS = [32, 48, 232]
    xbuf = lambda n, u: SETS[n % 3] + 4 * u
    wbuf = lambda n, t: SETS[n % 3] + 8 + 4 * t
    def reads(n):
        i, j = divmod(n, 4); sl = i % 3
        xa = (ax2 if sl == 2 else vAX) + j; xo = SLOT if sl == 1 else 0
        o = [f"ds_read_b128 {vr(xbuf(n,0),4)}, v{xa} offset:{xo}"]
        for kv in range(2):
            for rd in range(2): o.append(f"ds_read_b64_tr_b16 {vr(wbuf(n,kv)+2*rd,2)}, v{vAW+sl} offset:{kv*16384 + j*4096 + rd*1024}")
        o.append(f"ds_read_b128 {vr(xbuf(n,1),4)}, v{xa} offset:{xo+4096}")
        return o
    k.wait(vm=D[0]); e("s_barrier")
    stamp(1)
    RT = {}
    for n in range(2):
        for x in reads(n): RT[n] = e(x)
    pend = p1_dma(kind, 2); pend_i = 2
    for n in range(28):
        i, j = divmod(n, 4)
        mf = []
        for t in range(4):
            if 'kvfast' in DBG and t == 3 and n > 0: continue
            acc = vr(vACC + 16 * t, 16); u, kv = t >> 1, t & 1
            mf.append(f"v_mfma_f32_32x32x16_bf16 {acc}, {vr(xbuf(n,u),4)}, {vr(wbuf(n,kv),4)}, {'0' if n == 0 else acc}")
        if i == 0:
            for t in range(2):
                acc = vr(vCS + 4 * t, 4)
                mf.append(f"v_mfma_f32_16x16x32_bf16 {acc}, {vr(vSEL,4)}, {vr(wbuf(n,t),4)}, {'0' if n == 0 else acc}")
        k.wait(lg=RT[n])
        e(mf[0])
        if j == 2:
            assert not pend
            e(mf[1]); mf = mf[1:]
            e("s_waitcnt lgkmcnt(0)")
            if i < 6: k.wait(vm=D[i + 1])
            e("s_barrier")
            stamp(2 + i, chunk=True)
            pend_i = i + 3
            pend = (lead or {}).get(i, []) + (p1_dma(kind, i + 3) if i + 3 < 7 else tail[i + 3 - 7] if i < 6 else [])
        if n + 2 < 28:
            for x in reads(n + 2): RT[n + 2] = e(x)
        left = {2: 3, 3: 2, 0: 1, 1: 1}[j] if n >= 2 else 2 - n
        nd = -(-len(pend) // left)
        dmm = pend[:nd]; pend = pend[nd:]
        other = spread([('d', x) for x in dmm] or [('n', None)], [('f', x) for x in per[n]])
        other = [f for f in other if f[0] != 'n']
        for kind_, x in spread([('m', x) for x in mf[1:]], other):
            t_ = emit_item(x)
            if kind_ == 'd' and t_ is not None: D[pend_i] = t_

FLAG = f"buffer_store_dword v{vTG}, v{vZ0}, {WS}, s{sFLO} offen sc1\ns_add_u32 s{sFLO}, s{sFLO}, 128"

XP = [65536, 81920, 114688]
WP = [[49152, 57344], [98304, 106496], [131072, 139264]]
L2P = [SCR] + [8192 * i for i in range(6)]
def ring(c): return (c + 2) % 3
def phase1_M():
    mg = sMG
    vX = 96; AC = [64, 80]; mCS = 48; vK = 48; vBA = 56; vAA = [228, 232, 60]; sm = 26
    mSG = 208; mCG = 212; R = 236; vC = 244
    WS3 = [32, 40, 240]
    T = {}
    def tokset(key, text):
        def f(): T[key] = e(text)
        return f
    def dma_c(c):
        p = ring(c)
        return [f"s_add_u32 m0, s{sM0X}, {XP[p]}\ns_lshl_b32 s{sSOX}, s{sCC}, 7\nbuffer_load_dwordx4 v{vDX0}, s[{rX}:{rX+3}], s{sSOX} offen lds",
                f"s_add_u32 m0, s{sM0X}, {XP[p]+1024}\ns_mul_i32 s{sSO0}, s{sCC}, {64*3584}\nbuffer_load_dwordx4 v{vDX1}, s[{rX}:{rX+3}], s{sSOX} offen lds",
                f"s_add_u32 m0, s{sM0W}, {WP[p][0]}\ns_add_u32 s{sCC}, s{sCC}, 1\nbuffer_load_dwordx4 v{vDW0}, s[{rW0}:{rW0+3}], s{sSO0} offen lds",
                f"s_add_u32 m0, s{sM0W}, {WP[p][1]}\ns_cmp_eq_u32 s{sCC}, 7\nbuffer_load_dwordx4 v{vDW0+1}, s[{rW0}:{rW0+3}], s{sSO0} offen lds\n"
                f"s_cselect_b32 s{sCC}, 0, s{sCC}"]
    def dma_2(c):
        return (f"s_add_u32 m0, s{sM0W}, {L2P[c]}\ns_nop 0\nbuffer_load_dwordx4 v{vDW0+2}, s[{rW2}:{rW2+3}], s{sSO2} offen lds\n"
                f"s_add_u32 s{sSO2}, s{sSO2}, s{sPSTEP0+2}\ns_cmp_eq_u32 s{sSO2}, s{rW2+2}\ns_cselect_b32 s{sSO2}, 0, s{sSO2}")
    def wf(a, j, dst): return [f"ds_read_b64_tr_b16 {vr(dst+2*rd,2)}, v{vAW + (a >> 16)} offset:{(a & 0xffff) + j*2048 + rd*512}" for rd in range(2)]
    e(f"s_and_b32 s{sT0}, s{sXCD}, 1\ns_mul_i32 s{sT0}, s{sT0}, 6\ns_add_u32 s{mg}, s{sT0}, s{sGSEL}")
    e(f"""v_lshrrev_b32 v4, 3, v0
v_lshl_add_u32 v4, s{sW}, 3, v4
v_bfe_u32 v5, v0, 4, 1
v_lshlrev_b32 v5, 2, v5
v_and_b32 v6, 7, v0
v_xor_b32 v5, v5, v6
v_lshlrev_b32 v5, 4, v5
s_lshl_b32 s{sM0W}, s{sW}, 10
s_lshl_b32 s{sT0}, s{mg}, 8
v_mul_u32_u24 v{vDW0}, 3584, v4
v_add3_u32 v{vDW0}, v{vDW0}, v5, s{sT0}
v_add_u32 v{vDW0+1}, 128, v{vDW0}
s_mov_b32 s{rW0+2}, {448*3584}
s_mov_b32 s{rW0+3}, 0x20000""")
    rtok = after_kernarg()
    stamp(0)
    e(f"s_mov_b32 s{rW0}, s{pW1}\ns_and_b32 s{rW0+1}, s{pW1+1}, 0xffff\ns_mov_b32 s{sT3}, s{sCC}")
    for g in dma_c(0): T[0] = e(g)
    r = rW2
    e(f"""s_add_u32 s{sT0}, s{mg}, 24
s_sub_u32 s{sT1}, s{mg}, 4
s_cmp_lt_u32 s{mg}, 11
s_cselect_b32 s{r+2}, {448*2688}, 0
s_cmp_lt_u32 s{mg}, 4
s_cselect_b32 s{r+2}, {448*3584}, s{r+2}
s_cselect_b32 s{sT0}, s{sT0}, s{sT1}
s_movk_i32 s{sT1}, 2688
s_cselect_b32 s{sT1}, 3584, s{sT1}
s_cselect_b32 s{r}, s{pW1}, s{pWQKV}
s_cselect_b32 s{r+1}, s{pW1+1}, s{pWQKV+1}
s_and_b32 s{r+1}, s{r+1}, 0xffff
s_lshl_b32 s{sT0}, s{sT0}, 7
s_lshl_b32 s{sPSTEP0+2}, s{sT1}, 6
v_mad_u32_u24 v{vDW0+2}, v4, s{sT1}, v5
v_add_u32 v{vDW0+2}, s{sT0}, v{vDW0+2}
s_mov_b32 s{r+3}, 0x20000
s_mul_i32 s{sSO2}, s{sT3}, s{sPSTEP0+2}""")
    e(f"s_and_b32 s{sLO}, s{sW}, 3\ns_lshr_b32 s{sHI}, s{sW}, 2\ns_lshl_b32 s{sT3}, s{sLO}, 12")
    loop_setup(65536)
    e(trpat(4, 5, 3) + f"s_lshl_b32 s{sT0}, s{sHI}, 6\nv_xor_b32 v{vAW}, s{sT0}, v4\nv_add_u32 v{vAW+1}, 65536, v{vAW}\nv_add_u32 v{vAW+2}, 131072, v{vAW}")
    e(dma_2(0))
    for g in dma_c(1): T[1] = e(g)
    mall_prefetch()
    rowstat(rtok)
    m, var = mSG, mSG + 2
    r1, w_, rm = R + 5, R + 6, R + 7
    setup1 = misc_text() + f"s_lshl_b32 s{sT4}, s{mg}, 1\ns_add_u32 s{sT4}, s{sT4}, s{sHI}\ns_lshl_b32 s{sTILE0}, s{mg}, 2\ns_add_u32 s{sTILE0}, s{sTILE0}, s{sHI}\n" + \
        cs_addr_text(sT4, sLO) + srd_s(rMISC, pB1, 3584) + f"s_lshl_b32 s{sT0}, s{sTILE0}, 6\nv_and_b32 v4, 31, v0\nv_lshl_add_u32 v{vBIAS+2}, v4, 1, s{sT0}\n"
    bias = [f"buffer_load_ushort v{vBIAS+t}, v{vBIAS+2}, s[{rMISC}:{rMISC+3}], 0 offen offset:{128*t}" for t in range(2)] + \
           [f"s_lshl_b32 s{sT0}, s{mg}, 7\ns_sub_u32 s{sT0}, {48*64}, s{sT0}\nv_add_u32 v{vBIAS+2}, s{sT0}, v{vBIAS+2}\nbuffer_load_ushort v{vBIAS+2}, v{vBIAS+2}, s[{rMISC}:{rMISC+3}], 0 offen"]
    setup2 = f"""s_lshl_b32 s{sT0}, s{sRB}, 2
s_add_u32 s{sT0}, s{sT0}, s{sLO}
s_lshl_b32 s{sT1}, s{sT0}, 9
s_add_u32 s{sT1}, s{sT1}, {STATS}
v_and_b32 v4, 31, v0
v_lshl_add_u32 v{vGA}, v4, 4, s{sT1}
s_lshl_b32 s{sFLO}, s{sT0}, 13
s_mul_i32 s{sT0}, s{sT0}, {TSTR}
s_lshl_b32 s{sT1}, s{sTILE0}, 11
s_add_u32 s{sHQO}, s{sT0}, s{sT1}
s_add_u32 s{sHQO}, s{sHQO}, {HQ}
s_lshl_b32 s{sT1}, s{sT4}, 7
s_add_u32 s{sFLO}, s{sFLO}, s{sT1}
s_add_u32 s{sFLO}, s{sFLO}, {FLH}
""" + p2_setup_text()
    early = f"v_mov_b32 v{vBA+3}, 0\n" + "".join(f"v_lshlrev_b32 v{vAA[t]+1}, 16, v{vBIAS+t}\nv_mov_b32 v{vAA[t]+2}, v{vBIAS+t}\nv_mov_b32 v{vAA[t]+3}, 0\n" for t in range(3))
    gl, gcheck = gran_items(mSG, mCG)
    C3 = [mCG + 8, mCG + 9, mCG + 10]
    aug = [gcheck] + lines(f"""v_add_f32 v{vK}, {f32(EPS)}, v{var}
v_mov_b32 v{vK+1}, {f32(EPS)}
v_fma_f32 v{vK+1}, v{vK+1}, v{vK}, v{var}
v_rsq_f32 v{vK+4}, v{vK}
v_rsq_f32 v{vK+3}, v{vK+1}""") + cs_sum(3, mCG + 8, mCG) + lines(f"""v_mul_f32 v{sm}, v{vK+1}, v{vK+3}
v_cvt_pk_bf16_f32 v{R}, -v{m}, v{sm}
v_lshlrev_b32 v{R+1}, 16, v{R}
v_and_b32 v{R+2}, 0xffff0000, v{R}
v_sub_f32 v{R+1}, -v{m}, v{R+1}
v_sub_f32 v{R+2}, v{sm}, v{R+2}
v_cvt_pk_bf16_f32 v{R+3}, -v{m}, v{R+1}
v_cvt_pk_bf16_f32 v{R+2}, v{R+2}, 0
v_cndmask_b32 v{vBA}, v{R+3}, 0, {HALF}
v_cndmask_b32 v{vBA+1}, v{R}, 0, {HALF}
v_cndmask_b32 v{vBA+2}, v{R+2}, 0, {HALF}""")
    for t in range(3):
        c = C3[t]; a = vAA[t]
        aug += lines(f"""v_cvt_pk_bf16_f32 v{a}, v{c}, v{c}
v_and_b32 v{R}, 0xffff0000, v{a}
v_sub_f32 v{R}, v{c}, v{R}
v_cvt_pk_bf16_f32 v{a+1}, v{R}, v{a+1}""")
    post = lines(f"""v_mul_f32 v{vK}, {f32(GC0)}, v{vK+3}
v_mul_f32 v{vK+5}, v{vK+3}, v{vK+3}
v_mul_f32 v{vK+5}, {f32(GC1)}, v{vK+5}
v_mul_f32 v{vK+2}, v{vK+5}, v{vK}
v_mul_f32 v{vK+6}, {f32(LOG2E)}, v{vK+4}""")
    per = {n: [] for n in range(28)}
    dmx = {n: [] for n in range(28)}
    distribute(per, 0, 7, atoms(setup1)); per[9] += cs_pub(3, mCS) + bias
    distribute(per, 10, 17, atoms(setup2)); distribute(per, 19, 20, atoms(early))
    for st_ in [5, 9, 13, 17, 21][:PFP]: per[st_].append(pf_item())
    G0 = opt('gstep', 18)
    distribute(per, G0, G0 + 1, gl)
    distribute(per, 23, 27, aug)
    for n in range(28): per[n] += ['s_mov_b32 s99, 0'] * opt('fat1', 0)
    distribute(dmx, 0, 1, [tokset(2, g) for g in dma_c(2)])
    for c in range(3, 7): distribute(dmx, 4 * (c - 3) + 2, 4 * (c - 3) + 4, [tokset(c, g) for g in dma_c(c)])
    for c, st_ in zip(range(1, 7), (12, 16, 17, 20, 21, 21)): dmx[st_].append(tokset('l2', dma_2(c)))
    distribute(dmx, 22, 27, [tokset('P0', g) for g in p2_dma(0)])
    def reads(n):
        c, j = divmod(n, 4); p = ring(c); ws = WS3[n % 3]
        return [f"ds_read_b128 {vr(vX+4*n,4)}, v{vAX+j} offset:{XP[p]-65536}"] + wf(WP[p][0], j, ws) + wf(WP[p][1], j, ws + 4)
    k.wait(vm=T[0]); e("s_barrier")
    stamp(1)
    RT = {}
    MP = True
    for n in range(2):
        for x in reads(n): RT[n] = e(x)
    CT = {}
    for n in range(28):
        c, j = divmod(n, 4); ws = WS3[n % 3]
        if j == 2:
            e("s_waitcnt lgkmcnt(0)")
            if c < 6: k.wait(vm=T[c + 1])
            e("s_barrier")
            stamp(2 + c, chunk=True)
        mf = [f"v_mfma_f32_32x32x16_bf16 {vr(AC[t],16)}, {vr(ws+4*t,4)}, {vr(vX+4*n,4)}, {'0' if n == 0 else vr(AC[t],16)}" for t in range(2)]
        if c == 0: mf += [f"v_mfma_f32_16x16x32_bf16 {vr(mCS+4*t,4)}, {vr(vSEL,4)}, {vr(ws+4*t,4)}, {'0' if n == 0 else vr(mCS+4*t,4)}" for t in range(2)]
        rd = [tokset(('r', n + 2), x) for x in reads(n + 2)] if n + 2 < 28 else []
        if 2 <= n < 6: rd += [tokset(('c', n - 2), x) for x in wf(L2P[0], n - 2, [60, 228, 232, 236][n - 2])]
        if 4 <= n < 8:
            def csm(q=n - 4):
                k.wait(lg=T[('c', q)])
                e(f"v_mfma_f32_16x16x32_bf16 {vr(mCS+8,4)}, {vr(vSEL,4)}, {vr([60, 228, 232, 236][q],4)}, {'0' if q == 0 else vr(mCS+8,4)}")
            mf.append(csm)
        k.wait(lg=RT[n] if n < 2 else T[('r', n)])
        other = spread(dmx[n], per[n]) if dmx[n] else per[n]
        for x in [mf[0]] + rd + spread(mf[1:], other): emit_item(x)
    for x in spread([f"v_mfma_f32_32x32x16_bf16 {vr(AC[t],16)}, {vr(vAA[t],4)}, {vr(vBA,4)}, {vr(AC[t],16)}" for t in range(2)], post): e(x)
    stamp(2); stamp(9, chunk=True)
    def p1dma(cond, lab):
        st_ = k.state()
        e(f"s_cmp_{cond}_u32 s{sHI}, 0\ns_cbranch_scc1 {lab}")
        for g in p2_dma(1): e(g)
        k.label(lab); k.set_state(st_)
    p1dma('eq', 'Lp1a')
    vT = 32
    def tile(acc, out, kind, last=False):
        ep = gelu_pk(acc, out, vK, sm, vT) if kind == 'G' else phi_pk(acc, out, lambda p: vr(vK + 4, 2), lambda p: vr(vK + 6, 2), 0, vT)
        for x in ep:
            if isinstance(x, tuple):
                h = x[1]
                if last and h == 0 and not opt('eh', 0): k.wait(vm=T['poll'])
                T['st'] = e(f"buffer_store_dwordx4 {vr(out+4*h,4)}, v{vL16}, {WS}, s{sHQO} offen offset:{1024*h} sc1")
                if h: e(f"s_add_u32 s{sHQO}, s{sHQO}, 4096")
            else: e(x)
    e("s_nop 5")
    tile(AC[0], 208, 'G'); tile(AC[1], 216, 'G')
    T0 = dict(T)
    e(f"s_lshl_b32 s{sT0}, s{mg}, 12\ns_sub_u32 s{sHQO}, s{sHQO}, s{sT0}\ns_add_u32 s{sHQO}, s{sHQO}, {(48 - 4) * 2048}")
    stamp(3); stamp(12, 4)
    p1dma('lg', 'Lp1b')
    k.wait(vm=T0['l2'])
    e("s_barrier")
    stamp(10, chunk=True)
    def r2(n): return wf(L2P[n >> 2], n & 3, 32 + 4 * (n & 3))
    W = {}
    for n in range(3):
        for x in r2(n): W[n] = e(x)
    per = {n: [] for n in range(28)}
    FS = opt('fstep', 9)
    distribute(per, 0, FS - 1, atoms(poll_addr_text() + wa_text(), 3))
    per[FS] = ["s_waitcnt vmcnt(0)", f"buffer_store_dword v{vTG}, v{vZ0}, {WS}, s{sFLO} offen sc1\ns_add_u32 s{sFLO}, s{sFLO}, 4096"]
    pre = [tokset('pre', x) for u in range(5) for x, _ in wreads(u, vWP + 8 * u)]
    distribute(per, FS + 1, FS + 4, pre)
    distribute(per, FS + 6, 27, [lambda: k.wait(lg=T['pre'])] + [g for u in range(9, 14) for g in unit_dma(u)])
    if opt('eh', 0): per[opt('pstep', 22)] = [tokset('poll', POLL)] + per[opt('pstep', 22)]
    for n in range(28):
        k.wait(lg=W[n])
        e(f"v_mfma_f32_32x32x16_bf16 {vr(AC[0],16)}, {vr(32+4*(n&3),4)}, {vr(vX+4*n,4)}, {'0' if n == 0 else vr(AC[0],16)}")
        if n + 3 < 28:
            for x in r2(n + 3): W[n + 3] = e(x)
        for x in per[n]: emit_item(x)
    e(f"v_mfma_f32_32x32x16_bf16 {vr(AC[0],16)}, {vr(vAA[2],4)}, {vr(vBA,4)}, {vr(AC[0],16)}")
    e("s_barrier")
    stamp(11, chunk=True)
    EH = opt('eh', 0)
    if not EH: T['poll'] = e(POLL)
    else: k.wait(vm=T['poll'])
    st_ = k.state()
    e(f"s_mov_b32 s{sC0}, s{sHI}\ns_mov_b32 s{sLD}, 0\ns_cmp_eq_u32 s{sHI}, 0\ns_cbranch_scc1 Lp2a")
    if EH:
        e(ho_text())
        e(poll_test(7, 7)); e("s_cbranch_scc1 Lp2b")
        e(f"s_mov_b32 s{sLD}, 1")
        for j in range(2):
            for s_ in range(2):
                for tt in range(2): e(hload(j, s_, tt))
        k.label('Lp2b')
    for g in p2_dma(2): e(g)
    k.label('Lp2a'); k.set_state(st_)
    e(f"s_cmp_eq_u32 s{mg}, 11\ns_cselect_b32 s{sHQO}, {DUMP}, s{sHQO}\ns_nop 7\ns_cmp_ge_u32 s{mg}, 4\ns_cbranch_scc1 Lphi2")
    st1 = k.state()
    tile(AC[0], 80, 'G', True)
    def phi2():
        k.label('Lphi2'); k.set_state(st1)
        tile(AC[0], 80, 'P', True)
        e("s_branch Lp2")
    outline.append(phi2)
    stamp(12, chunk=True)

def phase1_KV():
    g = sMG
    kAX2 = 64; vRA = 68; vZA_ = 25
    e(f"""s_and_b32 s{sT0}, s{sXCD}, 1
s_mul_i32 s{sT1}, s{sT0}, 3
s_add_u32 s{sT3}, s{sT0}, 1
s_cmp_eq_u32 s{sGSEL}, 6
s_cselect_b32 s{g}, s{sT1}, s{sT3}
s_mul_i32 s{sT0}, s{g}, 224
s_cmp_eq_u32 s{g}, 3
s_cselect_b32 s{sT0}, 640, s{sT0}
s_add_u32 s{sT0}, s{sT0}, 896
v_lshrrev_b32 v4, 4, v0
v_lshlrev_b32 v5, 2, v4
v_sub_u32 v5, v0, v5
v_and_b32 v5, 15, v5
v_lshl_add_u32 v5, v5, 4, s{sT0}
v_lshl_add_u32 v4, s{sW}, 3, v4
v_mul_u32_u24 v4, 2688, v4
v_add_u32 v{vDW0}, v4, v5
v_add_u32 v{vDW0+1}, {4*2688}, v{vDW0}
s_lshl_b32 s{sM0W}, s{sW}, 11
s_add_u32 s{sM0W}, s{sM0W}, 16384""")
    rtok = after_kernarg()
    stamp(0)
    e(srd_s(rW0, pWQKV, 448 * 2688))
    D = {}
    for x in p1_dma('KV', 0): D[0] = e(x)
    e('s_branch Lkv2')
    yield
    k.label('Lkv2')
    e(f"s_and_b32 s{sLO}, s{sW}, 3\ns_lshr_b32 s{sHI}, s{sW}, 2\ns_lshl_b32 s{sT3}, s{sHI}, 13")
    loop_setup(0)
    e(f"""s_cmp_eq_u32 s{g}, 3
s_cselect_b32 s{sT1}, 32, 0
s_mul_i32 s{sT0}, s{sLO}, 56
s_add_u32 s{sT1}, s{sT1}, s{sT0}
v_bfe_u32 v4, v0, 2, 2
v_lshl_add_u32 v5, v4, 6, s{sT1}
v_bfe_u32 v6, v0, 4, 1
v_lshl_add_u32 v5, v6, 5, v5
v_and_b32 v6, 3, v0
v_lshl_add_u32 v5, v6, 3, v5
v_and_b32 v5, 255, v5
v_lshrrev_b32 v6, 5, v0
v_lshl_add_u32 v4, v6, 3, v4
v_lshl_add_u32 v5, v4, 8, v5
v_add_u32 v{vAW}, 16384, v5
v_add_u32 v{vAW+1}, {16384+SLOT}, v5
v_add_u32 v{vAW+2}, {16384+2*SLOT}, v5""")
    for x in p1_dma('KV', 1): D[1] = e(x)
    mall_prefetch()
    rowstat(rtok)
    vXA = 136; vWAu = 144; r1 = 152; R = 154; vC = 160; vR = 176
    setup1 = "".join(f"v_add_u32 v{kAX2+j}, {2*SLOT}, v{vAX+j}\n" for j in range(4)) + \
        f"s_lshl_b32 s{sTILE0}, s{g}, 2\ns_add_u32 s{sTILE0}, s{sTILE0}, s{sLO}\ns_add_u32 s{sT4}, s{sTILE0}, 24\n" + cs_addr_text(sT4, sHI)
    setup2 = f"""s_lshl_b32 s{sT0}, s{sRB}, 11
s_lshl_b32 s{sT1}, s{sHI}, 10
s_add_u32 s{sT0}, s{sT0}, s{sT1}
s_add_u32 s{sT0}, s{sT0}, {STATS}
v_add_u32 v{vGA}, s{sT0}, v{vL16}
""" + p2_setup_text() + poll_addr_text() + f"""s_mov_b32 s{sFLO}, {DUMP}
s_add_u32 s{sT0}, s{sM0X}, {SCR}
v_lshl_add_u32 v6, v0, 2, s{sT0}
v_lshrrev_b32 v7, 5, v0
v_lshl_add_u32 v7, v7, 4, s{sT0}
""" + "".join(f"v_mov_b32 v{r}, 0\n" for r in (vXA+2, vXA+3, vXA+6, vXA+7, vWAu+2, vWAu+3, vWAu+6, vWAu+7)) + f"""s_mov_b32 s{sMKM}, 0x10000000
s_mov_b32 s{sMKM+1}, 0x10000000
s_lshl_b32 s{sT0}, s{sLO}, 12
s_add_u32 s{sT0}, s{sT0}, {SCR}
v_add_u32 v26, s{sT0}, v{vL16}
s_lshl_b32 s{sHQO}, s{sTILE0}, 4
s_add_u32 s{sHQO}, s{sHQO}, s{sRB}
s_lshl_b32 s{sHQO}, s{sHQO}, 12
s_add_u32 s{sHQO}, s{sHQO}, {KVP}
v_mov_b32 v27, 0xff
v_mov_b32 v12, 0x3f803f80
s_bfe_u32 s{sPSTEP0}, s{sTAG}, 0x80008
s_bfe_u32 s{sPSTEP0+1}, s{sTAG}, 0x80010
s_lshr_b32 s{sPSTEP0+2}, s{sTAG}, 24
s_and_b32 s{sSO2}, s{sTAG}, 0xff
s_and_b32 s{sT0}, s{sTB}, 1
s_mul_i32 s{sT0}, s{sT0}, 7
s_add_u32 s{sRCT}, s{sT0}, s{sW}
s_lshr_b32 s{sT0}, s{sTB}, 1
s_mul_i32 s{sT0}, s{sT0}, 28
v_lshrrev_b32 v4, 2, v0
v_add_u32 v4, s{sT0}, v4
v_mul_u32_u24 v4, 896, v4
v_and_b32 v5, 3, v0
v_lshl_add_u32 v4, v5, 4, v4
s_lshl_b32 s{sT0}, s{sRCT}, 6
v_add_u32 v68, s{sT0}, v4
v_add_u32 v69, {16*896}, v68
""" + srd_s(rMISC, pWO, 448 * 896) + f"""s_cmp_eq_u32 s{sGSEL}, 7
s_cselect_b32 s{rMISC+2}, s{rMISC+2}, 0
"""
    gl, gcheck = gran_items()
    m, var = vSG, vSG + 2
    aug = [gcheck] + lines(f"""v_add_f32 v{r1}, {f32(EPS)}, v{var}
v_rsq_f32 v{r1}, v{r1}
v_cvt_pk_bf16_f32 v{R}, -v{m}, 0
v_mul_f32 v{r1+1}, {f32(LOG2E)}, v{r1}
ds_write_b32 v6, v{r1+1}""") + cs_sum(2, vC) + lines(f"""v_lshlrev_b32 v{R+1}, 16, v{R}
v_sub_f32 v{R+1}, -v{m}, v{R+1}
v_cvt_pk_bf16_f32 v{R+3}, -v{m}, v{R+1}
v_cndmask_b32 v{vXA}, v{R+3}, 0, {HALF}
v_cndmask_b32 v{vXA+1}, v{R}, 0, {HALF}
v_cndmask_b32 v{vXA+4}, 0, v{R+3}, {HALF}
v_cndmask_b32 v{vXA+5}, 0, v{R}, {HALF}""")
    for kv in range(2):
        c = vC + kv; a = vWAu + 4 * kv
        aug += lines(f"""v_cvt_pk_bf16_f32 v{a}, v{c}, v{c}
v_and_b32 v{R+4}, 0xffff0000, v{a}
v_sub_f32 v{R+4}, v{c}, v{R+4}
v_cvt_pk_bf16_f32 v{a+1}, v{R+4}, 0""")
    rr = []
    for u in range(2):
        for gq in range(4):
            rr.append(f"ds_read_b128 {vr(vR+16*u+4*gq,4)}, v7 offset:{128*u+32*gq}")
    per = {n: [] for n in range(28)}
    distribute(per, 0, 4, atoms(misc_text() + setup1, 3)); per[5] = cs_pub(2, 136, 188) + per[5]
    distribute(per, 6, 17, atoms(setup2))
    G0 = opt('kgstep', 13)
    per[G0] += gl
    distribute(per, 19, 23, aug)
    distribute(per, 24, 25, rr)
    distribute(per, 26, 27, atoms(wa_text(), 3))
    main_loop('KV', D, per, kAX2, [p2_dma(0), p2_dma(1)])
    for t in range(4): e(f"v_mfma_f32_32x32x16_bf16 {vr(vACC+16*t,16)}, {vr(vXA+4*(t>>1),4)}, {vr(vWAu+4*(t&1),4)}, {vr(vACC+16*t,16)}")
    stamp(2); stamp(9, chunk=True)
    vT = vXB; vPK = 48; vPVv = 56; vKV = 160
    e(f"s_mov_b32 s{sMK}, 0x3f317218\ns_mov_b32 s{sMK+1}, 0x3f317218")
    k.wait(vm=D[8])
    for u in range(5):
        for x, _ in wreads(u, vWP + 8 * u): e(x)
    def w2tail(cond):
        L, Lh = k.newlabel('Lkt'), k.newlabel('Lkt'); st_ = k.state()
        e(f"s_cmp_{cond}_u32 s{sHI}, 0\ns_cbranch_scc1 {L}")
        e(f"s_cmp_eq_u32 s{sGSEL}, 7\ns_cbranch_scc1 {Lh}")
        for g in p2_dma(2): e(g)
        e("s_waitcnt lgkmcnt(0)")
        for g in [g for u in range(9, 14) for g in unit_dma(u)]: e(g)
        e(f"s_branch {L}")
        k.label(Lh)
        e(f"s_mov_b32 m0, s{sM0X}\ns_nop 0\nbuffer_load_dwordx4 v68, s[{rMISC}:{rMISC+3}], 0 offen lds")
        e(f"s_add_u32 m0, s{sM0X}, 1024\ns_nop 0\nbuffer_load_dwordx4 v69, s[{rMISC}:{rMISC+3}], 0 offen lds")
        k.label(L); k.set_state(st_)
    kp = e(POLL)
    w2tail('eq')
    e("s_nop 7")
    for u in range(2):
        ak, av = vACC + 32 * u, vACC + 32 * u + 16
        for h in range(2):
            a_ = ak + 8 * h; t_ = vT + 8 * h; r_ = vR + 16 * u + 8 * h
            for p in range(4): e(f"v_pk_mul_f32 {vr(a_+2*p,2)}, {vr(a_+2*p,2)}, {vr(r_+2*p,2)}")
            for p in range(8): e(f"v_exp_f32 v{t_+p}, v{a_+p} clamp")
            for p in range(8): e(f"v_max_f32 v{a_+p}, 0, v{a_+p}")
            for p in range(4): e(f"v_pk_add_f32 {vr(t_+2*p,2)}, {vr(t_+2*p,2)}, {sr(sEPS,2)}")
            for p in range(4): e(f"v_pk_fma_f32 {vr(t_+2*p,2)}, {vr(a_+2*p,2)}, {sr(sMK,2)}, {vr(t_+2*p,2)}")
            for p in range(4): e(f"v_cvt_pk_bf16_f32 v{vPK+4*h+p}, v{t_+2*p}, v{t_+2*p+1}")
        for p in range(8): e(f"v_pk_mul_f32 {vr(av+2*p,2)}, {vr(av+2*p,2)}, {vr(vR+16*u+2*p,2)}")
        for p in range(8): e(f"v_cvt_pk_bf16_f32 v{vPVv+p}, v{av+2*p}, v{av+2*p+1}")
        for p in range(8): e(f"v_cndmask_b32 v{vPVv+p}, v{vPVv+p}, v12, s[{sMKM}:{sMKM+1}]")
        for h in range(2):
            cin = '0' if (u == 0 and h == 0) else vr(vKV, 16)
            e(f"v_mfma_f32_32x32x16_bf16 {vr(vKV,16)}, {vr(vPVv+4*h,4)}, {vr(vPK+4*h,4)}, {cin}")
    L1, L2 = k.newlabel('Lc'), k.newlabel('Lc')
    e(f"s_cmp_lg_u32 s{sHI}, 0\ns_cbranch_scc1 {L1}")
    for gq in range(4): e(f"ds_write_b128 v26, {vr(vKV+4*gq,4)} offset:{1024*gq}")
    e("s_waitcnt lgkmcnt(0)")
    k.label(L1)
    k.wait(vm=kp)
    e("s_barrier")
    st = k.state()
    e(f"s_cmp_eq_u32 s{sHI}, 0\ns_cbranch_scc1 {L2}")
    tk = [e(f"ds_read_b128 {vr(vT+4*gq,4)}, v26 offset:{1024*gq}") for gq in range(4)]
    e("s_nop 3")
    tb = [sTAG, sPSTEP0, sPSTEP0 + 1, sPSTEP0 + 2]
    for gq in range(4):
        k.wait(lg=tk[gq])
        for p in range(2): e(f"v_pk_add_f32 {vr(vKV+4*gq+2*p,2)}, {vr(vKV+4*gq+2*p,2)}, {vr(vT+4*gq+2*p,2)}")
        for d in range(4): e(f"v_bfi_b32 v{vKV+4*gq+d}, v27, s{tb[d]}, v{vKV+4*gq+d}")
        e(f"buffer_store_dwordx4 {vr(vKV+4*gq,4)}, v{vL16}, {WS}, s{sHQO} offen offset:{1024*gq} sc1")
    k.label(L2)
    k.set_state(st)
    e("s_barrier")
    if not opt('ktail', 0): w2tail('lg')
    stamp(3); stamp(12, 4)

def reducer():
    hd = sRHD
    WOB = 0; AF = SLOT + 16384
    vWF = 16; vP = 72; vXc = 56; vS = 60
    L1 = k.newlabel('Lr')
    e(f"""s_lshr_b32 s{hd}, s{sTB}, 1
s_lshl_b32 s{sT0}, s{hd}, 16
s_lshl_b32 s{sT1}, s{sLO}, 10
s_add_u32 s{sT0}, s{sT0}, s{sT1}
s_add_u32 s{sT0}, s{sT0}, {KVP}
v_add_u32 v12, s{sT0}, v{vL16}
s_lshl_b32 s{sT1}, s{sW}, 11""")
    tb = [sTAG, sPSTEP0, sPSTEP0 + 1, sPSTEP0 + 2]
    st = k.state()
    e(f"s_cmp_ge_u32 s{sW}, 4\ns_cbranch_scc1 Lr_a")
    ck = Checked()
    toks = []
    for rb in range(16):
        toks.append(ck.load(f"s_mov_b32 s{sT0}, {rb*4096}\nbuffer_load_dwordx4 {vr(vP+4*rb,4)}, v12, {WS}, s{sT0} offen sc1"))
    k.label('Lr_a')
    e(f"""v_lshrrev_b32 v6, 5, v0
v_lshlrev_b32 v6, 2, v6
v_bfe_u32 v7, v0, 2, 2
v_add_u32 v6, v6, v7
v_lshlrev_b32 v6, 6, v6
v_bfe_u32 v7, v0, 4, 1
v_lshl_add_u32 v6, v7, 5, v6
v_and_b32 v7, 3, v0
v_lshl_add_u32 v6, v7, 3, v6
s_add_u32 s{sT1}, s{sT1}, {WOB}
v_add_u32 v14, s{sT1}, v6
s_mov_b32 s{sMKM}, 0
s_cmp_eq_u32 s{sW}, 3
s_cselect_b32 s{sMKM+1}, -1, 0
s_lshl_b32 s{sFLO}, s{sRCT}, 11
s_lshl_b32 s{sT1}, s{hd}, 7
s_add_u32 s{sFLO}, s{sFLO}, s{sT1}
s_add_u32 s{sFLO}, s{sFLO}, {FLM + (4 if 'flag1' in DBG else 0)}
s_mul_i32 s{sRMB}, s{sRCT}, {28*1024}
s_mul_i32 s{sT3}, s{hd}, {7*256}
s_add_u32 s{sRMB}, s{sRMB}, s{sT3}
s_add_u32 s{sRMB}, s{sRMB}, {MB}
s_cmp_eq_u32 s{sW}, 7
s_cselect_b32 s{sFLO}, {DUMP}, s{sFLO}
s_cselect_b32 s{sRMB}, {DUMP}, s{sRMB}
v_add_u32 v15, {AF}, v{vL16}
v_lshlrev_b32 v8, 3, v0
v_mov_b32 v6, {DUMP}
v_cndmask_b32 v9, v8, v6, {HALF}
s_add_u32 s{sT1}, s{sT1}, {ZG}
v_and_b32 v4, 31, v0
v_lshl_add_u32 v4, v4, 2, s{sT1}
s_cmp_eq_u32 s{sRCT}, 3
s_mov_b32 vcc_lo, 0
s_cselect_b32 vcc_hi, 0x55555555, 0
v_cndmask_b32 v10, v6, v4, vcc
s_lshr_b32 s{sT3}, s{sW}, 1
s_lshl_b32 s{sT3}, s{sT3}, 10
s_and_b32 s{sT1}, s{sW}, 1
s_lshl_b32 s{sT1}, s{sT1}, 3
s_add_u32 s{sT3}, s{sT3}, s{sT1}
v_add_u32 v5, s{sT3}, v15
v_mov_b32 v7, s{sTAG}""")
    st_b = k.state()
    e(f"s_cmp_lt_u32 s{sW}, 4\ns_cbranch_scc1 Lr_b\ns_waitcnt vmcnt(4)")
    k.label('Lr_b'); k.set_state(st_b)
    e("s_waitcnt vmcnt(16)")
    for s in range(2):
        for rd in range(2): e(f"ds_read_b64_tr_b16 {vr(vWF+4*s+2*rd,2)}, v14 offset:{s*1024+rd*512}")
    e(f"s_cmp_ge_u32 s{sW}, 4\ns_cbranch_scc1 Lr_join")
    for gidx in range(4):
        c = []
        b0 = vP + 16 * gidx
        for i in range(16): c.append(f"v_xor_b32 v{b0+i}, s{[sSO2, sPSTEP0, sPSTEP0 + 1, sPSTEP0 + 2][i & 3]}, v{b0+i}")
        c += [f"v_or3_b32 v{vXc}, v{b0}, v{b0+1}, v{b0+2}", f"v_or3_b32 v{vXc+1}, v{b0+3}, v{b0+4}, v{b0+5}"]
        for i in range(6, 16, 2): c.append(f"v_or3_b32 v{vXc+((i>>1)&1)}, v{vXc+((i>>1)&1)}, v{b0+i}, v{b0+i+1}")
        c += [f"v_or_b32 v{vXc}, v{vXc}, v{vXc+1}", f"v_and_b32 v{vXc}, 0xff, v{vXc}", f"v_cmp_ne_u32 vcc, 0, v{vXc}", "s_cmp_lg_u64 vcc, 0"]
        ck.check(toks[4 * gidx], toks[4 * gidx + 3], "\n".join(c), sleep=opt('rsleep', 2))
        b = vP + 16 * gidx
        for p in range(2):
            e(f"v_pk_add_f32 {vr(b+2*p,2)}, {vr(b+2*p,2)}, {vr(b+4+2*p,2)}\nv_pk_add_f32 {vr(b+8+2*p,2)}, {vr(b+8+2*p,2)}, {vr(b+12+2*p,2)}")
        for p in range(2):
            if gidx == 0: e(f"v_pk_add_f32 {vr(vS+2*p,2)}, {vr(b+2*p,2)}, {vr(b+8+2*p,2)}")
            else: e(f"v_pk_add_f32 {vr(b+2*p,2)}, {vr(b+2*p,2)}, {vr(b+8+2*p,2)}")
        if gidx:
            for p in range(2): e(f"v_pk_add_f32 {vr(vS+2*p,2)}, {vr(vS+2*p,2)}, {vr(b+2*p,2)}")
    stamp(4)
    e(f"""v_pk_mul_f32 {vr(vXc,2)}, {vr(vS,2)}, {sr(sMK,2)}
v_pk_mul_f32 {vr(vXc+2,2)}, {vr(vS+2,2)}, {sr(sMK,2)}
v_mov_b32_dpp v6, v{vS} quad_perm:[1,1,3,3] row_mask:0xf bank_mask:0xf
v_cvt_pk_bf16_f32 v12, v{vXc}, v{vXc+1}
v_cvt_pk_bf16_f32 v13, v{vXc+2}, v{vXc+3}
v_cndmask_b32 v12, v12, 0, s[{sMKM}:{sMKM+1}]
v_cndmask_b32 v13, v13, 0, s[{sMKM}:{sMKM+1}]
ds_write_b64 v5, v[12:13]
v_cvt_pk_bf16_f32 v6, v{vS}, v6
buffer_store_dwordx2 v[6:7], v10, {WS}, 0 offen sc1""")
    k.label('Lr_join')
    e(f"s_waitcnt lgkmcnt(0)\ns_barrier")
    vAF = 32; vD = 96
    e(f"ds_read_b128 {vr(vAF,4)}, v15\nds_read_b128 {vr(vAF+4,4)}, v15 offset:1024")
    e("s_waitcnt lgkmcnt(1)")
    e(f"v_mfma_f32_32x32x16_bf16 {vr(vD,16)}, {vr(vAF,4)}, {vr(vWF,4)}, 0")
    e("s_waitcnt lgkmcnt(0)")
    e(f"v_mfma_f32_32x32x16_bf16 {vr(vD,16)}, {vr(vAF+4,4)}, {vr(vWF+4,4)}, {vr(vD,16)}")
    for gq in range(4):
        for p in range(2): e(f"v_cvt_pk_bf16_f32 v{112+2*gq+p}, v{vD+4*gq+2*p}, v{vD+4*gq+2*p+1}")
        e(f"buffer_store_dwordx2 {vr(112+2*gq,2)}, v{9 if gq == 3 else 8}, {WS}, s{sRMB} offen offset:{512*gq} sc1")
    stamp(5)
    e(f"s_waitcnt vmcnt(0)\nbuffer_store_dword v{vTG}, v{vZ0}, {WS}, s{sFLO} offen sc1")
    stamp(6)

def phase2():
    vHO = 4; vXR = 12; vWB2 = 16
    vA2 = 32; vH = 96
    vB2 = 248; vOUT = 3
    PRI2 = opt('pri2', 0)
    PSCHED = {1: {0: 2, 3: 1, 6: 0}, 2: {0: 2, 4: 1, 8: 0}, 3: {2: 2, 5: 1, 8: 0}, 4: {0: 2, 2: 1, 4: 0}}.get(PRI2, {})
    if opt('prio', 1) and not PRI2:
        e(f"s_cmp_lg_u32 s{sHI}, 0\ns_cbranch_scc1 Lprio\ns_setprio 0")
        k.label('Lprio')
    e(f"""s_mul_i32 s{sT1}, s{sTB}, {2*TSTR}
s_add_u32 s{sT1}, s{sT1}, {HQ}
s_mul_i32 s{sT0}, s{sHI}, {TSTR}
s_add_u32 s{sT3}, s{sT1}, s{sT0}
v_add_u32 v{vHO}, s{sT3}, v{vL16}
s_sub_u32 s{sT1}, s{sT1}, s{sT0}
s_add_u32 s{sT1}, s{sT1}, {TSTR}
v_add_u32 v{vHO+1}, s{sT1}, v{vL16}""")
    htok = {}
    def hl(j):
        o = []
        for s in range(2):
            for tt in range(2):
                def f(j=j, s=s, tt=tt): htok[(2*j+s, tt)] = e(f"buffer_load_dwordx4 {vr(vH+16*j+8*s+4*tt,4)}, v{vHO+tt}, {WS}, s{sHT+j} offen offset:{1024*s} sc1")
                o.append(f)
        return o
    PS = opt('psleep', 3)
    t0, t1 = vXR, vXR + 1
    e(srd_s(rMISC, pB2, 896))
    e(f"""v_lshrrev_b32 v{t0}, 3, v0
s_lshl_b32 s{sT0}, s{sTB}, 6
s_lshl_b32 s{sT1}, s{sW}, 3
s_add_u32 s{sT0}, s{sT0}, s{sT1}
v_add_u32 v{t0}, s{sT0}, v{t0}
v_mul_u32_u24 v{t0}, 896, v{t0}
v_and_b32 v{t1}, 7, v0
v_lshlrev_b32 v{t1}, 4, v{t1}
s_lshl_b32 s{sT0}, s{sCT}, 7
v_add_u32 v{t1}, s{sT0}, v{t1}
v_add_u32 v{t0}, v{t0}, v{t1}""")
    k.nt += 1; own = k.nt; k.vm.append(own)
    for j in range(7): e(f"s_lshl_b32 s{sHT+j}, s{sTAB+j}, 11")
    FF = opt('flagfirst', 1)
    def ownflag():
        k.wait(vm=own)
        e(f"buffer_store_dword v{vTG}, v{vZ0}, {WS}, s{sFLO} offen sc1")
        stamp(8); stamp(13, 4)
    if FF == 1: ownflag()
    if 'delay' in DBG:
        e('s_barrier')
        for _ in range(2): e('s_sleep 127')
        e('s_barrier')
    if 0 in PSCHED: e(f"s_setprio {PSCHED[0]}")
    verify(POLL, poll_test(7, 7), PS)
    stamp(9); stamp(15, 4)
    LA = 3
    e(f"s_cmp_lg_u32 s{sLD}, 0\ns_cbranch_scc1 Lhad")
    for j in range(2):
        for f in hl(j): f()
    k.label('Lhad')
    if not FF: ownflag()
    PACE = opt('pace', 0)
    if not PACE:
        for f in hl(2): f()
    st_ = k.state()
    e(f"s_cmp_lg_u32 s{sC0}, 0\ns_cbranch_scc1 Lnolate2")
    for g in p2_dma(2): e(g)
    k.label('Lnolate2')
    k.set_state(st_)
    e(f"""s_mul_i32 s{sSO0}, s{sLO}, {7*1024}
s_add_u32 s{sSO1}, s{sSO0}, {112*1024}
s_add_u32 s{sSO2}, s{sSO1}, 4096
v_mov_b32 v{vOUT}, v{t0}
v_lshrrev_b32 v2, 5, v0
v_lshlrev_b32 v2, 4, v2""")
    vZ = vWP
    vZA = vWP + 28; vZD = vWP + 38
    PITCH = 272
    w1, w0, ro, rs, m0_, m1_, x0 = [vWP + 31 + i for i in range(7)]
    x1 = vZ + 3
    addr = f"""v_mul_u32_u24 v{vZ}, 37, v0
v_lshrrev_b32 v{vZ}, 9, v{vZ}
v_lshlrev_b32 v{vZ+1}, 3, v0
v_lshl_add_u32 v{vZ+1}, v{vZ}, 4, v{vZ+1}
s_lshl_b32 s{sT3}, s{sLO}, 9
s_add_u32 s{sPD}, s{sT3}, {ZG}
v_add_u32 v{vZ+1}, s{sPD}, v{vZ+1}
s_lshl_b32 s{sPD}, s{sCT}, 12
s_add_u32 s{sPD}, s{sPD}, s{sT3}
s_lshl_b32 s{sT3}, s{sHI}, 11
s_add_u32 s{sPD}, s{sPD}, s{sT3}
s_add_u32 s{sPD}, s{sPD}, {FLM}
v_and_b32 v{vZ+2}, 3, v0
v_lshl_add_u32 v{vZ+2}, v{vZ+2}, 7, s{sPD}
v_cmp_gt_u32 vcc, 56, v0
v_cndmask_b32 v{vZA}, v{vZ+2}, v{vZ+1}, vcc
v_lshrrev_b32 v{vZ}, 3, v0
v_lshlrev_b32 v{vZ}, 5, v{vZ}
v_bfe_u32 v{vZ+1}, v0, 1, 1
v_lshl_add_u32 v{vZ}, v{vZ+1}, 4, v{vZ}
v_bfe_u32 v{vZ+1}, v0, 2, 1
v_lshl_add_u32 v{vZ}, v{vZ+1}, 3, v{vZ}
v_and_b32 v{vZ+1}, 1, v0
v_lshl_add_u32 v{vZ}, v{vZ+1}, 2, v{vZ}
s_lshl_b32 s{sPD}, s{sW}, 8
s_add_u32 s{sPD}, s{sPD}, {SCR2 + 2048}
v_add_u32 v{vZA+1}, s{sPD}, v{vZ}
v_add_u32 v{vZA+2}, s{sPD}, v2
s_mul_i32 s{sT4}, s{sW}, {7*1024}
s_mul_i32 s{sT0}, s{sCT}, {56*1024}
s_add_u32 s{sT0}, s{sT0}, s{sT4}
s_add_u32 s{sT0}, s{sT0}, {MB}
s_lshl_b32 s{sT4}, s{sW}, 10
s_add_u32 s{sT4}, s{sT4}, {SCR}
v_and_b32 v{x0}, 15, v0
v_mul_u32_u24 v{w1}, {PITCH}, v{x0}
v_bfe_u32 v{x0}, v0, 4, 1
v_mul_u32_u24 v{x0}, {SLOT}, v{x0}
v_add3_u32 v{w1}, v{w1}, v{x0}, v2
s_add_u32 s{sPD}, s{sM0P}, {SLOT}
v_add_u32 v{w1}, s{sPD}, v{w1}
v_lshrrev_b32 v{x0}, 3, v0
s_and_b32 s{sPD}, s{sLO}, 1
v_lshl_add_u32 v{x0}, s{sPD}, 3, v{x0}
v_mul_u32_u24 v{ro}, {PITCH}, v{x0}
v_and_b32 v{x1}, 7, v0
v_lshl_add_u32 v{ro}, v{x1}, 5, v{ro}
s_lshr_b32 s{sPD}, s{sLO}, 1
s_add_u32 s{sPD}, s{sPD}, 1
s_mul_i32 s{sPD}, s{sPD}, {SLOT}
s_xor_b32 s{sT3}, s{sHI}, 1
s_mul_i32 s{sT3}, s{sT3}, {4*6144}
s_add_u32 s{sPD}, s{sPD}, s{sT3}
v_add_u32 v{ro}, s{sPD}, v{ro}
s_lshl_b32 s{sPD}, s{sW}, 13
s_add_u32 s{sT3}, s{sPD}, {SCR - 6*8192}
s_cmp_ge_u32 s{sW}, 6
s_cselect_b32 s{sPD}, s{sT3}, s{sPD}
v_and_b32 v{x0}, 31, v0
v_lshl_add_u32 v{w0}, v{x0}, 8, s{sPD}
v_and_b32 v{x0}, 7, v0
v_lshlrev_b32 v{x0}, 4, v{x0}
v_xor_b32 v{x0}, v{x0}, v2
v_add_u32 v{w0}, v{w0}, v{x0}
v_lshrrev_b32 v{x0}, 3, v0
v_lshlrev_b32 v{x1}, 1, v{x1}
v_xor_b32 v{x1}, v{x1}, v{x0}
v_lshlrev_b32 v{x1}, 4, v{x1}
v_lshl_add_u32 v{rs}, v{x0}, 8, v{x1}
s_lshl_b32 s{sPD}, s{sLO}, 11
s_lshl_b32 s{sT3}, s{sHI}, 15
s_add_u32 s{sPD}, s{sPD}, s{sT3}
v_add_u32 v{rs}, s{sPD}, v{rs}
s_mul_i32 s{sPD}, s{sLO}, 6144
v_lshlrev_b32 v{x0}, 3, v0
v_add_u32 v{m0_}, s{sPD}, v{x0}
s_lshl_b32 s{sPD}, s{sLO}, 10
s_add_u32 s{sPD}, s{sPD}, {SCR}
v_add_u32 v{m1_}, s{sPD}, v{x0}
""" + srd_s(rMISC, pOUT, 2048 * 896)
    per = {u: [] for u in range(14)}
    Z = {}
    vQ = vH
    ZL = f"buffer_load_dwordx2 {vr(vZD,2)}, v{vZA}, {WS}, 0 offen sc1"
    ql = [f"buffer_load_dwordx4 {vr(vQ+4*q,4)}, v{vHO}, {WS}, s{sSO1 if q < 4 else sSO2} offen offset:{1024*(q&3)} sc1" for q in range(7)]
    XB = [f"buffer_load_dwordx4 {vr(vB2,4)}, v{t1}, s[{rMISC}:{rMISC+3}], 0 offen", f"buffer_load_dwordx4 {vr(vXR,4)}, v{vOUT}, s[{rX}:{rX+3}], 0 offen"]
    PU = opt('pu', 8)
    POLL2 = f"buffer_load_dword v{vZD}, v{vPA2}, {WS}, 0 offen sc1"
    def flag_late():
        k.wait(vm=htok[(4, 0)]); e(f"buffer_store_dword v{vTG}, v{vZ0}, {WS}, s{sFLO} offen sc1"); stamp(8); stamp(13, 4)
    if FF == 2 and not opt('eh', 0): per[0] += [ownflag]
    if FF == 2 and opt('eh', 0): per[3] += [flag_late]; per[4] += XB; XB = []
    per[0] += hl(3)[:2]; per[1] += hl(3)[2:] + XB; per[2] += hl(4)[:2]; per[3] += hl(4)[2:]; per[4] += hl(5)[:2]; per[5] += hl(5)[2:]
    per[PU - 3] = [lambda: Z.__setitem__('p', e(POLL2))] + per[PU - 3]
    per[PU] += hl(6); per[PU + 1] += ql[:4]; per[PU + 2] += ql[4:]
    distribute(per, 5, 11, atoms(addr, 3))
    for u in range(14): per[u] += ['s_mov_b32 s47, 0'] * opt('fat2', 0)
    per[opt('zu', 12)] += [ZL]
    tok = {}
    for u in range(14):
        j, s = divmod(u, 2); base = vH + 16 * j
        cur = tok; tok = {}
        stamp(1 + u, p2=True)
        if u in PSCHED and u: e(f"s_setprio {PSCHED[u]}")
        rd = wreads(u + 1, vWB2 + 8 * ((u + 1) & 1)) if 5 <= u + 1 < 14 else []
        wsrc = vWP + 8 * u if u < 5 else vWB2 + 8 * (u & 1)
        mf = []
        for tt in ((1, 0) if u == 13 else (0, 1)):
            for c in range(2):
                acc = vr(vA2 + 32 * tt + 16 * c, 16)
                mf.append(('m', (f"v_mfma_f32_32x32x16_bf16 {acc}, {vr(wsrc+4*c,4)}, {vr(base+8*s+4*tt,4)}, {'0' if u == 0 else acc}", c, tt)))
        if u == 5: k.wait(vm=htok[(6, 0)])
        if u == PU:
            k.wait(vm=Z['p'])
            verify(POLL2, f"v_cmp_ne_u32 vcc, s{sTAG}, v{vZD}\ns_mov_b32 s{sMK}, 0xf1\ns_mov_b32 s{sMK+1}, 1\ns_and_b64 vcc, vcc, s[{sMK}:{sMK+1}]", PS)
            stamp(10)
        for kind_, x in spread(mf, [('r', x) for x in rd] + [('f', x) for x in per[u]]):
            if kind_ == 'm':
                k.wait(vm=htok[(u, x[2])], lg=cur.get(x[1])); e(x[0])
            elif kind_ == 'r': tok[x[1]] = e(x[0])
            else: emit_item(x)
    stamp(4); stamp(14, 4); stamp(15, p2=True)
    vF = vWB2; vG = vWB2 + 8
    if PACE: e('s_waitcnt vmcnt(0)')
    for d in range(4):
        e(f"""v_lshlrev_b32 v{vF+2*d}, 16, v{vXR+d}
v_and_b32 v{vF+2*d+1}, 0xffff0000, v{vXR+d}
v_lshlrev_b32 v{vG+2*d}, 16, v{vB2+d}
v_and_b32 v{vG+2*d+1}, 0xffff0000, v{vB2+d}""")
    def mdma():
        for q in range(7):
            m = f"s_add_u32 m0, s{sM0P}, {1024*q}" if q < 6 else f"s_mov_b32 m0, s{sT4}"
            e(f"{m}\ns_add_u32 s{sT1}, s{sT0}, {1024*q}\nbuffer_load_dwordx4 v{vL16}, {WS}, s{sT1} offen sc1 lds")
    ZM = 0 if 'nozm' in DBG else 0xffffffff
    ztest = lambda lo, hi: ztest_(lo & ZM, hi & ZM)
    ztest_ = lambda lo, hi: f"v_cmp_ne_u32 vcc, s{sTAG}, v{vZD+1}\ns_mov_b32 s{sMK}, {lo:#x}\ns_mov_b32 s{sMK+1}, {hi:#x}\ns_and_b64 vcc, vcc, s[{sMK}:{sMK+1}]"
    e("s_waitcnt vmcnt(0)")
    e(f"s_mov_b32 s{sC0}, 0"); e(ztest(0, 0xff000000)); e("s_cbranch_scc1 Lnom")
    e(f"s_mov_b32 s{sC0}, 1"); mdma()
    k.label('Lnom')
    for c in range(2):
        for gq in range(4): e(f"ds_write_b128 v{w1}, {vr(vA2+32+16*c+4*gq,4)} offset:{c*128+gq*32}")
    for d in range(8): e(f"v_add_f32 v{vF+d}, v{vF+d}, v{vG+d}")
    tgt = {}
    for hi in range(2):
        for r in range(4): tgt[r + 4 * hi] = r
        tgt[8 + 4 * hi] = hi; tgt[9 + 4 * hi] = 2 + hi
    def rowmask(h): return sum(1 << i for i, t in tgt.items() if t == h)
    slot = {0: 0, 1: 0, 2: 0, 3: 4, 4: 1, 5: 1, 6: 1, 7: 2, 8: 2, 9: 2, 10: 5, 11: 3, 12: 3, 13: 3}
    vU = vG; vDN = vH + 32; R = 4
    def den_scale():
        e(f"ds_write_b32 v{vZA+1}, v{vZD}")
        for s in range(7): e(f"ds_read_b128 {vr(vZ+4*s,4)}, v{vZA+2} offset:{32*s}")
        e("s_waitcnt lgkmcnt(0)")
        prev = None
        for s in range(7):
            for q in (2 * s, 2 * s + 1):
                mk = (rowmask(2 * q // 7), rowmask((2 * q + 1) // 7))
                if mk != prev: e(f"s_mov_b32 s{sMK}, {mk[0]:#x}\ns_mov_b32 s{sMK+1}, {mk[1]:#x}"); prev = mk
                for d in range(2): e(f"v_cndmask_b32 v{vZ+2*q+d}, 0, v{vZ+2*q+d}, s[{sMK}:{sMK+1}]")
            if s: e(f"v_mfma_f32_32x32x16_bf16 {vr(vDN,16)}, {vr(vZ+4*s-4,4)}, {vr(vQ+4*s-4,4)}, {'0' if s == 1 else vr(vDN,16)}")
        e(f"v_mfma_f32_32x32x16_bf16 {vr(vDN,16)}, {vr(vZ+24,4)}, {vr(vQ+24,4)}, {vr(vDN,16)}")
        UP = vH + 48
        for x in range(28): e(f"v_lshlrev_b32 v{UP+2*x}, 16, v{vQ+x}\nv_and_b32 v{UP+2*x+1}, 0xffff0000, v{vQ+x}")
        for i in range(6): e(f"v_add_f32 v{R+2*i}, s{sEPS}, v{vDN+i}")
        for i in range(6): e(f"v_rcp_f32 v{R+2*i}, v{R+2*i}")
        for x in range(28): e(f"v_pk_mul_f32 {vr(UP+2*x,2)}, {vr(UP+2*x,2)}, {vr(R+2*slot[x>>1],2)} op_sel_hi:[1,0]")
        for x in range(28): e(f"v_cvt_pk_bf16_f32 v{vQ+x}, v{UP+2*x}, v{UP+2*x+1}")
    verify(ZL, ztest(0xffffffff, 0x00ffffff), opt('zsleep', 3))
    stamp(11)
    den_scale()
    e(f"s_cmp_lg_u32 s{sC0}, 0\ns_cbranch_scc1 Lhavem")
    e(ZL); e("s_waitcnt vmcnt(0)")
    verify(ZL, ztest(0, 0xff000000), opt('zsleep', 3))
    mdma()
    k.label('Lhavem')
    stamp(5)
    for i in range(1, 4): e(f"v_xor_b32 v{vZ+i}, {32*i}, v{w0}")
    e(f"v_mov_b32 v{vZ}, v{w0}\nv_xor_b32 v{vZ+4}, 16, v{rs}\ns_mul_i32 s{sT1}, s{sHI}, {SCR - 6*8192}\nv_add_u32 v{vZ+5}, s{sT1}, v{rs}\nv_add_u32 v{vZ+6}, s{sT1}, v{vZ+4}")
    e("s_waitcnt vmcnt(0)\ns_barrier")
    vM = vH + 32
    mt = {}
    for s in range(7):
        for c in range(2):
            pass
    def mread(i):
        c, s = divmod(i, 7)
        for jj in range(2):
            if s < 6: mt[i] = e(f"ds_read_b64 {vr(vM+4*i+2*jj,2)}, v{m0_} offset:{24576*c+1024*s+512*jj}")
            else: mt[i] = e(f"ds_read_b64 {vr(vM+4*i+2*jj,2)}, v{m1_} offset:{4096*c+512*jj}")
    for i in range(6): mread(i)
    ot = []
    for i in range(14):
        c, s = divmod(i, 7)
        k.wait(lg=mt[i])
        acc = vr(vA2 + 16 * c, 16)
        e(f"v_mfma_f32_32x32x16_bf16 {acc}, {vr(vM+4*i,4)}, {vr(vQ+4*s,4)}, {acc}")
        if i < 4: mread(6 + 2 * i); mread(7 + 2 * i)
        if i == 4:
            for q in range(4):
                for hh in range(2): ot.append(e(f"ds_read_b128 {vr(vA2+32+8*q+4*hh,4)}, v{ro} offset:{q*6144+16*hh}"))
        if i == 6:
            k.wait(lg=mt[13]); e("s_barrier")
        if i == 10:
            for gq in range(4): e(f"ds_write_b128 v{vZ+gq}, {vr(vA2+4*gq,4)}")
        if 7 <= i < 11:
            q = i - 7
            k.wait(lg=ot[2 * q + 1])
            for d in range(8): e(f"v_add_f32 v{vF+d}, v{vF+d}, v{vA2+32+8*q+d}")
    stamp(6)
    for gq in range(4): e(f"ds_write_b128 v{vZ+gq}, {vr(vA2+16+4*gq,4)} offset:128")
    e("s_waitcnt lgkmcnt(0)\ns_barrier")
    rt = []
    for q in range(4):
        for hh in range(2):
            a_ = [[rs, vZ + 4], [vZ + 5, vZ + 6]][q >> 1][hh]
            rt.append(e(f"ds_read_b128 {vr(vH+8*q+4*hh,4)}, v{a_} offset:{q*8192}"))
    for q in range(4):
        k.wait(lg=rt[2 * q + 1])
        for d in range(4): e(f"v_pk_add_f32 {vr(vF+2*d,2)}, {vr(vF+2*d,2)}, {vr(vH+8*q+2*d,2)}")
    for d in range(4): e(f"v_cvt_pk_bf16_f32 v{vG+d}, v{vF+2*d}, v{vF+2*d+1}")
    e(f"buffer_store_dwordx4 {vr(vG,4)}, v{vOUT}, s[{rMISC}:{rMISC+3}], 0 offen")
    stamp(7)
    e(f"s_or_b32 s{sT0}, s2, s{sW}\ns_cmp_lg_u32 s{sT0}, 0\ns_cbranch_scc1 Lend")
    e(f"v_mov_b32 v4, s{sTAG}\nv_mov_b32 v5, {EPOCH}\ns_mov_b64 exec, 1\nbuffer_store_dword v4, v5, {WS}, 0 offen")
    if 'pad' in DBG:
        k.label('Lpad')
        e(f"s_memrealtime vcc\ns_waitcnt lgkmcnt(0)\ns_sub_u32 s{sT0}, vcc_lo, s100\ns_cmp_lt_u32 s{sT0}, 4000\ns_cbranch_scc1 Lpad")

DOC = """; Generated by gen/gen29.py (own generator script). One persistent launch, 256 workgroups x 8 waves, one per CU.
"""
kn = NAME + '_kernel'
hdr = open(f'cdna_kernels/{NAME}.s.ref').read().split('; Override launch')[0]
head = hdr + DOC + f"; @launch grid=(256,1,1) block=(512,1,1) lds={LDS_BYTES}\n"
k.raw('.amdgcn_target "amdgcn-amd-amdhsa--gfx950"\n.text')
k.raw(f".globl {kn}\n.p2align 8\n.type {kn},@function\n{kn}:")
prologue()
st_pro = k.state()
kvgen = phase1_KV()
next(kvgen)
st_kv = k.state()
k.label('Lm'); k.set_state(st_pro)
phase1_M()
k.label('Lp2'); k.set_state(([], []))
phase2()
k.label('Lend'); e("s_endpgm")
k.set_state(st_kv)
for _ in kvgen: pass
e(f"s_cmp_eq_u32 s{sGSEL}, 7\ns_cbranch_scc1 Lred")
e(f"s_waitcnt lgkmcnt(0)\ns_mov_b32 s{sC0}, 1\ns_mov_b32 s{sLD}, 0\ns_branch Lp2")
k.label('Lred')
k.set_state(([], []))
reducer()
e("s_endpgm")
i = 0
while i < len(outline): outline[i](); i += 1
k.label('Lcode_end')
e("s_endpgm")
body, nnop = k.render()
kd = f""".amdhsa_kernel {kn}
  .amdhsa_next_free_vgpr 256
  .amdhsa_next_free_sgpr 102
  .amdhsa_accum_offset 256
  .amdhsa_group_segment_fixed_size 0
  .amdhsa_kernarg_size 88
  .amdhsa_user_sgpr_count 2
  .amdhsa_user_sgpr_kernarg_segment_ptr 1
  .amdhsa_system_sgpr_workgroup_id_x 1
.end_amdhsa_kernel
"""
out = head + body + '.section .rodata,"a"\n.p2align 6\n' + kd
outp = [a for a in sys.argv[1:] if not a.startswith('--')]
open(outp[0] if outp else f'cdna_kernels/{NAME}.s', 'w').write(out)
print("nops inserted:", nnop, "lines:", out.count('\n'))
```
